```python
import torch

def _softmax(x, axis=-1):
    return torch.softmax(x, dim=axis)
def _gelu(x):
    return torch.nn.functional.gelu(x, approximate="tanh")
def _silu(x):
    return torch.nn.functional.silu(x)
def _sigmoid(x):
    return torch.sigmoid(x)
def _layernorm(x, axis=-1, eps=1e-5):
    m = x.mean(dim=axis, keepdim=True)
    v = x.var(dim=axis, keepdim=True, unbiased=False)
    return (x - m) / torch.sqrt(v + eps)
def _scatter_add(tgt, idx, src, axis=0):
    return tgt.clone().index_add_(axis, idx, src)
def _segment_sum(src, seg, n):
    out = torch.zeros((n,) + src.shape[1:], dtype=src.dtype)
    return out.index_add_(0, seg, src)
def _pad(x, pw):
    flat = tuple(v for pair in reversed(pw) for v in pair)
    return torch.nn.functional.pad(x, flat)

kernel_name = 'recurrent_scan__ssm_conv_h3__glu_gated_reglu__prompt'

def setup_inputs():

    _w = (lambda a: (lambda t: t.to(torch.bfloat16) if t.is_floating_point() else t)(torch.as_tensor(a)))
    def _A_setup():
        B, S, D = 1, 2048, 448
        ks = 4
        return {
            "q": _w((lambda *s: torch.randn(*s, dtype=torch.bfloat16) * 0.05)(B, S, D)),
            "k": _w((lambda *s: torch.randn(*s, dtype=torch.bfloat16) * 0.8)(B, S, D)),
            "v": _w((lambda *s: torch.randn(*s, dtype=torch.bfloat16) * 0.8)(B, S, D)),
            "shift_k": _w((lambda *s: torch.randn(*s, dtype=torch.bfloat16) * 0.8)(D, ks) * 0.5),
            "ssm_k": _w((lambda *s: torch.randn(*s, dtype=torch.bfloat16) * 0.8)(D, S) * (1.0 / S ** 0.5)),
            "ssm_D": _w((lambda *s: torch.randn(*s, dtype=torch.bfloat16) * 0.8)(D)),
        }
    _A_in = _A_setup()

    def _B_setup():
        B, S, D, F = 1, 2048, 448, 1792
        return {
            "x": _w((lambda *s: torch.randn(*s, dtype=torch.bfloat16) * 0.05)(B, S, D)),
            "W_gate": _w((lambda *s: torch.randn(*s, dtype=torch.bfloat16) * 0.2)(D, F) * (2.0 / D) ** 0.5),
            "W_up": _w((lambda *s: torch.randn(*s, dtype=torch.bfloat16) * 0.2)(D, F) * (2.0 / D) ** 0.5),
            "W_down": _w((lambda *s: torch.randn(*s, dtype=torch.bfloat16) * 0.2)(F, D) * (1.0 / F) ** 0.5),
        }
    _B_in = _B_setup()

    return {
        "A_q": _A_in["q"],
        "A_k": _A_in["k"],
        "A_v": _A_in["v"],
        "A_shift_k": _A_in["shift_k"],
        "A_ssm_k": _A_in["ssm_k"],
        "A_ssm_D": _A_in["ssm_D"],
        "B_x": _B_in["x"],
        "B_W_gate": _B_in["W_gate"],
        "B_W_up": _B_in["W_up"],
        "B_W_down": _B_in["W_down"],
    }

def reference(A_q, A_k, A_v, A_shift_k, A_ssm_k, A_ssm_D, B_x, B_W_gate, B_W_up, B_W_down):
    def _A_ref(q, k, v, shift_k, ssm_k, ssm_D):
        B, S, D = q.shape
        ks = shift_k.shape[-1]
        k_pad = _pad(k, ((0, 0), (ks - 1, 0), (0, 0)))
        k_shift = torch.zeros_like(k)
        for t in range(ks):
            k_shift = k_shift + k_pad[:, t:t + S, :] * shift_k[:, ks - 1 - t][None, None, :]
        kv = k_shift * v
        L = 2 * S
        kv_pad = _pad(kv, ((0, 0), (0, S), (0, 0)))
        kf_pad = _pad(ssm_k, ((0, 0), (0, S)))
        kv_f = (lambda x, axes=(-2,-1): torch.fft.rfft2(x.float(), dim=axes))(kv_pad[:, None, :, :], axes=(1, 2))
        kf_f = (lambda x, axes=(-2,-1): torch.fft.rfft2(x.float(), dim=axes))(kf_pad[:, None, :], axes=(1, 2))
        kf_f = (lambda x, *d: x.permute(*d))(kf_f, 1, 2, 0)
        y_f = kv_f * kf_f[None, :, :, :]
        y = (lambda x, s, axes=(-2,-1): torch.fft.irfft2(x, s=s, dim=axes).to(torch.bfloat16))(y_f, (1, L), axes=(1, 2))[:, 0, :S, :]
        y = y + kv * ssm_D[None, None, :]
        return q * y

    def _B_ref(x, W_gate, W_up, W_down):
        gate = torch.einsum("bsd,df->bsf", x, W_gate)
        up = torch.einsum("bsd,df->bsf", x, W_up)
        gate = gate * (lambda x, dt: x.to(dt))(gate > 0, gate.dtype)
        h = gate * up
        return torch.einsum("bsf,fd->bsd", h, W_down)

    x = A_q
    xn = _layernorm(x, axis=-1)
    s = _A_ref(xn, A_k, A_v, A_shift_k, A_ssm_k, A_ssm_D)
    g = _silu(_B_ref(xn, B_W_gate, B_W_up, B_W_down))
    return x + s * g
```

```python
from gen import *

G2_W = 16384
CV_A = 65536
CV_ST = (1600, 2880)
CV_CH = 8 * (CV_ST[0] + CV_ST[1])
CV_U = CV_A + 2 * CV_CH
CV_UP = 768
CV_FLAG = CV_U + 2 * 8 * CV_UP
T_ST = CV_FLAG + 64
B_LDS = T_ST + 8192


def gen_kernel_b(a):
    K = "kb_kernel"
    a.lines.append(f".globl {K}\n.p2align 8\n.type {K},@function")
    a.label(K)
    a("s_cmp_ge_u32 s2, 224")
    a("s_cbranch_scc1 B_END")
    load_kernargs(a)
    a("""
    v_lshrrev_b32 v1, 6, v0
    v_and_b32 v2, 63, v0
    s_nop 0
    v_readfirstlane_b32 s3, v1
    s_cmp_ge_u32 s3, 4
    s_cbranch_scc1 B_CONV
    """)
    gen_gemm2(a)
    a.label("B_CONV")
    gen_conv(a)
    a.label("B_END")
    a("s_endpgm")
    return K


def round_pair(a, lo, hi, tmp):
    a(f"v_cvt_pk_bf16_f32 v{tmp}, v{lo}, v{hi}")
    a(f"v_lshlrev_b32 v{lo}, 16, v{tmp}")
    a(f"v_and_b32 v{hi}, 0xffff0000, v{tmp}")


def gen_gemm2(a):
    sRB, sCB, sT0, sT1, sTD, sTN, sWB = 4, 5, 6, 7, 8, 9, 10
    SRD_WS, SRD_WD, SRD_X, SRD_O = 44, 48, 52, 56
    sHO, sWO = 60, 61
    vL = 2
    vH0, vH1, vWD = 3, 4, 5
    vRA0, vRA1 = 6, 7
    vXO = 8
    vT = 10
    vXV = 16
    vST = 24
    vWF = 28
    vHR = 64
    vACC = 128
    a(f"""
    s_and_b32 s{sT0}, s2, 7
    s_lshr_b32 s{sT1}, s2, 3
    s_mul_i32 s{sRB}, s{sT1}, 37
    s_lshr_b32 s{sRB}, s{sRB}, 8
    s_mul_i32 s{sCB}, s{sRB}, 7
    s_sub_u32 s{sCB}, s{sT1}, s{sCB}
    s_and_b32 s{sT1}, s{sT0}, 3
    s_lshl_b32 s{sT1}, s{sT1}, 3
    s_add_u32 s{sRB}, s{sRB}, s{sT1}
    s_lshr_b32 s{sT1}, s{sT0}, 2
    s_lshl_b32 s{sT1}, s{sT1}, 2
    s_add_u32 s{sRB}, s{sRB}, s{sT1}
    s_and_b32 s{sTD}, s3, 1
    s_lshr_b32 s{sTN}, s3, 1
    s_lshl_b32 s{sWB}, s3, 14
    """)
    a(f"""
    s_mul_i32 s{sT0}, s{sRB}, 224
    s_mul_i32 s{sT1}, s3, 28
    s_add_u32 s{sT0}, s{sT0}, s{sT1}
    s_lshl_b32 s{sT0}, s{sT0}, 10
    v_lshl_add_u32 v{vH0}, v{vL}, 4, s{sT0}
    v_add_u32 v{vH1}, {112*1024}, v{vH0}
    """)
    a(f"""
    v_lshrrev_b32 v{vT}, 3, v{vL}
    s_mul_i32 s{sT0}, s3, 448
    v_add_u32 v{vT}, s{sT0}, v{vT}
    v_mul_u32_u24 v{vT}, 896, v{vT}
    v_bfe_u32 v{vT+1}, v{vL}, 4, 1
    v_lshlrev_b32 v{vT+1}, 2, v{vT+1}
    v_and_b32 v{vT+2}, 7, v{vL}
    v_xor_b32 v{vT+1}, v{vT+1}, v{vT+2}
    v_lshl_add_u32 v{vWD}, v{vT+1}, 4, v{vT}
    s_lshl_b32 s{sT0}, s{sCB}, 7
    v_add_u32 v{vWD}, s{sT0}, v{vWD}
    """)
    a(f"""
    v_lshrrev_b32 v{vT}, 5, v{vL}
    v_bfe_u32 v{vT+1}, v{vL}, 2, 2
    v_lshl_add_u32 v{vT}, v{vT}, 2, v{vT+1}
    v_bfe_u32 v{vT+2}, v{vL}, 4, 1
    v_bfe_u32 v{vT+3}, v{vL}, 1, 1
    v_lshl_add_u32 v{vT+2}, v{vT+2}, 1, v{vT+3}
    v_bfe_u32 v{vT+3}, v{vL}, 3, 1
    v_lshl_add_u32 v{vT+2}, v{vT+3}, 2, v{vT+2}
    v_lshlrev_b32 v{vT+2}, 4, v{vT+2}
    v_and_b32 v{vT+3}, 1, v{vL}
    v_lshl_add_u32 v{vT+2}, v{vT+3}, 3, v{vT+2}
    v_lshl_add_u32 v{vT+2}, v{vT}, 7, v{vT+2}
    v_add_u32 v{vRA0}, s{sWB}, v{vT+2}
    v_xor_b32 v{vRA1}, 64, v{vRA0}
    """)
    a(f"""
    s_lshl_b32 s{sT0}, s{sRB}, 6
    s_lshl_b32 s{sT1}, s{sTN}, 5
    s_add_u32 s{sT0}, s{sT0}, s{sT1}
    v_and_b32 v{vT}, 31, v{vL}
    v_add_u32 v{vT}, s{sT0}, v{vT}
    v_lshlrev_b32 v{vT+1}, 3, v{vT}
    v_add_u32 v{vT+1}, {WS_STATS}, v{vT+1}
    v_mul_u32_u24 v{vXO}, 896, v{vT}
    v_lshrrev_b32 v{vT+2}, 5, v{vL}
    v_lshl_add_u32 v{vXO}, v{vT+2}, 3, v{vXO}
    s_lshl_b32 s{sT0}, s{sCB}, 7
    s_lshl_b32 s{sT1}, s{sTD}, 6
    s_add_u32 s{sT0}, s{sT0}, s{sT1}
    v_add_u32 v{vXO}, s{sT0}, v{vXO}
    """)
    for i in range(64):
        a(f"v_mov_b32 v{vACC+i}, 0")
    a("s_waitcnt lgkmcnt(0)")
    srd(a, SRD_WS, S_WS, WS_END)
    srd(a, SRD_WD, S_WD, SZ_W)
    srd(a, SRD_X, S_X, SZ_X)
    srd(a, SRD_O, S_OUT, SZ_X)

    def issue(s):
        ring = s & 3
        a(f"s_mov_b32 s{sHO}, {2048*s}")
        a(f"s_mov_b32 s{sWO}, {32*s*896}")
        for j in range(4):
            a(f"s_add_u32 m0, s{sWB}, {ring*4096+j*1024}")
            if j:
                a(f"s_add_u32 s{sWO}, s{sWO}, {8*896}")
            else:
                a("s_nop 0")
            a(f"buffer_load_dwordx4 v{vWD}, {sr(SRD_WD,4)}, s{sWO} offen lds")
        for tt in range(2):
            for nt in range(2):
                a(f"buffer_load_dwordx4 {vr(vHR+16*ring+8*tt+4*nt,4)}, v{vH1 if nt else vH0}, {sr(SRD_WS,4)}, s{sHO} offen offset:{1024*tt}")

    NS = 14
    for s in range(3):
        issue(s)
    for i in range(4):
        a(f"buffer_load_dwordx2 {vr(vXV+2*i,2)}, v{vXO}, {sr(SRD_X,4)}, 0 offen offset:{16*i}")
    a(f"buffer_load_dwordx2 {vr(vST,2)}, v{vT+1}, {sr(SRD_WS,4)}, 0 offen")
    a("s_barrier")
    for s in range(NS):
        ring = s & 3
        if s == 0:
            n = 16 + 5
        elif s == 1:
            n = 8 + 5 + 8
        elif s == 2:
            n = 5 + 16
        else:
            n = 8 * min(2, NS - 1 - s)
        a(f"s_waitcnt vmcnt({n})")
        for tt in range(2):
            for Td in range(2):
                for hf in range(2):
                    a(f"ds_read_b64_tr_b16 {vr(vWF+8*tt+4*Td+2*hf,2)}, v{vRA1 if Td else vRA0} offset:{ring*4096+tt*2048+hf*1024}")
        if s + 3 < NS:
            issue(s + 3)
        for tt in range(2):
            a(f"s_waitcnt lgkmcnt({4 if tt == 0 else 0})")
            for Td in range(2):
                for nt in range(2):
                    acc = vACC + 32 * nt + 16 * Td
                    a(f"v_mfma_f32_32x32x16_bf16 {vr(acc,16)}, {vr(vWF+8*tt+4*Td,4)}, {vr(vHR+16*ring+8*tt+4*nt,4)}, {vr(acc,16)}")
    a(f"v_lshlrev_b32 v{vT}, 4, v{vL}")
    a(f"v_add_u32 v{vT+1}, s{sWB}, v{vT}")
    a(f"s_lshl_b32 s{sT0}, s3, 12")
    a(f"v_add_u32 v{vT+2}, s{sT0}, v{vT}")
    a("s_nop 7")
    a("s_nop 3")
    for tau in range(4):
        for q in range(4):
            a(f"ds_write_b128 v{vT+1}, {vr(vACC+16*tau+4*q,4)} offset:{tau*4096+q*1024}")
    vX = 28
    vXN = 44
    for i in range(8):
        a(f"v_lshlrev_b32 v{vX+2*i}, 16, v{vXV+i}")
        a(f"v_and_b32 v{vX+2*i+1}, 0xffff0000, v{vXV+i}")
    for i in range(16):
        a(f"v_sub_f32 v{vXN+i}, v{vX+i}, v{vST}")
    for i in range(8):
        round_pair(a, vXN + 2 * i, vXN + 2 * i + 1, vXN + 2 * i + 1)
    for i in range(16):
        a(f"v_mul_f32 v{vXN+i}, v{vXN+i}, v{vST+1}")
    for i in range(8):
        round_pair(a, vXN + 2 * i, vXN + 2 * i + 1, vXN + 2 * i + 1)
    a("s_waitcnt lgkmcnt(0)")
    a("s_barrier")
    vP = 64
    for src in range(4):
        for q in range(4):
            a(f"ds_read_b128 {vr(vP+16*src+4*q,4)}, v{vT+2} offset:{src*16384+q*1024}")
    vF, vTG, vTW, vTR = 10, 11, 12, 13
    a(f"""
    s_lshr_b32 s{sT0}, s{sRB}, 4
    s_mul_i32 s{sT0}, s{sT0}, 448
    s_lshl_b32 s{sT1}, s{sCB}, 6
    s_add_u32 s{sT0}, s{sT0}, s{sT1}
    s_lshl_b32 s{sHO}, s{sTD}, 5
    s_add_u32 s{sT0}, s{sT0}, s{sHO}
    s_add_u32 s{sT1}, s{sT1}, s{sHO}
    v_and_b32 v14, 31, v{vL}
    v_add_u32 v14, s{sT0}, v14
    v_lshlrev_b32 v14, 2, v14
    v_add_u32 v{vF}, {WS_FLAGS}, v14
    v_lshrrev_b32 v14, 2, v{vL}
    v_add_u32 v14, s{sT1}, v14
    v_lshlrev_b32 v14, 12, v14
    v_and_b32 v15, 3, v{vL}
    v_lshl_add_u32 v14, v15, 4, v14
    s_lshl_b32 s{sT0}, s{sRB}, 7
    s_lshl_b32 s{sT1}, s{sTN}, 6
    s_add_u32 s{sT0}, s{sT0}, s{sT1}
    s_add_u32 s{sT0}, s{sT0}, {WS_T}
    s_add_u32 s{sT1}, s{sT0}, {16*4096}
    v_mov_b32 v{vTG}, v14
    s_lshl_b32 s{sHO}, s3, 11
    s_add_u32 s{sHO}, s{sHO}, {T_ST}
    v_lshl_add_u32 v{vTW}, v{vL}, 4, s{sHO}
    v_lshrrev_b32 v14, 5, v{vL}
    v_bfe_u32 v15, v{vL}, 2, 2
    v_lshl_add_u32 v14, v14, 2, v15
    v_lshlrev_b32 v14, 6, v14
    v_bfe_u32 v15, v{vL}, 4, 1
    v_lshl_add_u32 v14, v15, 5, v14
    v_and_b32 v15, 3, v{vL}
    v_lshl_add_u32 v14, v15, 3, v14
    v_add_u32 v{vTR}, s{sHO}, v14
    s_waitcnt lgkmcnt(0)
    """)
    for i in range(16):
        a(f"v_add_f32 v{vP+i}, v{vP+i}, v{vP+16+i}")
        a(f"v_add_f32 v{vP+32+i}, v{vP+32+i}, v{vP+48+i}")
    for i in range(16):
        a(f"v_add_f32 v{vP+i}, v{vP+i}, v{vP+32+i}")
    for i in range(8):
        round_pair(a, vP + 2 * i, vP + 2 * i + 1, vP + 2 * i + 1)
    vE = 80
    a(f"s_mov_b32 s{sWO}, {f32bits(-1.4426950408889634)}")
    for i in range(16):
        a(f"v_mul_f32 v{vE+i}, s{sWO}, v{vP+i}")
    for i in range(16):
        a(f"v_exp_f32 v{vE+i}, v{vE+i}")
    for i in range(16):
        a(f"v_add_f32 v{vE+i}, 1.0, v{vE+i}")
    for i in range(16):
        a(f"v_rcp_f32 v{vE+i}, v{vE+i}")
    for i in range(16):
        a(f"v_mul_f32 v{vP+i}, v{vP+i}, v{vE+i}")
    for i in range(8):
        round_pair(a, vP + 2 * i, vP + 2 * i + 1, vP + 2 * i + 1)
    a(f"s_mov_b32 s{sWO}, 0")
    a.label("B_POLL")
    a(f"""
    s_add_u32 s{sWO}, s{sWO}, 1
    s_cmp_gt_u32 s{sWO}, 0x10000
    s_cbranch_scc1 B_POLL_OK
    buffer_load_dword v14, v{vF}, {sr(SRD_WS,4)}, 0 offen sc1
    s_waitcnt vmcnt(0)
    v_cmp_ne_u32 vcc, 0, v14
    s_nop 3
    s_cmp_eq_u64 vcc, exec
    s_cbranch_scc1 B_POLL_OK
    s_sleep 2
    s_branch B_POLL
    """)
    a.label("B_POLL_OK")
    vTT = 96
    a(f"buffer_load_dwordx4 {vr(vTT,4)}, v{vTG}, {sr(SRD_WS,4)}, s{sT0} offen sc1")
    a(f"buffer_load_dwordx4 {vr(vTT+4,4)}, v{vTG}, {sr(SRD_WS,4)}, s{sT1} offen sc1")
    a("s_waitcnt vmcnt(1)")
    a(f"ds_write_b128 v{vTW}, {vr(vTT,4)}")
    a("s_waitcnt vmcnt(0)")
    a(f"ds_write_b128 v{vTW}, {vr(vTT+4,4)} offset:1024")
    a("s_waitcnt lgkmcnt(0)")
    vTD = 104
    for i in range(4):
        a(f"ds_read_b64_tr_b16 {vr(vTD+2*i,2)}, v{vTR} offset:{512*i}")
    a("s_waitcnt lgkmcnt(0)")
    vS = 112
    for i in range(8):
        a(f"v_lshlrev_b32 v{vS+2*i}, 16, v{vTD+i}")
        a(f"v_and_b32 v{vS+2*i+1}, 0xffff0000, v{vTD+i}")
    for i in range(16):
        a(f"v_mul_f32 v{vS+i}, v{vS+i}, v{vXN+i}")
    for i in range(8):
        round_pair(a, vS + 2 * i, vS + 2 * i + 1, vS + 2 * i + 1)
    for i in range(16):
        a(f"v_mul_f32 v{vS+i}, v{vS+i}, v{vP+i}")
    for i in range(8):
        round_pair(a, vS + 2 * i, vS + 2 * i + 1, vS + 2 * i + 1)
    for i in range(16):
        a(f"v_add_f32 v{vS+i}, v{vS+i}, v{vX+i}")
    for i in range(8):
        a(f"v_cvt_pk_bf16_f32 v{vTT+i}, v{vS+2*i}, v{vS+2*i+1}")
    for i in range(4):
        a(f"buffer_store_dwordx2 {vr(vTT+2*i,2)}, v{vXO}, {sr(SRD_O,4)}, 0 offen offset:{16*i}")
    a("s_endpgm")


def gen_conv(a):
    sCHL, sHF, sCH, sT0, sT1, sUB, sAB, sD = 4, 5, 6, 7, 8, 9, 10, 11
    sPB, sFO = 12, 13
    SRD_WS, SRD_H = 44, 48
    vL = 2
    vT = 3
    vAA, vBA = 10, 11
    vU = 12
    vD = 20
    vE_, vO_, vO2 = 44, 50, 56
    vF = 64
    vB = 112
    vACC = 144
    a(f"""
    s_sub_u32 s{sT0}, s3, 4
    s_lshr_b32 s{sCHL}, s{sT0}, 1
    s_and_b32 s{sHF}, s{sT0}, 1
    s_lshl_b32 s{sCH}, s2, 1
    s_add_u32 s{sCH}, s{sCH}, s{sCHL}
    s_mul_i32 s{sUB}, s{sCHL}, {8*CV_UP}
    s_add_u32 s{sUB}, s{sUB}, {CV_U}
    s_mul_i32 s{sAB}, s{sCHL}, {CV_CH}
    s_add_u32 s{sAB}, s{sAB}, {CV_A}
    s_mul_i32 s{sT0}, s{sHF}, {8*CV_ST[0]}
    s_xor_b32 s{sT1}, s{sHF}, 1
    s_mul_i32 s{sT1}, s{sT1}, {8*CV_ST[0]}
    s_add_u32 s{sPB}, s{sAB}, s{sT1}
    s_add_u32 s{sAB}, s{sAB}, s{sT0}
    s_waitcnt lgkmcnt(0)
    """)
    srd(a, SRD_WS, S_WS, WS_END)
    a(f"""
    s_lshl_b32 s{sT0}, s{sCH}, 12
    s_add_u32 s{SRD_H}, s{S_SSMK}, s{sT0}
    s_addc_u32 s{SRD_H+1}, s{S_SSMK+1}, 0
    s_and_b32 s{SRD_H+1}, s{SRD_H+1}, 0xffff
    s_mov_b32 s{SRD_H+2}, 4096
    s_mov_b32 s{SRD_H+3}, 0x20000
    s_lshl_b32 s{sT1}, s2, 2
    s_load_dword s{sD}, {sr(S_SSMD,2)}, s{sT1}
    s_lshl_b32 s{sT1}, s{sHF}, 11
    s_add_u32 s{sT0}, s{sT0}, s{sT1}
    s_add_u32 s{sT0}, s{sT0}, {WS_KVR}
    v_lshlrev_b32 v{vT}, 4, v{vL}
    buffer_load_dwordx4 {vr(vU,4)}, v{vT}, {sr(SRD_WS,4)}, s{sT0} offen
    buffer_load_dwordx4 {vr(vU+4,4)}, v{vT}, {sr(SRD_WS,4)}, s{sT0} offen offset:1024
    """)
    a(f"""
    s_mul_i32 s{sT1}, s{sHF}, {92*16}
    s_sub_u32 s{sT1}, s{sT1}, 64
    v_add_u32 v{vT+1}, s{sT1}, v{vT}
    v_add_u32 v{vT+2}, 16, v{vT+1}
    v_add_u32 v{vT+3}, 1024, v{vT+1}
    buffer_load_dwordx4 {vr(vD,4)}, v{vT+1}, {sr(SRD_H,4)}, 0 offen
    buffer_load_dwordx4 {vr(vD+4,4)}, v{vT+2}, {sr(SRD_H,4)}, 0 offen
    buffer_load_dwordx4 {vr(vD+8,4)}, v{vT+3}, {sr(SRD_H,4)}, 0 offen
    buffer_load_dwordx4 {vr(vD+12,4)}, v{vT+3}, {sr(SRD_H,4)}, 0 offen offset:16
    buffer_load_dwordx4 {vr(vD+16,4)}, v{vT+3}, {sr(SRD_H,4)}, 0 offen offset:1024
    buffer_load_dwordx4 {vr(vD+20,4)}, v{vT+3}, {sr(SRD_H,4)}, 0 offen offset:1040
    """)
    a(f"""
    v_mov_b32 v{vE_}, 0
    v_mov_b32 v{vE_+1}, 0
    v_mov_b32 v{vE_+2}, 0
    v_mov_b32 v{vE_+3}, 0
    v_lshrrev_b32 v{vT+1}, 4, v{vL}
    s_lshl_b32 s{sT0}, s{sHF}, 2
    v_add_u32 v{vT+1}, s{sT0}, v{vT+1}
    v_mul_u32_u24 v{vT+1}, {CV_UP}, v{vT+1}
    v_and_b32 v{vT+2}, 15, v{vL}
    v_lshl_add_u32 v{vT+1}, v{vT+2}, 4, v{vT+1}
    v_add_u32 v{vT+1}, s{sUB}, v{vT+1}
    ds_write_b128 v{vT+1}, {vr(vE_,4)}
    v_mov_b32 v{vT+2}, {CV_FLAG}
    ds_write_b128 v{vT+2}, {vr(vE_,4)}
    """)
    a(f"""
    v_and_b32 v{vT+1}, 7, v{vL}
    v_xor_b32 v{vT+1}, 4, v{vT+1}
    v_mul_u32_u24 v{vT+1}, {CV_UP}, v{vT+1}
    v_lshrrev_b32 v{vT+2}, 3, v{vL}
    v_lshlrev_b32 v{vT+2}, 4, v{vT+2}
    v_sub_u32 v{vT+1}, v{vT+1}, v{vT+2}
    s_lshl_b32 s{sT0}, s{sHF}, 8
    s_sub_u32 s{sT0}, s{sUB}, s{sT0}
    s_add_u32 s{sT0}, s{sT0}, {(47-8)*16}
    v_add_u32 v{vT+1}, s{sT0}, v{vT+1}
    s_waitcnt vmcnt(7)
    ds_write_b128 v{vT+1}, {vr(vU,4)} offset:128
    s_waitcnt vmcnt(6)
    ds_write_b128 v{vT+1}, {vr(vU+4,4)}
    """)
    a(f"""
    v_and_b32 v{vT+1}, 15, v{vL}
    v_lshrrev_b32 v{vT+2}, 4, v{vL}
    v_mul_u32_u24 v{vBA}, {CV_UP}, v{vT+2}
    v_lshl_add_u32 v{vBA}, v{vT+1}, 4, v{vBA}
    v_add_u32 v{vBA}, s{sUB}, v{vBA}
    v_lshrrev_b32 v{vT+3}, 2, v{vT+1}
    v_add_u32 v{vT+3}, v{vT+3}, v{vT+2}
    v_lshlrev_b32 v{vT+3}, 4, v{vT+3}
    v_add_u32 v{vT+3}, s{sAB}, v{vT+3}
    v_and_b32 v{vT+4}, 3, v{vL}
    v_add_u32 v{vT+5}, s{sAB}, v{vT}
    """)
    for i in range(32):
        a(f"v_mov_b32 v{vACC+i}, 0")
    a("""
    s_waitcnt lgkmcnt(0)
    s_barrier
    """)
    a(f"s_cmp_eq_u32 s{sHF}, 1")
    a("s_cbranch_scc1 B_CONV1")
    for half in range(2):
        if half:
            a.label("B_CONV1")
        st = CV_ST[half]
        g0 = (-4, 88)[half]
        nsl = (99, 167)[half]
        a(f"v_mul_u32_u24 v{vAA}, {st}, v{vT+4}")
        a(f"v_add_u32 v{vAA}, v{vAA}, v{vT+3}")
        nr = (nsl + 63) // 64
        for rho in range(nr):
            d = vD + 8 * rho
            a(f"s_waitcnt vmcnt({4-2*rho})")
            for i in range(6):
                a(f"v_mov_b32 v{vE_+i}, v{d+1+i}")
            for i in range(6):
                a(f"v_alignbit_b32 v{vO_+i}, v{d+i+1}, v{d+i}, 16")
            for i in range(6):
                a(f"v_alignbit_b32 v{vO2+i}, v{d+i+2}, v{d+i+1}, 16")
            last = rho == nr - 1
            if last:
                rem = nsl - 64 * rho
                a(f"s_mov_b32 exec_hi, {hex((1 << (rem - 32)) - 1)}")
            srcs = [vO_, vE_, vO2, d + 2, vO_ + 2, vE_ + 2, vO2 + 2, d + 4]
            for c in range(8):
                a(f"ds_write_b128 v{vT+5}, {vr(srcs[c],4)} offset:{c*st+rho*1024}")
            if last:
                a("s_mov_b64 exec, -1")
            else:
                a("s_nop 1")
        a("s_waitcnt lgkmcnt(0)")

        def F(psi, par):
            return vF + 8 * (psi % 6) + 4 * par

        def rdA(psi):
            for par in range(2):
                a(f"ds_read_b128 {vr(F(psi,par),4)}, v{vAA} offset:{par*4*st+(4*psi-4-g0)*16}")
            return 2

        def nus(dl):
            return (0, 1) if dl < 16 else (1,)

        def rdB(dl):
            n = 0
            for kc in range(2):
                for nu in nus(dl):
                    a(f"ds_read_b128 {vr(vB+16*(dl&1)+8*kc+4*nu,4)}, v{vBA} offset:{kc*4*CV_UP+(16+16*nu-dl)*16}")
                    n += 1
            return n

        dls = list(range(0, 12)) if half == 0 else list(range(12, 32))
        if half:
            rdA(2 * dls[0] - 1)
        rdA(2 * dls[0]); rdA(2 * dls[0] + 1); rdB(dls[0])
        for dl in dls:
            n = 0
            if dl != dls[-1]:
                n += rdA(2 * dl + 2); n += rdA(2 * dl + 3); n += rdB(dl + 1)
            a(f"s_waitcnt lgkmcnt({n})")
            for kc in range(2):
                for p in range(2):
                    psi = 2 * dl + p - kc
                    if psi < 0:
                        continue
                    for par in range(2):
                        for nu in nus(dl):
                            acc = vACC + 16 * nu + 8 * p + 4 * par
                            a(f"v_mfma_f32_16x16x32_bf16 {vr(acc,4)}, {vr(F(psi,par),4)}, {vr(vB+16*(dl&1)+8*kc+4*nu,4)}, {vr(acc,4)}")
        own, oth = half, half ^ 1
        a(f"v_add_u32 v{vT+1}, s{sPB}, v{vT}")
        a(f"v_mov_b32 v{vT+2}, {CV_FLAG}")
        a(f"s_lshl_b32 s{sT0}, s{sCHL}, 3")
        a(f"v_add_u32 v{vT+2}, s{sT0}, v{vT+2}")
        a(f"v_mov_b32 v{vT+6}, 1")
        a("s_nop 7")
        for q in range(4):
            a(f"ds_write_b128 v{vT+5}, {vr(vACC+16*oth+4*q,4)} offset:{1024*q}")
        a("s_waitcnt lgkmcnt(0)")
        a(f"ds_write_b32 v{vT+2}, v{vT+6} offset:{4*own}")
        a(f"""
        v_lshrrev_b32 v{vT+3}, 4, v{vL}
        v_sub_u32 v{vT+4}, 3, v{vT+3}
        v_mul_u32_u24 v{vT+4}, {CV_UP}, v{vT+4}
        v_and_b32 v{vT+6}, 15, v{vL}
        v_lshl_add_u32 v{vT+4}, v{vT+6}, 4, v{vT+4}
        v_add_u32 v{vT+4}, s{sUB}, v{vT+4}
        ds_read_b128 {vr(vU,4)}, v{vT+4} offset:{(16+16*own)*16}
        ds_read_b128 {vr(vU+4,4)}, v{vT+4} offset:{4*CV_UP+(16+16*own)*16}
        v_lshlrev_b32 v{vT+6}, 7, v{vT+6}
        v_lshl_add_u32 v{vT+6}, v{vT+3}, 4, v{vT+6}
        s_lshl_b32 s{sT0}, s{sCH}, 12
        s_add_u32 s{sT0}, s{sT0}, {WS_T + own*2048}
        s_lshl_b32 s{sT1}, s{sCHL}, 4
        s_lshr_b32 s{sD}, s{sD}, s{sT1}
        s_lshl_b32 s{sD}, s{sD}, 16
        """)
        a(f"s_mov_b32 s{sFO}, 0")
        a.label(f"B_CPOLL{half}")
        a(f"""
        s_add_u32 s{sFO}, s{sFO}, 1
        s_cmp_gt_u32 s{sFO}, 0x100000
        s_cbranch_scc1 B_CPOLL_OK{half}
        ds_read_b32 v{vT+3}, v{vT+2} offset:{4*oth}
        s_waitcnt lgkmcnt(0)
        v_readfirstlane_b32 s{sT1}, v{vT+3}
        s_cmp_eq_u32 s{sT1}, 0
        s_cbranch_scc1 B_CPOLL{half}
        """)
        a.label(f"B_CPOLL_OK{half}")
        vR = vD
        for q in range(4):
            a(f"ds_read_b128 {vr(vR+4*q,4)}, v{vT+1} offset:{1024*q}")
        vK = vF
        for p in range(2):
            for dq in range(4):
                a(f"v_lshlrev_b32 v{vK+8*p+7-2*dq}, 16, v{vU+4*p+dq}")
                a(f"v_and_b32 v{vK+8*p+6-2*dq}, 0xffff0000, v{vU+4*p+dq}")
        for i in range(16):
            a(f"v_mul_f32 v{vK+i}, s{sD}, v{vK+i}")
        for i in range(8):
            round_pair(a, vK + 2 * i, vK + 2 * i + 1, vK + 2 * i + 1)
        a("s_waitcnt lgkmcnt(0)")
        y = vACC + 16 * own
        for i in range(16):
            a(f"v_add_f32 v{y+i}, v{y+i}, v{vR+i}")
        for i in range(8):
            round_pair(a, y + 2 * i, y + 2 * i + 1, y + 2 * i + 1)
        for i in range(16):
            a(f"v_add_f32 v{y+i}, v{y+i}, v{vK+i}")
        for i in range(8):
            a(f"v_cvt_pk_bf16_f32 v{vB+i}, v{y+2*i}, v{y+2*i+1}")
        a(f"buffer_store_dwordx4 {vr(vB,4)}, v{vT+6}, {sr(SRD_WS,4)}, s{sT0} offen sc1")
        a(f"buffer_store_dwordx4 {vr(vB+4,4)}, v{vT+6}, {sr(SRD_WS,4)}, s{sT0} offen offset:64 sc1")
        a(f"""
        s_lshl_b32 s{sT1}, s{sCH}, 2
        s_add_u32 s{sT1}, s{sT1}, {WS_FLAGS + own*448*4}
        v_mov_b32 v{vT+3}, 0
        v_mov_b32 v{vT+4}, 1
        s_waitcnt vmcnt(0)
        s_mov_b64 exec, 1
        buffer_store_dword v{vT+4}, v{vT+3}, {sr(SRD_WS,4)}, s{sT1} offen sc1
        s_endpgm
        """)
```

```python
import sys

NAME = "recurrent_scan__ssm_conv_h3__glu_gated_reglu__prompt"

WS_H = 0
WS_KVR = 0x700000
WS_T = 0x8C0000
WS_STATS = 0xA80000
WS_FLAGS = 0xA84000
WS_END = 0xA85000

SZ_X = 2048 * 448 * 2
SZ_W = 448 * 1792 * 2
SZ_SHK = 448 * 4 * 2
SZ_D = 448 * 2


class Asm:
    def __init__(self):
        self.lines = []

    def __call__(self, s):
        for ln in s.strip("\n").split("\n"):
            ln = ln.strip()
            if ln:
                self.lines.append("    " + ln)

    def label(self, l):
        self.lines.append(l + ":")

    def comment(self, s):
        self.lines.append("    ; " + s)

    def text(self):
        return "\n".join(self.lines) + "\n"


def vr(a, n=1):
    return f"v{a}" if n == 1 else f"v[{a}:{a+n-1}]"


def sr(a, n=1):
    return f"s{a}" if n == 1 else f"s[{a}:{a+n-1}]"


S_X, S_K, S_V, S_SHK, S_SSMK, S_SSMD, S_BX, S_WG = 16, 18, 20, 22, 24, 26, 28, 30
S_WU, S_WD, S_OUT, S_DBG = 32, 34, 36, 38
S_WS = 40


def load_kernargs(a):
    a("""
    s_load_dwordx16 s[16:31], s[0:1], 0
    s_load_dwordx8 s[32:39], s[0:1], 64
    s_load_dwordx2 s[40:41], s[0:1], 96
    """)


def srd(a, d, base, size, off=None):
    if off:
        a(f"s_add_u32 s{d}, s{base}, {off}")
        a(f"s_addc_u32 s{d+1}, s{base+1}, 0")
        a(f"s_and_b32 s{d+1}, s{d+1}, 0xffff")
    else:
        a(f"s_mov_b32 s{d}, s{base}")
        a(f"s_and_b32 s{d+1}, s{base+1}, 0xffff")
    a(f"s_mov_b32 s{d+2}, {size}")
    a(f"s_mov_b32 s{d+3}, 0x20000")


A_SLOT = 49152
A_NSLOT = 3
A_SCR = A_SLOT * A_NSLOT
A_LDS = A_SCR + 8192


def gen_kernel_a(a):
    K = "ka_kernel"
    a.lines.append(f".globl {K}\n.p2align 8\n.type {K},@function")
    a.label(K)
    a("s_cmp_ge_u32 s2, 256")
    a("s_cbranch_scc1 A_END")
    load_kernargs(a)
    a("""
    v_lshrrev_b32 v1, 6, v0
    v_and_b32 v2, 63, v0
    s_nop 0
    v_readfirstlane_b32 s3, v1
    s_cmp_ge_u32 s2, 224
    s_cbranch_scc1 A_PREP
    """)
    sRB, sCB, sE, sT0, sT1, sRH, sCQ = 4, 5, 6, 7, 8, 9, 10
    SRD_X, SRD_W, SRD_WS = 44, 48, 52
    sXO, sWO = 56, 57
    sM0X, sM0W = 58, 59
    sOFF = 60
    sSL = 64
    sTMP = 65
    a(f"""
    s_and_b32 s{sT0}, s2, 7
    s_lshr_b32 s{sT1}, s2, 3
    s_mul_i32 s{sRB}, s{sT1}, 37
    s_lshr_b32 s{sRB}, s{sRB}, 8
    s_mul_i32 s{sCB}, s{sRB}, 7
    s_sub_u32 s{sCB}, s{sT1}, s{sCB}
    s_and_b32 s{sT1}, s{sT0}, 3
    s_lshl_b32 s{sT1}, s{sT1}, 2
    s_add_u32 s{sRB}, s{sRB}, s{sT1}
    s_lshr_b32 s{sT1}, s{sT0}, 2
    s_mul_i32 s{sT1}, s{sT1}, 7
    s_add_u32 s{sCB}, s{sCB}, s{sT1}
    s_lshr_b32 s{sRH}, s3, 2
    s_and_b32 s{sCQ}, s3, 3
    s_lshl_b32 s{sE}, s{sRH}, 1
    s_xor_b32 s{sE}, s{sE}, s{sCQ}
    """)
    for p in range(4):
        a(f"s_xor_b32 s{sOFF+p}, s{sE}, {p}")
        a(f"s_lshl_b32 s{sOFF+p}, s{sOFF+p}, 12")
    vL = 2
    vXG0, vXG1, vWG = 3, 4, 5
    vXA = 6
    vWA = 10
    vXR, vWR0, vWR1 = 12, 13, 14
    vT = 15
    vSUM = 20
    vONE = 26
    vFR = 28
    vACC = 64
    a(f"""
    v_lshrrev_b32 v{vT}, 3, v{vL}
    v_lshrrev_b32 v{vT+1}, 4, v{vL}
    v_and_b32 v{vT+2}, 7, v{vL}
    s_lshl_b32 s{sT0}, s{sRB}, 7
    s_lshl_b32 s{sT1}, s3, 4
    s_add_u32 s{sT0}, s{sT0}, s{sT1}
    v_add_u32 v{vT}, s{sT0}, v{vT}
    v_mul_u32_u24 v{vT}, 896, v{vT}
    v_xor_b32 v{vT+3}, v{vT+2}, v{vT+1}
    v_lshl_add_u32 v{vXG0}, v{vT+3}, 4, v{vT}
    v_xor_b32 v{vT+3}, 4, v{vT+3}
    v_lshl_add_u32 v{vXG1}, v{vT+3}, 4, v{vT}
    v_add_u32 v{vXG1}, {8*896}, v{vXG1}
    """)
    a(f"""
    v_and_b32 v{vT+2}, 15, v{vL}
    v_lshlrev_b32 v{vT+3}, 2, v{vT+1}
    v_xor_b32 v{vT+2}, v{vT+2}, v{vT+3}
    s_lshl_b32 s{sT0}, s{sRH}, 1
    v_xor_b32 v{vT+2}, s{sT0}, v{vT+2}
    s_lshl_b32 s{sT1}, s{sCQ}, 4
    v_add_u32 v{vT+3}, s{sT1}, v{vT+1}
    v_mul_u32_u24 v{vT+3}, 3584, v{vT+3}
    v_lshl_add_u32 v{vWG}, v{vT+2}, 4, v{vT+3}
    s_lshl_b32 s{sT0}, s{sCB}, 8
    v_add_u32 v{vWG}, s{sT0}, v{vWG}
    s_lshl_b32 s{sM0X}, s3, 11
    s_lshl_b32 s{sM0W}, s3, 12
    s_add_u32 s{sM0W}, s{sM0W}, 16384
    """)
    a(f"""
    v_and_b32 v{vT}, 31, v{vL}
    v_lshrrev_b32 v{vT+1}, 5, v{vL}
    v_bfe_u32 v{vT+2}, v{vL}, 1, 3
    v_xor_b32 v{vT+2}, v{vT+2}, v{vT+1}
    s_lshl_b32 s{sT0}, s{sE}, 1
    v_xor_b32 v{vT+2}, s{sT0}, v{vT+2}
    s_lshl_b32 s{sT1}, s{sRH}, 6
    v_add_u32 v{vT}, s{sT1}, v{vT}
    v_lshlrev_b32 v{vT}, 7, v{vT}
    v_lshl_add_u32 v{vXA}, v{vT+2}, 4, v{vT}
    v_xor_b32 v{vXA+1}, 32, v{vXA}
    v_xor_b32 v{vXA+2}, 64, v{vXA}
    v_xor_b32 v{vXA+3}, 96, v{vXA}
    """)
    a(f"""
    v_bfe_u32 v{vT}, v{vL}, 4, 1
    v_bfe_u32 v{vT+2}, v{vL}, 2, 2
    v_bfe_u32 v{vT+3}, v{vL}, 1, 1
    s_lshl_b32 s{sT0}, s{sCQ}, 2
    v_or_b32 v{vT+3}, s{sT0}, v{vT+3}
    v_lshlrev_b32 v{vT+4}, 2, v{vT+2}
    v_xor_b32 v{vT+3}, v{vT+3}, v{vT+4}
    v_lshlrev_b32 v{vT+4}, 1, v{vT}
    v_xor_b32 v{vT+3}, v{vT+3}, v{vT+4}
    v_lshlrev_b32 v{vT+3}, 4, v{vT+3}
    v_and_b32 v{vT+4}, 1, v{vL}
    v_lshl_add_u32 v{vT+3}, v{vT+4}, 3, v{vT+3}
    v_lshl_add_u32 v{vT+2}, v{vT+1}, 3, v{vT+2}
    v_lshl_add_u32 v{vT+3}, v{vT+2}, 8, v{vT+3}
    v_add_u32 v{vT}, 1, v{vT}
    v_lshl_add_u32 v{vWA}, v{vT}, 14, v{vT+3}
    v_xor_b32 v{vWA+1}, 32, v{vWA}
    v_mov_b32 v{vONE}, 0x3f803f80
    """)
    for i in range(6):
        a(f"v_mov_b32 v{vSUM+i}, 0")
    for i in range(64):
        a(f"v_mov_b32 v{vACC+i}, 0")
    a("s_waitcnt lgkmcnt(0)")
    srd(a, SRD_X, S_X, SZ_X)
    a(f"""
    s_cmp_eq_u32 s{sRH}, 0
    s_cselect_b32 s{SRD_W}, s{S_WG}, s{S_WU}
    s_cselect_b32 s{SRD_W+1}, s{S_WG+1}, s{S_WU+1}
    s_and_b32 s{SRD_W+1}, s{SRD_W+1}, 0xffff
    s_mov_b32 s{SRD_W+2}, {SZ_W}
    s_mov_b32 s{SRD_W+3}, 0x20000
    """)
    srd(a, SRD_WS, S_WS, WS_END)

    def dma_stage(st):
        slot = (st % A_NSLOT) * A_SLOT
        a(f"s_mov_b32 s{sXO}, {st*128}")
        a(f"s_add_u32 m0, s{sM0X}, {slot}")
        a(f"s_mov_b32 s{sWO}, {st*64*3584}")
        a(f"buffer_load_dwordx4 v{vXG0}, {sr(SRD_X,4)}, s{sXO} offen lds")
        a(f"s_add_u32 m0, s{sM0X}, {slot+1024}")
        a("s_nop 0")
        a(f"buffer_load_dwordx4 v{vXG1}, {sr(SRD_X,4)}, s{sXO} offen lds")
        for j in range(4):
            a(f"s_add_u32 m0, s{sM0W}, {slot+1024*j}")
            if j:
                a(f"s_add_u32 s{sWO}, s{sWO}, {4*3584}")
            else:
                a("s_nop 0")
            a(f"buffer_load_dwordx4 v{vWG}, {sr(SRD_W,4)}, s{sWO} offen lds")

    def frag(setno, which):
        return vFR + 16 * setno + 4 * which

    def reads(st, p, setno):
        slot = (st % A_NSLOT) * A_SLOT
        a(f"s_add_u32 s{sTMP}, s{sOFF+p}, {slot}")
        a(f"v_add_u32 v{vXR}, {slot}, v{vXA+p}")
        a(f"v_add_u32 v{vWR0}, s{sTMP}, v{vWA}")
        a(f"v_add_u32 v{vWR1}, s{sTMP}, v{vWA+1}")
        a(f"ds_read_b128 {vr(frag(setno,0),4)}, v{vXR}")
        a(f"ds_read_b64_tr_b16 {vr(frag(setno,2),2)}, v{vWR0}")
        a(f"ds_read_b64_tr_b16 {vr(frag(setno,2)+2,2)}, v{vWR0} offset:1024")
        a(f"ds_read_b128 {vr(frag(setno,1),4)}, v{vXR} offset:4096")
        a(f"ds_read_b64_tr_b16 {vr(frag(setno,3),2)}, v{vWR1}")
        a(f"ds_read_b64_tr_b16 {vr(frag(setno,3)+2,2)}, v{vWR1} offset:1024")

    def mfmas(p, setno):
        x = [frag(setno, 0), frag(setno, 1)]
        w = [frag(setno, 2), frag(setno, 3)]
        order = [(0, 0), (0, 1), (1, 1), (1, 0)]
        extra = []
        if p == 0:
            for nt in range(2):
                for d in range(4):
                    extra.append(f"v_dot2c_f32_bf16 v{vSUM+nt}, v{x[nt]+d}, v{vONE}")
                    extra.append(f"v_dot2c_f32_bf16 v{vSUM+2+nt}, v{x[nt]+d}, v{x[nt]+d}")
        if p in (0, 1):
            for mt in range(2):
                for d in range(4):
                    extra.append(f"v_dot2c_f32_bf16 v{vSUM+4+mt}, v{w[mt]+d}, v{vONE}")
        n = len(extra)
        for i, (mt, nt) in enumerate(order):
            acc = vACC + 16 * (2 * mt + nt)
            a(f"v_mfma_f32_32x32x16_bf16 {vr(acc,16)}, {vr(w[mt],4)}, {vr(x[nt],4)}, {vr(acc,16)}")
            for e in extra[i * n // 4:(i + 1) * n // 4]:
                a(e)

    NST = 7
    for st in range(3):
        dma_stage(st)
    a("s_waitcnt vmcnt(12)")
    a("s_barrier")
    reads(0, 0, 0)
    cur = 0
    for st in range(NST):
        for p in range(4):
            if p < 3:
                reads(st, p + 1, cur ^ 1)
                a("s_waitcnt lgkmcnt(6)")
                mfmas(p, cur)
            else:
                a("s_waitcnt lgkmcnt(0)")
                if st + 1 < NST:
                    nout = 6 if st + 2 < NST else 0
                    a(f"s_waitcnt vmcnt({nout})")
                    a("s_barrier")
                    if st + 3 < NST:
                        dma_stage(st + 3)
                    reads(st + 1, 0, cur ^ 1)
                mfmas(p, cur)
            cur ^= 1
    a("s_nop 3")
    for i in range(6):
        a(f"v_mov_b32 v{vT}, v{vSUM+i}")
        a("s_nop 1")
        a(f"v_permlane32_swap_b32 v{vSUM+i}, v{vT}")
        a("s_nop 1")
        a(f"v_add_f32 v{vSUM+i}, v{vSUM+i}, v{vT}")
    a(f"""
    v_and_b32 v{vT}, 31, v{vL}
    s_lshl_b32 s{sT0}, s{sRH}, 11
    s_lshl_b32 s{sT1}, s{sCQ}, 2
    s_add_u32 s{sT0}, s{sT0}, {A_SCR}
    s_add_u32 s{sT1}, s{sT1}, s{sT0}
    v_lshlrev_b32 v{vT+1}, 6, v{vT}
    v_add_u32 v{vT+2}, s{sT1}, v{vT+1}
    v_add_u32 v{vT+3}, s{sT0}, v{vT+1}
    """)
    for q in range(4):
        a(f"ds_write_b32 v{vT+2}, v{vSUM+q} offset:{q*16}")
    a(f"""
    s_lshl_b32 s{sT0}, s{sCQ}, 9
    s_lshl_b32 s{sT1}, s{sRH}, 7
    s_add_u32 s{sT0}, s{sT0}, {A_SCR+4096}
    s_add_u32 s{sT1}, s{sT1}, s{sT0}
    v_lshlrev_b32 v{vT+1}, 2, v{vT}
    v_add_u32 v{vT+1}, s{sT1}, v{vT+1}
    ds_write_b32 v{vT+1}, v{vSUM+4}
    ds_write_b32 v{vT+1}, v{vSUM+5} offset:256
    v_lshrrev_b32 v{vT+4}, 5, v{vL}
    v_lshlrev_b32 v{vT+4}, 4, v{vT+4}
    v_add_u32 v{vT+4}, s{sT0}, v{vT+4}
    s_waitcnt lgkmcnt(0)
    s_barrier
    """)
    vR = vFR
    vCS = 128
    for q in range(4):
        a(f"ds_read_b128 {vr(vR+4*q,4)}, v{vT+3} offset:{q*16}")
    for mt in range(2):
        for rh in range(2):
            for i in range(4):
                a(f"ds_read_b128 {vr(vCS+32*mt+16*rh+4*i,4)}, v{vT+4} offset:{mt*256+rh*128+i*32}")
    a("s_waitcnt lgkmcnt(15)")
    a("s_waitcnt lgkmcnt(12)")
    for q in range(4):
        a(f"v_add_f32 v{vR+4*q}, v{vR+4*q}, v{vR+4*q+1}")
        a(f"v_add_f32 v{vR+4*q+2}, v{vR+4*q+2}, v{vR+4*q+3}")
        a(f"v_add_f32 v{vR+4*q}, v{vR+4*q}, v{vR+4*q+2}")
    vM, vRI, vR2 = 44, 46, 48
    a(f"s_mov_b32 s{sT0}, {f32bits(1.0/448.0)}")
    a(f"s_mov_b32 s{sT1}, {f32bits(1e-5)}")
    for nt in range(2):
        mean, msq = vR + 4 * nt, vR + 8 + 4 * nt
        a(f"""
        v_mul_f32 v{mean}, s{sT0}, v{mean}
        v_mul_f32 v{msq}, s{sT0}, v{msq}
        v_fma_f32 v{msq}, -v{mean}, v{mean}, v{msq}
        v_max_f32 v{msq}, 0, v{msq}
        v_cvt_pk_bf16_f32 v{vT}, v{mean}, v{msq}
        v_lshlrev_b32 v{vM+nt}, 16, v{vT}
        v_and_b32 v{msq}, 0xffff0000, v{vT}
        v_add_f32 v{msq}, s{sT1}, v{msq}
        v_cvt_pk_bf16_f32 v{msq}, v{msq}, v{msq}
        v_and_b32 v{msq}, 0xffff0000, v{msq}
        v_sqrt_f32 v{msq}, v{msq}
        s_nop 0
        v_cvt_pk_bf16_f32 v{msq}, v{msq}, v{msq}
        v_and_b32 v{msq}, 0xffff0000, v{msq}
        v_rcp_f32 v{vRI+nt}, v{msq}
        s_nop 0
        v_mul_f32 v{vR2+nt}, v{vRI+nt}, v{vRI+nt}
        """)
    a(f"""
    s_or_b32 s{sT0}, s{sCB}, s{sCQ}
    s_cmp_lg_u32 s{sT0}, 0
    s_cbranch_scc1 A_NOSTAT
    s_lshl_b32 s{sT0}, s{sRB}, 7
    s_lshl_b32 s{sT1}, s{sRH}, 6
    s_add_u32 s{sT0}, s{sT0}, s{sT1}
    v_add_u32 v{vT}, s{sT0}, v{vL}
    v_lshlrev_b32 v{vT}, 3, v{vT}
    v_add_u32 v{vT}, {WS_STATS}, v{vT}
    v_mov_b32 v50, v{vM}
    v_mov_b32 v51, v{vRI}
    v_mov_b32 v52, v{vM+1}
    v_mov_b32 v53, v{vRI+1}
    s_mov_b32 exec_hi, 0
    buffer_store_dwordx2 v[50:51], v{vT}, {sr(SRD_WS,4)}, 0 offen
    buffer_store_dwordx2 v[52:53], v{vT}, {sr(SRD_WS,4)}, 0 offen offset:256
    s_mov_b64 exec, -1
    """)
    a.label("A_NOSTAT")
    a("s_waitcnt lgkmcnt(0)")
    for mt in range(2):
        for i in range(16):
            a(f"v_add_f32 v{vCS+32*mt+i}, v{vCS+32*mt+i}, v{vCS+32*mt+16+i}")
    a(f"""
    s_lshl_b32 s{sT0}, s{sRB}, 2
    s_lshl_b32 s{sT1}, s{sRH}, 1
    s_add_u32 s{sT0}, s{sT0}, s{sT1}
    s_mul_i32 s{sT0}, s{sT0}, 112
    s_lshl_b32 s{sT1}, s{sCB}, 3
    s_add_u32 s{sT0}, s{sT0}, s{sT1}
    s_lshl_b32 s{sT1}, s{sCQ}, 1
    s_add_u32 s{sT0}, s{sT0}, s{sT1}
    s_lshl_b32 s{sT0}, s{sT0}, 10
    s_add_u32 s{sT1}, s{sT0}, {112*1024}
    v_lshlrev_b32 v{vT}, 4, v{vL}
    """)
    vH = 52
    k = 0
    for mt in range(2):
        for nt in range(2):
            acc = vACC + 16 * (2 * mt + nt)
            cs = vCS + 32 * mt
            for i in range(16):
                a(f"v_fma_f32 v{acc+i}, -v{vM+nt}, v{cs+i}, v{acc+i}")
            for i in range(8):
                a(f"v_max_f32 v{acc+i}, 0, v{acc+i}")
            for i in range(8):
                a(f"v_mul_f32 v{acc+i}, v{acc+i}, v{acc+8+i}")
            for i in range(8):
                a(f"v_mul_f32 v{acc+i}, v{acc+i}, v{vR2+nt}")
            o = vH + 4 * (k & 1)
            for i in range(4):
                a(f"v_cvt_pk_bf16_f32 v{o+i}, v{acc+2*i}, v{acc+2*i+1}")
            a(f"buffer_store_dwordx4 {vr(o,4)}, v{vT}, {sr(SRD_WS,4)}, s{sT1 if nt else sT0} offen offset:{mt*1024}")
            k += 1
    a("s_endpgm")

    a.label("A_PREP")
    SRD_K, SRD_Vv, SRD_SH = 44, 48, 56
    sB = 4
    vTID = 0
    vTB, vCG = 3, 4
    vO0, vO1, vOH, vOS = 5, 6, 7, 8
    vKR = 12
    vVR = 56
    vSH = 88
    vWU = 104
    vKU = 136
    vAC = 158
    vVU = 174
    vG = 176
    a(f"""
    s_sub_u32 s{sB}, s2, 224
    v_mul_u32_u24 v{vTB}, 1171, v{vTID}
    v_lshrrev_b32 v{vTB}, 16, v{vTB}
    v_mul_u32_u24 v{vCG}, 56, v{vTB}
    v_sub_u32 v{vCG}, v{vTID}, v{vCG}
    s_lshl_b32 s5, s{sB}, 6
    v_lshl_add_u32 v{vO0}, v{vTB}, 3, s5
    v_mul_u32_u24 v{vO0}, 896, v{vO0}
    v_lshl_add_u32 v{vO0}, v{vCG}, 4, v{vO0}
    v_add_u32 v{vO1}, {4*896}, v{vO0}
    v_subrev_u32 v{vOH}, {3*896}, v{vO0}
    v_lshlrev_b32 v{vOS}, 6, v{vCG}
    s_waitcnt lgkmcnt(0)
    """)
    srd(a, SRD_K, S_K, SZ_X)
    srd(a, SRD_Vv, S_V, SZ_X)
    srd(a, SRD_WS, S_WS, WS_END)
    srd(a, SRD_SH, S_SHK, SZ_SHK)
    a(f"""
    v_cmp_gt_u32 vcc, 448, v{vTID}
    s_and_saveexec_b64 s[6:7], vcc
    s_cbranch_execz A_PREP_SKIP
    """)
    for i in range(4):
        a(f"buffer_load_dwordx4 {vr(vSH+4*i,4)}, v{vOS}, {sr(SRD_SH,4)}, 0 offen offset:{16*i}")
    for i in range(3):
        a(f"buffer_load_dwordx4 {vr(vKR+4*i,4)}, v{vOH}, {sr(SRD_K,4)}, 0 offen offset:{896*i}")
    for i in range(8):
        a(f"buffer_load_dwordx4 {vr(vKR+12+4*i,4)}, v{vO0 if i<4 else vO1}, {sr(SRD_K,4)}, 0 offen offset:{896*(i&3)}")
    for i in range(8):
        a(f"buffer_load_dwordx4 {vr(vVR+4*i,4)}, v{vO0 if i<4 else vO1}, {sr(SRD_Vv,4)}, 0 offen offset:{896*(i&3)}")
    a("s_waitcnt vmcnt(19)")
    for cp in range(4):
        for h in range(2):
            c = 2 * cp + h
            a(f"v_lshlrev_b32 v{vWU+8*cp+0+h}, 16, v{vSH+2*c}")
            a(f"v_and_b32 v{vWU+8*cp+2+h}, 0xffff0000, v{vSH+2*c}")
            a(f"v_lshlrev_b32 v{vWU+8*cp+4+h}, 16, v{vSH+2*c+1}")
            a(f"v_and_b32 v{vWU+8*cp+6+h}, 0xffff0000, v{vSH+2*c+1}")
    a("s_waitcnt vmcnt(0)")
    for cp in range(4):
        for r in range(11):
            a(f"v_lshlrev_b32 v{vKU+2*r}, 16, v{vKR+4*r+cp}")
            a(f"v_and_b32 v{vKU+2*r+1}, 0xffff0000, v{vKR+4*r+cp}")
        w = lambda j: vr(vWU + 8 * cp + 2 * j, 2)
        for r in range(8):
            ac = vr(vAC + 2 * r, 2)
            a(f"v_pk_mul_f32 {ac}, {vr(vKU+2*r,2)}, {w(3)}")
            a(f"v_pk_fma_f32 {ac}, {vr(vKU+2*(r+1),2)}, {w(2)}, {ac}")
            a(f"v_pk_fma_f32 {ac}, {vr(vKU+2*(r+2),2)}, {w(1)}, {ac}")
            a(f"v_pk_fma_f32 {ac}, {vr(vKU+2*(r+3),2)}, {w(0)}, {ac}")
            a(f"v_cvt_pk_bf16_f32 v{vAC+2*r+1}, v{vAC+2*r}, v{vAC+2*r+1}")
            a(f"v_lshlrev_b32 v{vVU}, 16, v{vVR+4*r+cp}")
            a(f"v_and_b32 v{vVU+1}, 0xffff0000, v{vVR+4*r+cp}")
            a(f"v_lshlrev_b32 v{vAC+2*r}, 16, v{vAC+2*r+1}")
            a(f"v_and_b32 v{vAC+2*r+1}, 0xffff0000, v{vAC+2*r+1}")
            a(f"v_pk_mul_f32 {ac}, {ac}, {vr(vVU,2)}")
        for h in range(2):
            c = 2 * cp + h
            for q in range(4):
                a(f"v_cvt_pk_bf16_f32 v{vG+4*c+q}, v{vAC+2*(7-2*q)+h}, v{vAC+2*(6-2*q)+h}")
    a(f"""
    v_sub_u32 v{vO0}, 7, v{vTB}
    v_and_b32 v{vO1}, 7, v{vCG}
    v_xor_b32 v{vO0}, v{vO0}, v{vO1}
    v_lshlrev_b32 v{vO0}, 4, v{vO0}
    v_lshl_add_u32 v{vO0}, v{vCG}, 10, v{vO0}
    """)
    for c in range(8):
        a(f"ds_write_b128 v{vO0}, {vr(vG+4*c,4)} offset:{128*c}")
    a.label("A_PREP_SKIP")
    a(f"""
    s_mov_b64 exec, s[6:7]
    s_waitcnt lgkmcnt(0)
    s_barrier
    v_lshlrev_b32 v{vO0}, 4, v{vTID}
    """)
    for i in range(7):
        a(f"ds_read_b128 {vr(vG+4*i,4)}, v{vO0} offset:{8192*i}")
    a(f"""
    v_lshrrev_b32 v{vO1}, 3, v{vTID}
    v_and_b32 v{vOH}, 7, v{vTID}
    v_lshrrev_b32 v{vOS}, 6, v{vTID}
    v_xor_b32 v{vOH}, v{vOH}, v{vOS}
    v_lshlrev_b32 v{vOH}, 4, v{vOH}
    v_lshl_add_u32 v{vO1}, v{vO1}, 12, v{vOH}
    s_lshl_b32 s5, s{sB}, 7
    s_sub_u32 s5, {WS_KVR + 3968}, s5
    """)
    for i in range(7):
        a(f"s_waitcnt lgkmcnt({6-i})")
        a(f"buffer_store_dwordx4 {vr(vG+4*i,4)}, v{vO1}, {sr(SRD_WS,4)}, s5 offen")
        if i < 6:
            a(f"s_add_u32 s5, s5, {64*4096}")
    a(f"""
    s_cmp_lg_u32 s{sB}, 0
    s_cbranch_scc1 A_END
    v_cmp_gt_u32 vcc, 224, v{vTID}
    s_and_saveexec_b64 s[6:7], vcc
    s_cbranch_execz A_END
    v_mov_b32 v12, 0
    v_mov_b32 v13, 0
    v_mov_b32 v14, 0
    v_mov_b32 v15, 0
    v_add_u32 v{vO0}, {WS_FLAGS}, v{vO0}
    buffer_store_dwordx4 v[12:15], v{vO0}, {sr(SRD_WS,4)}, 0 offen
    """)
    a.label("A_END")
    a("s_endpgm")
    return K


import struct


def f32bits(x):
    return "0x%08x" % struct.unpack("<I", struct.pack("<f", x))[0]


def descriptor(name, vgpr, sgpr):
    acc = (vgpr + 3) // 4 * 4
    return f""".amdhsa_kernel {name}
  .amdhsa_next_free_vgpr {vgpr}
  .amdhsa_next_free_sgpr {sgpr}
  .amdhsa_accum_offset {acc}
  .amdhsa_group_segment_fixed_size 0
  .amdhsa_kernarg_size 104
  .amdhsa_user_sgpr_count 2
  .amdhsa_user_sgpr_kernarg_segment_ptr 1
  .amdhsa_system_sgpr_workgroup_id_x 1
  .amdhsa_float_denorm_mode_32 3
.end_amdhsa_kernel
"""


HEADER = open("cdna_kernels/" + NAME + ".s.ref").read().split("; Override launch")[0]


def main():
    from genb import gen_kernel_b, B_LDS
    a = Asm()
    ka = gen_kernel_a(a)
    kb = gen_kernel_b(a)
    out = HEADER
    out += f"; @launch kernel={ka} grid=(256,1,1) block=(512,1,1) lds={A_LDS}\n"
    if kb:
        out += f"; @launch kernel={kb} grid=(224,1,1) block=(512,1,1) lds={B_LDS}\n"
    out += '.amdgcn_target "amdgcn-amd-amdhsa--gfx950"\n.text\n'
    out += a.text()
    out += '.section .rodata,"a"\n.p2align 6\n'
    out += descriptor(ka, 208, 96)
    if kb:
        out += ".p2align 6\n" + descriptor(kb, 256, 96)
    path = sys.argv[1] if len(sys.argv) > 1 else "cdna_kernels/" + NAME + ".s"
    open(path, "w").write(out)


if __name__ == "__main__":
    main()
```

```python
import sys, os, struct

NAME = "recurrent_scan__ssm_conv_h3__glu_gated_reglu__prompt"
KNAME = NAME + "_kernel"
PROF = int(os.environ.get("PROF", "0"))

WS_H = 0
WS_KVR = 0x700000
WS_T = 0x8C0000
WS_STATS = 0xA80000
WS_CS = 0xA84000
WS_FLT = 0xA88000
WS_FLH = 0xA89000
WS_FLEND = 0xA8AC00
WS_END = 0xA8B000
WS_PROF = 0x1000000

SZ_X = 2048 * 448 * 2
SZ_W = 448 * 1792 * 2
SZ_SHK = 448 * 4 * 2

SLOT = 49152
G2_BASE = 49152
CV_ST = (1600, 2880)
CV_CH = 8 * (CV_ST[0] + CV_ST[1])
CV_A = (0, 114688)
CV_UP = 768
CV_U = 35840
T_ST = 150528
L_FLAG = 158720
LDS_BYTES = 158784


def f32bits(x):
    return "0x%08x" % struct.unpack("<I", struct.pack("<f", x))[0]


class Asm:
    def __init__(self):
        self.lines = []
        self.vm = []
        self.nst = 0

    def __call__(self, s):
        for ln in s.strip("\n").split("\n"):
            ln = ln.strip()
            if ln:
                self.lines.append("    " + ln)

    def label(self, l):
        self.lines.append(l + ":")

    def text(self):
        return "\n".join(self.lines) + "\n"

    def vmem(self, s, tag):
        self(s)
        self.vm.append(tag)

    def vm_wait(self, tag):
        idx = [i for i, t in enumerate(self.vm) if t == tag]
        if not idx:
            return
        n = len(self.vm) - 1 - idx[-1]
        assert n <= 63, n
        self(f"s_waitcnt vmcnt({n})")
        self.vm = self.vm[idx[-1] + 1:]

    def vm_all(self):
        self("s_waitcnt vmcnt(0)")
        self.vm = []

    def stamp(self):
        if not PROF:
            return
        i = self.nst
        if i >= 14:
            return
        self.nst += 1
        self(f"s_memtime s[{S_STAMP+2*i}:{S_STAMP+2*i+1}]")

    def stamp_flush(self):
        if not PROF:
            return
        n = self.nst
        self("s_waitcnt lgkmcnt(0)")
        self("s_mov_b64 exec, 1")
        self(f"s_mov_b32 s{S_STAMP-4}, s{S_WS}")
        self(f"s_and_b32 s{S_STAMP-3}, s{S_WS+1}, 0xffff")
        self(f"s_mov_b32 s{S_STAMP-2}, 0x2000000")
        self(f"s_mov_b32 s{S_STAMP-1}, 0x20000")
        self("s_lshl_b32 s100, s2, 3")
        self("s_add_u32 s100, s100, s3")
        self("s_lshl_b32 s100, s100, 6")
        self(f"s_add_u32 s100, s100, {WS_PROF}")
        self("v_mov_b32 v0, 0")
        for i in range(n):
            self(f"v_mov_b32 v1, s{S_STAMP+2*i}")
            self(f"buffer_store_dword v1, v0, s[{S_STAMP-4}:{S_STAMP-1}], s100 offen offset:{4*i}")
        self("s_mov_b64 exec, -1")


S_STAMP = 72


def vr(a, n=1):
    return f"v{a}" if n == 1 else f"v[{a}:{a+n-1}]"


def sr(a, n=1):
    return f"s{a}" if n == 1 else f"s[{a}:{a+n-1}]"


S_X, S_K, S_V, S_SHK, S_SSMK, S_SSMD, S_BX, S_WG = 16, 18, 20, 22, 24, 26, 28, 30
S_WU, S_WD, S_OUT, S_DBG = 32, 34, 36, 38
S_WS = 40
R_X, R_W, R_WS, R_DBG, R_A, R_B = 44, 48, 52, 56, 60, 64


def srd(a, d, base, size):
    a(f"s_mov_b32 s{d}, s{base}")
    a(f"s_and_b32 s{d+1}, s{base+1}, 0xffff")
    a(f"s_mov_b32 s{d+2}, {size}")
    a(f"s_mov_b32 s{d+3}, 0x20000")


def round_pair(a, lo, hi):
    a(f"v_cvt_pk_bf16_f32 v{hi}, v{lo}, v{hi}")
    a(f"v_lshlrev_b32 v{lo}, 16, v{hi}")
    a(f"v_and_b32 v{hi}, 0xffff0000, v{hi}")


_lbl = [0]


def newlabel(p):
    _lbl[0] += 1
    return f"{p}_{_lbl[0]}"


def spin_counter(a, vtmp, vzero, off, target, scnt):
    L, Lok = newlabel("SPIN"), newlabel("SPINOK")
    a(f"s_mov_b32 s{scnt}, 0")
    a.label(L)
    a(f"""
    v_readfirstlane_b32 s{scnt+1}, v{vtmp}
    s_add_u32 s{scnt}, s{scnt}, 1
    s_cmp_ge_u32 s{scnt+1}, {target}
    s_cbranch_scc1 {Lok}
    s_cmp_gt_u32 s{scnt}, 0x20000
    s_cbranch_scc1 {Lok}
    s_sleep 1
    buffer_load_dword v{vtmp}, v{vzero}, {sr(R_DBG,4)}, 0 offen offset:{off} sc1
    s_waitcnt vmcnt(0)
    s_branch {L}
    """)
    a.label(Lok)


sRB, sCB, sE, sT0, sT1, sRH, sCQ = 4, 5, 6, 7, 8, 9, 10
sXO, sWO, sM0X, sM0W, sTMP = 11, 12, 13, 14, 15
sOFF = 68
sSP = 42
vL = 2
vXG0, vXG1, vWG = 3, 4, 5
vXA = 6
vWA = 10
vXR, vWR0, vWR1 = 12, 13, 14
vT = 15
vZ, vPOLL = 20, 21
vSTAT = 24
vFR = 28
vACC = 64
vCS = 128


def gemm1_setup(a):
    a(f"""
    s_and_b32 s{sT0}, s2, 7
    s_lshr_b32 s{sT1}, s2, 3
    s_mul_i32 s{sRB}, s{sT1}, 37
    s_lshr_b32 s{sRB}, s{sRB}, 8
    s_mul_i32 s{sCB}, s{sRB}, 7
    s_sub_u32 s{sCB}, s{sT1}, s{sCB}
    s_and_b32 s{sT1}, s{sT0}, 3
    s_lshl_b32 s{sT1}, s{sT1}, 2
    s_add_u32 s{sRB}, s{sRB}, s{sT1}
    s_lshr_b32 s{sT1}, s{sT0}, 2
    s_mul_i32 s{sT1}, s{sT1}, 7
    s_add_u32 s{sCB}, s{sCB}, s{sT1}
    s_lshr_b32 s{sRH}, s3, 2
    s_and_b32 s{sCQ}, s3, 3
    """)
    a(f"""
    v_lshrrev_b32 v{vT}, 3, v{vL}
    v_lshrrev_b32 v{vT+1}, 4, v{vL}
    v_and_b32 v{vT+2}, 7, v{vL}
    s_lshl_b32 s{sT0}, s{sRB}, 7
    s_lshl_b32 s{sT1}, s3, 4
    s_add_u32 s{sT0}, s{sT0}, s{sT1}
    v_add_u32 v{vT}, s{sT0}, v{vT}
    v_mul_u32_u24 v{vT}, 896, v{vT}
    v_xor_b32 v{vT+3}, v{vT+2}, v{vT+1}
    v_lshl_add_u32 v{vXG0}, v{vT+3}, 4, v{vT}
    v_xor_b32 v{vT+3}, 4, v{vT+3}
    v_lshl_add_u32 v{vXG1}, v{vT+3}, 4, v{vT}
    v_add_u32 v{vXG1}, {8*896}, v{vXG1}
    v_and_b32 v{vT+2}, 15, v{vL}
    v_lshlrev_b32 v{vT+3}, 2, v{vT+1}
    v_xor_b32 v{vT+2}, v{vT+2}, v{vT+3}
    s_lshl_b32 s{sT0}, s{sRH}, 1
    v_xor_b32 v{vT+2}, s{sT0}, v{vT+2}
    s_lshl_b32 s{sT1}, s{sCQ}, 4
    v_add_u32 v{vT+3}, s{sT1}, v{vT+1}
    v_mul_u32_u24 v{vT+3}, 3584, v{vT+3}
    v_lshl_add_u32 v{vWG}, v{vT+2}, 4, v{vT+3}
    s_lshl_b32 s{sT0}, s{sCB}, 8
    v_add_u32 v{vWG}, s{sT0}, v{vWG}
    s_lshl_b32 s{sM0X}, s3, 11
    s_lshl_b32 s{sM0W}, s3, 12
    s_add_u32 s{sM0W}, s{sM0W}, 16384
    """)


def gemm1_setup2(a):
    a(f"""
    v_and_b32 v{vT}, 31, v{vL}
    v_lshrrev_b32 v{vT+1}, 5, v{vL}
    v_bfe_u32 v{vT+2}, v{vL}, 1, 3
    v_xor_b32 v{vT+2}, v{vT+2}, v{vT+1}
    s_lshl_b32 s{sT1}, s{sRH}, 6
    v_add_u32 v{vT}, s{sT1}, v{vT}
    v_lshlrev_b32 v{vT}, 7, v{vT}
    v_lshl_add_u32 v{vXA}, v{vT+2}, 4, v{vT}
    v_xor_b32 v{vXA+1}, 32, v{vXA}
    v_xor_b32 v{vXA+2}, 64, v{vXA}
    v_xor_b32 v{vXA+3}, 96, v{vXA}
    v_bfe_u32 v{vT}, v{vL}, 4, 1
    v_bfe_u32 v{vT+2}, v{vL}, 2, 2
    v_bfe_u32 v{vT+3}, v{vL}, 1, 1
    s_lshl_b32 s{sT0}, s{sCQ}, 2
    v_or_b32 v{vT+3}, s{sT0}, v{vT+3}
    v_lshlrev_b32 v{vT+4}, 2, v{vT+2}
    v_xor_b32 v{vT+3}, v{vT+3}, v{vT+4}
    v_lshlrev_b32 v{vT+4}, 1, v{vT}
    v_xor_b32 v{vT+3}, v{vT+3}, v{vT+4}
    v_lshlrev_b32 v{vT+3}, 4, v{vT+3}
    v_and_b32 v{vT+4}, 1, v{vL}
    v_lshl_add_u32 v{vT+3}, v{vT+4}, 3, v{vT+3}
    v_lshl_add_u32 v{vT+2}, v{vT+1}, 3, v{vT+2}
    v_lshl_add_u32 v{vT+3}, v{vT+2}, 8, v{vT+3}
    v_add_u32 v{vT}, 1, v{vT}
    v_lshl_add_u32 v{vWA}, v{vT}, 14, v{vT+3}
    v_xor_b32 v{vWA+1}, 32, v{vWA}
    v_mov_b32 v{vZ}, 0
    """)
    for i in range(64):
        a(f"v_mov_b32 v{vACC+i}, 0")


def dma_stage(a, st):
    slot = (st % 3) * SLOT
    a(f"s_mov_b32 s{sXO}, {st*128}")
    a(f"s_add_u32 m0, s{sM0X}, {slot}")
    a(f"s_mov_b32 s{sWO}, {st*64*3584}")
    a.vmem(f"buffer_load_dwordx4 v{vXG0}, {sr(R_X,4)}, s{sXO} offen lds", f"A{st}")
    a(f"s_add_u32 m0, s{sM0X}, {slot+1024}")
    a("s_nop 0")
    a.vmem(f"buffer_load_dwordx4 v{vXG1}, {sr(R_X,4)}, s{sXO} offen lds", f"A{st}")
    for j in range(4):
        a(f"s_add_u32 m0, s{sM0W}, {slot+1024*j}")
        if j:
            a(f"s_add_u32 s{sWO}, s{sWO}, {4*3584}")
        else:
            a("s_nop 0")
        a.vmem(f"buffer_load_dwordx4 v{vWG}, {sr(R_W,4)}, s{sWO} offen lds", f"A{st}")


def frag(setno, which):
    return vFR + 16 * setno + 4 * which


def g1_reads(a, st, p, setno):
    slot = (st % 3) * SLOT
    if p == 0:
        a(f"v_add_u32 v{vWR0}, {slot}, v{vWA}")
        a(f"v_add_u32 v{vWR1}, {slot}, v{vWA+1}")
    a(f"v_add_u32 v{vXR}, {slot}, v{vXA+p}")
    a(f"ds_read_b64_tr_b16 {vr(frag(setno,2),2)}, v{vWR0} offset:{4096*p}")
    a(f"ds_read_b64_tr_b16 {vr(frag(setno,2)+2,2)}, v{vWR0} offset:{4096*p+1024}")
    a(f"ds_read_b128 {vr(frag(setno,0),4)}, v{vXR}")
    a(f"ds_read_b128 {vr(frag(setno,1),4)}, v{vXR} offset:4096")
    a(f"ds_read_b64_tr_b16 {vr(frag(setno,3),2)}, v{vWR1} offset:{4096*p}")
    a(f"ds_read_b64_tr_b16 {vr(frag(setno,3)+2,2)}, v{vWR1} offset:{4096*p+1024}")


def g1_mfmas(a, setno):
    x = [frag(setno, 0), frag(setno, 1)]
    w = [frag(setno, 2), frag(setno, 3)]
    for mt, nt in [(0, 0), (0, 1), (1, 1), (1, 0)]:
        acc = vACC + 16 * (2 * mt + nt)
        a(f"v_mfma_f32_32x32x16_bf16 {vr(acc,16)}, {vr(w[mt],4)}, {vr(x[nt],4)}, {vr(acc,16)}")


def gemm1_main(a, hook):
    NST = 7
    g1_reads(a, 0, 0, 0)
    cur = 0
    for st in range(NST):
        for p in range(4):
            if p < 3:
                g1_reads(a, st, p + 1, cur ^ 1)
                a("s_waitcnt lgkmcnt(6)")
                g1_mfmas(a, cur)
            else:
                a("s_waitcnt lgkmcnt(0)")
                if st + 1 < NST:
                    a.vm_wait(f"A{st+1}")
                a("s_barrier")
                if st + 3 < NST:
                    dma_stage(a, st + 3)
                if st + 1 < NST:
                    g1_reads(a, st + 1, 0, cur ^ 1)
                g1_mfmas(a, cur)
                hook(st)
                if st in (3, 6):
                    a.stamp()
            cur ^= 1


def stat_loads(a):
    a(f"""
    s_lshl_b32 s{sT0}, s{sRB}, 7
    s_lshl_b32 s{sT1}, s{sRH}, 6
    s_add_u32 s{sT0}, s{sT0}, s{sT1}
    v_and_b32 v{vT}, 31, v{vL}
    v_add_u32 v{vT}, s{sT0}, v{vT}
    v_lshlrev_b32 v{vT}, 3, v{vT}
    s_lshl_b32 s{sT0}, s{sCB}, 3
    s_lshl_b32 s{sT1}, s{sCQ}, 1
    s_add_u32 s{sT0}, s{sT0}, s{sT1}
    s_lshl_b32 s{sT0}, s{sT0}, 7
    s_add_u32 s{sT0}, s{sT0}, {WS_CS}
    s_mov_b32 s{sT1}, {WS_STATS}
    v_lshrrev_b32 v{vT+1}, 5, v{vL}
    v_lshlrev_b32 v{vT+1}, 4, v{vT+1}
    """)
    a.vmem(f"buffer_load_dwordx2 {vr(vSTAT,2)}, v{vT}, {sr(R_WS,4)}, s{sT1} offen sc1", "ST")
    a.vmem(f"buffer_load_dwordx2 {vr(vSTAT+2,2)}, v{vT}, {sr(R_WS,4)}, s{sT1} offen offset:256 sc1", "ST")
    for i in range(8):
        a.vmem(f"buffer_load_dwordx4 {vr(vCS+4*i,4)}, v{vT+1}, {sr(R_WS,4)}, s{sT0} offen offset:{32*i} sc1", "ST")


def gemm1_epilogue(a):
    a.vm_wait("ST")
    vR2 = 60
    a(f"""
    v_mul_f32 v{vR2}, v{vSTAT+1}, v{vSTAT+1}
    v_mul_f32 v{vR2+2}, v{vSTAT+3}, v{vSTAT+3}
    s_lshl_b32 s{sT0}, s{sRB}, 2
    s_lshl_b32 s{sT1}, s{sRH}, 1
    s_add_u32 s{sT0}, s{sT0}, s{sT1}
    s_mul_i32 s{sT0}, s{sT0}, 112
    s_lshl_b32 s{sT1}, s{sCB}, 3
    s_add_u32 s{sT0}, s{sT0}, s{sT1}
    s_lshl_b32 s{sT1}, s{sCQ}, 1
    s_add_u32 s{sT0}, s{sT0}, s{sT1}
    s_lshl_b32 s{sT0}, s{sT0}, 10
    s_add_u32 s{sT1}, s{sT0}, {112*1024}
    v_lshlrev_b32 v{vT}, 4, v{vL}
    s_nop 4
    """)
    vH = 28
    k = 0
    for mt in range(2):
        for nt in range(2):
            acc = vACC + 16 * (2 * mt + nt)
            cs = vCS + 16 * mt
            m = vSTAT + 2 * nt
            for i in range(8):
                a(f"v_pk_fma_f32 {vr(acc+2*i,2)}, {vr(m,2)}, {vr(cs+2*i,2)}, {vr(acc+2*i,2)} op_sel_hi:[0,1,1] neg_lo:[1,0,0] neg_hi:[1,0,0]")
            for i in range(8):
                a(f"v_max_f32 v{acc+i}, 0, v{acc+i}")
            for i in range(4):
                a(f"v_pk_mul_f32 {vr(acc+8+2*i,2)}, {vr(acc+8+2*i,2)}, {vr(vR2+2*nt,2)} op_sel_hi:[1,0]")
            for i in range(4):
                a(f"v_pk_mul_f32 {vr(acc+2*i,2)}, {vr(acc+2*i,2)}, {vr(acc+8+2*i,2)}")
            o = vH + 4 * k
            for i in range(4):
                a(f"v_cvt_pk_bf16_f32 v{o+i}, v{acc+2*i}, v{acc+2*i+1}")
            a.vmem(f"buffer_store_dwordx4 {vr(o,4)}, v{vT}, {sr(R_WS,4)}, s{sT1 if nt else sT0} offen offset:{mt*1024} sc1", "HS")
            k += 1
    a(f"""
    s_lshl_b32 s{sE}, s{sRB}, 1
    s_add_u32 s{sE}, s{sE}, s{sRH}
    s_mul_i32 s{sE}, s{sE}, 56
    s_lshl_b32 s{sT0}, s{sCB}, 2
    s_add_u32 s{sE}, s{sE}, s{sT0}
    s_add_u32 s{sE}, s{sE}, s{sCQ}
    s_lshl_b32 s{sE}, s{sE}, 2
    s_add_u32 s{sE}, s{sE}, {WS_FLH}
    """)


def h_flag(a, vone):
    a.vm_wait("HS")
    a(f"v_mov_b32 v{vone}, 1")
    a("s_mov_b64 exec, 1")
    a.vmem(f"buffer_store_dword v{vone}, v{vZ}, {sr(R_WS,4)}, s{sE} offen sc1", "HF")
    a("s_mov_b64 exec, -1")


def role_g(a):
    s2RB, s2CB, sTD, sTN, sWB, sHO, sW2 = 18, 19, 20, 21, 22, 23, 28
    vWD, vRA0, vRA1 = 160, 161, 162
    vH0, vH1, vXO = 163, 164, 165
    u = 166
    R_WD = R_A
    R_O = R_B

    def g2_setup():
        a(f"""
        s_and_b32 s{sT0}, s2, 7
        s_lshr_b32 s{sT1}, s2, 3
        s_mul_i32 s{s2RB}, s{sT1}, 37
        s_lshr_b32 s{s2RB}, s{s2RB}, 8
        s_mul_i32 s{s2CB}, s{s2RB}, 7
        s_sub_u32 s{s2CB}, s{sT1}, s{s2CB}
        s_lshl_b32 s{sT1}, s{sT0}, 2
        s_add_u32 s{s2RB}, s{s2RB}, s{sT1}
        s_and_b32 s{sTD}, s3, 1
        s_lshr_b32 s{sTN}, s3, 1
        s_lshl_b32 s{sWB}, s3, 12
        s_add_u32 s{sWB}, s{sWB}, {G2_BASE}
        s_mul_i32 s{sT0}, s{s2RB}, 224
        s_mul_i32 s{sT1}, s3, 28
        s_add_u32 s{sT0}, s{sT0}, s{sT1}
        s_lshl_b32 s{sT0}, s{sT0}, 10
        v_lshl_add_u32 v{vH0}, v{vL}, 4, s{sT0}
        v_add_u32 v{vH1}, {112*1024}, v{vH0}
        v_lshrrev_b32 v{u}, 3, v{vL}
        s_mul_i32 s{sT0}, s3, 448
        v_add_u32 v{u}, s{sT0}, v{u}
        v_mul_u32_u24 v{u}, 896, v{u}
        v_bfe_u32 v{u+1}, v{vL}, 4, 1
        v_lshlrev_b32 v{u+1}, 2, v{u+1}
        v_and_b32 v{u+2}, 7, v{vL}
        v_xor_b32 v{u+1}, v{u+1}, v{u+2}
        v_lshl_add_u32 v{vWD}, v{u+1}, 4, v{u}
        s_lshl_b32 s{sT0}, s{s2CB}, 7
        v_add_u32 v{vWD}, s{sT0}, v{vWD}
        v_lshrrev_b32 v{u}, 5, v{vL}
        v_bfe_u32 v{u+1}, v{vL}, 2, 2
        v_lshl_add_u32 v{u}, v{u}, 2, v{u+1}
        v_bfe_u32 v{u+2}, v{vL}, 4, 1
        v_bfe_u32 v{u+3}, v{vL}, 1, 1
        v_lshl_add_u32 v{u+2}, v{u+2}, 1, v{u+3}
        v_bfe_u32 v{u+3}, v{vL}, 3, 1
        v_lshl_add_u32 v{u+2}, v{u+3}, 2, v{u+2}
        v_lshlrev_b32 v{u+2}, 4, v{u+2}
        v_and_b32 v{u+3}, 1, v{vL}
        v_lshl_add_u32 v{u+2}, v{u+3}, 3, v{u+2}
        v_lshl_add_u32 v{u+2}, v{u}, 7, v{u+2}
        v_add_u32 v{vRA0}, s{sWB}, v{u+2}
        v_xor_b32 v{vRA1}, 64, v{vRA0}
        """)
        srd(a, R_WD, S_WD, SZ_W)
        srd(a, R_O, S_OUT, SZ_X)

    def wdma(s):
        ring = s & 3
        a(f"s_mov_b32 s{sW2}, {32*s*896}")
        for j in range(4):
            a(f"s_add_u32 m0, s{sWB}, {ring*16384+j*1024}")
            if j:
                a(f"s_add_u32 s{sW2}, s{sW2}, {8*896}")
            else:
                a("s_nop 0")
            a.vmem(f"buffer_load_dwordx4 v{vWD}, {sr(R_WD,4)}, s{sW2} offen lds", f"W{s}")

    def hook(st):
        if st == 1:
            g2_setup()
        if st == 4:
            a.vmem(f"buffer_load_dword v{vPOLL}, v{vZ}, {sr(R_DBG,4)}, 0 offen sc1", "P0")
            for s in range(3):
                wdma(s)
        if st == 5:
            a.vm_wait("P0")
            spin_counter(a, vPOLL, vZ, 0, 32, sSP)
            stat_loads(a)
            wdma(3)

    gemm1_main(a, hook)
    gemm1_epilogue(a)
    a.stamp()
    NS = 14
    NREG = 7
    vW = [44 + 16 * i for i in range(5)] + [172 + 16 * i for i in range(2)]
    vA2 = 124
    vA2 = 192
    vW = [44 + 16 * i for i in range(5)] + [124, 140]
    vHR = None
    NREG = 6
    vW = [44 + 16 * i for i in range(6)]
    HR = [140, 172, 28]
    vXV, vST2 = 4, 12

    def trreads(s, dst):
        ring = s & 3
        for tt in range(2):
            for Td in range(2):
                for hf in range(2):
                    a(f"ds_read_b64_tr_b16 {vr(dst+8*tt+4*Td+2*hf,2)}, v{vRA1 if Td else vRA0} offset:{ring*16384+tt*2048+hf*1024}")

    for i in range(64):
        a(f"v_mov_b32 v{vA2+i}, 0")
    for s in range(NREG):
        a.vm_wait(f"W{s}")
        trreads(s, vW[s])
        a("s_waitcnt lgkmcnt(0)")
        wdma(s + 4)
        if s == 3:
            h_flag(a, u)
            a.stamp()
    a(f"""
    s_lshl_b32 s{sT0}, s{s2RB}, 6
    s_lshl_b32 s{sT1}, s{sTN}, 5
    s_add_u32 s{sT0}, s{sT0}, s{sT1}
    v_and_b32 v{u}, 31, v{vL}
    v_add_u32 v{u}, s{sT0}, v{u}
    v_lshlrev_b32 v{u+1}, 3, v{u}
    v_add_u32 v{u+1}, {WS_STATS}, v{u+1}
    v_mul_u32_u24 v{vXO}, 896, v{u}
    v_lshrrev_b32 v{u+2}, 5, v{vL}
    v_lshl_add_u32 v{vXO}, v{u+2}, 3, v{vXO}
    s_lshl_b32 s{sT0}, s{s2CB}, 7
    s_lshl_b32 s{sT1}, s{sTD}, 6
    s_add_u32 s{sT0}, s{sT0}, s{sT1}
    v_add_u32 v{vXO}, s{sT0}, v{vXO}
    """)
    for i in range(4):
        a.vmem(f"buffer_load_dwordx2 {vr(vXV+2*i,2)}, v{vXO}, {sr(R_X,4)}, 0 offen offset:{16*i}", "XV")
    a.vmem(f"buffer_load_dwordx2 {vr(vST2,2)}, v{u+1}, {sr(R_WS,4)}, 0 offen sc1", "XV")
    a(f"""
    s_mul_i32 s{sT0}, s{s2RB}, 56
    s_mul_i32 s{sT1}, s3, 14
    s_add_u32 s{sT0}, s{sT0}, s{sT1}
    s_lshl_b32 s{sT0}, s{sT0}, 2
    s_add_u32 s{sT0}, s{sT0}, {WS_FLH}
    v_min_u32 v{u+2}, 13, v{vL}
    v_lshlrev_b32 v{u+2}, 2, v{u+2}
    s_mov_b32 s{sSP}, 0
    """)
    a.stamp()
    a.label("G_HPOLL")
    a(f"""
    buffer_load_dword v{u+3}, v{u+2}, {sr(R_WS,4)}, s{sT0} offen sc1
    s_add_u32 s{sSP}, s{sSP}, 1
    s_cmp_gt_u32 s{sSP}, 0x20000
    s_cbranch_scc1 G_HPOLL_OK
    s_waitcnt vmcnt(0)
    v_cmp_ne_u32 vcc, 0, v{u+3}
    s_nop 3
    s_cmp_eq_u64 vcc, exec
    s_cbranch_scc0 G_HPOLL
    """)
    a.label("G_HPOLL_OK")
    a.vm_all()
    a.stamp()

    def hloads(s):
        r = HR[s % 3]
        a(f"s_mov_b32 s{sHO}, {2048*s}")
        for tt in range(2):
            for nt in range(2):
                a.vmem(f"buffer_load_dwordx4 {vr(r+8*tt+4*nt,4)}, v{vH1 if nt else vH0}, {sr(R_WS,4)}, s{sHO} offen offset:{1024*tt} sc1", f"H{s}")

    for s in range(3):
        hloads(s)
    for s in range(NS):
        wreg = vW[s % NREG]
        a.vm_wait(f"H{s}")
        if s >= NREG:
            a("s_waitcnt lgkmcnt(0)")
        for tt in range(2):
            for Td in range(2):
                for nt in range(2):
                    acc = vA2 + 32 * nt + 16 * Td
                    a(f"v_mfma_f32_32x32x16_bf16 {vr(acc,16)}, {vr(wreg+8*tt+4*Td,4)}, {vr(HR[s%3]+8*tt+4*nt,4)}, {vr(acc,16)}")
        if s + 3 < NS:
            hloads(s + 3)
        sn = s + NREG
        if sn < NS:
            a.vm_wait(f"W{sn}")
            trreads(sn, wreg)
            if sn + 4 < NS:
                a("s_waitcnt lgkmcnt(0)")
                wdma(sn + 4)
    a.stamp()
    vX, vXN, vP, vE = 28, 44, 64, 128
    a(f"v_lshlrev_b32 v{u}, 4, v{vL}")
    a(f"v_add_u32 v{u+1}, s{sWB}, v{u}")
    a(f"s_lshl_b32 s{sT0}, s3, 14")
    a(f"s_add_u32 s{sT0}, s{sT0}, {G2_BASE}")
    a(f"v_add_u32 v{u+2}, s{sT0}, v{u}")
    a(f"v_mov_b32 v{u+3}, {L_FLAG+32}")
    a(f"v_mov_b32 v{u+4}, 1")
    a("s_nop 7")
    for tau in range(4):
        for q in range(4):
            a(f"ds_write_b128 v{u+1}, {vr(vA2+16*tau+4*q,4)} offset:{tau*16384+q*1024}")
    for i in range(8):
        a(f"v_lshlrev_b32 v{vX+2*i}, 16, v{vXV+i}")
        a(f"v_and_b32 v{vX+2*i+1}, 0xffff0000, v{vXV+i}")
    a("s_waitcnt lgkmcnt(0)")
    a("s_mov_b64 exec, 1")
    a(f"ds_add_u32 v{u+3}, v{u+4}")
    a("s_mov_b64 exec, -1")
    for i in range(16):
        a(f"v_sub_f32 v{vXN+i}, v{vX+i}, v{vST2}")
    for i in range(8):
        round_pair(a, vXN + 2 * i, vXN + 2 * i + 1)
    for i in range(16):
        a(f"v_mul_f32 v{vXN+i}, v{vXN+i}, v{vST2+1}")
    for i in range(8):
        round_pair(a, vXN + 2 * i, vXN + 2 * i + 1)
    vF, vTG, vTW, vTR = 4, 5, 6, 7
    a(f"""
    s_lshr_b32 s{sT0}, s{s2RB}, 4
    s_mul_i32 s{sT0}, s{sT0}, 448
    s_lshl_b32 s{sT1}, s{s2CB}, 6
    s_add_u32 s{sT0}, s{sT0}, s{sT1}
    s_lshl_b32 s{sHO}, s{sTD}, 5
    s_add_u32 s{sT0}, s{sT0}, s{sHO}
    s_add_u32 s{sT1}, s{sT1}, s{sHO}
    v_and_b32 v8, 31, v{vL}
    v_add_u32 v8, s{sT0}, v8
    v_lshlrev_b32 v8, 2, v8
    v_add_u32 v{vF}, {WS_FLT}, v8
    v_lshrrev_b32 v8, 2, v{vL}
    v_add_u32 v8, s{sT1}, v8
    v_lshlrev_b32 v8, 12, v8
    v_and_b32 v9, 3, v{vL}
    v_lshl_add_u32 v{vTG}, v9, 4, v8
    s_lshl_b32 s{sT0}, s{s2RB}, 7
    s_lshl_b32 s{sT1}, s{sTN}, 6
    s_add_u32 s{sT0}, s{sT0}, s{sT1}
    s_add_u32 s{sT0}, s{sT0}, {WS_T}
    s_add_u32 s{sT1}, s{sT0}, {16*4096}
    s_lshl_b32 s{sHO}, s3, 11
    s_add_u32 s{sHO}, s{sHO}, {T_ST}
    v_lshl_add_u32 v{vTW}, v{vL}, 4, s{sHO}
    v_lshrrev_b32 v8, 5, v{vL}
    v_bfe_u32 v9, v{vL}, 2, 2
    v_lshl_add_u32 v8, v8, 2, v9
    v_lshlrev_b32 v8, 6, v8
    v_bfe_u32 v9, v{vL}, 4, 1
    v_lshl_add_u32 v8, v9, 5, v8
    v_and_b32 v9, 3, v{vL}
    v_lshl_add_u32 v8, v9, 3, v8
    v_add_u32 v{vTR}, s{sHO}, v8
    buffer_load_dword v10, v{vF}, {sr(R_WS,4)}, 0 offen sc1
    s_mov_b32 s{sSP}, 0
    """)
    a.label("G_RPOLL")
    a(f"""
    ds_read_b32 v9, v{u+3}
    s_add_u32 s{sSP}, s{sSP}, 1
    s_cmp_gt_u32 s{sSP}, 0x100000
    s_cbranch_scc1 G_RPOLL_OK
    s_waitcnt lgkmcnt(0)
    v_readfirstlane_b32 s{sSP+1}, v9
    s_cmp_lt_u32 s{sSP+1}, 4
    s_cbranch_scc1 G_RPOLL
    """)
    a.label("G_RPOLL_OK")
    a("s_waitcnt lgkmcnt(0)")
    a.stamp()
    for src in range(4):
        for q in range(4):
            a(f"ds_read_b128 {vr(vP+16*src+4*q,4)}, v{u+2} offset:{src*4096+q*1024}")
    a("s_waitcnt lgkmcnt(8)")
    for i in range(16):
        a(f"v_add_f32 v{vP+i}, v{vP+i}, v{vP+16+i}")
    a("s_waitcnt lgkmcnt(0)")
    for i in range(16):
        a(f"v_add_f32 v{vP+32+i}, v{vP+32+i}, v{vP+48+i}")
    for i in range(16):
        a(f"v_add_f32 v{vP+i}, v{vP+i}, v{vP+32+i}")
    for i in range(8):
        round_pair(a, vP + 2 * i, vP + 2 * i + 1)
    a(f"s_mov_b32 s{sW2}, {f32bits(-1.4426950408889634)}")
    for i in range(16):
        a(f"v_mul_f32 v{vE+i}, s{sW2}, v{vP+i}")
    for i in range(16):
        a(f"v_exp_f32 v{vE+i}, v{vE+i}")
    for i in range(16):
        a(f"v_add_f32 v{vE+i}, 1.0, v{vE+i}")
    for i in range(16):
        a(f"v_rcp_f32 v{vE+i}, v{vE+i}")
    for i in range(16):
        a(f"v_mul_f32 v{vP+i}, v{vP+i}, v{vE+i}")
    for i in range(8):
        round_pair(a, vP + 2 * i, vP + 2 * i + 1)
    a(f"s_mov_b32 s{sSP}, 0")
    a.label("G_TPOLL")
    a(f"""
    s_waitcnt vmcnt(0)
    v_cmp_ne_u32 vcc, 0, v10
    s_add_u32 s{sSP}, s{sSP}, 1
    s_cmp_gt_u32 s{sSP}, 0x20000
    s_cbranch_scc1 G_TPOLL_OK
    s_cmp_eq_u64 vcc, exec
    s_cbranch_scc1 G_TPOLL_OK
    buffer_load_dword v10, v{vF}, {sr(R_WS,4)}, 0 offen sc1
    s_branch G_TPOLL
    """)
    a.label("G_TPOLL_OK")
    a.stamp()
    vTT, vTD, vS = 96, 104, 112
    a(f"buffer_load_dwordx4 {vr(vTT,4)}, v{vTG}, {sr(R_WS,4)}, s{sT0} offen sc1")
    a(f"buffer_load_dwordx4 {vr(vTT+4,4)}, v{vTG}, {sr(R_WS,4)}, s{sT1} offen sc1")
    a("s_waitcnt vmcnt(1)")
    a(f"ds_write_b128 v{vTW}, {vr(vTT,4)}")
    a("s_waitcnt vmcnt(0)")
    a(f"ds_write_b128 v{vTW}, {vr(vTT+4,4)} offset:1024")
    a("s_waitcnt lgkmcnt(0)")
    for i in range(4):
        a(f"ds_read_b64_tr_b16 {vr(vTD+2*i,2)}, v{vTR} offset:{512*i}")
    a("s_waitcnt lgkmcnt(0)")
    for i in range(8):
        a(f"v_lshlrev_b32 v{vS+2*i}, 16, v{vTD+i}")
        a(f"v_and_b32 v{vS+2*i+1}, 0xffff0000, v{vTD+i}")
    for i in range(8):
        a(f"v_pk_mul_f32 {vr(vS+2*i,2)}, {vr(vS+2*i,2)}, {vr(vXN+2*i,2)}")
    for i in range(8):
        round_pair(a, vS + 2 * i, vS + 2 * i + 1)
    for i in range(8):
        a(f"v_pk_mul_f32 {vr(vS+2*i,2)}, {vr(vS+2*i,2)}, {vr(vP+2*i,2)}")
    for i in range(8):
        round_pair(a, vS + 2 * i, vS + 2 * i + 1)
    for i in range(8):
        a(f"v_pk_add_f32 {vr(vS+2*i,2)}, {vr(vS+2*i,2)}, {vr(vX+2*i,2)}")
    for i in range(8):
        a(f"v_cvt_pk_bf16_f32 v{vTT+i}, v{vS+2*i}, v{vS+2*i+1}")
    for i in range(4):
        a(f"buffer_store_dwordx2 {vr(vTT+2*i,2)}, v{vXO}, {sr(R_O,4)}, 0 offen offset:{16*i}")
    if PROF:
        a("s_waitcnt vmcnt(0)")
    a.stamp()
    a.stamp_flush()
    a("s_endpgm")


def role_c(a):
    sCHL, sHF, sCH, sUB, sAB, sD, sPB = 18, 19, 20, 21, 22, 23, 28
    R_H = R_A
    vD = 160
    vU = 184
    c = 192
    vLB = 200

    def c_setup():
        a(f"""
        s_sub_u32 s{sT0}, s3, 4
        s_lshr_b32 s{sCHL}, s{sT0}, 1
        s_and_b32 s{sHF}, s{sT0}, 1
        s_lshl_b32 s{sCH}, s2, 1
        s_add_u32 s{sCH}, s{sCH}, s{sCHL}
        s_mul_i32 s{sUB}, s{sCHL}, {8*CV_UP}
        s_add_u32 s{sUB}, s{sUB}, {CV_U}
        s_mul_i32 s{sAB}, s{sCHL}, {CV_A[1]}
        s_mul_i32 s{sT0}, s{sHF}, {8*CV_ST[0]}
        s_xor_b32 s{sT1}, s{sHF}, 1
        s_mul_i32 s{sT1}, s{sT1}, {8*CV_ST[0]}
        s_add_u32 s{sPB}, s{sAB}, s{sT1}
        s_add_u32 s{sAB}, s{sAB}, s{sT0}
        s_lshl_b32 s{sT0}, s{sCH}, 12
        s_add_u32 s{R_H}, s{S_SSMK}, s{sT0}
        s_addc_u32 s{R_H+1}, s{S_SSMK+1}, 0
        s_and_b32 s{R_H+1}, s{R_H+1}, 0xffff
        s_mov_b32 s{R_H+2}, 4096
        s_mov_b32 s{R_H+3}, 0x20000
        v_lshlrev_b32 v{vLB}, 4, v{vL}
        s_mul_i32 s{sT1}, s{sHF}, {92*16}
        s_sub_u32 s{sT1}, s{sT1}, 64
        v_add_u32 v{c+1}, s{sT1}, v{vLB}
        v_add_u32 v{c+2}, 16, v{c+1}
        v_add_u32 v{c+3}, 1024, v{c+1}
        """)

    def hook(st):
        if st == 1:
            c_setup()
        if st == 4:
            a.vmem(f"buffer_load_dword v{vPOLL}, v{vZ}, {sr(R_DBG,4)}, 0 offen sc1", "P0")
            a.vmem(f"buffer_load_dwordx4 {vr(vD,4)}, v{c+1}, {sr(R_H,4)}, 0 offen", "D0")
            a.vmem(f"buffer_load_dwordx4 {vr(vD+4,4)}, v{c+2}, {sr(R_H,4)}, 0 offen", "D0")
            a.vmem(f"buffer_load_dwordx4 {vr(vD+8,4)}, v{c+3}, {sr(R_H,4)}, 0 offen", "D1")
            a.vmem(f"buffer_load_dwordx4 {vr(vD+12,4)}, v{c+3}, {sr(R_H,4)}, 0 offen offset:16", "D1")
            a.vmem(f"buffer_load_dwordx4 {vr(vD+16,4)}, v{c+3}, {sr(R_H,4)}, 0 offen offset:1024", "D2")
            a.vmem(f"buffer_load_dwordx4 {vr(vD+20,4)}, v{c+3}, {sr(R_H,4)}, 0 offen offset:1040", "D2")
        if st == 5:
            a.vm_wait("P0")
            spin_counter(a, vPOLL, vZ, 0, 32, sSP)
            stat_loads(a)
            a.vmem(f"buffer_load_dword v{vPOLL}, v{vZ}, {sr(R_DBG,4)}, 0 offen offset:128 sc1", "P1")

    gemm1_main(a, hook)
    a.vm_wait("P1")
    spin_counter(a, vPOLL, vZ, 128, 32, sSP)
    a(f"""
    s_lshl_b32 s{sT0}, s{sCH}, 12
    s_lshl_b32 s{sT1}, s{sHF}, 11
    s_add_u32 s{sT0}, s{sT0}, s{sT1}
    s_add_u32 s{sT0}, s{sT0}, {WS_KVR}
    s_lshl_b32 s{sT1}, s2, 2
    s_load_dword s{sD}, {sr(S_SSMD,2)}, s{sT1}
    """)
    a.vmem(f"buffer_load_dwordx4 {vr(vU,4)}, v{vLB}, {sr(R_WS,4)}, s{sT0} offen sc1", "U")
    a.vmem(f"buffer_load_dwordx4 {vr(vU+4,4)}, v{vLB}, {sr(R_WS,4)}, s{sT0} offen offset:1024 sc1", "U")
    gemm1_epilogue(a)
    a.stamp()
    vE_, vO_, vO2 = 44, 50, 56
    vAA, vBA = 3, 4
    vF, vB, vAC = 64, 112, 208
    a(f"""
    v_mov_b32 v{vE_}, 0
    v_mov_b32 v{vE_+1}, 0
    v_mov_b32 v{vE_+2}, 0
    v_mov_b32 v{vE_+3}, 0
    v_lshrrev_b32 v{c+1}, 4, v{vL}
    s_lshl_b32 s{sT0}, s{sHF}, 2
    v_add_u32 v{c+1}, s{sT0}, v{c+1}
    v_mul_u32_u24 v{c+1}, {CV_UP}, v{c+1}
    v_and_b32 v{c+2}, 15, v{vL}
    v_lshl_add_u32 v{c+1}, v{c+2}, 4, v{c+1}
    v_add_u32 v{c+1}, s{sUB}, v{c+1}
    ds_write_b128 v{c+1}, {vr(vE_,4)}
    v_and_b32 v{c+1}, 7, v{vL}
    v_xor_b32 v{c+1}, 4, v{c+1}
    v_mul_u32_u24 v{c+1}, {CV_UP}, v{c+1}
    v_lshrrev_b32 v{c+2}, 3, v{vL}
    v_lshlrev_b32 v{c+2}, 4, v{c+2}
    v_sub_u32 v{c+1}, v{c+1}, v{c+2}
    s_lshl_b32 s{sT0}, s{sHF}, 8
    s_sub_u32 s{sT0}, s{sUB}, s{sT0}
    s_add_u32 s{sT0}, s{sT0}, {(47-8)*16}
    v_add_u32 v{c+1}, s{sT0}, v{c+1}
    """)
    a.vm_wait("U")
    a(f"""
    ds_write_b128 v{c+1}, {vr(vU,4)} offset:128
    ds_write_b128 v{c+1}, {vr(vU+4,4)}
    v_and_b32 v{c+1}, 15, v{vL}
    v_lshrrev_b32 v{c+2}, 4, v{vL}
    v_mul_u32_u24 v{vBA}, {CV_UP}, v{c+2}
    v_lshl_add_u32 v{vBA}, v{c+1}, 4, v{vBA}
    v_add_u32 v{vBA}, s{sUB}, v{vBA}
    v_lshrrev_b32 v{c+3}, 2, v{c+1}
    v_add_u32 v{c+3}, v{c+3}, v{c+2}
    v_lshlrev_b32 v{c+3}, 4, v{c+3}
    v_add_u32 v{c+3}, s{sAB}, v{c+3}
    v_and_b32 v{c+4}, 3, v{vL}
    v_add_u32 v{c+5}, s{sAB}, v{vLB}
    v_mov_b32 v{c+2}, {L_FLAG}
    s_lshl_b32 s{sT0}, s{sCHL}, 4
    v_add_u32 v{c+2}, s{sT0}, v{c+2}
    v_mov_b32 v{c+6}, 1
    s_waitcnt lgkmcnt(0)
    """)
    for i in range(32):
        a(f"v_mov_b32 v{vAC+i}, 0")
    a(f"s_cmp_eq_u32 s{sHF}, 1")
    a("s_cbranch_scc1 C_HALF1")
    vm_save = list(a.vm)
    nst_save = a.nst
    for half in range(2):
        if half:
            a.label("C_HALF1")
            a.vm = list(vm_save)
            a.nst = nst_save
        own, oth = half, half ^ 1
        a(f"ds_write_b32 v{c+2}, v{c+6} offset:{4*own}")
        st = CV_ST[half]
        g0 = (-4, 88)[half]
        nsl = (99, 167)[half]
        a(f"v_mul_u32_u24 v{vAA}, {st}, v{c+4}")
        a(f"v_add_u32 v{vAA}, v{vAA}, v{c+3}")
        nr = (nsl + 63) // 64
        for rho in range(nr):
            d = vD + 8 * rho
            for i in range(6):
                a(f"v_mov_b32 v{vE_+i}, v{d+1+i}")
            for i in range(6):
                a(f"v_alignbit_b32 v{vO_+i}, v{d+i+1}, v{d+i}, 16")
            for i in range(6):
                a(f"v_alignbit_b32 v{vO2+i}, v{d+i+2}, v{d+i+1}, 16")
            last = rho == nr - 1
            if last:
                rem = nsl - 64 * rho
                a(f"s_mov_b32 exec_hi, {hex((1 << (rem - 32)) - 1)}")
            srcs = [vO_, vE_, vO2, d + 2, vO_ + 2, vE_ + 2, vO2 + 2, d + 4]
            for cc in range(8):
                a(f"ds_write_b128 v{c+5}, {vr(srcs[cc],4)} offset:{cc*st+rho*1024}")
            if last:
                a("s_mov_b64 exec, -1")
            else:
                a("s_nop 1")
        h_flag(a, c + 7)
        a.stamp()
        Lp, Lok = f"C_UPOLL{half}", f"C_UPOLL_OK{half}"
        a(f"s_mov_b32 s{sSP}, 0")
        a.label(Lp)
        a(f"""
        ds_read_b32 v{c+7}, v{c+2} offset:{4*oth}
        s_add_u32 s{sSP}, s{sSP}, 1
        s_cmp_gt_u32 s{sSP}, 0x100000
        s_cbranch_scc1 {Lok}
        s_waitcnt lgkmcnt(0)
        v_readfirstlane_b32 s{sSP+1}, v{c+7}
        s_cmp_eq_u32 s{sSP+1}, 0
        s_cbranch_scc1 {Lp}
        """)
        a.label(Lok)
        a("s_waitcnt lgkmcnt(0)")
        a.stamp()

        def F(psi, par):
            return vF + 8 * (psi % 6) + 4 * par

        def rdA(psi):
            for par in range(2):
                a(f"ds_read_b128 {vr(F(psi,par),4)}, v{vAA} offset:{par*4*st+(4*psi-4-g0)*16}")
            return 2

        def nus(dl):
            return (0, 1) if dl < 16 else (1,)

        def rdB(dl):
            n = 0
            for kc in range(2):
                for nu in nus(dl):
                    a(f"ds_read_b128 {vr(vB+16*(dl&1)+8*kc+4*nu,4)}, v{vBA} offset:{kc*4*CV_UP+(16+16*nu-dl)*16}")
                    n += 1
            return n

        dls = list(range(0, 12)) if half == 0 else list(range(12, 32))
        if half:
            rdA(2 * dls[0] - 1)
        rdA(2 * dls[0]); rdA(2 * dls[0] + 1); rdB(dls[0])
        for dl in dls:
            n = 0
            if dl != dls[-1]:
                n += rdA(2 * dl + 2); n += rdA(2 * dl + 3); n += rdB(dl + 1)
            a(f"s_waitcnt lgkmcnt({n})")
            for kc in range(2):
                for p in range(2):
                    psi = 2 * dl + p - kc
                    if psi < 0:
                        continue
                    for par in range(2):
                        for nu in nus(dl):
                            acc = vAC + 16 * nu + 8 * p + 4 * par
                            a(f"v_mfma_f32_16x16x32_bf16 {vr(acc,4)}, {vr(F(psi,par),4)}, {vr(vB+16*(dl&1)+8*kc+4*nu,4)}, {vr(acc,4)}")
        a.stamp()
        a(f"v_add_u32 v{c+1}, s{sPB}, v{vLB}")
        a("s_nop 7")
        for q in range(4):
            a(f"ds_write_b128 v{c+5}, {vr(vAC+16*oth+4*q,4)} offset:{1024*q}")
        a("s_waitcnt lgkmcnt(0)")
        a(f"ds_write_b32 v{c+2}, v{c+6} offset:{8+4*own}")
        a(f"""
        v_lshrrev_b32 v{c+3}, 4, v{vL}
        v_sub_u32 v{c+4}, 3, v{c+3}
        v_mul_u32_u24 v{c+4}, {CV_UP}, v{c+4}
        v_and_b32 v{c+7}, 15, v{vL}
        v_lshl_add_u32 v{c+4}, v{c+7}, 4, v{c+4}
        v_add_u32 v{c+4}, s{sUB}, v{c+4}
        ds_read_b128 {vr(vU,4)}, v{c+4} offset:{(16+16*own)*16}
        ds_read_b128 {vr(vU+4,4)}, v{c+4} offset:{4*CV_UP+(16+16*own)*16}
        v_lshlrev_b32 v{c+7}, 7, v{c+7}
        v_lshl_add_u32 v{c+7}, v{c+3}, 4, v{c+7}
        s_lshl_b32 s{sT0}, s{sCH}, 12
        s_add_u32 s{sT0}, s{sT0}, {WS_T + own*2048}
        s_lshl_b32 s{sT1}, s{sCHL}, 4
        s_lshr_b32 s{sD}, s{sD}, s{sT1}
        s_lshl_b32 s{sD}, s{sD}, 16
        s_waitcnt lgkmcnt(0)
        """)
        vK = vF
        for p in range(2):
            for dq in range(4):
                a(f"v_lshlrev_b32 v{vK+8*p+7-2*dq}, 16, v{vU+4*p+dq}")
                a(f"v_and_b32 v{vK+8*p+6-2*dq}, 0xffff0000, v{vU+4*p+dq}")
        for i in range(16):
            a(f"v_mul_f32 v{vK+i}, s{sD}, v{vK+i}")
        for i in range(8):
            round_pair(a, vK + 2 * i, vK + 2 * i + 1)
        Lp, Lok = f"C_XPOLL{half}", f"C_XPOLL_OK{half}"
        a(f"s_mov_b32 s{sSP}, 0")
        a.label(Lp)
        a(f"""
        ds_read_b32 v{c+3}, v{c+2} offset:{8+4*oth}
        s_add_u32 s{sSP}, s{sSP}, 1
        s_cmp_gt_u32 s{sSP}, 0x100000
        s_cbranch_scc1 {Lok}
        s_waitcnt lgkmcnt(0)
        v_readfirstlane_b32 s{sSP+1}, v{c+3}
        s_cmp_eq_u32 s{sSP+1}, 0
        s_cbranch_scc1 {Lp}
        """)
        a.label(Lok)
        a.stamp()
        vR = vD
        for q in range(4):
            a(f"ds_read_b128 {vr(vR+4*q,4)}, v{c+1} offset:{1024*q}")
        a("s_waitcnt lgkmcnt(0)")
        y = vAC + 16 * own
        for i in range(8):
            a(f"v_pk_add_f32 {vr(y+2*i,2)}, {vr(y+2*i,2)}, {vr(vR+2*i,2)}")
        for i in range(8):
            round_pair(a, y + 2 * i, y + 2 * i + 1)
        for i in range(8):
            a(f"v_pk_add_f32 {vr(y+2*i,2)}, {vr(y+2*i,2)}, {vr(vK+2*i,2)}")
        for i in range(8):
            a(f"v_cvt_pk_bf16_f32 v{vB+i}, v{y+2*i}, v{y+2*i+1}")
        a(f"buffer_store_dwordx4 {vr(vB,4)}, v{c+7}, {sr(R_WS,4)}, s{sT0} offen sc1")
        a(f"buffer_store_dwordx4 {vr(vB+4,4)}, v{c+7}, {sr(R_WS,4)}, s{sT0} offen offset:64 sc1")
        a(f"""
        s_lshl_b32 s{sT1}, s{sCH}, 2
        s_add_u32 s{sT1}, s{sT1}, {WS_FLT + own*448*4}
        """)
        a.stamp()
        a("s_waitcnt vmcnt(0)")
        a.stamp()
        a(f"""
        s_mov_b64 exec, 1
        buffer_store_dword v{c+6}, v{vZ}, {sr(R_WS,4)}, s{sT1} offen sc1
        """)
        a.stamp_flush()
        a("s_endpgm")


def role_prep(a):
    R_K, R_V, R_SH = R_A, R_B, 68
    sB = 4
    vTID = 0
    vTB, vCG = 3, 4
    vO0, vO1, vOH, vOS = 5, 6, 7, 8
    t = 9
    vXS = 16
    vWC = 44
    vKR = 100
    vVR = 144
    vSH = 176
    vCA = 192
    a(f"""
    s_sub_u32 s{sB}, s2, 224
    v_mul_u32_u24 v{vTB}, 1171, v{vTID}
    v_lshrrev_b32 v{vTB}, 16, v{vTB}
    v_mul_u32_u24 v{vCG}, 56, v{vTB}
    v_sub_u32 v{vCG}, v{vTID}, v{vCG}
    s_lshl_b32 s5, s{sB}, 6
    v_lshl_add_u32 v{vO0}, v{vTB}, 3, s5
    v_mul_u32_u24 v{vO0}, 896, v{vO0}
    v_lshl_add_u32 v{vO0}, v{vCG}, 4, v{vO0}
    v_add_u32 v{vO1}, {4*896}, v{vO0}
    v_subrev_u32 v{vOH}, {3*896}, v{vO0}
    v_lshlrev_b32 v{vOS}, 6, v{vCG}
    v_lshrrev_b32 v{t}, 3, v{vTID}
    v_add_u32 v{t}, s5, v{t}
    v_mul_u32_u24 v{t+1}, 896, v{t}
    v_and_b32 v{t+2}, 7, v{vTID}
    v_lshl_add_u32 v{t+1}, v{t+2}, 4, v{t+1}
    s_cmp_ge_u32 s{sB}, 14
    s_cselect_b32 s6, 14, 0
    s_sub_u32 s6, s{sB}, s6
    v_lshrrev_b32 v{t+3}, 4, v{vTID}
    v_mul_u32_u24 v{t+3}, 3584, v{t+3}
    v_and_b32 v{t+4}, 15, v{vTID}
    v_lshl_add_u32 v{t+3}, v{t+4}, 4, v{t+3}
    s_lshl_b32 s7, s6, 8
    v_mov_b32 v{vZ+180}, 0
    s_waitcnt lgkmcnt(0)
    """)
    vZZ = vZ + 180
    srd(a, R_X, S_X, SZ_X)
    a(f"""
    s_cmp_ge_u32 s{sB}, 14
    s_cselect_b32 s{R_W}, s{S_WU}, s{S_WG}
    s_cselect_b32 s{R_W+1}, s{S_WU+1}, s{S_WG+1}
    s_and_b32 s{R_W+1}, s{R_W+1}, 0xffff
    s_mov_b32 s{R_W+2}, {SZ_W}
    s_mov_b32 s{R_W+3}, 0x20000
    s_cmp_ge_u32 s{sB}, 28
    s_cselect_b32 s{R_W+2}, 0, s{R_W+2}
    """)
    for i in range(7):
        a.vmem(f"buffer_load_dwordx4 {vr(vXS+4*i,4)}, v{t+1}, {sr(R_X,4)}, 0 offen offset:{128*i}", "X")
    for i in range(14):
        a.vmem(f"buffer_load_dwordx4 {vr(vWC+4*i,4)}, v{t+3}, {sr(R_W,4)}, s7 offen", f"C{i}")
        if i < 13:
            a(f"s_add_u32 s7, s7, {32*3584}")
    srd(a, R_K, S_K, SZ_X)
    srd(a, R_V, S_V, SZ_X)
    srd(a, R_SH, S_SHK, SZ_SHK)
    srd(a, R_WS, S_WS, WS_END)
    srd(a, R_DBG, S_DBG, 256)
    a(f"""
    v_cmp_le_u32 vcc, 448, v{vTID}
    v_mov_b32 v{t+5}, 0x7f000000
    s_nop 0
    v_cndmask_b32 v{vO0}, v{vO0}, v{t+5}, vcc
    v_cndmask_b32 v{vO1}, v{vO1}, v{t+5}, vcc
    v_cndmask_b32 v{vOH}, v{vOH}, v{t+5}, vcc
    """)
    for i in range(4):
        a.vmem(f"buffer_load_dwordx4 {vr(vSH+4*i,4)}, v{vOS}, {sr(R_SH,4)}, 0 offen offset:{16*i}", "KV")
    for i in range(3):
        a.vmem(f"buffer_load_dwordx4 {vr(vKR+4*i,4)}, v{vOH}, {sr(R_K,4)}, 0 offen offset:{896*i}", "KV")
    for i in range(8):
        a.vmem(f"buffer_load_dwordx4 {vr(vKR+12+4*i,4)}, v{vO0 if i<4 else vO1}, {sr(R_K,4)}, 0 offen offset:{896*(i&3)}", "KV")
    for i in range(8):
        a.vmem(f"buffer_load_dwordx4 {vr(vVR+4*i,4)}, v{vO0 if i<4 else vO1}, {sr(R_V,4)}, 0 offen offset:{896*(i&3)}", "KV")
    a(f"""
    v_mov_b32 v{vCA}, 0
    v_mov_b32 v{vCA+1}, 0
    v_mov_b32 v{vCA+2}, 0
    v_mov_b32 v{vCA+3}, 0
    v_mov_b32 v{vCA+4}, 0
    v_mov_b32 v{vCA+5}, 0
    v_mov_b32 v{vCA+6}, 0
    v_mov_b32 v{vCA+7}, 0
    v_lshlrev_b32 v{t+5}, 4, v{vTID}
    v_cmp_gt_u32 vcc, 22, v{vTID}
    v_mov_b32 v{t+6}, 0x7f000000
    s_mul_i32 s7, s{sB}, {22*16}
    v_cndmask_b32 v{t+5}, v{t+6}, v{t+5}, vcc
    s_add_u32 s7, s7, {WS_FLT}
    """)
    a.vmem(f"buffer_store_dwordx4 {vr(vCA,4)}, v{t+5}, {sr(R_WS,4)}, s7 offen sc1", "Z")
    vS1, vS2, vONE = t + 5, t + 6, t + 4
    a(f"v_mov_b32 v{vS1}, 0")
    a(f"v_mov_b32 v{vS2}, 0")
    a(f"v_mov_b32 v{vONE}, 0x3f803f80")
    a.vm_wait("X")
    a.stamp()
    for i in range(28):
        a(f"v_dot2c_f32_bf16 v{vS1}, v{vXS+i}, v{vONE}")
        a(f"v_dot2c_f32_bf16 v{vS2}, v{vXS+i}, v{vXS+i}")
    a("s_nop 3")
    for mode in ("quad_perm:[1,0,3,2]", "quad_perm:[2,3,0,1]", "row_half_mirror"):
        a(f"v_add_f32_dpp v{vS1}, v{vS1}, v{vS1} {mode} row_mask:0xf bank_mask:0xf")
        a(f"v_add_f32_dpp v{vS2}, v{vS2}, v{vS2} {mode} row_mask:0xf bank_mask:0xf")
        a("s_nop 1")
    a(f"""
    s_mov_b32 s8, {f32bits(1.0/448.0)}
    s_mov_b32 s9, {f32bits(1e-5)}
    v_mul_f32 v{vS1}, s8, v{vS1}
    v_mul_f32 v{vS2}, s8, v{vS2}
    v_fma_f32 v{vS2}, -v{vS1}, v{vS1}, v{vS2}
    v_max_f32 v{vS2}, 0, v{vS2}
    v_cvt_pk_bf16_f32 v{vS2}, v{vS1}, v{vS2}
    v_lshlrev_b32 v{vXS}, 16, v{vS2}
    v_and_b32 v{vS2}, 0xffff0000, v{vS2}
    v_add_f32 v{vS2}, s9, v{vS2}
    v_cvt_pk_bf16_f32 v{vS2}, v{vS2}, v{vS2}
    v_and_b32 v{vS2}, 0xffff0000, v{vS2}
    v_sqrt_f32 v{vS2}, v{vS2}
    s_nop 0
    v_cvt_pk_bf16_f32 v{vS2}, v{vS2}, v{vS2}
    v_and_b32 v{vS2}, 0xffff0000, v{vS2}
    v_rcp_f32 v{vXS+1}, v{vS2}
    v_lshlrev_b32 v{t}, 3, v{t}
    v_cmp_eq_u32 vcc, 0, v{t+2}
    v_mov_b32 v{vS1}, 0x7f000000
    s_mov_b32 s7, {WS_STATS}
    v_cndmask_b32 v{t}, v{vS1}, v{t}, vcc
    """)
    a.vmem(f"buffer_store_dwordx2 {vr(vXS,2)}, v{t}, {sr(R_WS,4)}, s7 offen sc1", "Z")
    vUP = 20
    for i in range(14):
        a.vm_wait(f"C{i}")
        for d in range(4):
            a(f"v_lshlrev_b32 v{vUP+2*d}, 16, v{vWC+4*i+d}")
            a(f"v_and_b32 v{vUP+2*d+1}, 0xffff0000, v{vWC+4*i+d}")
        for d in range(4):
            a(f"v_pk_add_f32 {vr(vCA+2*d,2)}, {vr(vCA+2*d,2)}, {vr(vUP+2*d,2)}")
    a(f"""
    v_lshlrev_b32 v{t+5}, 5, v{vTID}
    v_add_u32 v{t+5}, 65536, v{t+5}
    ds_write_b128 v{t+5}, {vr(vCA,4)}
    ds_write_b128 v{t+5}, {vr(vCA+4,4)} offset:16
    v_and_b32 v{t+5}, 127, v{vTID}
    v_lshrrev_b32 v{t+6}, 7, v{vTID}
    v_lshlrev_b32 v{t+6}, 12, v{t+6}
    v_lshl_add_u32 v{t+6}, v{t+5}, 2, v{t+6}
    v_add_u32 v{t+6}, 65536, v{t+6}
    s_waitcnt lgkmcnt(0)
    s_barrier
    """)
    for i in range(8):
        a(f"ds_read_b32 v{vUP+i}, v{t+6} offset:{512*i}")
    a("s_waitcnt lgkmcnt(0)")
    for i in (0, 2, 4, 6):
        a(f"v_add_f32 v{vUP+i}, v{vUP+i}, v{vUP+i+1}")
    a(f"v_add_f32 v{vUP}, v{vUP}, v{vUP+2}")
    a(f"v_add_f32 v{vUP+4}, v{vUP+4}, v{vUP+6}")
    a(f"v_add_f32 v{vUP}, v{vUP}, v{vUP+4}")
    a(f"""
    v_lshlrev_b32 v{t+6}, 2, v{vTID}
    v_add_u32 v{t+6}, 98304, v{t+6}
    ds_write_b32 v{t+6}, v{vUP}
    v_lshlrev_b32 v{t+6}, 2, v{t+5}
    v_add_u32 v{t+6}, 98304, v{t+6}
    s_waitcnt lgkmcnt(0)
    s_barrier
    ds_read_b32 v{vUP}, v{t+6}
    ds_read_b32 v{vUP+1}, v{t+6} offset:512
    ds_read_b32 v{vUP+2}, v{t+6} offset:1024
    ds_read_b32 v{vUP+3}, v{t+6} offset:1536
    v_lshrrev_b32 v{t+6}, 4, v{t+5}
    v_lshlrev_b32 v{t+6}, 7, v{t+6}
    v_and_b32 v{t+5}, 15, v{t+5}
    v_lshl_add_u32 v{t+6}, v{t+5}, 2, v{t+6}
    v_cmp_gt_u32 vcc, 128, v{vTID}
    v_mov_b32 v{t+5}, 0x7f000000
    s_lshl_b32 s7, s6, 10
    v_cndmask_b32 v{t+6}, v{t+5}, v{t+6}, vcc
    s_cmp_ge_u32 s{sB}, 14
    s_cselect_b32 s8, 64, 0
    s_add_u32 s7, s7, s8
    s_add_u32 s7, s7, {WS_CS}
    s_cmp_ge_u32 s{sB}, 28
    s_cselect_b32 s7, 0x7f000000, s7
    s_waitcnt lgkmcnt(0)
    v_add_f32 v{vUP}, v{vUP}, v{vUP+1}
    v_add_f32 v{vUP+2}, v{vUP+2}, v{vUP+3}
    v_add_f32 v{vUP}, v{vUP}, v{vUP+2}
    """)
    a.vmem(f"buffer_store_dword v{vUP}, v{t+6}, {sr(R_WS,4)}, s7 offen sc1", "Z")
    a.vm_all()
    a.stamp()
    a(f"""
    s_barrier
    v_mov_b32 v{t+5}, 1
    s_cmp_lg_u32 s3, 0
    s_cbranch_scc1 P_NOSIG0
    s_mov_b64 exec, 1
    buffer_atomic_add v{t+5}, v{vZZ}, {sr(R_DBG,4)}, 0 offen sc1
    s_mov_b64 exec, -1
    """)
    a.label("P_NOSIG0")
    vWU, vKU, vAC, vVU, vG = 16, 48, 70, 86, 202
    vG = 204
    for cp in range(4):
        for h in range(2):
            cc = 2 * cp + h
            a(f"v_lshlrev_b32 v{vWU+8*cp+0+h}, 16, v{vSH+2*cc}")
            a(f"v_and_b32 v{vWU+8*cp+2+h}, 0xffff0000, v{vSH+2*cc}")
            a(f"v_lshlrev_b32 v{vWU+8*cp+4+h}, 16, v{vSH+2*cc+1}")
            a(f"v_and_b32 v{vWU+8*cp+6+h}, 0xffff0000, v{vSH+2*cc+1}")
    for cp in range(4):
        for r in range(11):
            a(f"v_lshlrev_b32 v{vKU+2*r}, 16, v{vKR+4*r+cp}")
            a(f"v_and_b32 v{vKU+2*r+1}, 0xffff0000, v{vKR+4*r+cp}")
        w = lambda j: vr(vWU + 8 * cp + 2 * j, 2)
        for r in range(8):
            ac = vr(vAC + 2 * r, 2)
            a(f"v_pk_mul_f32 {ac}, {vr(vKU+2*r,2)}, {w(3)}")
            a(f"v_pk_fma_f32 {ac}, {vr(vKU+2*(r+1),2)}, {w(2)}, {ac}")
            a(f"v_pk_fma_f32 {ac}, {vr(vKU+2*(r+2),2)}, {w(1)}, {ac}")
            a(f"v_pk_fma_f32 {ac}, {vr(vKU+2*(r+3),2)}, {w(0)}, {ac}")
            a(f"v_cvt_pk_bf16_f32 v{vAC+2*r+1}, v{vAC+2*r}, v{vAC+2*r+1}")
            a(f"v_lshlrev_b32 v{vVU}, 16, v{vVR+4*r+cp}")
            a(f"v_and_b32 v{vVU+1}, 0xffff0000, v{vVR+4*r+cp}")
            a(f"v_lshlrev_b32 v{vAC+2*r}, 16, v{vAC+2*r+1}")
            a(f"v_and_b32 v{vAC+2*r+1}, 0xffff0000, v{vAC+2*r+1}")
            a(f"v_pk_mul_f32 {ac}, {ac}, {vr(vVU,2)}")
        for h in range(2):
            cc = 2 * cp + h
            for q in range(4):
                a(f"v_cvt_pk_bf16_f32 v{vG+4*cc+q}, v{vAC+2*(7-2*q)+h}, v{vAC+2*(6-2*q)+h}")
    a(f"""
    v_sub_u32 v{vO0}, 7, v{vTB}
    v_and_b32 v{vO1}, 7, v{vCG}
    v_xor_b32 v{vO0}, v{vO0}, v{vO1}
    v_lshlrev_b32 v{vO0}, 4, v{vO0}
    v_lshl_add_u32 v{vO0}, v{vCG}, 10, v{vO0}
    s_cmp_eq_u32 s3, 7
    s_cbranch_scc1 P_SKIPW
    """)
    for cc in range(8):
        a(f"ds_write_b128 v{vO0}, {vr(vG+4*cc,4)} offset:{128*cc}")
    a.label("P_SKIPW")
    a(f"""
    s_waitcnt lgkmcnt(0)
    s_barrier
    v_lshlrev_b32 v{vO0}, 4, v{vTID}
    """)
    for i in range(7):
        a(f"ds_read_b128 {vr(vG+4*i,4)}, v{vO0} offset:{8192*i}")
    a(f"""
    v_lshrrev_b32 v{vO1}, 3, v{vTID}
    v_and_b32 v{vOH}, 7, v{vTID}
    v_lshrrev_b32 v{vOS}, 6, v{vTID}
    v_xor_b32 v{vOH}, v{vOH}, v{vOS}
    v_lshlrev_b32 v{vOH}, 4, v{vOH}
    v_lshl_add_u32 v{vO1}, v{vO1}, 12, v{vOH}
    s_lshl_b32 s5, s{sB}, 7
    s_sub_u32 s5, {WS_KVR + 3968}, s5
    """)
    for i in range(7):
        a(f"s_waitcnt lgkmcnt({6-i})")
        a(f"buffer_store_dwordx4 {vr(vG+4*i,4)}, v{vO1}, {sr(R_WS,4)}, s5 offen sc1")
        if i < 6:
            a(f"s_add_u32 s5, s5, {64*4096}")
    a.stamp()
    a("s_waitcnt vmcnt(0)")
    a.stamp()
    a(f"""
    s_barrier
    s_cmp_lg_u32 s3, 0
    s_cbranch_scc1 P_NOSIG1
    s_mov_b64 exec, 1
    buffer_atomic_add v{t+5}, v{vZZ}, {sr(R_DBG,4)}, 0 offen offset:128 sc1
    s_mov_b64 exec, -1
    """)
    a.label("P_NOSIG1")
    a.stamp_flush()
    a("s_endpgm")


def gen(a):
    a.lines.append(f".globl {KNAME}\n.p2align 8\n.type {KNAME},@function")
    a.label(KNAME)
    a("s_cmp_ge_u32 s2, 256")
    a("s_cbranch_scc1 K_END")
    a.stamp()
    a("""
    s_load_dwordx16 s[16:31], s[0:1], 0
    s_load_dwordx8 s[32:39], s[0:1], 64
    s_load_dwordx2 s[40:41], s[0:1], 96
    v_lshrrev_b32 v1, 6, v0
    v_and_b32 v2, 63, v0
    s_nop 0
    v_readfirstlane_b32 s3, v1
    s_cmp_ge_u32 s2, 224
    s_cbranch_scc1 K_PREP
    """)
    gemm1_setup(a)
    a("s_waitcnt lgkmcnt(0)")
    srd(a, R_X, S_X, SZ_X)
    a(f"""
    s_cmp_eq_u32 s{sRH}, 0
    s_cselect_b32 s{R_W}, s{S_WG}, s{S_WU}
    s_cselect_b32 s{R_W+1}, s{S_WG+1}, s{S_WU+1}
    s_and_b32 s{R_W+1}, s{R_W+1}, 0xffff
    s_mov_b32 s{R_W+2}, {SZ_W}
    s_mov_b32 s{R_W+3}, 0x20000
    """)
    a.stamp()
    dma_stage(a, 0)
    gemm1_setup2(a)
    a(f"v_mov_b32 v{vT}, {L_FLAG}")
    a(f"ds_write_b128 v{vT}, {vr(vACC,4)}")
    a(f"ds_write_b128 v{vT}, {vr(vACC,4)} offset:16")
    a(f"ds_write_b128 v{vT}, {vr(vACC,4)} offset:32")
    srd(a, R_WS, S_WS, WS_END)
    srd(a, R_DBG, S_DBG, 256)
    a("s_barrier")
    dma_stage(a, 1)
    dma_stage(a, 2)
    a.stamp()
    a.vm_wait("A0")
    a("s_waitcnt lgkmcnt(0)")
    a("s_barrier")
    a.stamp()
    a("s_cmp_ge_u32 s3, 4")
    a("s_cbranch_scc1 K_ROLEC")
    vm_save, nst_save = list(a.vm), a.nst
    role_g(a)
    a.label("K_ROLEC")
    a.vm, a.nst = list(vm_save), nst_save
    role_c(a)
    a.label("K_PREP")
    a.vm, a.nst = [], 1
    role_prep(a)
    a.label("K_END")
    a("s_endpgm")


def descriptor(name, vgpr, sgpr):
    acc = (vgpr + 3) // 4 * 4
    return f""".amdhsa_kernel {name}
  .amdhsa_next_free_vgpr {vgpr}
  .amdhsa_next_free_sgpr {sgpr}
  .amdhsa_accum_offset {acc}
  .amdhsa_group_segment_fixed_size 0
  .amdhsa_kernarg_size 104
  .amdhsa_user_sgpr_count 2
  .amdhsa_user_sgpr_kernarg_segment_ptr 1
  .amdhsa_system_sgpr_workgroup_id_x 1
  .amdhsa_float_denorm_mode_32 3
.end_amdhsa_kernel
"""


def main():
    HEADER = open("cdna_kernels/" + NAME + ".s.ref").read().split("; Override launch")[0]
    a = Asm()
    gen(a)
    out = HEADER
    out += f"; @launch grid=(256,1,1) block=(512,1,1) lds={LDS_BYTES}\n"
    out += '.amdgcn_target "amdgcn-amd-amdhsa--gfx950"\n.text\n'
    out += a.text()
    out += '.section .rodata,"a"\n.p2align 6\n'
    out += descriptor(KNAME, 256, 102)
    path = sys.argv[1] if len(sys.argv) > 1 else "cdna_kernels/" + NAME + ".s"
    open(path, "w").write(out)


if __name__ == "__main__":
    main()
```

```python
import sys, os, struct
from gen2 import (Asm, vr, sr, srd, round_pair, newlabel, f32bits, descriptor, NAME, KNAME, PROF,
                  S_X, S_K, S_V, S_SHK, S_SSMK, S_SSMD, S_WG, S_WU, S_WD, S_OUT, S_DBG, S_WS,
                  R_X, R_W, R_WS, R_DBG, R_A, R_B, SZ_X, SZ_W, SZ_SHK,
                  WS_H, WS_KVR, WS_T, WS_STATS, WS_CS)

WS_FLT = 0xA88000
WS_FLH = 0xA8A000
WS_FLEND = 0xA8C000
WS_END = 0xA8C000

SLOT = 49152
WENT = [49152 + 16384 * i for i in range(7)]
CV_ST = 4160
CV_A = (0, 4 * CV_ST)
CV_U = 8 * CV_ST
CV_UP = 768
LDS_BYTES = 163840

sRB, sCB, sE, sT0, sT1, sRH, sCQ = 4, 5, 6, 7, 8, 9, 10
sXO, sWO, sM0X, sM0W, sTMP = 11, 12, 13, 14, 15
sSP = 42
s2RB, s2CB, sCH, sUB, sAB, sD, sW2 = 18, 19, 20, 21, 22, 23, 28
sWB, sOK0, sOK1, sHO = 29, 68, 69, 70
R_WD, R_O, R_H = R_A, R_B, 92

vL = 2
vXG0, vXG1, vWG = 3, 4, 5
vXA, vWA = 6, 10
vXR, vWR0, vWR1 = 12, 13, 14
vT = 15
vZ, vPOLL, vPOLL1 = 20, 21, 22
vSTAT = 24
vFR = 28
vACC = 64
vCS = 160
vD = 192
vU = 208
vC = 228
vLB, vWD, vHO = 1, 0, 19
vR2 = 60


R_K, R_V, R_SH = 76, 80, 84
uK, uV, uW, uX = 160, 167, 172, 176
uA = 180
uKU, uWU, uAC, uVU, uO = 186, 200, 208, 216, 218
uS = 222


def unit_loads(a):
    srd(a, R_K, S_K, SZ_X)
    srd(a, R_V, S_V, SZ_X)
    srd(a, R_SH, S_SHK, SZ_SHK)
    a(f"""
    v_cmp_le_u32 vcc, 28, v{vL}
    v_mov_b32 v{uA+4}, 0x7f000000
    s_mul_i32 s{sT0}, s3, 112
    v_cndmask_b32 v{uA}, 0, 1, vcc
    v_mul_u32_u24 v{uA+1}, 28, v{uA}
    v_sub_u32 v{uA+1}, v{vL}, v{uA+1}
    s_mul_i32 s{sT1}, s2, {8*896}
    s_add_u32 s{sT1}, s{sT1}, s{sT0}
    v_mul_u32_u24 v{uA+2}, {4*896}, v{uA}
    v_lshl_add_u32 v{uA+2}, v{uA+1}, 2, v{uA+2}
    v_add_u32 v{uA+2}, s{sT1}, v{uA+2}
    v_cmp_le_u32 vcc, 56, v{vL}
    v_subrev_u32 v{uA+3}, {3*896}, v{uA+2}
    s_mul_i32 s{sT0}, s3, {56*8}
    v_cndmask_b32 v{uA+2}, v{uA+2}, v{uA+4}, vcc
    v_cndmask_b32 v{uA+3}, v{uA+3}, v{uA+4}, vcc
    v_lshl_add_u32 v{uA+5}, v{uA+1}, 4, s{sT0}
    s_lshl_b32 s{sT0}, s2, 3
    s_add_u32 s{sT0}, s{sT0}, s3
    s_mul_i32 s{sT0}, s{sT0}, 896
    v_lshl_add_u32 v{uS}, v{vL}, 4, s{sT0}
    v_cndmask_b32 v{uS}, v{uS}, v{uA+4}, vcc
    """)
    a.vmem(f"buffer_load_dwordx4 {vr(uX,4)}, v{uS}, {sr(R_X,4)}, 0 offen", "UX")
    a.vmem(f"buffer_load_dwordx4 {vr(uW,4)}, v{uA+5}, {sr(R_SH,4)}, 0 offen", "UK")
    for i in range(3):
        a.vmem(f"buffer_load_dword v{uK+i}, v{uA+3}, {sr(R_K,4)}, 0 offen offset:{896*i}", "UK")
    for i in range(4):
        a.vmem(f"buffer_load_dword v{uK+3+i}, v{uA+2}, {sr(R_K,4)}, 0 offen offset:{896*i}", "UK")
    for i in range(4):
        a.vmem(f"buffer_load_dword v{uV+i}, v{uA+2}, {sr(R_V,4)}, 0 offen offset:{896*i}", "UK")


def unit_pieces(a):
    P = []

    def st1():
        a.vm_wait("UX")
        a(f"v_mov_b32 v{uS}, 0")
        a(f"v_mov_b32 v{uS+1}, 0")
        a(f"v_mov_b32 v{uS+2}, 0x3f803f80")
        for i in range(4):
            a(f"v_dot2c_f32_bf16 v{uS}, v{uX+i}, v{uS+2}")
            a(f"v_dot2c_f32_bf16 v{uS+1}, v{uX+i}, v{uX+i}")
        a("s_nop 2")

    def st2():
        for mode in ("quad_perm:[1,0,3,2]", "quad_perm:[2,3,0,1]", "row_half_mirror", "row_mirror"):
            a(f"v_add_f32_dpp v{uS}, v{uS}, v{uS} {mode} row_mask:0xf bank_mask:0xf")
            a(f"v_add_f32_dpp v{uS+1}, v{uS+1}, v{uS+1} {mode} row_mask:0xf bank_mask:0xf")
            a("s_nop 0")
        a(f"v_mov_b32 v{uS+2}, v{uS}")
        a(f"v_mov_b32 v{uS+3}, v{uS+1}")
        a("s_nop 1")
        a(f"v_permlane16_swap_b32 v{uS}, v{uS+2}")
        a(f"v_permlane16_swap_b32 v{uS+1}, v{uS+3}")
        a("s_nop 1")
        a(f"v_add_f32 v{uS}, v{uS}, v{uS+2}")
        a(f"v_add_f32 v{uS+1}, v{uS+1}, v{uS+3}")

    def st3():
        a(f"v_mov_b32 v{uS+2}, v{uS}")
        a(f"v_mov_b32 v{uS+3}, v{uS+1}")
        a("s_nop 1")
        a(f"v_permlane32_swap_b32 v{uS}, v{uS+2}")
        a(f"v_permlane32_swap_b32 v{uS+1}, v{uS+3}")
        a("s_nop 1")
        a(f"""
        v_add_f32 v{uS}, v{uS}, v{uS+2}
        v_add_f32 v{uS+1}, v{uS+1}, v{uS+3}
        s_mov_b32 s{sT0}, {f32bits(1.0/448.0)}
        s_mov_b32 s{sT1}, {f32bits(1e-5)}
        v_mul_f32 v{uS}, s{sT0}, v{uS}
        v_mul_f32 v{uS+1}, s{sT0}, v{uS+1}
        v_fma_f32 v{uS+1}, -v{uS}, v{uS}, v{uS+1}
        v_max_f32 v{uS+1}, 0, v{uS+1}
        v_cvt_pk_bf16_f32 v{uS+1}, v{uS}, v{uS+1}
        v_lshlrev_b32 v{uS}, 16, v{uS+1}
        v_and_b32 v{uS+1}, 0xffff0000, v{uS+1}
        v_add_f32 v{uS+1}, s{sT1}, v{uS+1}
        """)

    def st4():
        a(f"""
        v_cvt_pk_bf16_f32 v{uS+1}, v{uS+1}, v{uS+1}
        v_and_b32 v{uS+1}, 0xffff0000, v{uS+1}
        v_sqrt_f32 v{uS+1}, v{uS+1}
        s_lshl_b32 s{sT0}, s2, 3
        v_cvt_pk_bf16_f32 v{uS+1}, v{uS+1}, v{uS+1}
        v_and_b32 v{uS+1}, 0xffff0000, v{uS+1}
        v_rcp_f32 v{uS+1}, v{uS+1}
        s_add_u32 s{sT0}, s{sT0}, s3
        s_lshl_b32 s{sT0}, s{sT0}, 3
        s_add_u32 s{sT0}, s{sT0}, {WS_STATS}
        s_mov_b64 exec, 1
        """)
        a.vmem(f"buffer_store_dwordx2 {vr(uS,2)}, v{vZ}, {sr(R_WS,4)}, s{sT0} offen sc1", "US")
        a("s_mov_b64 exec, -1")

    def k1():
        a.vm_wait("UK")
        for r in range(7):
            a(f"v_lshlrev_b32 v{uKU+2*r}, 16, v{uK+r}")
            a(f"v_and_b32 v{uKU+2*r+1}, 0xffff0000, v{uK+r}")

    def k2():
        for h in range(2):
            a(f"v_lshlrev_b32 v{uWU+0+h}, 16, v{uW+2*h}")
            a(f"v_and_b32 v{uWU+2+h}, 0xffff0000, v{uW+2*h}")
            a(f"v_lshlrev_b32 v{uWU+4+h}, 16, v{uW+2*h+1}")
            a(f"v_and_b32 v{uWU+6+h}, 0xffff0000, v{uW+2*h+1}")

    def krow(r):
        def f():
            for h in range(2):
                ac = uAC + 2 * r + h
                a(f"v_mul_f32 v{ac}, v{uKU+2*r+h}, v{uWU+6+h}")
                a(f"v_fmac_f32 v{ac}, v{uKU+2*(r+1)+h}, v{uWU+4+h}")
                a(f"v_fmac_f32 v{ac}, v{uKU+2*(r+2)+h}, v{uWU+2+h}")
                a(f"v_fmac_f32 v{ac}, v{uKU+2*(r+3)+h}, v{uWU+0+h}")
            a(f"v_cvt_pk_bf16_f32 v{uAC+2*r+1}, v{uAC+2*r}, v{uAC+2*r+1}")
            a(f"v_lshlrev_b32 v{uVU}, 16, v{uV+r}")
            a(f"v_and_b32 v{uVU+1}, 0xffff0000, v{uV+r}")
            a(f"v_lshlrev_b32 v{uAC+2*r}, 16, v{uAC+2*r+1}")
            a(f"v_and_b32 v{uAC+2*r+1}, 0xffff0000, v{uAC+2*r+1}")
            a(f"v_mul_f32 v{uAC+2*r}, v{uAC+2*r}, v{uVU}")
            a(f"v_mul_f32 v{uAC+2*r+1}, v{uAC+2*r+1}, v{uVU+1}")
        return f

    def k3():
        for h in range(2):
            a(f"v_cvt_pk_bf16_f32 v{uO+2*h}, v{uAC+6+h}, v{uAC+4+h}")
            a(f"v_cvt_pk_bf16_f32 v{uO+2*h+1}, v{uAC+2+h}, v{uAC+0+h}")
        a(f"""
        v_lshlrev_b32 v{uA+2}, 13, v{uA+1}
        v_lshlrev_b32 v{uA+3}, 3, v{uA}
        v_sub_u32 v{uA+2}, v{uA+2}, v{uA+3}
        v_cmp_le_u32 vcc, 56, v{vL}
        s_mul_i32 s{sT0}, s3, {56*4096}
        s_lshl_b32 s{sT1}, s2, 4
        v_add_u32 v{uA+2}, 8, v{uA+2}
        v_cndmask_b32 v{uA+2}, v{uA+2}, v{uA+4}, vcc
        s_sub_u32 s{sT0}, s{sT0}, s{sT1}
        s_add_u32 s{sT0}, s{sT0}, {WS_KVR + 4080}
        s_add_u32 s{sT1}, s{sT0}, 4096
        """)
        a.vmem(f"buffer_store_dwordx2 {vr(uO,2)}, v{uA+2}, {sr(R_WS,4)}, s{sT0} offen sc1", "US")
        a.vmem(f"buffer_store_dwordx2 {vr(uO+2,2)}, v{uA+2}, {sr(R_WS,4)}, s{sT1} offen sc1", "US")

    return [st1, st2, st3, st4, k1, k2, krow(0), krow(1), krow(2), krow(3), k3]


def unit_signal(a):
    L = newlabel("NOSIG")
    a(f"""
    s_cmp_lg_u32 s3, 0
    s_cbranch_scc1 {L}
    v_mov_b32 v{uS}, 1
    s_mov_b64 exec, 1
    buffer_store_byte v{uS}, v{vZ}, {sr(R_DBG,4)}, s2 offen sc1
    s_mov_b64 exec, -1
    """)
    a.label(L)


def poll_issue(a, vdst, tag):
    a(f"v_lshlrev_b32 v{vT+2}, 2, v{vL}")
    a.vmem(f"buffer_load_dword v{vdst}, v{vT+2}, {sr(R_DBG,4)}, 0 offen sc1", tag)


def check_counter(a, vpoll, sok):
    a(f"s_mov_b32 s{sT0}, 0x01010101")
    a(f"v_cmp_eq_u32 vcc, s{sT0}, v{vpoll}")
    a("s_nop 3")
    a("s_cmp_eq_u64 vcc, exec")
    a(f"s_cselect_b32 s{sok}, 1, 0")


def spin_reload(a, sok, reload_fn, vtmp):
    L, Ld, Lok = newlabel("SP"), newlabel("SPD"), newlabel("SPOK")
    a(f"s_cmp_lg_u32 s{sok}, 0")
    a(f"s_cbranch_scc1 {Lok}")
    a(f"s_mov_b32 s{sSP}, 0")
    a(f"v_lshlrev_b32 v{vT+2}, 2, v{vL}")
    a(f"s_mov_b32 s{sT0}, 0x01010101")
    a.label(L)
    a(f"""
    buffer_load_dword v{vtmp}, v{vT+2}, {sr(R_DBG,4)}, 0 offen sc1
    s_add_u32 s{sSP}, s{sSP}, 1
    s_waitcnt vmcnt(0)
    v_cmp_eq_u32 vcc, s{sT0}, v{vtmp}
    s_cmp_gt_u32 s{sSP}, 0x4000
    s_cbranch_scc1 {Ld}
    s_cmp_eq_u64 vcc, exec
    s_cbranch_scc1 {Ld}
    s_sleep 16
    s_branch {L}
    """)
    a.label(Ld)
    save = list(a.vm)
    reload_fn()
    a("s_waitcnt vmcnt(0)")
    a.vm = save
    a.label(Lok)


def gemm1_setup(a):
    a(f"""
    s_and_b32 s{sT0}, s2, 7
    s_lshr_b32 s{sT1}, s2, 3
    s_mul_i32 s{sRB}, s{sT1}, 37
    s_lshr_b32 s{sRB}, s{sRB}, 8
    s_mul_i32 s{sCB}, s{sRB}, 7
    s_sub_u32 s{sCB}, s{sT1}, s{sCB}
    s_and_b32 s{sT1}, s{sT0}, 3
    s_lshl_b32 s{sT1}, s{sT1}, 2
    s_add_u32 s{sRB}, s{sRB}, s{sT1}
    s_lshr_b32 s{sT1}, s{sT0}, 2
    s_mul_i32 s{sT1}, s{sT1}, 7
    s_add_u32 s{sCB}, s{sCB}, s{sT1}
    s_lshr_b32 s{sRH}, s3, 2
    s_and_b32 s{sCQ}, s3, 3
    v_lshrrev_b32 v{vT}, 3, v{vL}
    v_lshrrev_b32 v{vT+1}, 4, v{vL}
    v_and_b32 v{vT+2}, 7, v{vL}
    s_lshl_b32 s{sT0}, s{sRB}, 7
    s_lshl_b32 s{sT1}, s3, 4
    s_add_u32 s{sT0}, s{sT0}, s{sT1}
    v_add_u32 v{vT}, s{sT0}, v{vT}
    v_mul_u32_u24 v{vT}, 896, v{vT}
    v_xor_b32 v{vT+3}, v{vT+2}, v{vT+1}
    v_lshl_add_u32 v{vXG0}, v{vT+3}, 4, v{vT}
    v_xor_b32 v{vT+3}, 4, v{vT+3}
    v_lshl_add_u32 v{vXG1}, v{vT+3}, 4, v{vT}
    v_add_u32 v{vXG1}, {8*896}, v{vXG1}
    v_and_b32 v{vT+2}, 15, v{vL}
    v_lshlrev_b32 v{vT+3}, 2, v{vT+1}
    v_xor_b32 v{vT+2}, v{vT+2}, v{vT+3}
    s_lshl_b32 s{sT0}, s{sRH}, 1
    v_xor_b32 v{vT+2}, s{sT0}, v{vT+2}
    s_lshl_b32 s{sT1}, s{sCQ}, 4
    v_add_u32 v{vT+3}, s{sT1}, v{vT+1}
    v_mul_u32_u24 v{vT+3}, 3584, v{vT+3}
    v_lshl_add_u32 v{vWG}, v{vT+2}, 4, v{vT+3}
    s_lshl_b32 s{sT0}, s{sCB}, 8
    v_add_u32 v{vWG}, s{sT0}, v{vWG}
    s_lshl_b32 s{sM0X}, s3, 11
    s_lshl_b32 s{sM0W}, s3, 12
    s_add_u32 s{sM0W}, s{sM0W}, 16384
    """)


def gemm1_setup2(a):
    a(f"""
    v_and_b32 v{vT}, 31, v{vL}
    v_lshrrev_b32 v{vT+1}, 5, v{vL}
    v_bfe_u32 v{vT+2}, v{vL}, 1, 3
    v_xor_b32 v{vT+2}, v{vT+2}, v{vT+1}
    s_lshl_b32 s{sT1}, s{sRH}, 6
    v_add_u32 v{vT}, s{sT1}, v{vT}
    v_lshlrev_b32 v{vT}, 7, v{vT}
    v_lshl_add_u32 v{vXA}, v{vT+2}, 4, v{vT}
    v_xor_b32 v{vXA+1}, 32, v{vXA}
    v_xor_b32 v{vXA+2}, 64, v{vXA}
    v_xor_b32 v{vXA+3}, 96, v{vXA}
    v_bfe_u32 v{vT}, v{vL}, 4, 1
    v_bfe_u32 v{vT+2}, v{vL}, 2, 2
    v_bfe_u32 v{vT+3}, v{vL}, 1, 1
    s_lshl_b32 s{sT0}, s{sCQ}, 2
    v_or_b32 v{vT+3}, s{sT0}, v{vT+3}
    v_lshlrev_b32 v{vT+4}, 2, v{vT+2}
    v_xor_b32 v{vT+3}, v{vT+3}, v{vT+4}
    v_lshlrev_b32 v{vT+4}, 1, v{vT}
    v_xor_b32 v{vT+3}, v{vT+3}, v{vT+4}
    v_lshlrev_b32 v{vT+3}, 4, v{vT+3}
    v_and_b32 v{vT+4}, 1, v{vL}
    v_lshl_add_u32 v{vT+3}, v{vT+4}, 3, v{vT+3}
    v_lshl_add_u32 v{vT+2}, v{vT+1}, 3, v{vT+2}
    v_lshl_add_u32 v{vT+3}, v{vT+2}, 8, v{vT+3}
    v_add_u32 v{vT}, 1, v{vT}
    v_lshl_add_u32 v{vWA}, v{vT}, 14, v{vT+3}
    v_xor_b32 v{vWA+1}, 32, v{vWA}
    v_mov_b32 v{vZ}, 0
    v_lshlrev_b32 v{vLB}, 4, v{vL}
    """)
    for i in range(64):
        a(f"v_mov_b32 v{vACC+i}, 0")


def dma_pieces(a, st):
    slot = (st % 3) * SLOT
    P = []

    def px(i):
        def f():
            a(f"s_mov_b32 s{sXO}, {st*128}")
            a(f"s_add_u32 m0, s{sM0X}, {slot+1024*i}")
            a("s_nop 0")
            a.vmem(f"buffer_load_dwordx4 v{vXG1 if i else vXG0}, {sr(R_X,4)}, s{sXO} offen lds", f"A{st}")
        return f

    def pw(j):
        def f():
            a(f"s_mov_b32 s{sWO}, {st*64*3584 + j*4*3584}")
            a(f"s_add_u32 m0, s{sM0W}, {slot+1024*j}")
            a("s_nop 0")
            a.vmem(f"buffer_load_dwordx4 v{vWG}, {sr(R_W,4)}, s{sWO} offen lds", f"A{st}")
        return f
    return [px(0), px(1)] + [pw(j) for j in range(4)]


def wdma_pieces(a, s, ent):
    def p(j):
        def f():
            a(f"s_mov_b32 s{sW2}, {(32*s + 8*j)*896}")
            a(f"s_add_u32 m0, s{sWB}, {ent + j*1024}")
            a("s_nop 0")
            a.vmem(f"buffer_load_dwordx4 v{vWD}, {sr(R_WD,4)}, s{sW2} offen lds", f"W{s}")
        return f
    return [p(0), p(1)]


def frag(setno, which):
    return vFR + 16 * setno + 4 * which


def g1_reads(a, st, p, setno):
    slot = (st % 3) * SLOT
    if p == 0:
        a(f"v_add_u32 v{vWR0}, {slot}, v{vWA}")
        a(f"v_add_u32 v{vWR1}, {slot}, v{vWA+1}")
    a(f"v_add_u32 v{vXR}, {slot}, v{vXA+p}")
    a(f"ds_read_b64_tr_b16 {vr(frag(setno,2),2)}, v{vWR0} offset:{4096*p}")
    a(f"ds_read_b64_tr_b16 {vr(frag(setno,2)+2,2)}, v{vWR0} offset:{4096*p+1024}")
    a(f"ds_read_b128 {vr(frag(setno,0),4)}, v{vXR}")
    a(f"ds_read_b128 {vr(frag(setno,1),4)}, v{vXR} offset:4096")
    a(f"ds_read_b64_tr_b16 {vr(frag(setno,3),2)}, v{vWR1} offset:{4096*p}")
    a(f"ds_read_b64_tr_b16 {vr(frag(setno,3)+2,2)}, v{vWR1} offset:{4096*p+1024}")


def g1_mfmas(a, setno, fill, rate=2):
    x = [frag(setno, 0), frag(setno, 1)]
    w = [frag(setno, 2), frag(setno, 3)]
    for k, (mt, nt) in enumerate([(0, 0), (0, 1), (1, 1), (1, 0)]):
        acc = vACC + 16 * (2 * mt + nt)
        a(f"v_mfma_f32_32x32x16_bf16 {vr(acc,16)}, {vr(w[mt],4)}, {vr(x[nt],4)}, {vr(acc,16)}")
        if fill and (rate == 4 or k in (0, 2)):
            fill.pop(0)()


def stat_loads(a):
    a(f"""
    s_lshl_b32 s{sT0}, s{sRB}, 7
    s_lshl_b32 s{sT1}, s{sRH}, 6
    s_add_u32 s{sT0}, s{sT0}, s{sT1}
    v_and_b32 v{vT}, 31, v{vL}
    v_add_u32 v{vT}, s{sT0}, v{vT}
    v_lshlrev_b32 v{vT}, 3, v{vT}
    s_lshl_b32 s{sT0}, s{sCB}, 3
    s_lshl_b32 s{sT1}, s{sCQ}, 1
    s_add_u32 s{sT0}, s{sT0}, s{sT1}
    s_lshl_b32 s{sT0}, s{sT0}, 7
    s_add_u32 s{sT0}, s{sT0}, {WS_CS}
    s_mov_b32 s{sT1}, {WS_STATS}
    v_lshrrev_b32 v{vT+1}, 5, v{vL}
    v_lshlrev_b32 v{vT+1}, 4, v{vT+1}
    """)
    a.vmem(f"buffer_load_dwordx2 {vr(vSTAT,2)}, v{vT}, {sr(R_WS,4)}, s{sT1} offen sc1", "ST")
    a.vmem(f"buffer_load_dwordx2 {vr(vSTAT+2,2)}, v{vT}, {sr(R_WS,4)}, s{sT1} offen offset:256 sc1", "ST")
    for i in range(8):
        a.vmem(f"buffer_load_dwordx4 {vr(vCS+4*i,4)}, v{vT+1}, {sr(R_WS,4)}, s{sT0} offen offset:{32*i} sc1", "ST")


def kv_load(a):
    a(f"""
    s_lshl_b32 s{sT0}, s{sCH}, 12
    s_lshl_b32 s{sT1}, s{sCQ}, 10
    s_add_u32 s{sT0}, s{sT0}, s{sT1}
    s_add_u32 s{sT0}, s{sT0}, {WS_KVR}
    """)
    a.vmem(f"buffer_load_dwordx4 {vr(vU,4)}, v{vLB}, {sr(R_WS,4)}, s{sT0} offen sc1", "U")


def phase23_setup(a):
    u = vC
    a(f"""
    s_and_b32 s{sT0}, s2, 7
    s_lshr_b32 s{sT1}, s2, 3
    s_mul_i32 s{s2RB}, s{sT1}, 37
    s_lshr_b32 s{s2RB}, s{s2RB}, 8
    s_mul_i32 s{s2CB}, s{s2RB}, 7
    s_sub_u32 s{s2CB}, s{sT1}, s{s2CB}
    s_lshl_b32 s{sT1}, s{sT0}, 2
    s_add_u32 s{s2RB}, s{s2RB}, s{sT1}
    s_lshl_b32 s{sWB}, s{sCQ}, 12
    s_lshl_b32 s{sT0}, s{sRH}, 11
    s_add_u32 s{sWB}, s{sWB}, s{sT0}
    s_lshl_b32 s{sT0}, s{s2RB}, 1
    s_add_u32 s{sT0}, s{sT0}, s{sRH}
    s_mul_i32 s{sT0}, s{sT0}, 112
    s_mul_i32 s{sT1}, s{sCQ}, 28
    s_add_u32 s{sT0}, s{sT0}, s{sT1}
    s_lshl_b32 s{sT0}, s{sT0}, 10
    v_add_u32 v{vHO}, s{sT0}, v{vLB}
    v_lshrrev_b32 v{u}, 3, v{vL}
    s_mul_i32 s{sT0}, s{sCQ}, 448
    s_lshl_b32 s{sT1}, s{sRH}, 4
    s_add_u32 s{sT0}, s{sT0}, s{sT1}
    v_add_u32 v{u}, s{sT0}, v{u}
    v_mul_u32_u24 v{u}, 896, v{u}
    v_bfe_u32 v{u+1}, v{vL}, 4, 1
    v_lshlrev_b32 v{u+1}, 2, v{u+1}
    v_and_b32 v{u+2}, 7, v{vL}
    v_xor_b32 v{u+1}, v{u+1}, v{u+2}
    v_lshl_add_u32 v{vWD}, v{u+1}, 4, v{u}
    s_lshl_b32 s{sT0}, s{s2CB}, 7
    v_add_u32 v{vWD}, s{sT0}, v{vWD}
    s_lshl_b32 s{sCH}, s2, 1
    s_add_u32 s{sCH}, s{sCH}, s{sRH}
    s_mul_i32 s{sUB}, s{sRH}, {8*CV_UP}
    s_add_u32 s{sUB}, s{sUB}, {CV_U}
    s_mul_i32 s{sAB}, s{sRH}, {CV_A[1]}
    s_lshl_b32 s{sT0}, s{sCH}, 12
    s_add_u32 s{R_H}, s{S_SSMK}, s{sT0}
    s_addc_u32 s{R_H+1}, s{S_SSMK+1}, 0
    s_and_b32 s{R_H+1}, s{R_H+1}, 0xffff
    s_mov_b32 s{R_H+2}, 4096
    s_mov_b32 s{R_H+3}, 0x20000
    s_lshl_b32 s{sT1}, s{sCQ}, 10
    v_add_u32 v{u+1}, s{sT1}, v{vLB}
    v_subrev_u32 v{u+2}, 64, v{vLB}
    v_subrev_u32 v{u+3}, 48, v{vLB}
    """)
    srd(a, R_WD, S_WD, SZ_W)
    srd(a, R_O, S_OUT, SZ_X)


def win_pieces(a):
    u = vC
    return [
        lambda: a.vmem(f"buffer_load_dwordx4 {vr(vD,4)}, v{u+1}, {sr(R_H,4)}, 0 offen", "D"),
        lambda: a.vmem(f"buffer_load_dwordx4 {vr(vD+4,4)}, v{u+1}, {sr(R_H,4)}, 0 offen offset:16", "D"),
        lambda: a.vmem(f"buffer_load_dwordx4 {vr(vD+8,4)}, v{u+2}, {sr(R_H,4)}, 0 offen", "D"),
        lambda: a.vmem(f"buffer_load_dwordx4 {vr(vD+12,4)}, v{u+3}, {sr(R_H,4)}, 0 offen", "D"),
    ]


def flag_zero(a):
    a(f"""
    s_lshl_b32 s{sE}, s{sRB}, 1
    s_add_u32 s{sE}, s{sE}, s{sRH}
    s_mul_i32 s{sE}, s{sE}, 56
    s_lshl_b32 s{sT0}, s{sCB}, 2
    s_add_u32 s{sE}, s{sE}, s{sT0}
    s_add_u32 s{sE}, s{sE}, s{sCQ}
    s_lshl_b32 s{sE}, s{sE}, 2
    s_add_u32 s{sE}, s{sE}, {WS_FLH}
    s_lshl_b32 s{sTMP}, s{sCH}, 3
    s_lshr_b32 s{sT0}, s{sCQ}, 1
    s_mul_i32 s{sT0}, s{sT0}, 3584
    s_add_u32 s{sTMP}, s{sTMP}, s{sT0}
    s_and_b32 s{sT0}, s{sCQ}, 1
    s_lshl_b32 s{sT0}, s{sT0}, 2
    s_add_u32 s{sTMP}, s{sTMP}, s{sT0}
    s_add_u32 s{sTMP}, s{sTMP}, {WS_FLT}
    s_mov_b64 exec, 1
    """)
    a.vmem(f"buffer_store_dword v{vZ}, v{vZ}, {sr(R_WS,4)}, s{sE} offen sc1", "US")
    a.vmem(f"buffer_store_dword v{vZ}, v{vZ}, {sr(R_WS,4)}, s{sTMP} offen sc1", "US")
    a("s_mov_b64 exec, -1")


def gemm1_main(a):
    NST = 7
    g1_reads(a, 0, 0, 0)
    cur = 0
    fill = [lambda: phase23_setup(a), lambda: flag_zero(a)] + unit_pieces(a)
    for st in range(NST):
        for p in range(4):
            if p < 3:
                g1_reads(a, st, p + 1, cur ^ 1)
                a("s_waitcnt lgkmcnt(6)")
                g1_mfmas(a, cur, fill, 4 if st == 0 else 2)
            else:
                while fill:
                    fill.pop(0)()
                a("s_waitcnt lgkmcnt(0)")
                if st + 1 < NST:
                    a.vm_wait(f"A{st+1}")
                if st == 2:
                    a.vm_wait("US")
                a("s_barrier")
                if st + 1 < NST:
                    g1_reads(a, st + 1, 0, cur ^ 1)
                if st == 2:
                    fill += [lambda: unit_signal(a)]
                if st + 3 < NST:
                    fill += dma_pieces(a, st + 3)
                if st == 1:
                    fill += wdma_pieces(a, 6, WENT[6])
                if st == 3:
                    w = win_pieces(a)
                    fill += [lambda: [f() for f in w]]
                if st == 4:
                    for s_ in range(3):
                        fill += wdma_pieces(a, s_, WENT[s_])
                    fill += [lambda: poll_issue(a, vPOLL, "P0")]
                if st == 5:
                    def f5():
                        a.vm_wait("P0")
                        check_counter(a, vPOLL, sOK0)
                        stat_loads(a)
                        kv_load(a)
                    fill += wdma_pieces(a, 3, WENT[3])
                    fill += [f5]
                    for s_ in range(4, 6):
                        fill += wdma_pieces(a, s_, WENT[s_])
                g1_mfmas(a, cur, fill)
                if st in (3, 6):
                    a.stamp()
            cur ^= 1
    assert not fill


def gemm1_epilogue(a):
    a(f"s_lshl_b32 s{sT1}, s2, 2")
    a(f"s_load_dword s{sD}, {sr(S_SSMD,2)}, s{sT1}")
    a.vm_wait("U")
    spin_reload(a, sOK0, lambda: (stat_loads(a), kv_load(a)), vPOLL)
    a.stamp()
    a(f"""
    v_mul_f32 v{vR2}, v{vSTAT+1}, v{vSTAT+1}
    v_mul_f32 v{vR2+2}, v{vSTAT+3}, v{vSTAT+3}
    s_lshl_b32 s{sT0}, s{sRB}, 2
    s_lshl_b32 s{sT1}, s{sRH}, 1
    s_add_u32 s{sT0}, s{sT0}, s{sT1}
    s_mul_i32 s{sT0}, s{sT0}, 112
    s_lshl_b32 s{sT1}, s{sCB}, 3
    s_add_u32 s{sT0}, s{sT0}, s{sT1}
    s_lshl_b32 s{sT1}, s{sCQ}, 1
    s_add_u32 s{sT0}, s{sT0}, s{sT1}
    s_lshl_b32 s{sT0}, s{sT0}, 10
    s_add_u32 s{sT1}, s{sT0}, {112*1024}
    """)
    vH = 28
    k = 0
    for mt in range(2):
        for nt in range(2):
            acc = vACC + 16 * (2 * mt + nt)
            cs = vCS + 16 * mt
            m = vSTAT + 2 * nt
            for i in range(8):
                a(f"v_pk_fma_f32 {vr(acc+2*i,2)}, {vr(m,2)}, {vr(cs+2*i,2)}, {vr(acc+2*i,2)} op_sel_hi:[0,1,1] neg_lo:[1,0,0] neg_hi:[1,0,0]")
            for i in range(8):
                a(f"v_max_f32 v{acc+i}, 0, v{acc+i}")
            for i in range(4):
                a(f"v_pk_mul_f32 {vr(acc+8+2*i,2)}, {vr(acc+8+2*i,2)}, {vr(vR2+2*nt,2)} op_sel_hi:[1,0]")
            for i in range(4):
                a(f"v_pk_mul_f32 {vr(acc+2*i,2)}, {vr(acc+2*i,2)}, {vr(acc+8+2*i,2)}")
            o = vH + 4 * k
            for i in range(4):
                a(f"v_cvt_pk_bf16_f32 v{o+i}, v{acc+2*i}, v{acc+2*i+1}")
            a.vmem(f"buffer_store_dwordx4 {vr(o,4)}, v{vLB}, {sr(R_WS,4)}, s{sT1 if nt else sT0} offen offset:{mt*1024} sc1", "HS")
            k += 1


vONE = 23


def h_flag(a):
    a.vm_wait("HS")
    a("s_mov_b64 exec, 1")
    a.vmem(f"buffer_store_dword v{vONE}, v{vZ}, {sr(R_WS,4)}, s{sE} offen sc1", "HF")
    a("s_mov_b64 exec, -1")


vF, vB, vAC = 44, 80, 112
vHD = 144
HLD = int(os.environ.get("HLD", 1))
HFL = " sc1" if HLD == 0 else ""
HF_AT, HP_AT, HC_AT = int(os.environ.get("HF_AT", 16)), int(os.environ.get("HP_AT", 48)), int(os.environ.get("HC_AT", 64))


def hload(a, T):
    if T % 4 == 0:
        a(f"s_mov_b32 s{sHO}, {1024*T}")
    a.vmem(f"buffer_load_dwordx4 {vr(vHD+4*T,4)}, v{vHO}, {sr(R_WS,4)}, s{sHO} offen offset:{1024*(T%4)}{HFL}", f"H{T}")


def conv(a):
    c = vC
    vAA, vBA, vFA, vPA, vKA, vTA, vEX = 3, 4, 5, 6, 7, 8, 9
    vE_, vO_, vO2 = 232, 236, 240
    a(f"v_mov_b32 v{vONE}, 1")
    a(f"""
    s_lshl_b32 s{sT0}, s{sCQ}, 10
    s_add_u32 s{sT0}, s{sT0}, s{sAB}
    v_add_u32 v{c}, s{sT0}, v{vLB}
    v_add_u32 v{c+1}, s{sAB}, v{vLB}
    """)
    a.vm_wait("D")
    for rnd in range(2):
        d = vD + 8 * rnd
        for i in range(4):
            a(f"v_mov_b32 v{vE_+i}, v{d+1+i}")
        for i in range(4):
            a(f"v_alignbit_b32 v{vO_+i}, v{d+i+1}, v{d+i}, 16")
        for i in range(4):
            a(f"v_alignbit_b32 v{vO2+i}, v{d+i+2}, v{d+i+1}, 16")
        if rnd:
            a("s_mov_b64 exec, 15")
        srcs = [vO_, vE_, vO2, d + 2]
        for cc in range(4):
            a(f"ds_write_b128 v{c+rnd}, {vr(srcs[cc],4)} offset:{cc*CV_ST + (0 if rnd else 64)}")
        if rnd:
            a("s_mov_b64 exec, -1")
        else:
            a("s_nop 1")
    a(f"""
    v_mov_b32 v{vAC}, 0
    v_mov_b32 v{vAC+1}, 0
    v_mov_b32 v{vAC+2}, 0
    v_mov_b32 v{vAC+3}, 0
    v_bfe_u32 v{c+1}, v{vL}, 4, 1
    s_lshl_b32 s{sT0}, s{sCQ}, 1
    v_add_u32 v{c+1}, s{sT0}, v{c+1}
    v_mul_u32_u24 v{c+1}, {CV_UP}, v{c+1}
    v_and_b32 v{c+2}, 15, v{vL}
    v_lshl_add_u32 v{c+1}, v{c+2}, 4, v{c+1}
    v_add_u32 v{c+1}, s{sUB}, v{c+1}
    ds_write_b128 v{c+1}, {vr(vAC,4)}
    v_and_b32 v{c+1}, 7, v{vL}
    v_xor_b32 v{c+1}, 4, v{c+1}
    v_mul_u32_u24 v{c+1}, {CV_UP}, v{c+1}
    v_lshrrev_b32 v{c+3}, 3, v{vL}
    v_lshlrev_b32 v{c+3}, 4, v{c+3}
    v_sub_u32 v{c+1}, v{c+1}, v{c+3}
    s_lshl_b32 s{sT0}, s{sCQ}, 7
    s_sub_u32 s{sT0}, s{sUB}, s{sT0}
    s_add_u32 s{sT0}, s{sT0}, {47*16}
    v_add_u32 v{c+1}, s{sT0}, v{c+1}
    v_lshrrev_b32 v{c+3}, 4, v{vL}
    v_mul_u32_u24 v{vBA}, {CV_UP}, v{c+3}
    v_lshl_add_u32 v{vBA}, v{c+2}, 4, v{vBA}
    v_add_u32 v{vBA}, s{sUB}, v{vBA}
    v_sub_u32 v{vKA}, 3, v{c+3}
    v_mul_u32_u24 v{vKA}, {CV_UP}, v{vKA}
    v_lshl_add_u32 v{vKA}, v{c+2}, 4, v{vKA}
    v_add_u32 v{vKA}, s{sUB}, v{vKA}
    v_lshlrev_b32 v{vTA}, 7, v{c+2}
    v_lshl_add_u32 v{vTA}, v{c+3}, 4, v{vTA}
    v_lshrrev_b32 v{c+2}, 2, v{c+2}
    v_add_u32 v{c+2}, v{c+2}, v{c+3}
    v_lshlrev_b32 v{c+2}, 4, v{c+2}
    v_add_u32 v{c+2}, s{sAB}, v{c+2}
    v_and_b32 v{c+3}, 3, v{vL}
    v_mul_u32_u24 v{vAA}, {CV_ST}, v{c+3}
    v_add_u32 v{vAA}, v{vAA}, v{c+2}
    s_mul_i32 s{sT0}, s{sRH}, {12*2048}
    v_add_u32 v{vEX}, s{sT0}, v{vLB}
    s_mul_i32 s{sT0}, s{s2RB}, 56
    s_mul_i32 s{sT1}, s{sCQ}, 14
    s_add_u32 s{sT0}, s{sT0}, s{sT1}
    s_lshl_b32 s{sT0}, s{sT0}, 2
    s_add_u32 s{sT0}, s{sT0}, {WS_FLH}
    v_min_u32 v{vFA}, 13, v{vL}
    v_lshl_add_u32 v{vFA}, v{vFA}, 2, s{sT0}
    """)
    for i in range(4, 32):
        a(f"v_mov_b32 v{vAC+i}, 0")
    a(f"ds_write_b128 v{c+1}, {vr(vU,4)}")
    a("s_waitcnt lgkmcnt(0)")
    a.stamp()
    a("s_barrier")
    a(f"""
    s_cmp_eq_u32 s{sCQ}, 1
    s_cbranch_scc1 CV_Q1
    s_cmp_eq_u32 s{sCQ}, 2
    s_cbranch_scc1 CV_Q2
    s_cmp_eq_u32 s{sCQ}, 3
    s_cbranch_scc1 CV_Q3
    """)
    vm_save, nst_save = list(a.vm), a.nst
    ranges = [range(0, 6), range(6, 12), range(12, 20), range(20, 32)]
    vm_end = None
    for qd in range(4):
        if qd:
            a.label(f"CV_Q{qd}")
        a.vm, a.nst = list(vm_save), nst_save

        def F(psi):
            return vF + 6 * (psi % 6)

        def rdA(psi):
            off = (4 * psi - 4 + 4) * 16
            a(f"ds_read_b128 {vr(F(psi),4)}, v{vAA} offset:{off}")
            a(f"ds_read_b64 {vr(F(psi)+4,2)}, v{vAA} offset:{off+16}")
            return 2

        def nus(dl):
            return (0, 1) if dl < 16 else (1,)

        def rdB(dl):
            n = 0
            for kc in range(2):
                for nu in nus(dl):
                    a(f"ds_read_b128 {vr(vB+16*(dl&1)+8*kc+4*nu,4)}, v{vBA} offset:{kc*4*CV_UP+(16+16*nu-dl)*16}")
                    n += 1
            return n

        dls = list(ranges[qd])
        if dls[0] > 0:
            rdA(2 * dls[0] - 1)
        rdA(2 * dls[0]); rdA(2 * dls[0] + 1); rdB(dls[0])
        cnt = 0
        done = set()
        for dl in dls:
            n = 0
            if dl != dls[-1]:
                n += rdA(2 * dl + 2); n += rdA(2 * dl + 3); n += rdB(dl + 1)
            a(f"s_waitcnt lgkmcnt({n})")
            for kc in range(2):
                for p in range(2):
                    psi = 2 * dl + p - kc
                    if psi < 0:
                        continue
                    for par in range(2):
                        for nu in nus(dl):
                            acc = vAC + 16 * nu + 8 * p + 4 * par
                            a(f"v_mfma_f32_16x16x32_bf16 {vr(acc,4)}, {vr(F(psi)+2*par,4)}, {vr(vB+16*(dl&1)+8*kc+4*nu,4)}, {vr(acc,4)}")
                            cnt += 1
            if cnt >= HF_AT - 4 and "hf" not in done:
                done.add("hf")
                h_flag(a)
            if cnt >= HP_AT - 4 and "hp" not in done:
                done.add("hp")
                a.vmem(f"buffer_load_dword v{vPOLL}, v{vFA}, {sr(R_WS,4)}, 0 offen sc1", "PH")
            elif cnt >= HC_AT - 4 and "hc" not in done:
                done.add("hc")
                L, Lok = f"CV_HP{qd}", f"CV_HPOK{qd}"
                a.vm_wait("PH")
                a(f"s_mov_b32 s{sSP}, 0")
                a.label(L)
                a(f"""
                v_cmp_ne_u32 vcc, 0, v{vPOLL}
                s_add_u32 s{sSP}, s{sSP}, 1
                s_cmp_gt_u32 s{sSP}, 0x10000
                s_cbranch_scc1 {Lok}
                s_cmp_eq_u64 vcc, exec
                s_cbranch_scc1 {Lok}
                s_sleep 2
                buffer_load_dword v{vPOLL}, v{vFA}, {sr(R_WS,4)}, 0 offen sc1
                s_waitcnt vmcnt(0)
                s_branch {L}
                """)
                a.label(Lok)
                a.stamp()
                if HLD == 1:
                    a("buffer_inv sc1")
                for T in range(14):
                    hload(a, T)
        assert done == {"hf", "hp", "hc"}, done
        a.stamp()
        nu_o, p_o = qd >> 1, qd & 1
        vK = vF
        a(f"ds_read_b128 {vr(vB,4)}, v{vKA} offset:{p_o*4*CV_UP+(16+16*nu_o)*16}")
        a(f"""
        s_lshl_b32 s{sT0}, s{sCH}, 12
        s_add_u32 s{sT0}, s{sT0}, {WS_T + nu_o*2048 + p_o*64}
        s_lshl_b32 s{sT1}, s{sRH}, 4
        s_lshr_b32 s{sD}, s{sD}, s{sT1}
        s_lshl_b32 s{sD}, s{sD}, 16
        s_waitcnt lgkmcnt(0)
        s_barrier
        """)
        for dq in range(4):
            if dq == qd or (qd == 3 and dq < 2):
                continue
            sl = (qd - dq - 1) % 4
            for q in range(2):
                a(f"ds_write_b128 v{vEX}, {vr(vAC+8*dq+4*q,4)} offset:{(dq*3+sl)*2048+q*1024}")
        for dq_ in range(4):
            a(f"v_lshlrev_b32 v{vK+7-2*dq_}, 16, v{vB+dq_}")
            a(f"v_and_b32 v{vK+6-2*dq_}, 0xffff0000, v{vB+dq_}")
        for i in range(8):
            a(f"v_mul_f32 v{vK+i}, s{sD}, v{vK+i}")
        for i in range(4):
            round_pair(a, vK + 2 * i, vK + 2 * i + 1)
        a("s_waitcnt lgkmcnt(0)")
        a("s_barrier")
        srcs = [s_ for s_ in range(4) if s_ != qd and not (s_ == 3 and qd < 2)]
        vR = vB
        for k, s_ in enumerate(srcs):
            sl = (s_ - qd - 1) % 4
            for q in range(2):
                a(f"ds_read_b128 {vr(vR+8*k+4*q,4)}, v{vEX} offset:{(qd*3+sl)*2048+q*1024}")
        y = vAC + 8 * qd
        for k in range(len(srcs)):
            a(f"s_waitcnt lgkmcnt({2*(len(srcs)-1-k)})")
            for i in range(4):
                a(f"v_pk_add_f32 {vr(y+2*i,2)}, {vr(y+2*i,2)}, {vr(vR+8*k+2*i,2)}")
        for i in range(4):
            round_pair(a, y + 2 * i, y + 2 * i + 1)
        for i in range(4):
            a(f"v_pk_add_f32 {vr(y+2*i,2)}, {vr(y+2*i,2)}, {vr(vK+2*i,2)}")
        for i in range(4):
            a(f"v_cvt_pk_bf16_f32 v{108+i}, v{y+2*i}, v{y+2*i+1}")
        a.vmem(f"buffer_store_dwordx4 {vr(108,4)}, v{vTA}, {sr(R_WS,4)}, s{sT0} offen sc1", "TS")
        if qd < 3:
            a("s_branch CV_JOIN")
        if vm_end is None:
            vm_end = list(a.vm)
        assert vm_end == a.vm
    a.label("CV_JOIN")


def gemm2(a):
    u = 10
    vRA0, vRA1, vRB0, vRB1, vXO = 3, 4, 5, 6, 7
    vXV, vST2 = 24, 8
    vW = [28 + 16 * i for i in range(5)]
    vA2 = 112
    for T in range(14, 28):
        hload(a, T)
    a(f"""
    v_lshrrev_b32 v{u}, 5, v{vL}
    v_bfe_u32 v{u+1}, v{vL}, 2, 2
    v_lshl_add_u32 v{u}, v{u}, 2, v{u+1}
    v_bfe_u32 v{u+2}, v{vL}, 4, 1
    v_bfe_u32 v{u+3}, v{vL}, 1, 1
    v_lshl_add_u32 v{u+2}, v{u+2}, 1, v{u+3}
    v_bfe_u32 v{u+3}, v{vL}, 3, 1
    v_lshl_add_u32 v{u+2}, v{u+3}, 2, v{u+2}
    v_lshlrev_b32 v{u+2}, 4, v{u+2}
    v_and_b32 v{u+3}, 1, v{vL}
    v_lshl_add_u32 v{u+2}, v{u+3}, 3, v{u+2}
    v_lshl_add_u32 v{u+2}, v{u}, 7, v{u+2}
    s_lshl_b32 s{sT0}, s{sCQ}, 12
    v_add_u32 v{vRA0}, s{sT0}, v{u+2}
    v_xor_b32 v{vRA1}, 64, v{vRA0}
    """)
    for i in range(32):
        a(f"v_mov_b32 v{vA2+i}, 0")
    a("s_barrier")
    a.stamp()
    ENT = {s: WENT[s] for s in range(7)}
    for s in range(7, 12):
        ENT[s] = WENT[s - 7]
    ENT[12], ENT[13] = 0, 16384
    for s in (12, 13):
        for f in wdma_pieces(a, s, ENT[s]):
            f()

    def trreads(s, dst):
        a(f"v_add_u32 v{vRB0}, {ENT[s]}, v{vRA0}")
        a(f"v_add_u32 v{vRB1}, {ENT[s]}, v{vRA1}")
        for tt in range(2):
            for Td in range(2):
                for hf in range(2):
                    a(f"ds_read_b64_tr_b16 {vr(dst+8*tt+4*Td+2*hf,2)}, v{vRB1 if Td else vRB0} offset:{tt*2048+hf*1024}")

    def mf(s, wreg):
        for tt in range(2):
            a.vm_wait(f"H{2*s+tt}")
            for Td in range(2):
                acc = vA2 + 16 * Td
                a(f"v_mfma_f32_32x32x16_bf16 {vr(acc,16)}, {vr(wreg+8*tt+4*Td,4)}, {vr(vHD+4*(2*s+tt),4)}, {vr(acc,16)}")

    for s in range(5):
        trreads(s, vW[s])
    a(f"""
    s_lshl_b32 s{sT0}, s{s2RB}, 6
    s_lshl_b32 s{sT1}, s{sRH}, 5
    s_add_u32 s{sT0}, s{sT0}, s{sT1}
    v_and_b32 v{u}, 31, v{vL}
    v_add_u32 v{u}, s{sT0}, v{u}
    v_lshlrev_b32 v{u+1}, 3, v{u}
    v_add_u32 v{u+1}, {WS_STATS}, v{u+1}
    v_mul_u32_u24 v{vXO}, 896, v{u}
    v_lshrrev_b32 v{u+2}, 5, v{vL}
    v_lshl_add_u32 v{vXO}, v{u+2}, 3, v{vXO}
    s_and_b32 s{sT1}, s{sCQ}, 1
    s_lshl_b32 s{sT1}, s{sT1}, 6
    s_lshr_b32 s{sXO}, s{sCQ}, 1
    s_lshl_b32 s{sXO}, s{sXO}, 5
    s_add_u32 s{sXO}, s{sXO}, s{sT1}
    s_lshl_b32 s{sT0}, s{s2CB}, 7
    s_add_u32 s{sXO}, s{sXO}, s{sT0}
    v_add_u32 v{vXO}, s{sXO}, v{vXO}
    s_waitcnt lgkmcnt(0)
    s_barrier
    """)
    for s in range(7, 12):
        for f in wdma_pieces(a, s, ENT[s]):
            f()
    for i in range(2):
        a.vmem(f"buffer_load_dwordx2 {vr(vXV+2*i,2)}, v{vXO}, {sr(R_X,4)}, 0 offen offset:{16*i}", "XV")
    a.vmem(f"buffer_load_dwordx2 {vr(vST2,2)}, v{u+1}, {sr(R_WS,4)}, 0 offen sc1", "XV")
    mf(0, vW[0])
    trreads(5, vW[0])
    mf(1, vW[1])
    trreads(6, vW[1])
    for s in range(2, 5):
        mf(s, vW[s])
    a("s_waitcnt lgkmcnt(0)")
    mf(5, vW[0])
    mf(6, vW[1])
    a.vm_wait("TS")
    a("s_mov_b64 exec, 1")
    a.vmem(f"buffer_store_dword v{vONE}, v{vZ}, {sr(R_WS,4)}, s{sTMP} offen sc1", "TF")
    a("s_mov_b64 exec, -1")
    a.stamp()
    a.vm_wait("W11")
    a("s_barrier")
    order = list(range(7, 14))
    for k in range(3):
        trreads(order[k], vW[2 + k])
    for k, s in enumerate(order):
        left = min(2, len(order) - 1 - k)
        a(f"s_waitcnt lgkmcnt({min(15, 8*left)})")
        mf(s, vW[(2 + k) % 5])
        if k + 3 < len(order):
            trreads(order[k + 3], vW[(2 + k + 3) % 5])
    a.stamp()
    vX, vXN, vP, vE = 28, 36, 44, 76
    vF_, vTG, vTW, vTR = 3, 4, 5, 6
    a(f"""
    s_lshl_b32 s{sT0}, s3, 13
    v_add_u32 v{u}, s{sT0}, v{vLB}
    s_lshl_b32 s{sT0}, s{sRH}, 15
    s_and_b32 s{sT1}, s{sCQ}, 1
    s_lshl_b32 s{sT1}, s{sT1}, 12
    s_add_u32 s{sT0}, s{sT0}, s{sT1}
    s_lshr_b32 s{sT1}, s{sCQ}, 1
    s_lshl_b32 s{sT1}, s{sT1}, 11
    s_add_u32 s{sT0}, s{sT0}, s{sT1}
    v_add_u32 v{u+1}, s{sT0}, v{vLB}
    s_lshr_b32 s{sT0}, s{s2RB}, 4
    s_mul_i32 s{sT0}, s{sT0}, 3584
    s_lshl_b32 s{sT1}, s{sXO}, 2
    s_add_u32 s{sT0}, s{sT0}, s{sT1}
    s_add_u32 s{sT0}, s{sT0}, {WS_FLT}
    v_and_b32 v{u+2}, 31, v{vL}
    v_lshl_add_u32 v{vF_}, v{u+2}, 2, s{sT0}
    s_barrier
    """)
    a.vmem(f"buffer_load_dword v{vPOLL}, v{vF_}, {sr(R_WS,4)}, 0 offen sc1", "PT")
    for q in range(8):
        a(f"ds_write_b128 v{u}, {vr(vA2+4*q,4)} offset:{q*1024}")
    a.vm_wait("XV")
    for i in range(4):
        a(f"v_lshlrev_b32 v{vX+2*i}, 16, v{vXV+i}")
        a(f"v_and_b32 v{vX+2*i+1}, 0xffff0000, v{vXV+i}")
    for i in range(8):
        a(f"v_sub_f32 v{vXN+i}, v{vX+i}, v{vST2}")
    for i in range(4):
        round_pair(a, vXN + 2 * i, vXN + 2 * i + 1)
    for i in range(8):
        a(f"v_mul_f32 v{vXN+i}, v{vXN+i}, v{vST2+1}")
    for i in range(4):
        round_pair(a, vXN + 2 * i, vXN + 2 * i + 1)
    a(f"""
    v_lshrrev_b32 v{u+2}, 2, v{vL}
    s_lshr_b32 s{sT1}, s{sXO}, 1
    v_add_u32 v{u+2}, s{sT1}, v{u+2}
    v_lshlrev_b32 v{u+2}, 12, v{u+2}
    v_and_b32 v{u+3}, 3, v{vL}
    v_lshl_add_u32 v{vTG}, v{u+3}, 4, v{u+2}
    s_lshl_b32 s{sT0}, s{s2RB}, 7
    s_lshl_b32 s{sT1}, s{sRH}, 6
    s_add_u32 s{sT0}, s{sT0}, s{sT1}
    s_add_u32 s{sT0}, s{sT0}, {WS_T}
    s_lshl_b32 s{sHO}, s3, 10
    s_add_u32 s{sHO}, s{sHO}, 65536
    v_add_u32 v{vTW}, s{sHO}, v{vLB}
    v_lshrrev_b32 v{u+2}, 5, v{vL}
    v_bfe_u32 v{u+4}, v{vL}, 2, 2
    v_lshl_add_u32 v{u+2}, v{u+2}, 2, v{u+4}
    v_lshlrev_b32 v{u+2}, 6, v{u+2}
    v_bfe_u32 v{u+4}, v{vL}, 4, 1
    v_lshl_add_u32 v{u+2}, v{u+4}, 5, v{u+2}
    v_lshl_add_u32 v{u+2}, v{u+3}, 3, v{u+2}
    v_add_u32 v{vTR}, s{sHO}, v{u+2}
    s_waitcnt lgkmcnt(0)
    s_barrier
    """)
    for src in range(4):
        for q in range(2):
            a(f"ds_read_b128 {vr(vP+8*src+4*q,4)}, v{u+1} offset:{src*8192+q*1024}")
    a(f"s_mov_b32 s{sSP}, 0")
    a.label("G_TPOLL")
    a(f"""
    s_waitcnt vmcnt(0)
    v_cmp_ne_u32 vcc, 0, v{vPOLL}
    s_add_u32 s{sSP}, s{sSP}, 1
    s_cmp_gt_u32 s{sSP}, 0x10000
    s_cbranch_scc1 G_TPOLL_OK
    s_cmp_eq_u64 vcc, exec
    s_cbranch_scc1 G_TPOLL_OK
    s_sleep 1
    buffer_load_dword v{vPOLL}, v{vF_}, {sr(R_WS,4)}, 0 offen sc1
    s_branch G_TPOLL
    """)
    a.label("G_TPOLL_OK")
    a.vm = []
    a.stamp()
    vTT, vTD, vS = 88, 92, 96
    a(f"buffer_load_dwordx4 {vr(vTT,4)}, v{vTG}, {sr(R_WS,4)}, s{sT0} offen sc1")
    a("s_waitcnt lgkmcnt(0)")
    for i in range(4):
        a(f"v_pk_add_f32 {vr(vP+2*i,2)}, {vr(vP+2*i,2)}, {vr(vP+8+2*i,2)}")
        a(f"v_pk_add_f32 {vr(vP+16+2*i,2)}, {vr(vP+16+2*i,2)}, {vr(vP+24+2*i,2)}")
    for i in range(4):
        a(f"v_pk_add_f32 {vr(vP+2*i,2)}, {vr(vP+2*i,2)}, {vr(vP+16+2*i,2)}")
    for i in range(4):
        round_pair(a, vP + 2 * i, vP + 2 * i + 1)
    a(f"s_mov_b32 s{sW2}, {f32bits(-1.4426950408889634)}")
    for i in range(8):
        a(f"v_mul_f32 v{vE+i}, s{sW2}, v{vP+i}")
    for i in range(8):
        a(f"v_exp_f32 v{vE+i}, v{vE+i}")
    for i in range(8):
        a(f"v_add_f32 v{vE+i}, 1.0, v{vE+i}")
    for i in range(8):
        a(f"v_rcp_f32 v{vE+i}, v{vE+i}")
    for i in range(8):
        a(f"v_mul_f32 v{vP+i}, v{vP+i}, v{vE+i}")
    for i in range(4):
        round_pair(a, vP + 2 * i, vP + 2 * i + 1)
    a("s_waitcnt vmcnt(0)")
    a(f"ds_write_b128 v{vTW}, {vr(vTT,4)}")
    a("s_waitcnt lgkmcnt(0)")
    for i in range(2):
        a(f"ds_read_b64_tr_b16 {vr(vTD+2*i,2)}, v{vTR} offset:{512*i}")
    a("s_waitcnt lgkmcnt(0)")
    for i in range(4):
        a(f"v_lshlrev_b32 v{vS+2*i}, 16, v{vTD+i}")
        a(f"v_and_b32 v{vS+2*i+1}, 0xffff0000, v{vTD+i}")
    for i in range(4):
        a(f"v_pk_mul_f32 {vr(vS+2*i,2)}, {vr(vS+2*i,2)}, {vr(vXN+2*i,2)}")
    for i in range(4):
        round_pair(a, vS + 2 * i, vS + 2 * i + 1)
    for i in range(4):
        a(f"v_pk_mul_f32 {vr(vS+2*i,2)}, {vr(vS+2*i,2)}, {vr(vP+2*i,2)}")
    for i in range(4):
        round_pair(a, vS + 2 * i, vS + 2 * i + 1)
    for i in range(4):
        a(f"v_pk_add_f32 {vr(vS+2*i,2)}, {vr(vS+2*i,2)}, {vr(vX+2*i,2)}")
    for i in range(4):
        a(f"v_cvt_pk_bf16_f32 v{vTT+i}, v{vS+2*i}, v{vS+2*i+1}")
    for i in range(2):
        a(f"buffer_store_dwordx2 {vr(vTT+2*i,2)}, v{vXO}, {sr(R_O,4)}, 0 offen offset:{16*i}")
    if PROF:
        a("s_waitcnt vmcnt(0)")
    a.stamp()
    a.stamp_flush()
    a("s_endpgm")


def role_prep(a):
    sB = 4
    vTID = 0
    t = 9
    vWC, vCA, vUP = 44, 100, 108
    a(f"""
    s_sub_u32 s{sB}, s2, 224
    s_cmp_ge_u32 s{sB}, 14
    s_cselect_b32 s6, 14, 0
    s_sub_u32 s6, s{sB}, s6
    v_lshrrev_b32 v{t+3}, 4, v{vTID}
    v_mul_u32_u24 v{t+3}, 3584, v{t+3}
    v_and_b32 v{t+4}, 15, v{vTID}
    v_lshl_add_u32 v{t+3}, v{t+4}, 4, v{t+3}
    s_lshl_b32 s5, s6, 8
    v_mov_b32 v{vZ}, 0
    s_waitcnt lgkmcnt(0)
    s_cmp_ge_u32 s{sB}, 14
    s_cselect_b32 s{R_W}, s{S_WU}, s{S_WG}
    s_cselect_b32 s{R_W+1}, s{S_WU+1}, s{S_WG+1}
    s_and_b32 s{R_W+1}, s{R_W+1}, 0xffff
    s_mov_b32 s{R_W+2}, {SZ_W}
    s_mov_b32 s{R_W+3}, 0x20000
    s_cmp_ge_u32 s{sB}, 28
    s_cselect_b32 s{R_W+2}, 0, s{R_W+2}
    """)
    srd(a, R_X, S_X, SZ_X)
    srd(a, R_WS, S_WS, WS_END)
    srd(a, R_DBG, S_DBG, 256)
    unit_loads(a)
    for i in range(14):
        a.vmem(f"buffer_load_dwordx4 {vr(vWC+4*i,4)}, v{t+3}, {sr(R_W,4)}, s5 offen", f"C{i}")
        if i < 13:
            a(f"s_add_u32 s5, s5, {32*3584}")
    for i in range(8):
        a(f"v_mov_b32 v{vCA+i}, 0")
    for f in unit_pieces(a):
        f()
    a.stamp()
    for i in range(14):
        a.vm_wait(f"C{i}")
        for d in range(4):
            a(f"v_lshlrev_b32 v{vUP+2*d}, 16, v{vWC+4*i+d}")
            a(f"v_and_b32 v{vUP+2*d+1}, 0xffff0000, v{vWC+4*i+d}")
        for d in range(8):
            a(f"v_add_f32 v{vCA+d}, v{vCA+d}, v{vUP+d}")
    a(f"""
    v_lshlrev_b32 v{t+5}, 5, v{vTID}
    ds_write_b128 v{t+5}, {vr(vCA,4)}
    ds_write_b128 v{t+5}, {vr(vCA+4,4)} offset:16
    v_lshlrev_b32 v{t+1}, 3, v{vL}
    s_lshl_b32 s5, s3, 11
    v_add_u32 v{t+2}, s5, v{t+1}
    s_lshl_b32 s5, s3, 9
    v_add_u32 v{t+5}, s5, v{t+1}
    s_waitcnt lgkmcnt(0)
    """)
    a.stamp()
    a("s_barrier")
    for i in range(4):
        a(f"ds_read_b64 {vr(vWC+2*i,2)}, v{t+2} offset:{512*i}")
    a("s_waitcnt lgkmcnt(0)")
    a(f"v_pk_add_f32 {vr(vWC,2)}, {vr(vWC,2)}, {vr(vWC+2,2)}")
    a(f"v_pk_add_f32 {vr(vWC+4,2)}, {vr(vWC+4,2)}, {vr(vWC+6,2)}")
    a(f"v_pk_add_f32 {vr(vWC,2)}, {vr(vWC,2)}, {vr(vWC+4,2)}")
    a(f"ds_write_b64 v{t+5}, {vr(vWC,2)} offset:16384")
    a("s_waitcnt vmcnt(0) lgkmcnt(0)")
    a("s_barrier")
    a("s_cmp_lg_u32 s3, 0")
    a("s_cbranch_scc1 P_DONE")
    for i in range(8):
        a(f"ds_read_b64 {vr(vWC+2*i,2)}, v{t+1} offset:{16384+512*i}")
    a(f"""
    v_lshrrev_b32 v{t+2}, 3, v{vL}
    v_lshlrev_b32 v{t+2}, 7, v{t+2}
    v_and_b32 v{t+3}, 7, v{vL}
    v_lshl_add_u32 v{t+2}, v{t+3}, 3, v{t+2}
    s_lshl_b32 s8, s6, 10
    s_cmp_ge_u32 s{sB}, 14
    s_cselect_b32 s9, 64, 0
    s_add_u32 s8, s8, s9
    s_add_u32 s8, s8, {WS_CS}
    s_cmp_ge_u32 s{sB}, 28
    s_cselect_b32 s8, 0x7f000000, s8
    s_waitcnt lgkmcnt(0)
    """)
    n = 8
    while n > 1:
        n //= 2
        for i in range(n):
            a(f"v_pk_add_f32 {vr(vWC+2*i,2)}, {vr(vWC+2*i,2)}, {vr(vWC+2*(i+n),2)}")
    a(f"""
    buffer_store_dwordx2 {vr(vWC,2)}, v{t+2}, {sr(R_WS,4)}, s8 offen sc1
    s_waitcnt vmcnt(0)
    """)
    unit_signal(a)
    a.label("P_DONE")
    a.stamp()
    a.stamp_flush()
    a("s_endpgm")


def gen(a):
    a.lines.append(f".globl {KNAME}\n.p2align 8\n.type {KNAME},@function")
    a.label(KNAME)
    a("s_cmp_ge_u32 s2, 256")
    a("s_cbranch_scc1 K_END")
    a.stamp()
    a("""
    s_load_dwordx16 s[16:31], s[0:1], 0
    s_load_dwordx8 s[32:39], s[0:1], 64
    s_load_dwordx2 s[40:41], s[0:1], 96
    v_lshrrev_b32 v1, 6, v0
    v_and_b32 v2, 63, v0
    s_nop 0
    v_readfirstlane_b32 s3, v1
    s_cmp_ge_u32 s2, 224
    s_cbranch_scc1 K_PREP
    """)
    gemm1_setup(a)
    a("s_waitcnt lgkmcnt(0)")
    srd(a, R_X, S_X, SZ_X)
    a(f"""
    s_cmp_eq_u32 s{sRH}, 0
    s_cselect_b32 s{R_W}, s{S_WG}, s{S_WU}
    s_cselect_b32 s{R_W+1}, s{S_WG+1}, s{S_WU+1}
    s_and_b32 s{R_W+1}, s{R_W+1}, 0xffff
    s_mov_b32 s{R_W+2}, {SZ_W}
    s_mov_b32 s{R_W+3}, 0x20000
    """)
    for f in dma_pieces(a, 0):
        f()
    unit_loads(a)
    gemm1_setup2(a)
    srd(a, R_WS, S_WS, WS_END)
    srd(a, R_DBG, S_DBG, 256)
    a("s_barrier")
    for st in (1, 2):
        for f in dma_pieces(a, st):
            f()
    a.vm_wait("A0")
    a("s_barrier")
    a.stamp()
    gemm1_main(a)
    gemm1_epilogue(a)
    conv(a)
    gemm2(a)
    a.label("K_PREP")
    a.vm, a.nst = [], 1
    role_prep(a)
    a.label("K_END")
    a("s_endpgm")


def main():
    HEADER = open("cdna_kernels/" + NAME + ".s.ref").read().split("; Override launch")[0]
    a = Asm()
    gen(a)
    out = HEADER
    out += f"; @launch grid=(256,1,1) block=(512,1,1) lds={LDS_BYTES}\n"
    out += '.amdgcn_target "amdgcn-amd-amdhsa--gfx950"\n.text\n'
    out += a.text()
    out += '.section .rodata,"a"\n.p2align 6\n'
    out += descriptor(KNAME, 256, 102)
    path = sys.argv[1] if len(sys.argv) > 1 else "cdna_kernels/" + NAME + ".s"
    open(path, "w").write(out)


if __name__ == "__main__":
    main()
```

```python
import sys, os, struct
from gen2 import (Asm, vr, sr, srd, round_pair, newlabel, f32bits, descriptor, NAME, KNAME, PROF,
                  S_X, S_K, S_V, S_SHK, S_SSMK, S_SSMD, S_WG, S_WU, S_WD, S_OUT, S_DBG, S_WS,
                  R_X, R_W, R_WS, R_DBG, R_A, R_B, SZ_X, SZ_W, SZ_SHK,
                  )

WS_H = 0
WS_KVR = 0x800000
WS_T = 0xA00000
WS_STATS = 0xC00000
WS_CS = 0xC04000
WS_FLU = 0xC20000
WS_FLH = 0xC40000
WS_FLT = 0xC80000
WS_END = 0xD00000
vONE = 23
ROT = int(os.environ.get("ROT", 0))
TOUCH = int(os.environ.get("TOUCH", 1))
PI_AT = int(os.environ.get("PI_AT", 0))
SIG_AT = int(os.environ.get("SIG_AT", 2))
STM = int(os.environ.get("STM", 0))
WPF = 0
WPF2 = int(os.environ.get("WPF2", 0))
WPF3 = int(os.environ.get("WPF3", 1))

SLOT = 49152
WENT = [49152 + 16384 * i for i in range(7)]
CV_ST = 4160
CV_A = (0, 4 * CV_ST)
CV_U = 8 * CV_ST
CV_UP = 768
LDS_BYTES = 163840
USCR = 147456

sRB, sCB, sE, sT0, sT1, sRH, sCQ = 4, 5, 6, 7, 8, 9, 10
sXO, sWO, sM0X, sM0W, sTMP = 11, 12, 13, 14, 15
sSP = 42
s2RB, s2CB, sCH, sUB, sAB, sD, sW2 = 18, 19, 20, 21, 22, 23, 28
sWB, sOK0, sROT, sHO = 29, 68, 69, 70
R_WD, R_O, R_H = R_A, R_B, 92

vL = 2
vXG0, vXG1, vWG = 3, 4, 5
vXA, vWA = 6, 10
vXR, vWR0, vWR1 = 12, 13, 14
vT = 15
vZ, vPOLL, vPOLL1 = 20, 21, 22
vSTAT = 24
vFR = 28
vACC = 64
vCS = 160
vD = 192
vU = 208
vC = 228
vLB, vWD, vHO = 1, 0, 19
vR2 = 60


R_K, R_V, R_SH = 76, 80, 84
uK, uV, uW, uX = 160, 167, 172, 176
uA = 180
uKU, uWU, uAC, uVU, uO = 186, 200, 208, 216, 218
uS = 222


def unit_loads(a):
    srd(a, R_K, S_K, SZ_X)
    srd(a, R_V, S_V, SZ_X)
    srd(a, R_SH, S_SHK, SZ_SHK)
    a(f"""
    v_cmp_le_u32 vcc, 28, v{vL}
    v_mov_b32 v{uA+4}, 0x7f000000
    s_and_b32 s{sT0}, s2, 7
    v_cndmask_b32 v{uA}, 0, 1, vcc
    v_mul_u32_u24 v{uA+1}, 28, v{uA}
    v_sub_u32 v{uA+1}, v{vL}, v{uA+1}
    s_and_b32 s{sT1}, s2, 0xf8
    s_add_u32 s{sT1}, s{sT1}, s3
    s_mul_i32 s{sT1}, s{sT1}, {8*896}
    s_mul_i32 s{sT0}, s{sT0}, 112
    s_add_u32 s{sT1}, s{sT1}, s{sT0}
    v_mul_u32_u24 v{uA+2}, {4*896}, v{uA}
    v_lshl_add_u32 v{uA+2}, v{uA+1}, 2, v{uA+2}
    v_add_u32 v{uA+2}, s{sT1}, v{uA+2}
    v_cmp_le_u32 vcc, 56, v{vL}
    v_subrev_u32 v{uA+3}, {3*896}, v{uA+2}
    s_lshl_b32 s{sT0}, s{sT0}, 2
    v_cndmask_b32 v{uA+2}, v{uA+2}, v{uA+4}, vcc
    v_cndmask_b32 v{uA+3}, v{uA+3}, v{uA+4}, vcc
    v_lshl_add_u32 v{uA+5}, v{uA+1}, 4, s{sT0}
    s_lshl_b32 s{sT0}, s2, 3
    s_add_u32 s{sT0}, s{sT0}, s3
    s_mul_i32 s{sT0}, s{sT0}, 896
    v_lshl_add_u32 v{uS}, v{vL}, 4, s{sT0}
    v_cndmask_b32 v{uS}, v{uS}, v{uA+4}, vcc
    """)
    a.vmem(f"buffer_load_dwordx4 {vr(uX,4)}, v{uS}, {sr(R_X,4)}, 0 offen", "UX")
    a.vmem(f"buffer_load_dwordx4 {vr(uW,4)}, v{uA+5}, {sr(R_SH,4)}, 0 offen", "UK")
    for i in range(3):
        a.vmem(f"buffer_load_dword v{uK+i}, v{uA+3}, {sr(R_K,4)}, 0 offen offset:{896*i}", "UK")
    for i in range(4):
        a.vmem(f"buffer_load_dword v{uK+3+i}, v{uA+2}, {sr(R_K,4)}, 0 offen offset:{896*i}", "UK")
    for i in range(4):
        a.vmem(f"buffer_load_dword v{uV+i}, v{uA+2}, {sr(R_V,4)}, 0 offen offset:{896*i}", "UK")


def unit_pieces(a):
    P = []

    def st1():
        a.vm_wait("UX")
        a(f"v_mov_b32 v{uS}, 0")
        a(f"v_mov_b32 v{uS+1}, 0")
        a(f"v_mov_b32 v{uS+2}, 0x3f803f80")
        for i in range(4):
            a(f"v_dot2c_f32_bf16 v{uS}, v{uX+i}, v{uS+2}")
            a(f"v_dot2c_f32_bf16 v{uS+1}, v{uX+i}, v{uX+i}")
        a("s_nop 2")

    def st2():
        for mode in ("quad_perm:[1,0,3,2]", "quad_perm:[2,3,0,1]", "row_half_mirror", "row_mirror"):
            a(f"v_add_f32_dpp v{uS}, v{uS}, v{uS} {mode} row_mask:0xf bank_mask:0xf")
            a(f"v_add_f32_dpp v{uS+1}, v{uS+1}, v{uS+1} {mode} row_mask:0xf bank_mask:0xf")
            a("s_nop 0")
        a(f"v_mov_b32 v{uS+2}, v{uS}")
        a(f"v_mov_b32 v{uS+3}, v{uS+1}")
        a("s_nop 1")
        a(f"v_permlane16_swap_b32 v{uS}, v{uS+2}")
        a(f"v_permlane16_swap_b32 v{uS+1}, v{uS+3}")
        a("s_nop 1")
        a(f"v_add_f32 v{uS}, v{uS}, v{uS+2}")
        a(f"v_add_f32 v{uS+1}, v{uS+1}, v{uS+3}")

    def st3():
        a(f"v_mov_b32 v{uS+2}, v{uS}")
        a(f"v_mov_b32 v{uS+3}, v{uS+1}")
        a("s_nop 1")
        a(f"v_permlane32_swap_b32 v{uS}, v{uS+2}")
        a(f"v_permlane32_swap_b32 v{uS+1}, v{uS+3}")
        a("s_nop 1")
        a(f"""
        v_add_f32 v{uS}, v{uS}, v{uS+2}
        v_add_f32 v{uS+1}, v{uS+1}, v{uS+3}
        s_mov_b32 s{sT0}, {f32bits(1.0/448.0)}
        s_mov_b32 s{sT1}, {f32bits(1e-5)}
        v_mul_f32 v{uS}, s{sT0}, v{uS}
        v_mul_f32 v{uS+1}, s{sT0}, v{uS+1}
        v_fma_f32 v{uS+1}, -v{uS}, v{uS}, v{uS+1}
        v_max_f32 v{uS+1}, 0, v{uS+1}
        v_cvt_pk_bf16_f32 v{uS+1}, v{uS}, v{uS+1}
        v_lshlrev_b32 v{uS}, 16, v{uS+1}
        v_and_b32 v{uS+1}, 0xffff0000, v{uS+1}
        v_add_f32 v{uS+1}, s{sT1}, v{uS+1}
        """)

    def st4():
        a(f"""
        v_cvt_pk_bf16_f32 v{uS+1}, v{uS+1}, v{uS+1}
        v_and_b32 v{uS+1}, 0xffff0000, v{uS+1}
        v_sqrt_f32 v{uS+1}, v{uS+1}
        s_lshl_b32 s{sT0}, s2, 3
        v_cvt_pk_bf16_f32 v{uS+1}, v{uS+1}, v{uS+1}
        v_and_b32 v{uS+1}, 0xffff0000, v{uS+1}
        v_rcp_f32 v{uS+1}, v{uS+1}
        s_add_u32 s{sT0}, s{sT0}, s3
        s_lshl_b32 s{sT0}, s{sT0}, 3
        s_add_u32 s{sT0}, s{sT0}, {WS_STATS}
        s_mov_b64 exec, 1
        """)
        a.vmem(f"buffer_store_dwordx2 {vr(uS,2)}, v{vZ}, {sr(R_WS,4)}, s{sT0} offen sc1", "US")
        a("s_mov_b64 exec, -1")

    def k1():
        a.vm_wait("UK")
        for r in range(7):
            a(f"v_lshlrev_b32 v{uKU+2*r}, 16, v{uK+r}")
            a(f"v_and_b32 v{uKU+2*r+1}, 0xffff0000, v{uK+r}")

    def k2():
        for h in range(2):
            a(f"v_lshlrev_b32 v{uWU+0+h}, 16, v{uW+2*h}")
            a(f"v_and_b32 v{uWU+2+h}, 0xffff0000, v{uW+2*h}")
            a(f"v_lshlrev_b32 v{uWU+4+h}, 16, v{uW+2*h+1}")
            a(f"v_and_b32 v{uWU+6+h}, 0xffff0000, v{uW+2*h+1}")

    def krow(r):
        def f():
            for h in range(2):
                ac = uAC + 2 * r + h
                a(f"v_mul_f32 v{ac}, v{uKU+2*r+h}, v{uWU+6+h}")
                a(f"v_fmac_f32 v{ac}, v{uKU+2*(r+1)+h}, v{uWU+4+h}")
                a(f"v_fmac_f32 v{ac}, v{uKU+2*(r+2)+h}, v{uWU+2+h}")
                a(f"v_fmac_f32 v{ac}, v{uKU+2*(r+3)+h}, v{uWU+0+h}")
            a(f"v_cvt_pk_bf16_f32 v{uAC+2*r+1}, v{uAC+2*r}, v{uAC+2*r+1}")
            a(f"v_lshlrev_b32 v{uVU}, 16, v{uV+r}")
            a(f"v_and_b32 v{uVU+1}, 0xffff0000, v{uV+r}")
            a(f"v_lshlrev_b32 v{uAC+2*r}, 16, v{uAC+2*r+1}")
            a(f"v_and_b32 v{uAC+2*r+1}, 0xffff0000, v{uAC+2*r+1}")
            a(f"v_mul_f32 v{uAC+2*r}, v{uAC+2*r}, v{uVU}")
            a(f"v_mul_f32 v{uAC+2*r+1}, v{uAC+2*r+1}, v{uVU+1}")
        return f

    def k3():
        for h in range(2):
            a(f"v_cvt_pk_bf16_f32 v{uO+2*h}, v{uAC+6+h}, v{uAC+4+h}")
            a(f"v_cvt_pk_bf16_f32 v{uO+2*h+1}, v{uAC+2+h}, v{uAC+0+h}")
        a(f"""
        v_lshlrev_b32 v{uA+2}, 8, v{uA+1}
        v_lshlrev_b32 v{uA+3}, 3, v{uA}
        v_sub_u32 v{uA+2}, v{uA+2}, v{uA+3}
        s_lshl_b32 s{sT0}, s3, 4
        s_sub_u32 s{sT0}, {USCR + 7*16 + 8}, s{sT0}
        v_add_u32 v{uA+2}, s{sT0}, v{uA+2}
        s_mov_b32 exec_hi, 0xffffff
        ds_write_b64 v{uA+2}, {vr(uO,2)}
        ds_write_b64 v{uA+2}, {vr(uO+2,2)} offset:128
        s_mov_b64 exec, -1
        """)

    def k4():
        a(f"""
        s_mul_i32 s{sT0}, s3, 896
        s_add_u32 s{sT0}, s{sT0}, {USCR}
        v_lshl_add_u32 v{uA+2}, v{vL}, 4, s{sT0}
        ds_read_b128 {vr(uAC,4)}, v{uA+2}
        v_lshrrev_b32 v{uA+2}, 3, v{vL}
        v_lshlrev_b32 v{uA+2}, 12, v{uA+2}
        v_and_b32 v{uA+3}, 7, v{vL}
        v_lshl_add_u32 v{uA+2}, v{uA+3}, 4, v{uA+2}
        s_and_b32 s{sT0}, s2, 7
        s_mul_i32 s{sT0}, s{sT0}, 56
        s_mul_i32 s{sT1}, s3, 7
        s_add_u32 s{sT0}, s{sT0}, s{sT1}
        s_lshl_b32 s{sT0}, s{sT0}, 12
        s_lshr_b32 s{sT1}, s2, 3
        s_lshl_b32 s{sT1}, s{sT1}, 7
        s_sub_u32 s{sT0}, s{sT0}, s{sT1}
        s_add_u32 s{sT0}, s{sT0}, {WS_KVR + 3968}
        s_waitcnt lgkmcnt(0)
        s_mov_b32 exec_hi, 0xffffff
        """)
        a.vmem(f"buffer_store_dwordx4 {vr(uAC,4)}, v{uA+2}, {sr(R_WS,4)}, s{sT0} offen sc1", "US")
        a("s_mov_b64 exec, -1")

    return [st1, st2, st3, st4, k1, k2, krow(0), krow(1), krow(2), krow(3), k3, k4]


def unit_signal(a):
    L = newlabel("NOSIG")
    a(f"""
    s_cmp_lg_u32 s3, 0
    s_cbranch_scc1 {L}
    s_lshl_b32 s{sT0}, s2, 7
    s_add_u32 s{sT0}, s{sT0}, {WS_FLU}
    s_mov_b64 exec, 1
    buffer_store_dword v{vONE}, v{vZ}, {sr(R_WS,4)}, s{sT0} offen sc1
    s_mov_b64 exec, -1
    """)
    a.label(L)


def tag_issue(a):
    a(f"s_lshl_b32 s{sT0}, s3, 12")
    a.vmem(f"buffer_load_dword v{vONE}, v{vZ}, {sr(R_DBG,4)}, s{sT0} offen sc1", "TAG")


def tag_block(a, to_lds=True):
    L, Lok, Lsk = newlabel("TB"), newlabel("TBOK"), newlabel("TBSK")
    a.vm_wait("TAG")
    a(f"""
    s_cmp_lg_u32 s3, 0
    s_cbranch_scc1 {Lsk}
    s_mov_b32 s{sSP}, 0
    """)
    a.label(L)
    a(f"""
    v_readfirstlane_b32 s{sSP+1}, v{vONE}
    s_add_u32 s{sSP}, s{sSP}, 1
    s_cmp_gt_u32 s{sSP}, 0x4000
    s_cbranch_scc1 {Lok}
    s_cmp_lg_u32 s{sSP+1}, 0
    s_cbranch_scc1 {Lok}
    s_sleep 4
    buffer_load_dword v{vONE}, v{vZ}, {sr(R_DBG,4)}, 0 offen sc1
    s_waitcnt vmcnt(0)
    s_branch {L}
    """)
    a.label(Lok)
    if to_lds:
        a(f"v_mov_b32 v{vT+2}, {USCR+8192}")
        a(f"ds_write_b32 v{vT+2}, v{vONE}")
    a.label(Lsk)


def tag_read(a):
    a(f"v_mov_b32 v{vT+2}, {USCR+8192}")
    a(f"ds_read_b32 v{vONE}, v{vT+2}")


def poll_issue(a, vdst, tag):
    a(f"""
    s_lshl_b32 s{sT0}, s{sRB}, 4
    v_add_u32 v{vT+2}, s{sT0}, v{vL}
    s_mul_i32 s{sT1}, s2, 2341
    s_lshr_b32 s{sT1}, s{sT1}, 16
    s_sub_u32 s{sT1}, s{sT1}, 128
    v_lshl_add_u32 v{vT+3}, v{vL}, 3, s{sT1}
    v_cmp_le_u32 vcc, 16, v{vL}
    s_add_u32 s{sT1}, s{sCB}, {224 - 48*14}
    v_mul_u32_u24 v{vT}, 14, v{vL}
    v_cndmask_b32 v{vT+2}, v{vT+2}, v{vT+3}, vcc
    v_add_u32 v{vT+3}, s{sT1}, v{vT}
    v_cmp_le_u32 vcc, 48, v{vL}
    s_lshl_b32 s{sT1}, s{s2RB}, 3
    s_sub_u32 s{sT1}, s{sT1}, 50
    v_cndmask_b32 v{vT+2}, v{vT+2}, v{vT+3}, vcc
    v_add_u32 v{vT+3}, s{sT1}, v{vL}
    v_cmp_le_u32 vcc, 50, v{vL}
    v_mov_b32 v{vT}, s{sT0}
    s_lshl_b32 s{sT1}, s3, 24
    v_cndmask_b32 v{vT+2}, v{vT+2}, v{vT+3}, vcc
    v_cmp_le_u32 vcc, 58, v{vL}
    s_add_u32 s{sT1}, s{sT1}, {WS_FLU}
    s_nop 0
    v_cndmask_b32 v{vT+2}, v{vT+2}, v{vT}, vcc
    v_lshlrev_b32 v{vT+2}, 7, v{vT+2}
    """)
    a.vmem(f"buffer_load_dword v{vdst}, v{vT+2}, {sr(R_WS,4)}, s{sT1} offen sc1", tag)


def poll_block(a, vtmp):
    L, Lok = newlabel("PB"), newlabel("PBOK")
    a.vm_wait("P0")
    a(f"""
    s_cmp_lg_u32 s3, 0
    s_cbranch_scc1 {Lok}
    s_mov_b32 s{sSP}, 0
    s_mov_b32 s{sT0}, {WS_FLU}
    """)
    a.label(L)
    a(f"""
    v_cmp_eq_u32 vcc, v{vONE}, v{vtmp}
    s_add_u32 s{sSP}, s{sSP}, 1
    s_cmp_gt_u32 s{sSP}, 0x4000
    s_cbranch_scc1 {Lok}
    s_cmp_eq_u64 vcc, exec
    s_cbranch_scc1 {Lok}
    s_sleep 2
    buffer_load_dword v{vtmp}, v{vT+2}, {sr(R_WS,4)}, s{sT0} offen sc1
    s_waitcnt vmcnt(0)
    s_branch {L}
    """)
    a.label(Lok)


def gemm1_setup(a):
    a(f"""
    s_and_b32 s{sT0}, s2, 7
    s_lshr_b32 s{sT1}, s2, 3
    s_mul_i32 s{sRB}, s{sT1}, 37
    s_lshr_b32 s{sRB}, s{sRB}, 8
    s_mul_i32 s{sCB}, s{sRB}, 7
    s_sub_u32 s{sCB}, s{sT1}, s{sCB}
    s_lshl_b32 s{sROT}, s{sRB}, 1
    s_add_u32 s{sROT}, s{sROT}, s{sCB}
    s_cmp_ge_u32 s{sROT}, 7
    s_cselect_b32 s{sT1}, 7, 0
    s_sub_u32 s{sROT}, s{sROT}, s{sT1}
    s_mul_i32 s{sROT}, s{sROT}, {ROT}
    s_and_b32 s{sT1}, s{sT0}, 3
    s_lshl_b32 s{sT1}, s{sT1}, 2
    s_add_u32 s{sRB}, s{sRB}, s{sT1}
    s_lshr_b32 s{sT1}, s{sT0}, 2
    s_mul_i32 s{sT1}, s{sT1}, 7
    s_add_u32 s{sCB}, s{sCB}, s{sT1}
    s_lshr_b32 s{sRH}, s3, 2
    s_and_b32 s{sCQ}, s3, 3
    v_lshrrev_b32 v{vT}, 3, v{vL}
    v_lshrrev_b32 v{vT+1}, 4, v{vL}
    v_and_b32 v{vT+2}, 7, v{vL}
    s_lshl_b32 s{sT0}, s{sRB}, 7
    s_lshl_b32 s{sT1}, s3, 4
    s_add_u32 s{sT0}, s{sT0}, s{sT1}
    v_add_u32 v{vT}, s{sT0}, v{vT}
    v_mul_u32_u24 v{vT}, 896, v{vT}
    v_xor_b32 v{vT+3}, v{vT+2}, v{vT+1}
    v_lshl_add_u32 v{vXG0}, v{vT+3}, 4, v{vT}
    v_xor_b32 v{vT+3}, 4, v{vT+3}
    v_lshl_add_u32 v{vXG1}, v{vT+3}, 4, v{vT}
    v_add_u32 v{vXG1}, {8*896}, v{vXG1}
    v_and_b32 v{vT+2}, 15, v{vL}
    v_lshlrev_b32 v{vT+3}, 2, v{vT+1}
    v_xor_b32 v{vT+2}, v{vT+2}, v{vT+3}
    s_lshl_b32 s{sT0}, s{sRH}, 1
    v_xor_b32 v{vT+2}, s{sT0}, v{vT+2}
    s_lshl_b32 s{sT1}, s{sCQ}, 4
    v_add_u32 v{vT+3}, s{sT1}, v{vT+1}
    v_mul_u32_u24 v{vT+3}, 3584, v{vT+3}
    v_lshl_add_u32 v{vWG}, v{vT+2}, 4, v{vT+3}
    s_lshl_b32 s{sT0}, s{sCB}, 8
    v_add_u32 v{vWG}, s{sT0}, v{vWG}
    s_lshl_b32 s{sM0X}, s3, 11
    s_lshl_b32 s{sM0W}, s3, 12
    s_add_u32 s{sM0W}, s{sM0W}, 16384
    """)


def gemm1_setup2(a):
    a(f"""
    v_and_b32 v{vT}, 31, v{vL}
    v_lshrrev_b32 v{vT+1}, 5, v{vL}
    v_bfe_u32 v{vT+2}, v{vL}, 1, 3
    v_xor_b32 v{vT+2}, v{vT+2}, v{vT+1}
    s_lshl_b32 s{sT1}, s{sRH}, 6
    v_add_u32 v{vT}, s{sT1}, v{vT}
    v_lshlrev_b32 v{vT}, 7, v{vT}
    v_lshl_add_u32 v{vXA}, v{vT+2}, 4, v{vT}
    v_xor_b32 v{vXA+1}, 32, v{vXA}
    v_xor_b32 v{vXA+2}, 64, v{vXA}
    v_xor_b32 v{vXA+3}, 96, v{vXA}
    v_bfe_u32 v{vT}, v{vL}, 4, 1
    v_bfe_u32 v{vT+2}, v{vL}, 2, 2
    v_bfe_u32 v{vT+3}, v{vL}, 1, 1
    s_lshl_b32 s{sT0}, s{sCQ}, 2
    v_or_b32 v{vT+3}, s{sT0}, v{vT+3}
    v_lshlrev_b32 v{vT+4}, 2, v{vT+2}
    v_xor_b32 v{vT+3}, v{vT+3}, v{vT+4}
    v_lshlrev_b32 v{vT+4}, 1, v{vT}
    v_xor_b32 v{vT+3}, v{vT+3}, v{vT+4}
    v_lshlrev_b32 v{vT+3}, 4, v{vT+3}
    v_and_b32 v{vT+4}, 1, v{vL}
    v_lshl_add_u32 v{vT+3}, v{vT+4}, 3, v{vT+3}
    v_lshl_add_u32 v{vT+2}, v{vT+1}, 3, v{vT+2}
    v_lshl_add_u32 v{vT+3}, v{vT+2}, 8, v{vT+3}
    v_add_u32 v{vT}, 1, v{vT}
    v_lshl_add_u32 v{vWA}, v{vT}, 14, v{vT+3}
    v_xor_b32 v{vWA+1}, 32, v{vWA}
    v_mov_b32 v{vZ}, 0
    v_lshlrev_b32 v{vLB}, 4, v{vL}
    """)


def dma_pieces(a, st):
    slot = (st % 3) * SLOT
    P = []

    def px(i):
        def f():
            if i == 0:
                a(f"s_add_u32 s{sXO}, s{sROT}, {st}")
                a(f"s_cmp_ge_u32 s{sXO}, 7")
                a(f"s_cselect_b32 s{sWO}, 7, 0")
                a(f"s_sub_u32 s{sXO}, s{sXO}, s{sWO}")
                a(f"s_mul_i32 s{sWO}, s{sXO}, {64*3584}")
                a(f"s_lshl_b32 s{sXO}, s{sXO}, 7")
            a(f"s_add_u32 m0, s{sM0X}, {slot+1024*i}")
            a("s_nop 0")
            a.vmem(f"buffer_load_dwordx4 v{vXG1 if i else vXG0}, {sr(R_X,4)}, s{sXO} offen lds", f"A{st}")
        return f

    def pw(j):
        def f():
            a(f"s_add_u32 m0, s{sM0W}, {slot+1024*j}")
            if j:
                a(f"s_add_u32 s{sWO}, s{sWO}, {4*3584}")
            else:
                a("s_nop 0")
            a.vmem(f"buffer_load_dwordx4 v{vWG}, {sr(R_W,4)}, s{sWO} offen lds", f"A{st}")
        return f
    return [px(0), px(1)] + [pw(j) for j in range(4)]


def wdma_pieces(a, s, ent):
    def p(j):
        def f():
            a(f"s_mov_b32 s{sW2}, {(32*s + 8*j)*896}")
            a(f"s_add_u32 m0, s{sWB}, {ent + j*1024}")
            a("s_nop 0")
            a.vmem(f"buffer_load_dwordx4 v{vWD}, {sr(R_WD,4)}, s{sW2} offen lds", f"W{s}")
        return f
    return [p(0), p(1)]


def frag(setno, which):
    return vFR + 16 * setno + 4 * which


def g1_reads(a, st, p, setno):
    slot = (st % 3) * SLOT
    if p == 0:
        a(f"v_add_u32 v{vWR0}, {slot}, v{vWA}")
        a(f"v_add_u32 v{vWR1}, {slot}, v{vWA+1}")
    a(f"v_add_u32 v{vXR}, {slot}, v{vXA+p}")
    a(f"ds_read_b64_tr_b16 {vr(frag(setno,2),2)}, v{vWR0} offset:{4096*p}")
    a(f"ds_read_b64_tr_b16 {vr(frag(setno,2)+2,2)}, v{vWR0} offset:{4096*p+1024}")
    a(f"ds_read_b128 {vr(frag(setno,0),4)}, v{vXR}")
    a(f"ds_read_b128 {vr(frag(setno,1),4)}, v{vXR} offset:4096")
    a(f"ds_read_b64_tr_b16 {vr(frag(setno,3),2)}, v{vWR1} offset:{4096*p}")
    a(f"ds_read_b64_tr_b16 {vr(frag(setno,3)+2,2)}, v{vWR1} offset:{4096*p+1024}")


def g1_mfmas(a, setno, fill, rate=2, first=False):
    x = [frag(setno, 0), frag(setno, 1)]
    w = [frag(setno, 2), frag(setno, 3)]
    for k, (mt, nt) in enumerate([(0, 0), (0, 1), (1, 1), (1, 0)]):
        acc = vACC + 16 * (2 * mt + nt)
        a(f"v_mfma_f32_32x32x16_bf16 {vr(acc,16)}, {vr(w[mt],4)}, {vr(x[nt],4)}, {'0' if first else vr(acc,16)}")
        if fill and (rate == 4 or k in (0, 2)):
            fill.pop(0)()


def stat_loads(a):
    a(f"""
    s_lshl_b32 s{sT0}, s{sRB}, 7
    s_lshl_b32 s{sT1}, s{sRH}, 6
    s_add_u32 s{sT0}, s{sT0}, s{sT1}
    v_and_b32 v{vT}, 31, v{vL}
    v_add_u32 v{vT}, s{sT0}, v{vT}
    v_lshlrev_b32 v{vT}, 3, v{vT}
    s_lshl_b32 s{sT0}, s{sCB}, 3
    s_lshl_b32 s{sT1}, s{sCQ}, 1
    s_add_u32 s{sT0}, s{sT0}, s{sT1}
    s_lshl_b32 s{sT0}, s{sT0}, 7
    s_add_u32 s{sT0}, s{sT0}, {WS_CS}
    s_mov_b32 s{sT1}, {WS_STATS}
    v_lshrrev_b32 v{vT+1}, 5, v{vL}
    v_lshlrev_b32 v{vT+1}, 4, v{vT+1}
    """)
    a.vmem(f"buffer_load_dwordx2 {vr(vSTAT,2)}, v{vT}, {sr(R_WS,4)}, s{sT1} offen sc1", "ST")
    a.vmem(f"buffer_load_dwordx2 {vr(vSTAT+2,2)}, v{vT}, {sr(R_WS,4)}, s{sT1} offen offset:256 sc1", "ST")
    for i in range(8):
        a.vmem(f"buffer_load_dwordx4 {vr(vCS+4*i,4)}, v{vT+1}, {sr(R_WS,4)}, s{sT0} offen offset:{32*i} sc1", "ST")


def kv_load(a):
    a(f"""
    s_lshl_b32 s{sT0}, s{sCH}, 12
    s_lshl_b32 s{sT1}, s{sCQ}, 10
    s_add_u32 s{sT0}, s{sT0}, s{sT1}
    s_add_u32 s{sT0}, s{sT0}, {WS_KVR}
    """)
    a.vmem(f"buffer_load_dwordx4 {vr(vU,4)}, v{vLB}, {sr(R_WS,4)}, s{sT0} offen sc1", "U")


def phase23_setup(a):
    u = vC
    a(f"""
    s_and_b32 s{sT0}, s2, 7
    s_lshr_b32 s{sT1}, s2, 3
    s_mul_i32 s{s2RB}, s{sT1}, 37
    s_lshr_b32 s{s2RB}, s{s2RB}, 8
    s_mul_i32 s{s2CB}, s{s2RB}, 7
    s_sub_u32 s{s2CB}, s{sT1}, s{s2CB}
    s_lshl_b32 s{sT1}, s{sT0}, 2
    s_add_u32 s{s2RB}, s{s2RB}, s{sT1}
    s_lshl_b32 s{sWB}, s{sCQ}, 12
    s_lshl_b32 s{sT0}, s{sRH}, 11
    s_add_u32 s{sWB}, s{sWB}, s{sT0}
    s_lshl_b32 s{sT0}, s{s2RB}, 1
    s_add_u32 s{sT0}, s{sT0}, s{sRH}
    s_lshl_b32 s{sT0}, s{sT0}, 7
    s_mul_i32 s{sT1}, s{sCQ}, 28
    s_add_u32 s{sT0}, s{sT0}, s{sT1}
    s_lshl_b32 s{sT0}, s{sT0}, 10
    v_add_u32 v{vHO}, s{sT0}, v{vLB}
    v_lshrrev_b32 v{u}, 3, v{vL}
    s_mul_i32 s{sT0}, s{sCQ}, 448
    s_lshl_b32 s{sT1}, s{sRH}, 4
    s_add_u32 s{sT0}, s{sT0}, s{sT1}
    v_add_u32 v{u}, s{sT0}, v{u}
    v_mul_u32_u24 v{u}, 896, v{u}
    v_bfe_u32 v{u+1}, v{vL}, 4, 1
    v_lshlrev_b32 v{u+1}, 2, v{u+1}
    v_and_b32 v{u+2}, 7, v{vL}
    v_xor_b32 v{u+1}, v{u+1}, v{u+2}
    v_lshl_add_u32 v{vWD}, v{u+1}, 4, v{u}
    s_lshl_b32 s{sT0}, s{s2CB}, 7
    v_add_u32 v{vWD}, s{sT0}, v{vWD}
    s_lshl_b32 s{sCH}, s2, 1
    s_add_u32 s{sCH}, s{sCH}, s{sRH}
    s_mul_i32 s{sUB}, s{sRH}, {8*CV_UP}
    s_add_u32 s{sUB}, s{sUB}, {CV_U}
    s_mul_i32 s{sAB}, s{sRH}, {CV_A[1]}
    s_lshl_b32 s{sT0}, s{sCH}, 12
    s_add_u32 s{R_H}, s{S_SSMK}, s{sT0}
    s_addc_u32 s{R_H+1}, s{S_SSMK+1}, 0
    s_and_b32 s{R_H+1}, s{R_H+1}, 0xffff
    s_mov_b32 s{R_H+2}, 4096
    s_mov_b32 s{R_H+3}, 0x20000
    s_lshl_b32 s{sT1}, s{sCQ}, 10
    v_add_u32 v{u+1}, s{sT1}, v{vLB}
    v_subrev_u32 v{u+2}, 64, v{vLB}
    v_subrev_u32 v{u+3}, 48, v{vLB}
    """)
    srd(a, R_WD, S_WD, SZ_W)
    srd(a, R_O, S_OUT, SZ_X)


def win_pieces(a):
    u = vC
    return [
        lambda: a.vmem(f"buffer_load_dwordx4 {vr(vD,4)}, v{u+1}, {sr(R_H,4)}, 0 offen", "D"),
        lambda: a.vmem(f"buffer_load_dwordx4 {vr(vD+4,4)}, v{u+1}, {sr(R_H,4)}, 0 offen offset:16", "D"),
        lambda: a.vmem(f"buffer_load_dwordx4 {vr(vD+8,4)}, v{u+2}, {sr(R_H,4)}, 0 offen", "D"),
        lambda: a.vmem(f"buffer_load_dwordx4 {vr(vD+12,4)}, v{u+3}, {sr(R_H,4)}, 0 offen", "D"),
    ]


def flag_zero(a):
    a(f"""
    s_lshl_b32 s{sE}, s{sRB}, 1
    s_add_u32 s{sE}, s{sE}, s{sRH}
    s_mul_i32 s{sE}, s{sE}, 56
    s_lshl_b32 s{sT0}, s{sCB}, 2
    s_add_u32 s{sE}, s{sE}, s{sT0}
    s_add_u32 s{sE}, s{sE}, s{sCQ}
    s_lshl_b32 s{sE}, s{sE}, 7
    s_add_u32 s{sE}, s{sE}, {WS_FLH}
    s_mul_i32 s{sTMP}, s{sCQ}, 448
    s_add_u32 s{sTMP}, s{sTMP}, s{sCH}
    s_lshl_b32 s{sTMP}, s{sTMP}, 7
    s_add_u32 s{sTMP}, s{sTMP}, {WS_FLT}
    """)
    tag_issue(a)


def wpf(a):
    if not WPF2:
        return
    a(f"""
    s_lshr_b32 s{sT0}, s2, 3
    s_mul_i32 s{sT0}, s{sT0}, 7
    s_add_u32 s{sT0}, s{sT0}, s3
    s_lshl_b32 s{sT0}, s{sT0}, 13
    s_cmp_eq_u32 s3, 7
    s_cselect_b32 s{sT0}, 0x7f000000, s{sT0}
    v_lshlrev_b32 v{vT}, 7, v{vL}
    """)
    a.vmem(f"buffer_load_dword v{vT+1}, v{vT}, {sr(R_WD,4)}, s{sT0} offen", "WPF")


def interleave(x, y):
    out = []
    while x or y:
        if x:
            out.append(x.pop(0))
        if y:
            out.append(y.pop(0))
    return out


def gemm1_main(a):
    NST = 7
    g1_reads(a, 0, 0, 0)
    cur = 0
    up = unit_pieces(a)
    fill = dma_pieces(a, 2) + [lambda: phase23_setup(a), lambda: flag_zero(a)]
    for st in range(NST):
        for p in range(4):
            if p < 3:
                g1_reads(a, st, p + 1, cur ^ 1)
                a("s_waitcnt lgkmcnt(6)")
                g1_mfmas(a, cur, fill, 4 if st <= 4 else 2, st == 0 and p == 0)
            else:
                while fill:
                    fill.pop(0)()
                a("s_waitcnt lgkmcnt(0)")
                if st + 1 < NST:
                    a.vm_wait(f"A{st+1}")
                if st == 1:
                    tag_block(a)
                    a("s_waitcnt lgkmcnt(0)")
                if st == SIG_AT:
                    a.vm_wait("US")
                if st == 5:
                    poll_block(a, vPOLL)
                a("s_barrier")
                if st + 1 < NST:
                    g1_reads(a, st + 1, 0, cur ^ 1)
                if st == SIG_AT:
                    fill += [lambda: unit_signal(a)]
                d = dma_pieces(a, st + 3) if st + 3 < NST else []
                if st == 0:
                    d = interleave(d, up[4:11] + up[:4])
                if st == 1:
                    d = [lambda: (tag_read(a), up[11]())] + d
                fill += d
                if st == 2:
                    cp = conv_pre(a)
                    fill = interleave(fill, cp[:3])
                    fill += wdma_pieces(a, 6, WENT[6])
                if st == 3:
                    fill += cp[3:]
                if st == 1:
                    w = win_pieces(a)
                    fill += [lambda: ([f() for f in w], wpf(a))]
                if st == 4:
                    wd = []
                    for s_ in range(3):
                        wd += wdma_pieces(a, s_, WENT[s_])
                    fill += wd[:PI_AT] + [lambda: poll_issue(a, vPOLL, "P0")] + wd[PI_AT:]
                if st == 5:
                    def f5():
                        stat_loads(a)
                        kv_load(a)
                    fill += [f5]
                    for s_ in range(3, 6):
                        fill += wdma_pieces(a, s_, WENT[s_])
                g1_mfmas(a, cur, fill, 4 if st <= 3 else 2)
                if st in (3, 6) or STM:
                    a.stamp()
            cur ^= 1
    assert not fill


def gemm1_epilogue(a):
    a(f"s_lshl_b32 s{sT1}, s2, 2")
    a(f"s_load_dword s{sD}, {sr(S_SSMD,2)}, s{sT1}")
    conv_writes(a)
    a.vm_wait("U")
    a(f"ds_write_b128 v{vWP}, {vr(vU,4)}")
    a.stamp()
    a(f"""
    v_mul_f32 v{vR2}, v{vSTAT+1}, v{vSTAT+1}
    v_mul_f32 v{vR2+2}, v{vSTAT+3}, v{vSTAT+3}
    s_lshl_b32 s{sT0}, s{sRB}, 2
    s_lshl_b32 s{sT1}, s{sRH}, 1
    s_add_u32 s{sT0}, s{sT0}, s{sT1}
    s_lshl_b32 s{sT0}, s{sT0}, 7
    s_lshl_b32 s{sT1}, s{sCB}, 3
    s_add_u32 s{sT0}, s{sT0}, s{sT1}
    s_lshl_b32 s{sT1}, s{sCQ}, 1
    s_add_u32 s{sT0}, s{sT0}, s{sT1}
    s_lshl_b32 s{sT0}, s{sT0}, 10
    s_add_u32 s{sT1}, s{sT0}, {128*1024}
    """)
    vH = 28
    k = 0
    for mt in range(2):
        for nt in range(2):
            acc = vACC + 16 * (2 * mt + nt)
            cs = vCS + 16 * mt
            m = vSTAT + 2 * nt
            for i in range(8):
                a(f"v_pk_fma_f32 {vr(acc+2*i,2)}, {vr(m,2)}, {vr(cs+2*i,2)}, {vr(acc+2*i,2)} op_sel_hi:[0,1,1] neg_lo:[1,0,0] neg_hi:[1,0,0]")
            for i in range(8):
                a(f"v_max_f32 v{acc+i}, 0, v{acc+i}")
            for i in range(4):
                a(f"v_pk_mul_f32 {vr(acc+8+2*i,2)}, {vr(acc+8+2*i,2)}, {vr(vR2+2*nt,2)} op_sel_hi:[1,0]")
            for i in range(4):
                a(f"v_pk_mul_f32 {vr(acc+2*i,2)}, {vr(acc+2*i,2)}, {vr(acc+8+2*i,2)}")
            o = vH + 4 * k
            for i in range(4):
                a(f"v_cvt_pk_bf16_f32 v{o+i}, v{acc+2*i}, v{acc+2*i+1}")
            a.vmem(f"buffer_store_dwordx4 {vr(o,4)}, v{vLB}, {sr(R_WS,4)}, s{sT1 if nt else sT0} offen offset:{mt*1024} sc1", "HS")
            k += 1


def h_flag(a):
    a.vm_wait("HS")
    a("s_mov_b64 exec, 1")
    a.vmem(f"buffer_store_dword v{vONE}, v{vZ}, {sr(R_WS,4)}, s{sE} offen sc1", "HF")
    a("s_mov_b64 exec, -1")


vF, vB, vAC = 44, 80, 112
vHD = 144
HLD = int(os.environ.get("HLD", 0))
HFL = " sc1" if HLD == 0 else ""
HF_AT, HP_AT, HC_AT = int(os.environ.get("HF_AT", 16)), int(os.environ.get("HP_AT", 48)), int(os.environ.get("HC_AT", 64))


def hload(a, T):
    if T % 4 == 0 or T == 14:
        a(f"s_mov_b32 s{sHO}, {1024*(T - T%4)}")
    a.vmem(f"buffer_load_dwordx4 {vr(vHD+4*T,4)}, v{vHO}, {sr(R_WS,4)}, s{sHO} offen offset:{1024*(T%4)}{HFL}", f"H{T}")


def late_h(a, qd, vFA, blocking):
    Ls, L, Lgo = f"LH_SK{qd}_{blocking}", f"LH_L{qd}_{blocking}", f"LH_GO{qd}_{blocking}"
    save = list(a.vm)
    a(f"s_cmp_lg_u32 s{sOK0}, 0")
    a(f"s_cbranch_scc1 {Ls}")
    a(f"s_mov_b32 s{sSP}, 0")
    a.label(L)
    a(f"""
    s_waitcnt vmcnt(0)
    v_cmp_eq_u32 vcc, v{vONE}, v{vPOLL}
    s_add_u32 s{sSP}, s{sSP}, 1
    s_cmp_gt_u32 s{sSP}, 0x10000
    s_cbranch_scc1 {Lgo}
    s_cmp_eq_u64 vcc, exec
    s_cbranch_scc1 {Lgo}
    buffer_load_dword v{vPOLL}, v{vFA}, {sr(R_WS,4)}, 0 offen sc1
    s_branch {L if blocking else Ls}
    """)
    a.label(Lgo)
    a(f"s_mov_b32 s{sOK0}, 1")
    for T in range(14):
        hload(a, T)
    if blocking:
        a(f"buffer_load_dword v{vPOLL}, v{vFA}, {sr(R_WS,4)}, 0 offen sc1")
    a.vm = save
    a.label(Ls)


vAA, vBA, vFA, vKA, vTA, vEX = 244, 245, 246, 247, 248, 249
vWM, vWX, vWZ, vWP = 250, 251, 252, 253
vBLD = 128


def conv_pre(a):
    c = vC

    def p1():
        a(f"""
        s_lshl_b32 s{sT0}, s{sCQ}, 10
        s_add_u32 s{sT0}, s{sT0}, s{sAB}
        v_add_u32 v{vWM}, s{sT0}, v{vLB}
        v_add_u32 v{vWX}, s{sAB}, v{vLB}
        v_mov_b32 v{vBLD+24}, 0
        v_mov_b32 v{vBLD+25}, 0
        v_mov_b32 v{vBLD+26}, 0
        v_mov_b32 v{vBLD+27}, 0
        v_bfe_u32 v{vWZ}, v{vL}, 4, 1
        s_lshl_b32 s{sT0}, s{sCQ}, 1
        v_add_u32 v{vWZ}, s{sT0}, v{vWZ}
        v_mul_u32_u24 v{vWZ}, {CV_UP}, v{vWZ}
        v_and_b32 v{c}, 15, v{vL}
        v_lshl_add_u32 v{vWZ}, v{c}, 4, v{vWZ}
        v_add_u32 v{vWZ}, s{sUB}, v{vWZ}
        """)

    def p2():
        a(f"""
        v_and_b32 v{vWP}, 7, v{vL}
        v_xor_b32 v{vWP}, 4, v{vWP}
        v_mul_u32_u24 v{vWP}, {CV_UP}, v{vWP}
        v_lshrrev_b32 v{c+4}, 3, v{vL}
        v_lshlrev_b32 v{c+4}, 4, v{c+4}
        v_sub_u32 v{vWP}, v{vWP}, v{c+4}
        s_lshl_b32 s{sT0}, s{sCQ}, 7
        s_sub_u32 s{sT0}, s{sUB}, s{sT0}
        s_add_u32 s{sT0}, s{sT0}, {47*16}
        v_add_u32 v{vWP}, s{sT0}, v{vWP}
        v_lshrrev_b32 v{c+4}, 4, v{vL}
        v_mul_u32_u24 v{vBA}, {CV_UP}, v{c+4}
        v_lshl_add_u32 v{vBA}, v{c}, 4, v{vBA}
        v_add_u32 v{vBA}, s{sUB}, v{vBA}
        v_sub_u32 v{vKA}, 3, v{c+4}
        v_mul_u32_u24 v{vKA}, {CV_UP}, v{vKA}
        v_lshl_add_u32 v{vKA}, v{c}, 4, v{vKA}
        v_add_u32 v{vKA}, s{sUB}, v{vKA}
        """)

    def p3():
        a(f"""
        v_lshlrev_b32 v{vTA}, 7, v{c}
        v_lshl_add_u32 v{vTA}, v{c+4}, 4, v{vTA}
        v_lshrrev_b32 v{c}, 2, v{c}
        v_add_u32 v{c}, v{c}, v{c+4}
        v_lshlrev_b32 v{c}, 4, v{c}
        v_add_u32 v{c}, s{sAB}, v{c}
        v_and_b32 v{c+4}, 3, v{vL}
        v_mul_u32_u24 v{vAA}, {CV_ST}, v{c+4}
        v_add_u32 v{vAA}, v{vAA}, v{c}
        s_mul_i32 s{sT0}, s{sRH}, {12*2048}
        v_add_u32 v{vEX}, s{sT0}, v{vLB}
        s_mul_i32 s{sT0}, s{s2RB}, 56
        s_mul_i32 s{sT1}, s{sCQ}, 14
        s_add_u32 s{sT0}, s{sT0}, s{sT1}
        s_lshl_b32 s{sT0}, s{sT0}, 7
        s_add_u32 s{sT0}, s{sT0}, {WS_FLH}
        v_min_u32 v{vFA}, 13, v{vL}
        v_lshl_add_u32 v{vFA}, v{vFA}, 7, s{sT0}
        """)

    def bld(rnd):
        def f():
            a.vm_wait("D")
            d, b = vD + 8 * rnd, vBLD + 12 * rnd
            for i in range(4):
                a(f"v_mov_b32 v{b+i}, v{d+1+i}")
            for i in range(4):
                a(f"v_alignbit_b32 v{b+4+i}, v{d+i+1}, v{d+i}, 16")
            for i in range(4):
                a(f"v_alignbit_b32 v{b+8+i}, v{d+i+2}, v{d+i+1}, 16")
        return f
    return [p1, p2, p3, bld(0), bld(1)]


def conv_writes(a):
    for rnd in range(2):
        d, b = vD + 8 * rnd, vBLD + 12 * rnd
        if rnd:
            a("s_mov_b64 exec, 15")
        srcs = [b + 4, b, b + 8, d + 2]
        for cc in range(4):
            a(f"ds_write_b128 v{vWX if rnd else vWM}, {vr(srcs[cc],4)} offset:{cc*CV_ST + (0 if rnd else 64)}")
        if rnd:
            a("s_mov_b64 exec, -1")
    a(f"ds_write_b128 v{vWZ}, {vr(vBLD+24,4)}")


def conv(a):
    a("s_waitcnt lgkmcnt(0)")
    a.stamp()
    a("s_barrier")
    a(f"""
    s_cmp_eq_u32 s{sCQ}, 1
    s_cbranch_scc1 CV_Q1
    s_cmp_eq_u32 s{sCQ}, 2
    s_cbranch_scc1 CV_Q2
    s_cmp_eq_u32 s{sCQ}, 3
    s_cbranch_scc1 CV_Q3
    """)
    vm_save, nst_save = list(a.vm), a.nst
    ranges = [range(0, 6), range(6, 12), range(12, 20), range(20, 32)]
    vm_end = None
    for qd in range(4):
        if qd:
            a.label(f"CV_Q{qd}")
        a.vm, a.nst = list(vm_save), nst_save

        def F(psi):
            return vF + 6 * (psi % 6)

        def rdA(psi):
            off = (4 * psi - 4 + 4) * 16
            a(f"ds_read_b128 {vr(F(psi),4)}, v{vAA} offset:{off}")
            a(f"ds_read_b64 {vr(F(psi)+4,2)}, v{vAA} offset:{off+16}")
            return 2

        def nus(dl):
            return (0, 1) if dl < 16 else (1,)

        def rdB(dl):
            n = 0
            for kc in range(2):
                for nu in nus(dl):
                    a(f"ds_read_b128 {vr(vB+16*(dl&1)+8*kc+4*nu,4)}, v{vBA} offset:{kc*4*CV_UP+(16+16*nu-dl)*16}")
                    n += 1
            return n

        dls = list(ranges[qd])
        if dls[0] > 0:
            rdA(2 * dls[0] - 1)
        rdA(2 * dls[0]); rdA(2 * dls[0] + 1); rdB(dls[0])
        cnt = 0
        done = set()
        inited = set()
        for dl in dls:
            n = 0
            if dl != dls[-1]:
                n += rdA(2 * dl + 2); n += rdA(2 * dl + 3); n += rdB(dl + 1)
            a(f"s_waitcnt lgkmcnt({n})")
            for kc in range(2):
                for p in range(2):
                    psi = 2 * dl + p - kc
                    if psi < 0:
                        continue
                    for par in range(2):
                        for nu in nus(dl):
                            acc = vAC + 16 * nu + 8 * p + 4 * par
                            csrc = vr(acc, 4) if acc in inited else "0"
                            inited.add(acc)
                            a(f"v_mfma_f32_16x16x32_bf16 {vr(acc,4)}, {vr(F(psi)+2*par,4)}, {vr(vB+16*(dl&1)+8*kc+4*nu,4)}, {csrc}")
                            cnt += 1
            if cnt >= HF_AT - 4 and "hf" not in done:
                done.add("hf")
                h_flag(a)
            if cnt >= HP_AT - 4 and "hp" not in done:
                done.add("hp")
                a.vmem(f"buffer_load_dword v{vPOLL}, v{vFA}, {sr(R_WS,4)}, 0 offen sc1", "PH")
            elif cnt >= HC_AT - 4 and "hc" not in done:
                done.add("hc")
                a.vm_wait("PH")
                a(f"""
                v_cmp_eq_u32 vcc, v{vONE}, v{vPOLL}
                s_mov_b32 s{sOK0}, 0
                s_nop 2
                s_cmp_eq_u64 vcc, exec
                s_cbranch_scc0 CV_NR{qd}
                s_mov_b32 s{sOK0}, 1
                """)
                for T in range(14):
                    hload(a, T)
                a(f"s_branch CV_NR2{qd}")
                a.label(f"CV_NR{qd}")
                a(f"buffer_load_dword v{vPOLL}, v{vFA}, {sr(R_WS,4)}, 0 offen sc1")
                a.label(f"CV_NR2{qd}")
                a.stamp()
        assert done == {"hf", "hp", "hc"}, done
        a.stamp()
        nu_o, p_o = qd >> 1, qd & 1
        vK = vF
        a(f"ds_read_b128 {vr(vB,4)}, v{vKA} offset:{p_o*4*CV_UP+(16+16*nu_o)*16}")
        a(f"""
        s_lshl_b32 s{sT0}, s{sCH}, 12
        s_add_u32 s{sT0}, s{sT0}, {WS_T + nu_o*2048 + p_o*64}
        s_lshl_b32 s{sT1}, s{sRH}, 4
        s_lshr_b32 s{sD}, s{sD}, s{sT1}
        s_lshl_b32 s{sD}, s{sD}, 16
        s_waitcnt lgkmcnt(0)
        s_barrier
        """)
        for dq in range(4):
            if dq == qd or (qd == 3 and dq < 2):
                continue
            sl = (qd - dq - 1) % 4
            for q in range(2):
                a(f"ds_write_b128 v{vEX}, {vr(vAC+8*dq+4*q,4)} offset:{(dq*3+sl)*2048+q*1024}")
        for dq_ in range(4):
            a(f"v_lshlrev_b32 v{vK+7-2*dq_}, 16, v{vB+dq_}")
            a(f"v_and_b32 v{vK+6-2*dq_}, 0xffff0000, v{vB+dq_}")
        for i in range(8):
            a(f"v_mul_f32 v{vK+i}, s{sD}, v{vK+i}")
        for i in range(4):
            round_pair(a, vK + 2 * i, vK + 2 * i + 1)
        a("s_waitcnt lgkmcnt(0)")
        a("s_barrier")
        late_h(a, qd, vFA, 0)
        srcs = [s_ for s_ in range(4) if s_ != qd and not (s_ == 3 and qd < 2)]
        vR = vB
        for k, s_ in enumerate(srcs):
            sl = (s_ - qd - 1) % 4
            for q in range(2):
                a(f"ds_read_b128 {vr(vR+8*k+4*q,4)}, v{vEX} offset:{(qd*3+sl)*2048+q*1024}")
        y = vAC + 8 * qd
        for k in range(len(srcs)):
            a(f"s_waitcnt lgkmcnt({2*(len(srcs)-1-k)})")
            for i in range(4):
                a(f"v_pk_add_f32 {vr(y+2*i,2)}, {vr(y+2*i,2)}, {vr(vR+8*k+2*i,2)}")
        for i in range(4):
            round_pair(a, y + 2 * i, y + 2 * i + 1)
        for i in range(4):
            a(f"v_pk_add_f32 {vr(y+2*i,2)}, {vr(y+2*i,2)}, {vr(vK+2*i,2)}")
        for i in range(4):
            a(f"v_cvt_pk_bf16_f32 v{108+i}, v{y+2*i}, v{y+2*i+1}")
        a.vmem(f"buffer_store_dwordx4 {vr(108,4)}, v{vTA}, {sr(R_WS,4)}, s{sT0} offen sc1", "TS")
        late_h(a, qd, vFA, 1)
        if qd < 3:
            a("s_branch CV_JOIN")
        if vm_end is None:
            vm_end = list(a.vm)
        assert vm_end == a.vm
    a.label("CV_JOIN")


def gemm2(a):
    u = 10
    vRA0, vRA1, vRB0, vRB1, vXO = 3, 4, 5, 6, 7
    vXV, vST2 = 24, 8
    vW = [28 + 16 * i for i in range(5)]
    vA2 = 112
    vF_, vTG, vTW, vTR = 14, 15, 16, 17
    a(f"""
    v_lshrrev_b32 v{u}, 5, v{vL}
    v_bfe_u32 v{u+1}, v{vL}, 2, 2
    v_lshl_add_u32 v{u}, v{u}, 2, v{u+1}
    v_bfe_u32 v{u+2}, v{vL}, 4, 1
    v_bfe_u32 v{u+3}, v{vL}, 1, 1
    v_lshl_add_u32 v{u+2}, v{u+2}, 1, v{u+3}
    v_bfe_u32 v{u+3}, v{vL}, 3, 1
    v_lshl_add_u32 v{u+2}, v{u+3}, 2, v{u+2}
    v_lshlrev_b32 v{u+2}, 4, v{u+2}
    v_and_b32 v{u+3}, 1, v{vL}
    v_lshl_add_u32 v{u+2}, v{u+3}, 3, v{u+2}
    v_lshl_add_u32 v{u+2}, v{u}, 7, v{u+2}
    s_lshl_b32 s{sT0}, s{sCQ}, 12
    v_add_u32 v{vRA0}, s{sT0}, v{u+2}
    v_xor_b32 v{vRA1}, 64, v{vRA0}
    """)
    ENT = {s_: WENT[s_] for s_ in range(7)}
    for s_ in range(7, 12):
        ENT[s_] = WENT[s_ - 7]
    ENT[12], ENT[13] = 0, 16384

    def trreads(s_, dst):
        a(f"v_add_u32 v{vRB0}, {ENT[s_]}, v{vRA0}")
        a(f"v_add_u32 v{vRB1}, {ENT[s_]}, v{vRA1}")
        for tt in range(2):
            for Td in range(2):
                for hf in range(2):
                    a(f"ds_read_b64_tr_b16 {vr(dst+8*tt+4*Td+2*hf,2)}, v{vRB1 if Td else vRB0} offset:{tt*2048+hf*1024}")

    first = [True]

    def mf(s_, wreg, fill):
        for tt in range(2):
            a.vm_wait(f"H{2*s_+tt}")
            for Td in range(2):
                acc = vA2 + 16 * Td
                c = "0" if first[0] else vr(acc, 16)
                a(f"v_mfma_f32_32x32x16_bf16 {vr(acc,16)}, {vr(wreg+8*tt+4*Td,4)}, {vr(vHD+4*(2*s_+tt),4)}, {c}")
                if fill:
                    fill.pop(0)()
            first[0] = False

    for s_ in range(5):
        trreads(s_, vW[s_])
    a(f"""
    s_lshl_b32 s{sT0}, s{s2RB}, 6
    s_lshl_b32 s{sT1}, s{sRH}, 5
    s_add_u32 s{sT0}, s{sT0}, s{sT1}
    v_and_b32 v{u}, 31, v{vL}
    v_add_u32 v{u}, s{sT0}, v{u}
    v_lshlrev_b32 v{u+1}, 3, v{u}
    v_add_u32 v{u+1}, {WS_STATS}, v{u+1}
    v_mul_u32_u24 v{vXO}, 896, v{u}
    v_lshrrev_b32 v{u+2}, 5, v{vL}
    v_lshl_add_u32 v{vXO}, v{u+2}, 3, v{vXO}
    s_and_b32 s{sT1}, s{sCQ}, 1
    s_lshl_b32 s{sT1}, s{sT1}, 6
    s_lshr_b32 s{sXO}, s{sCQ}, 1
    s_lshl_b32 s{sXO}, s{sXO}, 5
    s_add_u32 s{sXO}, s{sXO}, s{sT1}
    s_lshl_b32 s{sT0}, s{s2CB}, 7
    s_add_u32 s{sXO}, s{sXO}, s{sT0}
    v_add_u32 v{vXO}, s{sXO}, v{vXO}
    s_waitcnt lgkmcnt(0)
    s_barrier
    """)
    a.stamp()
    fill = []
    for s_ in range(7, 14):
        fill += wdma_pieces(a, s_, ENT[s_])
        fill += [(lambda T: (lambda: hload(a, T)))(2 * s_), (lambda T: (lambda: hload(a, T)))(2 * s_ + 1)]

    def xloads():
        for i in range(2):
            a.vmem(f"buffer_load_dwordx2 {vr(vXV+2*i,2)}, v{vXO}, {sr(R_X,4)}, 0 offen offset:{16*i}", "XV")
        a.vmem(f"buffer_load_dwordx2 {vr(vST2,2)}, v{u+1}, {sr(R_WS,4)}, 0 offen sc1", "XV")

    def tflag():
        a.vm_wait("TS")
        a("s_mov_b64 exec, 1")
        a.vmem(f"buffer_store_dword v{vONE}, v{vZ}, {sr(R_WS,4)}, s{sTMP} offen sc1", "TF")
        a("s_mov_b64 exec, -1")

    NPRE = int(os.environ.get("NPRE", 4))
    for _ in range(NPRE):
        fill.pop(0)()
    mf(0, vW[0], fill)
    trreads(5, vW[0])
    mf(1, vW[1], fill)
    trreads(6, vW[1])
    for s_ in range(2, 5):
        mf(s_, vW[s_], fill)
    a("s_waitcnt lgkmcnt(0)")
    mf(5, vW[0], fill)
    mf(6, vW[1], fill)
    while fill:
        fill.pop(0)()
    tflag()
    xloads()
    a.stamp()
    a(f"""
    s_lshr_b32 s{sT0}, s{s2RB}, 4
    s_lshl_b32 s{sT0}, s{sT0}, 1
    s_add_u32 s{sT0}, s{sT0}, s{sRH}
    s_mul_i32 s{sT0}, s{sT0}, {448*128}
    s_lshl_b32 s{sT1}, s{sXO}, 6
    s_add_u32 s{sT0}, s{sT0}, s{sT1}
    s_add_u32 s{sT0}, s{sT0}, {WS_FLT}
    v_and_b32 v{u+2}, 15, v{vL}
    v_lshl_add_u32 v{vF_}, v{u+2}, 7, s{sT0}
    v_lshrrev_b32 v{u+2}, 2, v{vL}
    s_lshr_b32 s{sT1}, s{sXO}, 1
    v_add_u32 v{u+2}, s{sT1}, v{u+2}
    v_lshlrev_b32 v{u+2}, 12, v{u+2}
    v_and_b32 v{u+3}, 3, v{vL}
    v_lshl_add_u32 v{vTG}, v{u+3}, 4, v{u+2}
    s_lshl_b32 s{sT0}, s{s2RB}, 7
    s_lshl_b32 s{sT1}, s{sRH}, 6
    s_add_u32 s{sT0}, s{sT0}, s{sT1}
    s_add_u32 s{sWO}, s{sT0}, {WS_T}
    s_lshl_b32 s{sT1}, s3, 10
    s_add_u32 s{sT1}, s{sT1}, 32768
    v_add_u32 v{vTW}, s{sT1}, v{vLB}
    v_lshrrev_b32 v{u+2}, 5, v{vL}
    v_bfe_u32 v{u+8}, v{vL}, 2, 2
    v_lshl_add_u32 v{u+2}, v{u+2}, 2, v{u+8}
    v_lshlrev_b32 v{u+2}, 6, v{u+2}
    v_bfe_u32 v{u+8}, v{vL}, 4, 1
    v_lshl_add_u32 v{u+2}, v{u+8}, 5, v{u+2}
    v_lshl_add_u32 v{u+2}, v{u+3}, 3, v{u+2}
    v_add_u32 v{vTR}, s{sT1}, v{u+2}
    s_lshl_b32 s{sT0}, s3, 13
    s_add_u32 s{sT0}, s{sT0}, 49152
    v_add_u32 v{u}, s{sT0}, v{vLB}
    s_lshl_b32 s{sT0}, s{sRH}, 15
    s_and_b32 s{sT1}, s{sCQ}, 1
    s_lshl_b32 s{sT1}, s{sT1}, 12
    s_add_u32 s{sT0}, s{sT0}, s{sT1}
    s_lshr_b32 s{sT1}, s{sCQ}, 1
    s_lshl_b32 s{sT1}, s{sT1}, 11
    s_add_u32 s{sT0}, s{sT0}, s{sT1}
    s_add_u32 s{sT0}, s{sT0}, 49152
    v_add_u32 v{u+1}, s{sT0}, v{vLB}
    """)
    groups = [[7, 8, 9], [10, 11], [12, 13]]
    wi = 2
    vX, vXN, vTT, vTD = 144, 152, 160, 164
    for gi, g in enumerate(groups):
        a.vm_wait(f"W{g[-1]}")
        a("s_barrier")
        regs = []
        for s_ in g:
            regs.append(vW[wi % 5])
            trreads(s_, regs[-1])
            wi += 1
        if gi == 1:
            a.vmem(f"buffer_load_dword v{vPOLL}, v{vF_}, {sr(R_WS,4)}, 0 offen sc1", "PT")
        for k, s_ in enumerate(g):
            a(f"s_waitcnt lgkmcnt({min(15, 8*(len(g)-1-k))})")
            mf(s_, regs[k], [])
        if gi == 1:
            pass
    a.stamp()
    a(f"s_mov_b32 s{sSP}, 0")
    a.label("G_TPOLL")
    a(f"""
    s_waitcnt vmcnt(0)
    v_cmp_eq_u32 vcc, v{vONE}, v{vPOLL}
    s_add_u32 s{sSP}, s{sSP}, 1
    s_cmp_gt_u32 s{sSP}, 0x10000
    s_cbranch_scc1 G_TPOLL_OK
    s_cmp_eq_u64 vcc, exec
    s_cbranch_scc1 G_TPOLL_OK
    s_sleep 1
    buffer_load_dword v{vPOLL}, v{vF_}, {sr(R_WS,4)}, 0 offen sc1
    s_branch G_TPOLL
    """)
    a.label("G_TPOLL_OK")
    a.vm = []
    a(f"buffer_load_dwordx4 {vr(vTT,4)}, v{vTG}, {sr(R_WS,4)}, s{sWO} offen sc1")
    a.stamp()
    vP, vE, vS = 44, 76, 96
    a("s_nop 3")
    for q in range(8):
        a(f"ds_write_b128 v{u}, {vr(vA2+4*q,4)} offset:{q*1024}")
    for i in range(4):
        a(f"v_lshlrev_b32 v{vX+2*i}, 16, v{vXV+i}")
        a(f"v_and_b32 v{vX+2*i+1}, 0xffff0000, v{vXV+i}")
    for i in range(8):
        a(f"v_sub_f32 v{vXN+i}, v{vX+i}, v{vST2}")
    for i in range(4):
        round_pair(a, vXN + 2 * i, vXN + 2 * i + 1)
    for i in range(8):
        a(f"v_mul_f32 v{vXN+i}, v{vXN+i}, v{vST2+1}")
    for i in range(4):
        round_pair(a, vXN + 2 * i, vXN + 2 * i + 1)
    a("s_waitcnt lgkmcnt(0)")
    a("s_barrier")
    for src in range(4):
        for q in range(2):
            a(f"ds_read_b128 {vr(vP+8*src+4*q,4)}, v{u+1} offset:{src*8192+q*1024}")
    a("s_waitcnt vmcnt(0)")
    a(f"ds_write_b128 v{vTW}, {vr(vTT,4)}")
    a("s_waitcnt lgkmcnt(1)")
    for i in range(4):
        a(f"v_pk_add_f32 {vr(vP+2*i,2)}, {vr(vP+2*i,2)}, {vr(vP+8+2*i,2)}")
        a(f"v_pk_add_f32 {vr(vP+16+2*i,2)}, {vr(vP+16+2*i,2)}, {vr(vP+24+2*i,2)}")
    a("s_waitcnt lgkmcnt(0)")
    for i in range(2):
        a(f"ds_read_b64_tr_b16 {vr(vTD+2*i,2)}, v{vTR} offset:{512*i}")
    for i in range(4):
        a(f"v_pk_add_f32 {vr(vP+2*i,2)}, {vr(vP+2*i,2)}, {vr(vP+16+2*i,2)}")
    for i in range(4):
        round_pair(a, vP + 2 * i, vP + 2 * i + 1)
    a(f"s_mov_b32 s{sW2}, {f32bits(-1.4426950408889634)}")
    for i in range(8):
        a(f"v_mul_f32 v{vE+i}, s{sW2}, v{vP+i}")
    for i in range(8):
        a(f"v_exp_f32 v{vE+i}, v{vE+i}")
    a("s_waitcnt lgkmcnt(0)")
    for i in range(4):
        a(f"v_lshlrev_b32 v{vS+2*i}, 16, v{vTD+i}")
        a(f"v_and_b32 v{vS+2*i+1}, 0xffff0000, v{vTD+i}")
    for i in range(8):
        a(f"v_add_f32 v{vE+i}, 1.0, v{vE+i}")
    for i in range(8):
        a(f"v_rcp_f32 v{vE+i}, v{vE+i}")
    for i in range(4):
        a(f"v_pk_mul_f32 {vr(vS+2*i,2)}, {vr(vS+2*i,2)}, {vr(vXN+2*i,2)}")
    for i in range(4):
        round_pair(a, vS + 2 * i, vS + 2 * i + 1)
    for i in range(8):
        a(f"v_mul_f32 v{vP+i}, v{vP+i}, v{vE+i}")
    for i in range(4):
        round_pair(a, vP + 2 * i, vP + 2 * i + 1)
    for i in range(4):
        a(f"v_pk_mul_f32 {vr(vS+2*i,2)}, {vr(vS+2*i,2)}, {vr(vP+2*i,2)}")
    for i in range(4):
        round_pair(a, vS + 2 * i, vS + 2 * i + 1)
    for i in range(4):
        a(f"v_pk_add_f32 {vr(vS+2*i,2)}, {vr(vS+2*i,2)}, {vr(vX+2*i,2)}")
    for i in range(4):
        a(f"v_cvt_pk_bf16_f32 v{vTT+i}, v{vS+2*i}, v{vS+2*i+1}")
    for i in range(2):
        a(f"buffer_store_dwordx2 {vr(vTT+2*i,2)}, v{vXO}, {sr(R_O,4)}, 0 offen offset:{16*i}")
    if PROF:
        a("s_waitcnt vmcnt(0)")
    a.stamp()
    a.stamp_flush()
    a("s_endpgm")


def role_prep(a):
    sB = 4
    vTID = 0
    t = 9
    vWC, vCA, vUP = 44, 100, 108
    a(f"""
    s_sub_u32 s{sB}, s2, 224
    s_cmp_ge_u32 s{sB}, 14
    s_cselect_b32 s6, 14, 0
    s_sub_u32 s6, s{sB}, s6
    v_lshrrev_b32 v{t+3}, 4, v{vTID}
    v_mul_u32_u24 v{t+3}, 3584, v{t+3}
    v_and_b32 v{t+4}, 15, v{vTID}
    v_lshl_add_u32 v{t+3}, v{t+4}, 4, v{t+3}
    s_lshl_b32 s5, s6, 8
    v_mov_b32 v{vZ}, 0
    s_waitcnt lgkmcnt(0)
    s_cmp_ge_u32 s{sB}, 14
    s_cselect_b32 s{R_W}, s{S_WU}, s{S_WG}
    s_cselect_b32 s{R_W+1}, s{S_WU+1}, s{S_WG+1}
    s_and_b32 s{R_W+1}, s{R_W+1}, 0xffff
    s_mov_b32 s{R_W+2}, {SZ_W}
    s_mov_b32 s{R_W+3}, 0x20000
    s_cmp_ge_u32 s{sB}, 28
    s_cselect_b32 s{R_W+2}, 0, s{R_W+2}
    """)
    srd(a, R_X, S_X, SZ_X)
    srd(a, R_WS, S_WS, WS_END)
    srd(a, R_DBG, S_DBG, 256)
    a(f"""
    s_add_u32 s{sT0}, s{sB}, s3
    s_cmp_lg_u32 s{sT0}, 0
    s_cbranch_scc1 P_NOTAG
    s_memrealtime s[{sSP}:{sSP+1}]
    s_waitcnt lgkmcnt(0)
    s_lshl_b32 s{sSP+1}, s{sSP+1}, 29
    s_xor_b32 s{sSP}, s{sSP}, s{sSP+1}
    s_or_b32 s{sSP}, s{sSP}, 1
    v_mov_b32 v{vONE}, s{sSP}
    s_mov_b64 exec, 1
    buffer_store_dword v{vONE}, v{vZ}, {sr(R_DBG,4)}, 0 offen sc1
    s_mov_b64 exec, -1
    """)
    a.label("P_NOTAG")
    unit_loads(a)
    for i in range(14):
        a.vmem(f"buffer_load_dwordx4 {vr(vWC+4*i,4)}, v{t+3}, {sr(R_W,4)}, s5 offen", f"C{i}")
        if i < 13:
            a(f"s_add_u32 s5, s5, {32*3584}")
    for i in range(8):
        a(f"v_mov_b32 v{vCA+i}, 0")
    up = unit_pieces(a)
    for f in up[:11]:
        f()
    a("s_waitcnt lgkmcnt(0)")
    a("s_barrier")
    up[11]()
    a.stamp()
    for i in range(14):
        a.vm_wait(f"C{i}")
        for d in range(4):
            a(f"v_lshlrev_b32 v{vUP+2*d}, 16, v{vWC+4*i+d}")
            a(f"v_and_b32 v{vUP+2*d+1}, 0xffff0000, v{vWC+4*i+d}")
        for d in range(8):
            a(f"v_add_f32 v{vCA+d}, v{vCA+d}, v{vUP+d}")
    a(f"""
    v_lshlrev_b32 v{t+5}, 5, v{vTID}
    ds_write_b128 v{t+5}, {vr(vCA,4)}
    ds_write_b128 v{t+5}, {vr(vCA+4,4)} offset:16
    v_lshlrev_b32 v{t+1}, 3, v{vL}
    s_lshl_b32 s5, s3, 11
    v_add_u32 v{t+2}, s5, v{t+1}
    s_lshl_b32 s5, s3, 9
    v_add_u32 v{t+5}, s5, v{t+1}
    s_waitcnt lgkmcnt(0)
    """)
    a.stamp()
    a("s_barrier")
    for i in range(4):
        a(f"ds_read_b64 {vr(vWC+2*i,2)}, v{t+2} offset:{512*i}")
    a("s_waitcnt lgkmcnt(0)")
    a(f"v_pk_add_f32 {vr(vWC,2)}, {vr(vWC,2)}, {vr(vWC+2,2)}")
    a(f"v_pk_add_f32 {vr(vWC+4,2)}, {vr(vWC+4,2)}, {vr(vWC+6,2)}")
    a(f"v_pk_add_f32 {vr(vWC,2)}, {vr(vWC,2)}, {vr(vWC+4,2)}")
    a(f"ds_write_b64 v{t+5}, {vr(vWC,2)} offset:16384")
    a("s_waitcnt vmcnt(0) lgkmcnt(0)")
    a("s_barrier")
    a("s_cmp_lg_u32 s3, 0")
    a("s_cbranch_scc1 P_DONE")
    for i in range(8):
        a(f"ds_read_b64 {vr(vWC+2*i,2)}, v{t+1} offset:{16384+512*i}")
    a(f"""
    v_lshrrev_b32 v{t+2}, 3, v{vL}
    v_lshlrev_b32 v{t+2}, 7, v{t+2}
    v_and_b32 v{t+3}, 7, v{vL}
    v_lshl_add_u32 v{t+2}, v{t+3}, 3, v{t+2}
    s_lshl_b32 s8, s6, 10
    s_cmp_ge_u32 s{sB}, 14
    s_cselect_b32 s9, 64, 0
    s_add_u32 s8, s8, s9
    s_add_u32 s8, s8, {WS_CS}
    s_cmp_ge_u32 s{sB}, 28
    s_cselect_b32 s8, 0x7f000000, s8
    s_waitcnt lgkmcnt(0)
    """)
    n = 8
    while n > 1:
        n //= 2
        for i in range(n):
            a(f"v_pk_add_f32 {vr(vWC+2*i,2)}, {vr(vWC+2*i,2)}, {vr(vWC+2*(i+n),2)}")
    a(f"buffer_store_dwordx2 {vr(vWC,2)}, v{t+2}, {sr(R_WS,4)}, s8 offen sc1")
    a.vm = []
    tag_issue(a)
    tag_block(a, to_lds=False)
    unit_signal(a)
    a.label("P_DONE")
    if WPF3:
        srd(a, R_WD, S_WD, SZ_W)
        a(f"""
        s_lshr_b32 s5, s{sB}, 3
        s_mul_i32 s5, s5, 401408
        s_add_u32 s9, s5, 200704
        v_lshlrev_b32 v{t}, 7, v{vTID}
        """)
        for half in (1, 0):
            for i in range(4):
                off = i * 65536
                if off >= 200704:
                    continue
                a(f"s_add_u32 s8, s{9 if half else 5}, {off}")
                if i == 3:
                    a(f"v_cmp_gt_u32 vcc, {(200704 - off)//128}, v{vTID}")
                    a("s_and_saveexec_b64 s[10:11], vcc")
                    a(f"s_cbranch_execz P_PF{half}")
                a(f"buffer_load_dword v{t+1}, v{t}, {sr(R_WD,4)}, s8 offen")
                if i == 3:
                    a.label(f"P_PF{half}")
                    a("s_mov_b64 exec, s[10:11]")
    a.stamp()
    a.stamp_flush()
    a("s_endpgm")


def touches(a):
    srd(a, R_WD, S_WD, SZ_W)
    srd(a, R_O, S_OUT, SZ_X)
    srd(a, R_H, S_SSMK, SZ_X)
    L = newlabel("NOTOUCH")
    a(f"""
    s_cmp_lg_u32 s3, 7
    s_cbranch_scc1 {L}
    v_lshlrev_b32 v{vT}, 20, v{vL}
    v_add_u32 v{vT}, 0x1c000, v{vT}
    v_mov_b32 v{vT+1}, 0x1f0000
    v_cmp_le_u32 vcc, 8, v{vL}
    v_lshlrev_b32 v{vT+2}, 21, v{vL}
    v_add_u32 v{vT+2}, {0x1f0000 - 0x800000}, v{vT+2}
    v_cndmask_b32 v{vT}, v{vT}, v{vT+2}, vcc
    v_mov_b32 v{vT+2}, 0xc10000
    v_cmp_le_u32 vcc, 10, v{vL}
    s_nop 1
    v_cndmask_b32 v{vT}, v{vT}, v{vT+2}, vcc
    v_lshlrev_b32 v{vT+1}, 19, v{vL}
    s_mov_b64 exec, 0x7ff
    buffer_load_dword v{vT+3}, v{vT}, {sr(R_WS,4)}, 0 offen
    s_mov_b64 exec, 15
    buffer_load_dword v{vT+3}, v{vT+1}, {sr(R_O,4)}, 0 offen
    buffer_load_dword v{vT+3}, v{vT+1}, {sr(R_H,4)}, 0 offen
    buffer_load_dword v{vT+3}, v{vT+1}, {sr(R_WD,4)}, 0 offen
    s_mov_b64 exec, -1
    """)
    a.label(L)
    if WPF:
        L2 = newlabel("NOWPF")
        a(f"""
        s_cmp_eq_u32 s3, 7
        s_cbranch_scc1 {L2}
        s_lshr_b32 s{sT0}, s2, 3
        s_mul_i32 s{sT0}, s{sT0}, 7
        s_add_u32 s{sT0}, s{sT0}, s3
        s_lshl_b32 s{sT0}, s{sT0}, 13
        v_lshlrev_b32 v{vT}, 7, v{vL}
        buffer_load_dword v{vT+3}, v{vT}, {sr(R_WD,4)}, s{sT0} offen
        """)
        a.label(L2)


def gen(a):
    a.lines.append(f".globl {KNAME}\n.p2align 8\n.type {KNAME},@function")
    a.label(KNAME)
    a("s_cmp_ge_u32 s2, 256")
    a("s_cbranch_scc1 K_END")
    a.stamp()
    a("""
    s_load_dwordx16 s[16:31], s[0:1], 0
    s_load_dwordx8 s[32:39], s[0:1], 64
    s_load_dwordx2 s[40:41], s[0:1], 96
    v_lshrrev_b32 v1, 6, v0
    v_and_b32 v2, 63, v0
    s_nop 0
    v_readfirstlane_b32 s3, v1
    s_cmp_ge_u32 s2, 224
    s_cbranch_scc1 K_PREP
    """)
    gemm1_setup(a)
    a("s_waitcnt lgkmcnt(0)")
    srd(a, R_X, S_X, SZ_X)
    a(f"""
    s_cmp_eq_u32 s{sRH}, 0
    s_cselect_b32 s{R_W}, s{S_WG}, s{S_WU}
    s_cselect_b32 s{R_W+1}, s{S_WG+1}, s{S_WU+1}
    s_and_b32 s{R_W+1}, s{R_W+1}, 0xffff
    s_mov_b32 s{R_W+2}, {SZ_W}
    s_mov_b32 s{R_W+3}, 0x20000
    """)
    for f in dma_pieces(a, 0):
        f()
    gemm1_setup2(a)
    srd(a, R_WS, S_WS, WS_END)
    srd(a, R_DBG, S_DBG, 256)
    a("s_barrier")
    if TOUCH:
        touches(a)
    unit_loads(a)
    for f in dma_pieces(a, 1):
        f()
    a.vm_wait("A0")
    a("s_barrier")
    a.stamp()
    gemm1_main(a)
    gemm1_epilogue(a)
    conv(a)
    gemm2(a)
    a.label("K_PREP")
    a.vm, a.nst = [], 1
    role_prep(a)
    a.label("K_END")
    a("s_endpgm")


def main():
    HEADER = open("cdna_kernels/" + NAME + ".s.ref").read().split("; Override launch")[0]
    a = Asm()
    gen(a)
    out = HEADER
    out += f"; @launch grid=(256,1,1) block=(512,1,1) lds={LDS_BYTES}\n"
    out += '.amdgcn_target "amdgcn-amd-amdhsa--gfx950"\n.text\n'
    out += a.text()
    out += '.section .rodata,"a"\n.p2align 6\n'
    out += descriptor(KNAME, 256, 102)
    path = sys.argv[1] if len(sys.argv) > 1 else "cdna_kernels/" + NAME + ".s"
    open(path, "w").write(out)


if __name__ == "__main__":
    main()
```

```python
import sys, os, struct
from gen2 import (Asm, vr, sr, srd, round_pair, newlabel, f32bits, descriptor, NAME, KNAME, PROF,
                  S_X, S_K, S_V, S_SHK, S_SSMK, S_SSMD, S_WG, S_WU, S_WD, S_OUT, S_DBG, S_WS,
                  R_X, R_W, R_WS, R_DBG, R_A, R_B, SZ_X, SZ_W, SZ_SHK,
                  )

WS_H = 0
WS_KVR = 0x800000
WS_T = 0xA00000
WS_STATS = 0xC00000
WS_CS = 0xC04000
WS_FLU = 0xC20000
WS_FLH = 0xC40000
WS_FLT = 0xC80000
WS_END = 0xD00000
vONE = 23
ROT = int(os.environ.get("ROT", 0))
TOUCH = int(os.environ.get("TOUCH", 1))
PI_AT = int(os.environ.get("PI_AT", 0))
SIG_AT = int(os.environ.get("SIG_AT", 2))
STM = int(os.environ.get("STM", 0))
WPF = 0
WPF2 = int(os.environ.get("WPF2", 0))
WPF3 = int(os.environ.get("WPF3", 1))

SLOT = 49152
WENT = [49152 + 16384 * i for i in range(7)]
CV_ST = 4160
CV_A = (0, 4 * CV_ST)
CV_U = 8 * CV_ST
CV_UP = 768
LDS_BYTES = 163840
USCR = 147456

sRB, sCB, sE, sT0, sT1, sRH, sCQ = 4, 5, 6, 7, 8, 9, 10
sXO, sWO, sM0X, sM0W, sTMP = 11, 12, 13, 14, 15
sSP = 42
s2RB, s2CB, sCH, sUB, sAB, sD, sW2 = 18, 19, 20, 21, 22, 23, 28
sWB, sOK0, sROT, sHO = 29, 68, 69, 70
R_WD, R_O, R_H = R_A, R_B, 92

vL = 2
vXG0, vXG1, vWG = 3, 4, 5
vXA, vWA = 6, 10
vXR, vWR0, vWR1 = 12, 13, 14
vT = 15
vZ, vPOLL, vPOLL1 = 20, 21, 22
vSTAT = 24
vFR = 28
vACC = 64
vCS = 160
vD = 192
vU = 208
vC = 228
vLB, vWD, vHO = 1, 0, 19
vR2 = 60


R_K, R_V, R_SH = 76, 80, 84
uK, uV, uW, uX = 160, 167, 172, 176
uA = 180
uKU, uWU, uAC, uVU, uO = 186, 200, 208, 216, 218
uS = 222


def unit_loads(a):
    srd(a, R_K, S_K, SZ_X)
    srd(a, R_V, S_V, SZ_X)
    srd(a, R_SH, S_SHK, SZ_SHK)
    a(f"""
    v_cmp_le_u32 vcc, 28, v{vL}
    v_mov_b32 v{uA+4}, 0x7f000000
    s_and_b32 s{sT0}, s2, 7
    v_cndmask_b32 v{uA}, 0, 1, vcc
    v_mul_u32_u24 v{uA+1}, 28, v{uA}
    v_sub_u32 v{uA+1}, v{vL}, v{uA+1}
    s_and_b32 s{sT1}, s2, 0xf8
    s_add_u32 s{sT1}, s{sT1}, s3
    s_mul_i32 s{sT1}, s{sT1}, {8*896}
    s_mul_i32 s{sT0}, s{sT0}, 112
    s_add_u32 s{sT1}, s{sT1}, s{sT0}
    v_mul_u32_u24 v{uA+2}, {4*896}, v{uA}
    v_lshl_add_u32 v{uA+2}, v{uA+1}, 2, v{uA+2}
    v_add_u32 v{uA+2}, s{sT1}, v{uA+2}
    v_cmp_le_u32 vcc, 56, v{vL}
    v_subrev_u32 v{uA+3}, {3*896}, v{uA+2}
    s_lshl_b32 s{sT0}, s{sT0}, 2
    v_cndmask_b32 v{uA+2}, v{uA+2}, v{uA+4}, vcc
    v_cndmask_b32 v{uA+3}, v{uA+3}, v{uA+4}, vcc
    v_lshl_add_u32 v{uA+5}, v{uA+1}, 4, s{sT0}
    s_lshl_b32 s{sT0}, s2, 3
    s_add_u32 s{sT0}, s{sT0}, s3
    s_mul_i32 s{sT0}, s{sT0}, 896
    v_lshl_add_u32 v{uS}, v{vL}, 4, s{sT0}
    v_cndmask_b32 v{uS}, v{uS}, v{uA+4}, vcc
    """)
    a.vmem(f"buffer_load_dwordx4 {vr(uX,4)}, v{uS}, {sr(R_X,4)}, 0 offen", "UX")
    a.vmem(f"buffer_load_dwordx4 {vr(uW,4)}, v{uA+5}, {sr(R_SH,4)}, 0 offen", "UK")
    for i in range(3):
        a.vmem(f"buffer_load_dword v{uK+i}, v{uA+3}, {sr(R_K,4)}, 0 offen offset:{896*i}", "UK")
    for i in range(4):
        a.vmem(f"buffer_load_dword v{uK+3+i}, v{uA+2}, {sr(R_K,4)}, 0 offen offset:{896*i}", "UK")
    for i in range(4):
        a.vmem(f"buffer_load_dword v{uV+i}, v{uA+2}, {sr(R_V,4)}, 0 offen offset:{896*i}", "UK")


def unit_pieces(a):
    P = []

    def st1():
        a.vm_wait("UX")
        a(f"v_mov_b32 v{uS}, 0")
        a(f"v_mov_b32 v{uS+1}, 0")
        a(f"v_mov_b32 v{uS+2}, 0x3f803f80")
        for i in range(4):
            a(f"v_dot2c_f32_bf16 v{uS}, v{uX+i}, v{uS+2}")
            a(f"v_dot2c_f32_bf16 v{uS+1}, v{uX+i}, v{uX+i}")
        a("s_nop 2")

    def st2():
        for mode in ("quad_perm:[1,0,3,2]", "quad_perm:[2,3,0,1]", "row_half_mirror", "row_mirror"):
            a(f"v_add_f32_dpp v{uS}, v{uS}, v{uS} {mode} row_mask:0xf bank_mask:0xf")
            a(f"v_add_f32_dpp v{uS+1}, v{uS+1}, v{uS+1} {mode} row_mask:0xf bank_mask:0xf")
            a("s_nop 0")
        a(f"v_mov_b32 v{uS+2}, v{uS}")
        a(f"v_mov_b32 v{uS+3}, v{uS+1}")
        a("s_nop 1")
        a(f"v_permlane16_swap_b32 v{uS}, v{uS+2}")
        a(f"v_permlane16_swap_b32 v{uS+1}, v{uS+3}")
        a("s_nop 1")
        a(f"v_add_f32 v{uS}, v{uS}, v{uS+2}")
        a(f"v_add_f32 v{uS+1}, v{uS+1}, v{uS+3}")

    def st3():
        a(f"v_mov_b32 v{uS+2}, v{uS}")
        a(f"v_mov_b32 v{uS+3}, v{uS+1}")
        a("s_nop 1")
        a(f"v_permlane32_swap_b32 v{uS}, v{uS+2}")
        a(f"v_permlane32_swap_b32 v{uS+1}, v{uS+3}")
        a("s_nop 1")
        a(f"""
        v_add_f32 v{uS}, v{uS}, v{uS+2}
        v_add_f32 v{uS+1}, v{uS+1}, v{uS+3}
        s_mov_b32 s{sT0}, {f32bits(1.0/448.0)}
        s_mov_b32 s{sT1}, {f32bits(1e-5)}
        v_mul_f32 v{uS}, s{sT0}, v{uS}
        v_mul_f32 v{uS+1}, s{sT0}, v{uS+1}
        v_fma_f32 v{uS+1}, -v{uS}, v{uS}, v{uS+1}
        v_max_f32 v{uS+1}, 0, v{uS+1}
        v_cvt_pk_bf16_f32 v{uS+1}, v{uS}, v{uS+1}
        v_lshlrev_b32 v{uS}, 16, v{uS+1}
        v_and_b32 v{uS+1}, 0xffff0000, v{uS+1}
        v_add_f32 v{uS+1}, s{sT1}, v{uS+1}
        """)

    def st4():
        a(f"""
        v_cvt_pk_bf16_f32 v{uS+1}, v{uS+1}, v{uS+1}
        v_and_b32 v{uS+1}, 0xffff0000, v{uS+1}
        v_sqrt_f32 v{uS+1}, v{uS+1}
        s_lshl_b32 s{sT0}, s2, 3
        v_cvt_pk_bf16_f32 v{uS+1}, v{uS+1}, v{uS+1}
        v_and_b32 v{uS+1}, 0xffff0000, v{uS+1}
        v_rcp_f32 v{uS+1}, v{uS+1}
        s_add_u32 s{sT0}, s{sT0}, s3
        s_lshl_b32 s{sT0}, s{sT0}, 3
        s_add_u32 s{sT0}, s{sT0}, {WS_STATS}
        s_mov_b64 exec, 1
        """)
        a.vmem(f"buffer_store_dwordx2 {vr(uS,2)}, v{vZ}, {sr(R_WS,4)}, s{sT0} offen sc1", "US")
        a("s_mov_b64 exec, -1")

    def k1():
        a.vm_wait("UK")
        for r in range(7):
            a(f"v_lshlrev_b32 v{uKU+2*r}, 16, v{uK+r}")
            a(f"v_and_b32 v{uKU+2*r+1}, 0xffff0000, v{uK+r}")

    def k2():
        for h in range(2):
            a(f"v_lshlrev_b32 v{uWU+0+h}, 16, v{uW+2*h}")
            a(f"v_and_b32 v{uWU+2+h}, 0xffff0000, v{uW+2*h}")
            a(f"v_lshlrev_b32 v{uWU+4+h}, 16, v{uW+2*h+1}")
            a(f"v_and_b32 v{uWU+6+h}, 0xffff0000, v{uW+2*h+1}")

    def krow(r):
        def f():
            for h in range(2):
                ac = uAC + 2 * r + h
                a(f"v_mul_f32 v{ac}, v{uKU+2*r+h}, v{uWU+6+h}")
                a(f"v_fmac_f32 v{ac}, v{uKU+2*(r+1)+h}, v{uWU+4+h}")
                a(f"v_fmac_f32 v{ac}, v{uKU+2*(r+2)+h}, v{uWU+2+h}")
                a(f"v_fmac_f32 v{ac}, v{uKU+2*(r+3)+h}, v{uWU+0+h}")
            a(f"v_cvt_pk_bf16_f32 v{uAC+2*r+1}, v{uAC+2*r}, v{uAC+2*r+1}")
            a(f"v_lshlrev_b32 v{uVU}, 16, v{uV+r}")
            a(f"v_and_b32 v{uVU+1}, 0xffff0000, v{uV+r}")
            a(f"v_lshlrev_b32 v{uAC+2*r}, 16, v{uAC+2*r+1}")
            a(f"v_and_b32 v{uAC+2*r+1}, 0xffff0000, v{uAC+2*r+1}")
            a(f"v_mul_f32 v{uAC+2*r}, v{uAC+2*r}, v{uVU}")
            a(f"v_mul_f32 v{uAC+2*r+1}, v{uAC+2*r+1}, v{uVU+1}")
        return f

    def k3():
        for h in range(2):
            a(f"v_cvt_pk_bf16_f32 v{uO+2*h}, v{uAC+6+h}, v{uAC+4+h}")
            a(f"v_cvt_pk_bf16_f32 v{uO+2*h+1}, v{uAC+2+h}, v{uAC+0+h}")
        a(f"""
        v_lshlrev_b32 v{uA+2}, 8, v{uA+1}
        v_lshlrev_b32 v{uA+3}, 3, v{uA}
        v_sub_u32 v{uA+2}, v{uA+2}, v{uA+3}
        s_lshl_b32 s{sT0}, s3, 4
        s_sub_u32 s{sT0}, {USCR + 7*16 + 8}, s{sT0}
        v_add_u32 v{uA+2}, s{sT0}, v{uA+2}
        s_mov_b32 exec_hi, 0xffffff
        ds_write_b64 v{uA+2}, {vr(uO,2)}
        ds_write_b64 v{uA+2}, {vr(uO+2,2)} offset:128
        s_mov_b64 exec, -1
        """)

    def k4():
        a(f"""
        s_mul_i32 s{sT0}, s3, 896
        s_add_u32 s{sT0}, s{sT0}, {USCR}
        v_lshl_add_u32 v{uA+2}, v{vL}, 4, s{sT0}
        ds_read_b128 {vr(uAC,4)}, v{uA+2}
        v_lshrrev_b32 v{uA+2}, 3, v{vL}
        v_lshlrev_b32 v{uA+2}, 12, v{uA+2}
        v_and_b32 v{uA+3}, 7, v{vL}
        v_lshl_add_u32 v{uA+2}, v{uA+3}, 4, v{uA+2}
        s_and_b32 s{sT0}, s2, 7
        s_mul_i32 s{sT0}, s{sT0}, 56
        s_mul_i32 s{sT1}, s3, 7
        s_add_u32 s{sT0}, s{sT0}, s{sT1}
        s_lshl_b32 s{sT0}, s{sT0}, 12
        s_lshr_b32 s{sT1}, s2, 3
        s_lshl_b32 s{sT1}, s{sT1}, 7
        s_sub_u32 s{sT0}, s{sT0}, s{sT1}
        s_add_u32 s{sT0}, s{sT0}, {WS_KVR + 3968}
        s_waitcnt lgkmcnt(0)
        s_mov_b32 exec_hi, 0xffffff
        """)
        a.vmem(f"buffer_store_dwordx4 {vr(uAC,4)}, v{uA+2}, {sr(R_WS,4)}, s{sT0} offen sc1", "US")
        a("s_mov_b64 exec, -1")

    return [st1, st2, st3, st4, k1, k2, krow(0), krow(1), krow(2), krow(3), k3, k4]


def unit_signal(a):
    L = newlabel("NOSIG")
    a(f"""
    s_cmp_lg_u32 s3, 0
    s_cbranch_scc1 {L}
    s_lshl_b32 s{sT0}, s2, 7
    s_add_u32 s{sT0}, s{sT0}, {WS_FLU}
    s_mov_b64 exec, 1
    buffer_store_dword v{vONE}, v{vZ}, {sr(R_WS,4)}, s{sT0} offen sc1
    s_mov_b64 exec, -1
    """)
    a.label(L)


def tag_issue(a):
    a(f"s_lshl_b32 s{sT0}, s3, 12")
    a.vmem(f"buffer_load_dword v{vONE}, v{vZ}, {sr(R_DBG,4)}, s{sT0} offen sc1", "TAG")


def tag_block(a, to_lds=True):
    L, Lok, Lsk = newlabel("TB"), newlabel("TBOK"), newlabel("TBSK")
    a.vm_wait("TAG")
    a(f"""
    s_cmp_lg_u32 s3, 0
    s_cbranch_scc1 {Lsk}
    s_mov_b32 s{sSP}, 0
    """)
    a.label(L)
    a(f"""
    v_readfirstlane_b32 s{sSP+1}, v{vONE}
    s_add_u32 s{sSP}, s{sSP}, 1
    s_cmp_gt_u32 s{sSP}, 0x4000
    s_cbranch_scc1 {Lok}
    s_cmp_lg_u32 s{sSP+1}, 0
    s_cbranch_scc1 {Lok}
    s_sleep 4
    buffer_load_dword v{vONE}, v{vZ}, {sr(R_DBG,4)}, 0 offen sc1
    s_waitcnt vmcnt(0)
    s_branch {L}
    """)
    a.label(Lok)
    if to_lds:
        a(f"v_mov_b32 v{vT+2}, {USCR+8192}")
        a(f"ds_write_b32 v{vT+2}, v{vONE}")
    a.label(Lsk)


def tag_read(a):
    a(f"v_mov_b32 v{vT+2}, {USCR+8192}")
    a(f"ds_read_b32 v{vONE}, v{vT+2}")


def poll_issue(a, vdst, tag):
    a(f"""
    s_lshl_b32 s{sT0}, s{sRB}, 4
    v_add_u32 v{vT+2}, s{sT0}, v{vL}
    s_mul_i32 s{sT1}, s2, 2341
    s_lshr_b32 s{sT1}, s{sT1}, 16
    s_sub_u32 s{sT1}, s{sT1}, 128
    v_lshl_add_u32 v{vT+3}, v{vL}, 3, s{sT1}
    v_cmp_le_u32 vcc, 16, v{vL}
    s_add_u32 s{sT1}, s{sCB}, {224 - 48*14}
    v_mul_u32_u24 v{vT}, 14, v{vL}
    v_cndmask_b32 v{vT+2}, v{vT+2}, v{vT+3}, vcc
    v_add_u32 v{vT+3}, s{sT1}, v{vT}
    v_cmp_le_u32 vcc, 48, v{vL}
    s_lshl_b32 s{sT1}, s{s2RB}, 3
    s_sub_u32 s{sT1}, s{sT1}, 50
    v_cndmask_b32 v{vT+2}, v{vT+2}, v{vT+3}, vcc
    v_add_u32 v{vT+3}, s{sT1}, v{vL}
    v_cmp_le_u32 vcc, 50, v{vL}
    v_mov_b32 v{vT}, s{sT0}
    s_lshl_b32 s{sT1}, s3, 24
    v_cndmask_b32 v{vT+2}, v{vT+2}, v{vT+3}, vcc
    v_cmp_le_u32 vcc, 58, v{vL}
    s_add_u32 s{sT1}, s{sT1}, {WS_FLU}
    s_nop 0
    v_cndmask_b32 v{vT+2}, v{vT+2}, v{vT}, vcc
    v_lshlrev_b32 v{vT+2}, 7, v{vT+2}
    """)
    a.vmem(f"buffer_load_dword v{vdst}, v{vT+2}, {sr(R_WS,4)}, s{sT1} offen sc1", tag)


def poll_block(a, vtmp):
    L, Lok = newlabel("PB"), newlabel("PBOK")
    a.vm_wait("P0")
    a(f"""
    s_cmp_lg_u32 s3, 0
    s_cbranch_scc1 {Lok}
    s_mov_b32 s{sSP}, 0
    s_mov_b32 s{sT0}, {WS_FLU}
    """)
    a.label(L)
    a(f"""
    v_cmp_eq_u32 vcc, v{vONE}, v{vtmp}
    s_add_u32 s{sSP}, s{sSP}, 1
    s_cmp_gt_u32 s{sSP}, 0x4000
    s_cbranch_scc1 {Lok}
    s_cmp_eq_u64 vcc, exec
    s_cbranch_scc1 {Lok}
    s_sleep 2
    buffer_load_dword v{vtmp}, v{vT+2}, {sr(R_WS,4)}, s{sT0} offen sc1
    s_waitcnt vmcnt(0)
    s_branch {L}
    """)
    a.label(Lok)


def gemm1_setup(a):
    a(f"""
    s_and_b32 s{sT0}, s2, 7
    s_lshr_b32 s{sT1}, s2, 3
    s_mul_i32 s{sRB}, s{sT1}, 37
    s_lshr_b32 s{sRB}, s{sRB}, 8
    s_mul_i32 s{sCB}, s{sRB}, 7
    s_sub_u32 s{sCB}, s{sT1}, s{sCB}
    s_lshl_b32 s{sROT}, s{sRB}, 1
    s_add_u32 s{sROT}, s{sROT}, s{sCB}
    s_cmp_ge_u32 s{sROT}, 7
    s_cselect_b32 s{sT1}, 7, 0
    s_sub_u32 s{sROT}, s{sROT}, s{sT1}
    s_mul_i32 s{sROT}, s{sROT}, {ROT}
    s_and_b32 s{sT1}, s{sT0}, 3
    s_lshl_b32 s{sT1}, s{sT1}, 2
    s_add_u32 s{sRB}, s{sRB}, s{sT1}
    s_lshr_b32 s{sT1}, s{sT0}, 2
    s_mul_i32 s{sT1}, s{sT1}, 7
    s_add_u32 s{sCB}, s{sCB}, s{sT1}
    s_lshr_b32 s{sRH}, s3, 2
    s_and_b32 s{sCQ}, s3, 3
    v_lshrrev_b32 v{vT}, 3, v{vL}
    v_lshrrev_b32 v{vT+1}, 4, v{vL}
    v_and_b32 v{vT+2}, 7, v{vL}
    s_lshl_b32 s{sT0}, s{sRB}, 7
    s_lshl_b32 s{sT1}, s3, 4
    s_add_u32 s{sT0}, s{sT0}, s{sT1}
    v_add_u32 v{vT}, s{sT0}, v{vT}
    v_mul_u32_u24 v{vT}, 896, v{vT}
    v_xor_b32 v{vT+3}, v{vT+2}, v{vT+1}
    v_lshl_add_u32 v{vXG0}, v{vT+3}, 4, v{vT}
    v_xor_b32 v{vT+3}, 4, v{vT+3}
    v_lshl_add_u32 v{vXG1}, v{vT+3}, 4, v{vT}
    v_add_u32 v{vXG1}, {8*896}, v{vXG1}
    v_and_b32 v{vT+2}, 15, v{vL}
    v_lshlrev_b32 v{vT+3}, 2, v{vT+1}
    v_xor_b32 v{vT+2}, v{vT+2}, v{vT+3}
    s_lshl_b32 s{sT0}, s{sRH}, 1
    v_xor_b32 v{vT+2}, s{sT0}, v{vT+2}
    s_lshl_b32 s{sT1}, s{sCQ}, 4
    v_add_u32 v{vT+3}, s{sT1}, v{vT+1}
    v_mul_u32_u24 v{vT+3}, 3584, v{vT+3}
    v_lshl_add_u32 v{vWG}, v{vT+2}, 4, v{vT+3}
    s_lshl_b32 s{sT0}, s{sCB}, 8
    v_add_u32 v{vWG}, s{sT0}, v{vWG}
    s_lshl_b32 s{sM0X}, s3, 11
    s_lshl_b32 s{sM0W}, s3, 12
    s_add_u32 s{sM0W}, s{sM0W}, 16384
    """)


def gemm1_setup2(a):
    a(f"""
    v_and_b32 v{vT}, 31, v{vL}
    v_lshrrev_b32 v{vT+1}, 5, v{vL}
    v_bfe_u32 v{vT+2}, v{vL}, 1, 3
    v_xor_b32 v{vT+2}, v{vT+2}, v{vT+1}
    s_lshl_b32 s{sT1}, s{sRH}, 6
    v_add_u32 v{vT}, s{sT1}, v{vT}
    v_lshlrev_b32 v{vT}, 7, v{vT}
    v_lshl_add_u32 v{vXA}, v{vT+2}, 4, v{vT}
    v_xor_b32 v{vXA+1}, 32, v{vXA}
    v_xor_b32 v{vXA+2}, 64, v{vXA}
    v_xor_b32 v{vXA+3}, 96, v{vXA}
    v_bfe_u32 v{vT}, v{vL}, 4, 1
    v_bfe_u32 v{vT+2}, v{vL}, 2, 2
    v_bfe_u32 v{vT+3}, v{vL}, 1, 1
    s_lshl_b32 s{sT0}, s{sCQ}, 2
    v_or_b32 v{vT+3}, s{sT0}, v{vT+3}
    v_lshlrev_b32 v{vT+4}, 2, v{vT+2}
    v_xor_b32 v{vT+3}, v{vT+3}, v{vT+4}
    v_lshlrev_b32 v{vT+4}, 1, v{vT}
    v_xor_b32 v{vT+3}, v{vT+3}, v{vT+4}
    v_lshlrev_b32 v{vT+3}, 4, v{vT+3}
    v_and_b32 v{vT+4}, 1, v{vL}
    v_lshl_add_u32 v{vT+3}, v{vT+4}, 3, v{vT+3}
    v_lshl_add_u32 v{vT+2}, v{vT+1}, 3, v{vT+2}
    v_lshl_add_u32 v{vT+3}, v{vT+2}, 8, v{vT+3}
    v_add_u32 v{vT}, 1, v{vT}
    v_lshl_add_u32 v{vWA}, v{vT}, 14, v{vT+3}
    v_xor_b32 v{vWA+1}, 32, v{vWA}
    v_mov_b32 v{vZ}, 0
    v_lshlrev_b32 v{vLB}, 4, v{vL}
    """)


def dma_pieces(a, st):
    slot = (st % 3) * SLOT
    P = []

    def px(i):
        def f():
            if i == 0:
                a(f"s_add_u32 s{sXO}, s{sROT}, {st}")
                a(f"s_cmp_ge_u32 s{sXO}, 7")
                a(f"s_cselect_b32 s{sWO}, 7, 0")
                a(f"s_sub_u32 s{sXO}, s{sXO}, s{sWO}")
                a(f"s_mul_i32 s{sWO}, s{sXO}, {64*3584}")
                a(f"s_lshl_b32 s{sXO}, s{sXO}, 7")
            a(f"s_add_u32 m0, s{sM0X}, {slot+1024*i}")
            a("s_nop 0")
            a.vmem(f"buffer_load_dwordx4 v{vXG1 if i else vXG0}, {sr(R_X,4)}, s{sXO} offen lds", f"A{st}")
        return f

    def pw(j):
        def f():
            a(f"s_add_u32 m0, s{sM0W}, {slot+1024*j}")
            if j:
                a(f"s_add_u32 s{sWO}, s{sWO}, {4*3584}")
            else:
                a("s_nop 0")
            a.vmem(f"buffer_load_dwordx4 v{vWG}, {sr(R_W,4)}, s{sWO} offen lds", f"A{st}")
        return f
    return [px(0), px(1)] + [pw(j) for j in range(4)]


def wdma_pieces(a, s, ent):
    def p(j):
        def f():
            a(f"s_mov_b32 s{sW2}, {(32*s + 8*j)*896}")
            a(f"s_add_u32 m0, s{sWB}, {ent + j*1024}")
            a("s_nop 0")
            a.vmem(f"buffer_load_dwordx4 v{vWD}, {sr(R_WD,4)}, s{sW2} offen lds", f"W{s}")
        return f
    return [p(0), p(1)]


def frag(setno, which):
    return vFR + 16 * setno + 4 * which


def g1_reads(a, st, p, setno):
    slot = (st % 3) * SLOT
    if p == 0:
        a(f"v_add_u32 v{vWR0}, {slot}, v{vWA}")
        a(f"v_add_u32 v{vWR1}, {slot}, v{vWA+1}")
    a(f"v_add_u32 v{vXR}, {slot}, v{vXA+p}")
    a(f"ds_read_b64_tr_b16 {vr(frag(setno,2),2)}, v{vWR0} offset:{4096*p}")
    a(f"ds_read_b64_tr_b16 {vr(frag(setno,2)+2,2)}, v{vWR0} offset:{4096*p+1024}")
    a(f"ds_read_b128 {vr(frag(setno,0),4)}, v{vXR}")
    a(f"ds_read_b128 {vr(frag(setno,1),4)}, v{vXR} offset:4096")
    a(f"ds_read_b64_tr_b16 {vr(frag(setno,3),2)}, v{vWR1} offset:{4096*p}")
    a(f"ds_read_b64_tr_b16 {vr(frag(setno,3)+2,2)}, v{vWR1} offset:{4096*p+1024}")


def g1_mfmas(a, setno, fill, rate=2, first=False):
    x = [frag(setno, 0), frag(setno, 1)]
    w = [frag(setno, 2), frag(setno, 3)]
    for k, (mt, nt) in enumerate([(0, 0), (0, 1), (1, 1), (1, 0)]):
        acc = vACC + 16 * (2 * mt + nt)
        a(f"v_mfma_f32_32x32x16_bf16 {vr(acc,16)}, {vr(w[mt],4)}, {vr(x[nt],4)}, {'0' if first else vr(acc,16)}")
        if fill and (rate == 4 or k in (0, 2)):
            fill.pop(0)()


def stat_loads(a):
    a(f"""
    s_lshl_b32 s{sT0}, s{sRB}, 7
    s_lshl_b32 s{sT1}, s{sRH}, 6
    s_add_u32 s{sT0}, s{sT0}, s{sT1}
    v_and_b32 v{vT}, 31, v{vL}
    v_add_u32 v{vT}, s{sT0}, v{vT}
    v_lshlrev_b32 v{vT}, 3, v{vT}
    s_lshl_b32 s{sT0}, s{sCB}, 3
    s_lshl_b32 s{sT1}, s{sCQ}, 1
    s_add_u32 s{sT0}, s{sT0}, s{sT1}
    s_lshl_b32 s{sT0}, s{sT0}, 7
    s_add_u32 s{sT0}, s{sT0}, {WS_CS}
    s_mov_b32 s{sT1}, {WS_STATS}
    v_lshrrev_b32 v{vT+1}, 5, v{vL}
    v_lshlrev_b32 v{vT+1}, 4, v{vT+1}
    """)
    a.vmem(f"buffer_load_dwordx2 {vr(vSTAT,2)}, v{vT}, {sr(R_WS,4)}, s{sT1} offen sc1", "ST")
    a.vmem(f"buffer_load_dwordx2 {vr(vSTAT+2,2)}, v{vT}, {sr(R_WS,4)}, s{sT1} offen offset:256 sc1", "ST")
    for i in range(8):
        a.vmem(f"buffer_load_dwordx4 {vr(vCS+4*i,4)}, v{vT+1}, {sr(R_WS,4)}, s{sT0} offen offset:{32*i} sc1", "ST")


def kv_load(a):
    a(f"""
    s_lshl_b32 s{sT0}, s{sCH}, 12
    s_lshl_b32 s{sT1}, s{sCQ}, 10
    s_add_u32 s{sT0}, s{sT0}, s{sT1}
    s_add_u32 s{sT0}, s{sT0}, {WS_KVR}
    """)
    a.vmem(f"buffer_load_dwordx4 {vr(vU,4)}, v{vLB}, {sr(R_WS,4)}, s{sT0} offen sc1", "U")


def phase23_setup(a):
    u = vC
    a(f"""
    s_and_b32 s{sT0}, s2, 7
    s_lshr_b32 s{sT1}, s2, 3
    s_mul_i32 s{s2RB}, s{sT1}, 37
    s_lshr_b32 s{s2RB}, s{s2RB}, 8
    s_mul_i32 s{s2CB}, s{s2RB}, 7
    s_sub_u32 s{s2CB}, s{sT1}, s{s2CB}
    s_lshl_b32 s{sT1}, s{sT0}, 2
    s_add_u32 s{s2RB}, s{s2RB}, s{sT1}
    s_lshl_b32 s{sWB}, s{sCQ}, 12
    s_lshl_b32 s{sT0}, s{sRH}, 11
    s_add_u32 s{sWB}, s{sWB}, s{sT0}
    s_lshl_b32 s{sT0}, s{s2RB}, 1
    s_add_u32 s{sT0}, s{sT0}, s{sRH}
    s_lshl_b32 s{sT0}, s{sT0}, 7
    s_mul_i32 s{sT1}, s{sCQ}, 28
    s_add_u32 s{sT0}, s{sT0}, s{sT1}
    s_lshl_b32 s{sT0}, s{sT0}, 10
    v_add_u32 v{vHO}, s{sT0}, v{vLB}
    v_lshrrev_b32 v{u}, 3, v{vL}
    s_mul_i32 s{sT0}, s{sCQ}, 448
    s_lshl_b32 s{sT1}, s{sRH}, 4
    s_add_u32 s{sT0}, s{sT0}, s{sT1}
    v_add_u32 v{u}, s{sT0}, v{u}
    v_mul_u32_u24 v{u}, 896, v{u}
    v_bfe_u32 v{u+1}, v{vL}, 4, 1
    v_lshlrev_b32 v{u+1}, 2, v{u+1}
    v_and_b32 v{u+2}, 7, v{vL}
    v_xor_b32 v{u+1}, v{u+1}, v{u+2}
    v_lshl_add_u32 v{vWD}, v{u+1}, 4, v{u}
    s_lshl_b32 s{sT0}, s{s2CB}, 7
    v_add_u32 v{vWD}, s{sT0}, v{vWD}
    s_lshl_b32 s{sCH}, s2, 1
    s_add_u32 s{sCH}, s{sCH}, s{sRH}
    s_mul_i32 s{sUB}, s{sRH}, {8*CV_UP}
    s_add_u32 s{sUB}, s{sUB}, {CV_U}
    s_mul_i32 s{sAB}, s{sRH}, {CV_A[1]}
    s_lshl_b32 s{sT0}, s{sCH}, 12
    s_add_u32 s{R_H}, s{S_SSMK}, s{sT0}
    s_addc_u32 s{R_H+1}, s{S_SSMK+1}, 0
    s_and_b32 s{R_H+1}, s{R_H+1}, 0xffff
    s_mov_b32 s{R_H+2}, 4096
    s_mov_b32 s{R_H+3}, 0x20000
    s_lshl_b32 s{sT1}, s{sCQ}, 10
    v_add_u32 v{u+1}, s{sT1}, v{vLB}
    v_subrev_u32 v{u+2}, 64, v{vLB}
    v_subrev_u32 v{u+3}, 48, v{vLB}
    """)
    srd(a, R_WD, S_WD, SZ_W)
    srd(a, R_O, S_OUT, SZ_X)


def win_pieces(a):
    u = vC
    return [
        lambda: a.vmem(f"buffer_load_dwordx4 {vr(vD,4)}, v{u+1}, {sr(R_H,4)}, 0 offen", "D"),
        lambda: a.vmem(f"buffer_load_dwordx4 {vr(vD+4,4)}, v{u+1}, {sr(R_H,4)}, 0 offen offset:16", "D"),
        lambda: a.vmem(f"buffer_load_dwordx4 {vr(vD+8,4)}, v{u+2}, {sr(R_H,4)}, 0 offen", "D"),
        lambda: a.vmem(f"buffer_load_dwordx4 {vr(vD+12,4)}, v{u+3}, {sr(R_H,4)}, 0 offen", "D"),
    ]


def flag_zero(a):
    a(f"""
    s_lshl_b32 s{sE}, s{sRB}, 1
    s_add_u32 s{sE}, s{sE}, s{sRH}
    s_mul_i32 s{sE}, s{sE}, 56
    s_lshl_b32 s{sT0}, s{sCB}, 2
    s_add_u32 s{sE}, s{sE}, s{sT0}
    s_add_u32 s{sE}, s{sE}, s{sCQ}
    s_lshl_b32 s{sE}, s{sE}, 7
    s_add_u32 s{sE}, s{sE}, {WS_FLH}
    s_mul_i32 s{sTMP}, s{sCQ}, 448
    s_add_u32 s{sTMP}, s{sTMP}, s{sCH}
    s_lshl_b32 s{sTMP}, s{sTMP}, 7
    s_add_u32 s{sTMP}, s{sTMP}, {WS_FLT}
    """)
    tag_issue(a)


def wpf(a):
    if not WPF2:
        return
    a(f"""
    s_lshr_b32 s{sT0}, s2, 3
    s_mul_i32 s{sT0}, s{sT0}, 7
    s_add_u32 s{sT0}, s{sT0}, s3
    s_lshl_b32 s{sT0}, s{sT0}, 13
    s_cmp_eq_u32 s3, 7
    s_cselect_b32 s{sT0}, 0x7f000000, s{sT0}
    v_lshlrev_b32 v{vT}, 7, v{vL}
    """)
    a.vmem(f"buffer_load_dword v{vT+1}, v{vT}, {sr(R_WD,4)}, s{sT0} offen", "WPF")


class Rec:
    def __init__(self, a):
        self.a = a
        self.items = []

    def __call__(self, txt):
        for ln in txt.strip("\n").split("\n"):
            ln = ln.strip()
            if ln:
                self.items.append(("i", ln))

    def vmem(self, txt, tag):
        self.items.append(("v", txt, tag))

    def vm_wait(self, tag):
        self.items.append(("w", tag))

    def label(self, l):
        self.items.append(("l", l))

    def groups(self):
        out, cur, depth = [], [], 0
        for it in self.items:
            cur.append(it)
            t = it[1]
            if it[0] == "i":
                if t.startswith("s_cbranch") or (("exec" in t) and t.startswith("s_mov") and not t.endswith("-1")):
                    depth += 1
                elif t == "s_mov_b64 exec, -1":
                    depth -= 1
                elif " m0," in t:
                    depth += 100
            elif it[0] == "l":
                depth -= 1
            elif it[0] == "v" and depth >= 100:
                depth -= 100
            if depth == 0:
                out.append(cur)
                cur = []
        assert not cur, cur
        return out


def explode(a, fns):
    res = []
    for fn in fns:
        r = Rec(a)
        fn(r)
        for g in r.groups():
            def emit(g=g):
                for it in g:
                    if it[0] == "i":
                        a(it[1])
                    elif it[0] == "v":
                        a.vmem(it[1], it[2])
                    elif it[0] == "w":
                        a.vm_wait(it[1])
                    else:
                        a.label(it[1])
            cost = sum(0.5 if (it[0] == "i" and it[1].startswith("s_")) else 1 for it in g)
            res.append((cost, emit))
    return res


def interleave(x, y):
    out = []
    while x or y:
        if x:
            out.append(x.pop(0))
        if y:
            out.append(y.pop(0))
    return out


def g1_mf2(a, setno, fill, slots_left, first=False):
    x = [frag(setno, 0), frag(setno, 1)]
    w = [frag(setno, 2), frag(setno, 3)]
    for k, (mt, nt) in enumerate([(0, 0), (0, 1), (1, 1), (1, 0)]):
        acc = vACC + 16 * (2 * mt + nt)
        a(f"v_mfma_f32_32x32x16_bf16 {vr(acc,16)}, {vr(w[mt],4)}, {vr(x[nt],4)}, {'0' if first else vr(acc,16)}")
        tot = sum(c for c, _ in fill)
        budget = tot / max(1, slots_left - k)
        used = 0
        while fill and used < budget - 1e-9:
            c, e = fill.pop(0)
            e()
            used += c


def seq(*fs):
    return lambda r: [f(r) for f in fs]


def gemm1_main(a):
    NST = 7
    g1_reads(a, 0, 0, 0)
    cur = 0
    U = lambda i: (lambda r: unit_pieces(r)[i]())
    D = lambda st: [(lambda j: (lambda r: dma_pieces(r, st)[j]()))(j) for j in range(6)]
    WD = lambda s_: [(lambda j: (lambda r: wdma_pieces(r, s_, WENT[s_])[j]()))(j) for j in range(2)]
    CP = lambda i: (lambda r: conv_pre(r)[i]())
    plan = {
        -1: D(2) + [phase23_setup, flag_zero, U(0), U(1), U(2), U(3)],
        0: interleave(D(3), [U(i) for i in (4, 5, 6, 7, 8, 9, 10)]),
        1: [seq(tag_read, U(11))] + interleave(D(4), [CP(0), CP(1), CP(2)]) + [lambda r: [f() for f in win_pieces(r)]],
        2: [unit_signal] + D(5) + WD(6),
        3: D(6) + [CP(3), CP(4)],
        4: [lambda r: poll_issue(r, vPOLL, "P0")] + WD(0) + WD(1) + WD(2),
        5: [stat_loads, kv_load] + WD(3) + WD(4) + WD(5),
        6: [],
    }
    fill = explode(a, plan[-1])
    for st in range(NST):
        for p in range(4):
            if p < 3:
                g1_reads(a, st, p + 1, cur ^ 1)
                a("s_waitcnt lgkmcnt(6)")
                g1_mf2(a, cur, fill, 4 * (3 - p), st == 0 and p == 0)
            else:
                assert not fill
                a("s_waitcnt lgkmcnt(0)")
                if st + 1 < NST:
                    a.vm_wait(f"A{st+1}")
                if st == 1:
                    tag_block(a)
                    a("s_waitcnt lgkmcnt(0)")
                if st == 2:
                    a.vm_wait("US")
                if st == 5:
                    poll_block(a, vPOLL)
                a("s_barrier")
                if st + 1 < NST:
                    g1_reads(a, st + 1, 0, cur ^ 1)
                fill = explode(a, plan[st])
                g1_mf2(a, cur, fill, 16)
                if st in (3, 6) or STM:
                    a.stamp()
            cur ^= 1
    assert not fill


def gemm1_epilogue(a):
    a(f"s_lshl_b32 s{sT1}, s2, 2")
    a(f"s_load_dword s{sD}, {sr(S_SSMD,2)}, s{sT1}")
    a.vm_wait("U")
    a.stamp()
    cw = explode(a, [conv_writes, lambda r: r(f"ds_write_b128 v{vWP}, {vr(vU,4)}")])
    a(f"""
    v_mul_f32 v{vR2}, v{vSTAT+1}, v{vSTAT+1}
    v_mul_f32 v{vR2+2}, v{vSTAT+3}, v{vSTAT+3}
    s_lshl_b32 s{sT0}, s{sRB}, 2
    s_lshl_b32 s{sT1}, s{sRH}, 1
    s_add_u32 s{sT0}, s{sT0}, s{sT1}
    s_lshl_b32 s{sT0}, s{sT0}, 7
    s_lshl_b32 s{sT1}, s{sCB}, 3
    s_add_u32 s{sT0}, s{sT0}, s{sT1}
    s_lshl_b32 s{sT1}, s{sCQ}, 1
    s_add_u32 s{sT0}, s{sT0}, s{sT1}
    s_lshl_b32 s{sT0}, s{sT0}, 10
    s_add_u32 s{sT1}, s{sT0}, {128*1024}
    """)
    vH = 28
    k = 0
    for mt in range(2):
        for nt in range(2):
            acc = vACC + 16 * (2 * mt + nt)
            cs = vCS + 16 * mt
            m = vSTAT + 2 * nt
            for i in range(8):
                a(f"v_pk_fma_f32 {vr(acc+2*i,2)}, {vr(m,2)}, {vr(cs+2*i,2)}, {vr(acc+2*i,2)} op_sel_hi:[0,1,1] neg_lo:[1,0,0] neg_hi:[1,0,0]")
            if cw:
                cw.pop(0)[1]()
            for i in range(8):
                a(f"v_max_f32 v{acc+i}, 0, v{acc+i}")
            if cw:
                cw.pop(0)[1]()
            for i in range(4):
                a(f"v_pk_mul_f32 {vr(acc+8+2*i,2)}, {vr(acc+8+2*i,2)}, {vr(vR2+2*nt,2)} op_sel_hi:[1,0]")
            for i in range(4):
                a(f"v_pk_mul_f32 {vr(acc+2*i,2)}, {vr(acc+2*i,2)}, {vr(acc+8+2*i,2)}")
            o = vH + 4 * k
            for i in range(4):
                a(f"v_cvt_pk_bf16_f32 v{o+i}, v{acc+2*i}, v{acc+2*i+1}")
            a.vmem(f"buffer_store_dwordx4 {vr(o,4)}, v{vLB}, {sr(R_WS,4)}, s{sT1 if nt else sT0} offen offset:{mt*1024} sc1", "HS")
            k += 1
    while cw:
        cw.pop(0)[1]()


def h_flag(a):
    a.vm_wait("HS")
    a("s_mov_b64 exec, 1")
    a.vmem(f"buffer_store_dword v{vONE}, v{vZ}, {sr(R_WS,4)}, s{sE} offen sc1", "HF")
    a("s_mov_b64 exec, -1")


vF, vB, vAC = 44, 80, 112
vHD = 144
HLD = int(os.environ.get("HLD", 0))
HFL = " sc1" if HLD == 0 else ""
HF_AT, HP_AT, HC_AT = int(os.environ.get("HF_AT", 16)), int(os.environ.get("HP_AT", 48)), int(os.environ.get("HC_AT", 64))


def hload(a, T):
    if T % 4 == 0 or T == 14:
        a(f"s_mov_b32 s{sHO}, {1024*(T - T%4)}")
    a.vmem(f"buffer_load_dwordx4 {vr(vHD+4*T,4)}, v{vHO}, {sr(R_WS,4)}, s{sHO} offen offset:{1024*(T%4)}{HFL}", f"H{T}")


def late_h(a, qd, vFA, blocking):
    Ls, L, Lgo = f"LH_SK{qd}_{blocking}", f"LH_L{qd}_{blocking}", f"LH_GO{qd}_{blocking}"
    save = list(a.vm)
    a(f"s_cmp_lg_u32 s{sOK0}, 0")
    a(f"s_cbranch_scc1 {Ls}")
    a(f"s_mov_b32 s{sSP}, 0")
    a.label(L)
    a(f"""
    s_waitcnt vmcnt(0)
    v_cmp_eq_u32 vcc, v{vONE}, v{vPOLL}
    s_add_u32 s{sSP}, s{sSP}, 1
    s_cmp_gt_u32 s{sSP}, 0x10000
    s_cbranch_scc1 {Lgo}
    s_cmp_eq_u64 vcc, exec
    s_cbranch_scc1 {Lgo}
    buffer_load_dword v{vPOLL}, v{vFA}, {sr(R_WS,4)}, 0 offen sc1
    s_branch {L if blocking else Ls}
    """)
    a.label(Lgo)
    a(f"s_mov_b32 s{sOK0}, 1")
    for T in range(14):
        hload(a, T)
    if blocking:
        a(f"buffer_load_dword v{vPOLL}, v{vFA}, {sr(R_WS,4)}, 0 offen sc1")
    a.vm = save
    a.label(Ls)


vAA, vBA, vFA, vKA, vTA, vEX = 244, 245, 246, 247, 248, 249
vWM, vWX, vWZ, vWP = 250, 251, 252, 253
vBLD = 128


def conv_pre(a):
    c = vC

    def p1():
        a(f"""
        s_lshl_b32 s{sT0}, s{sCQ}, 10
        s_add_u32 s{sT0}, s{sT0}, s{sAB}
        v_add_u32 v{vWM}, s{sT0}, v{vLB}
        v_add_u32 v{vWX}, s{sAB}, v{vLB}
        v_mov_b32 v{vBLD+24}, 0
        v_mov_b32 v{vBLD+25}, 0
        v_mov_b32 v{vBLD+26}, 0
        v_mov_b32 v{vBLD+27}, 0
        v_bfe_u32 v{vWZ}, v{vL}, 4, 1
        s_lshl_b32 s{sT0}, s{sCQ}, 1
        v_add_u32 v{vWZ}, s{sT0}, v{vWZ}
        v_mul_u32_u24 v{vWZ}, {CV_UP}, v{vWZ}
        v_and_b32 v{c}, 15, v{vL}
        v_lshl_add_u32 v{vWZ}, v{c}, 4, v{vWZ}
        v_add_u32 v{vWZ}, s{sUB}, v{vWZ}
        """)

    def p2():
        a(f"""
        v_and_b32 v{vWP}, 7, v{vL}
        v_xor_b32 v{vWP}, 4, v{vWP}
        v_mul_u32_u24 v{vWP}, {CV_UP}, v{vWP}
        v_lshrrev_b32 v{c+4}, 3, v{vL}
        v_lshlrev_b32 v{c+4}, 4, v{c+4}
        v_sub_u32 v{vWP}, v{vWP}, v{c+4}
        s_lshl_b32 s{sT0}, s{sCQ}, 7
        s_sub_u32 s{sT0}, s{sUB}, s{sT0}
        s_add_u32 s{sT0}, s{sT0}, {47*16}
        v_add_u32 v{vWP}, s{sT0}, v{vWP}
        v_lshrrev_b32 v{c+4}, 4, v{vL}
        v_mul_u32_u24 v{vBA}, {CV_UP}, v{c+4}
        v_lshl_add_u32 v{vBA}, v{c}, 4, v{vBA}
        v_add_u32 v{vBA}, s{sUB}, v{vBA}
        v_sub_u32 v{vKA}, 3, v{c+4}
        v_mul_u32_u24 v{vKA}, {CV_UP}, v{vKA}
        v_lshl_add_u32 v{vKA}, v{c}, 4, v{vKA}
        v_add_u32 v{vKA}, s{sUB}, v{vKA}
        """)

    def p3():
        a(f"""
        v_lshlrev_b32 v{vTA}, 7, v{c}
        v_lshl_add_u32 v{vTA}, v{c+4}, 4, v{vTA}
        v_lshrrev_b32 v{c}, 2, v{c}
        v_add_u32 v{c}, v{c}, v{c+4}
        v_lshlrev_b32 v{c}, 4, v{c}
        v_add_u32 v{c}, s{sAB}, v{c}
        v_and_b32 v{c+4}, 3, v{vL}
        v_mul_u32_u24 v{vAA}, {CV_ST}, v{c+4}
        v_add_u32 v{vAA}, v{vAA}, v{c}
        s_mul_i32 s{sT0}, s{sRH}, {12*2048}
        v_add_u32 v{vEX}, s{sT0}, v{vLB}
        s_mul_i32 s{sT0}, s{s2RB}, 56
        s_mul_i32 s{sT1}, s{sCQ}, 14
        s_add_u32 s{sT0}, s{sT0}, s{sT1}
        s_lshl_b32 s{sT0}, s{sT0}, 7
        s_add_u32 s{sT0}, s{sT0}, {WS_FLH}
        v_min_u32 v{vFA}, 13, v{vL}
        v_lshl_add_u32 v{vFA}, v{vFA}, 7, s{sT0}
        """)

    def bld(rnd):
        def f():
            a.vm_wait("D")
            d, b = vD + 8 * rnd, vBLD + 12 * rnd
            for i in range(4):
                a(f"v_mov_b32 v{b+i}, v{d+1+i}")
            for i in range(4):
                a(f"v_alignbit_b32 v{b+4+i}, v{d+i+1}, v{d+i}, 16")
            for i in range(4):
                a(f"v_alignbit_b32 v{b+8+i}, v{d+i+2}, v{d+i+1}, 16")
        return f
    return [p1, p2, p3, bld(0), bld(1)]


def conv_writes(a):
    for rnd in range(2):
        d, b = vD + 8 * rnd, vBLD + 12 * rnd
        if rnd:
            a("s_mov_b64 exec, 15")
        srcs = [b + 4, b, b + 8, d + 2]
        for cc in range(4):
            a(f"ds_write_b128 v{vWX if rnd else vWM}, {vr(srcs[cc],4)} offset:{cc*CV_ST + (0 if rnd else 64)}")
        if rnd:
            a("s_mov_b64 exec, -1")
    a(f"ds_write_b128 v{vWZ}, {vr(vBLD+24,4)}")


def conv(a):
    a("s_waitcnt lgkmcnt(0)")
    a.stamp()
    a("s_barrier")
    a(f"""
    s_cmp_eq_u32 s{sCQ}, 1
    s_cbranch_scc1 CV_Q1
    s_cmp_eq_u32 s{sCQ}, 2
    s_cbranch_scc1 CV_Q2
    s_cmp_eq_u32 s{sCQ}, 3
    s_cbranch_scc1 CV_Q3
    """)
    vm_save, nst_save = list(a.vm), a.nst
    ranges = [range(0, 6), range(6, 12), range(12, 20), range(20, 32)]
    vm_end = None
    for qd in range(4):
        if qd:
            a.label(f"CV_Q{qd}")
        a.vm, a.nst = list(vm_save), nst_save

        def F(psi):
            return vF + 6 * (psi % 6)

        def rdA(psi):
            off = (4 * psi - 4 + 4) * 16
            a(f"ds_read_b128 {vr(F(psi),4)}, v{vAA} offset:{off}")
            a(f"ds_read_b64 {vr(F(psi)+4,2)}, v{vAA} offset:{off+16}")
            return 2

        def nus(dl):
            return (0, 1) if dl < 16 else (1,)

        def rdB(dl):
            n = 0
            for kc in range(2):
                for nu in nus(dl):
                    a(f"ds_read_b128 {vr(vB+16*(dl&1)+8*kc+4*nu,4)}, v{vBA} offset:{kc*4*CV_UP+(16+16*nu-dl)*16}")
                    n += 1
            return n

        dls = list(ranges[qd])
        if dls[0] > 0:
            rdA(2 * dls[0] - 1)
        rdA(2 * dls[0]); rdA(2 * dls[0] + 1); rdB(dls[0])
        cnt = 0
        done = set()
        inited = set()
        for dl in dls:
            n = 0
            if dl != dls[-1]:
                n += rdA(2 * dl + 2); n += rdA(2 * dl + 3); n += rdB(dl + 1)
            a(f"s_waitcnt lgkmcnt({n})")
            for kc in range(2):
                for p in range(2):
                    psi = 2 * dl + p - kc
                    if psi < 0:
                        continue
                    for par in range(2):
                        for nu in nus(dl):
                            acc = vAC + 16 * nu + 8 * p + 4 * par
                            csrc = vr(acc, 4) if acc in inited else "0"
                            inited.add(acc)
                            a(f"v_mfma_f32_16x16x32_bf16 {vr(acc,4)}, {vr(F(psi)+2*par,4)}, {vr(vB+16*(dl&1)+8*kc+4*nu,4)}, {csrc}")
                            cnt += 1
            if cnt >= HF_AT - 4 and "hf" not in done:
                done.add("hf")
                h_flag(a)
                a.stamp()
        assert done == {"hf"}, done
        a.stamp()
        nu_o, p_o = qd >> 1, qd & 1
        vK = vF
        a(f"ds_read_b128 {vr(vB,4)}, v{vKA} offset:{p_o*4*CV_UP+(16+16*nu_o)*16}")
        a(f"""
        s_lshl_b32 s{sT0}, s{sCH}, 12
        s_add_u32 s{sT0}, s{sT0}, {WS_T + nu_o*2048 + p_o*64}
        s_lshl_b32 s{sT1}, s{sRH}, 4
        s_lshr_b32 s{sD}, s{sD}, s{sT1}
        s_lshl_b32 s{sD}, s{sD}, 16
        s_waitcnt lgkmcnt(0)
        s_barrier
        """)
        for dq in range(4):
            if dq == qd or (qd == 3 and dq < 2):
                continue
            sl = (qd - dq - 1) % 4
            for q in range(2):
                a(f"ds_write_b128 v{vEX}, {vr(vAC+8*dq+4*q,4)} offset:{(dq*3+sl)*2048+q*1024}")
        for dq_ in range(4):
            a(f"v_lshlrev_b32 v{vK+7-2*dq_}, 16, v{vB+dq_}")
            a(f"v_and_b32 v{vK+6-2*dq_}, 0xffff0000, v{vB+dq_}")
        for i in range(8):
            a(f"v_mul_f32 v{vK+i}, s{sD}, v{vK+i}")
        for i in range(4):
            round_pair(a, vK + 2 * i, vK + 2 * i + 1)
        a("s_waitcnt lgkmcnt(0)")
        a("s_barrier")
        srcs = [s_ for s_ in range(4) if s_ != qd and not (s_ == 3 and qd < 2)]
        vR = vB
        for k, s_ in enumerate(srcs):
            sl = (s_ - qd - 1) % 4
            for q in range(2):
                a(f"ds_read_b128 {vr(vR+8*k+4*q,4)}, v{vEX} offset:{(qd*3+sl)*2048+q*1024}")
        y = vAC + 8 * qd
        for k in range(len(srcs)):
            a(f"s_waitcnt lgkmcnt({2*(len(srcs)-1-k)})")
            for i in range(4):
                a(f"v_pk_add_f32 {vr(y+2*i,2)}, {vr(y+2*i,2)}, {vr(vR+8*k+2*i,2)}")
        for i in range(4):
            round_pair(a, y + 2 * i, y + 2 * i + 1)
        for i in range(4):
            a(f"v_pk_add_f32 {vr(y+2*i,2)}, {vr(y+2*i,2)}, {vr(vK+2*i,2)}")
        for i in range(4):
            a(f"v_cvt_pk_bf16_f32 v{108+i}, v{y+2*i}, v{y+2*i+1}")
        a.vmem(f"buffer_store_dwordx4 {vr(108,4)}, v{vTA}, {sr(R_WS,4)}, s{sT0} offen sc1", "TS")
        if qd < 3:
            a("s_branch CV_JOIN")
        if vm_end is None:
            vm_end = list(a.vm)
        assert vm_end == a.vm
    a.label("CV_JOIN")


def gemm2(a):
    u = 10
    vRA0, vRA1, vRB0, vRB1, vXO = 3, 4, 5, 6, 7
    vXV, vST2 = 24, 8
    vW = [28 + 16 * i for i in range(5)]
    vA2 = 112
    vF_, vTG, vTW, vTR = 14, 15, 16, 17
    a(f"""
    v_lshrrev_b32 v{u}, 5, v{vL}
    v_bfe_u32 v{u+1}, v{vL}, 2, 2
    v_lshl_add_u32 v{u}, v{u}, 2, v{u+1}
    v_bfe_u32 v{u+2}, v{vL}, 4, 1
    v_bfe_u32 v{u+3}, v{vL}, 1, 1
    v_lshl_add_u32 v{u+2}, v{u+2}, 1, v{u+3}
    v_bfe_u32 v{u+3}, v{vL}, 3, 1
    v_lshl_add_u32 v{u+2}, v{u+3}, 2, v{u+2}
    v_lshlrev_b32 v{u+2}, 4, v{u+2}
    v_and_b32 v{u+3}, 1, v{vL}
    v_lshl_add_u32 v{u+2}, v{u+3}, 3, v{u+2}
    v_lshl_add_u32 v{u+2}, v{u}, 7, v{u+2}
    s_lshl_b32 s{sT0}, s{sCQ}, 12
    v_add_u32 v{vRA0}, s{sT0}, v{u+2}
    v_xor_b32 v{vRA1}, 64, v{vRA0}
    """)
    ENT = {s_: WENT[s_] for s_ in range(7)}
    for s_ in range(7, 12):
        ENT[s_] = WENT[s_ - 7]
    ENT[12], ENT[13] = 0, 16384

    def trreads(s_, dst):
        a(f"v_add_u32 v{vRB0}, {ENT[s_]}, v{vRA0}")
        a(f"v_add_u32 v{vRB1}, {ENT[s_]}, v{vRA1}")
        for tt in range(2):
            for Td in range(2):
                for hf in range(2):
                    a(f"ds_read_b64_tr_b16 {vr(dst+8*tt+4*Td+2*hf,2)}, v{vRB1 if Td else vRB0} offset:{tt*2048+hf*1024}")

    first = [True]

    def mf(s_, wreg, fill):
        for tt in range(2):
            a.vm_wait(f"H{2*s_+tt}")
            for Td in range(2):
                acc = vA2 + 16 * Td
                c = "0" if first[0] else vr(acc, 16)
                a(f"v_mfma_f32_32x32x16_bf16 {vr(acc,16)}, {vr(wreg+8*tt+4*Td,4)}, {vr(vHD+4*(2*s_+tt),4)}, {c}")
                if fill:
                    fill.pop(0)()
            first[0] = False

    for s_ in range(5):
        trreads(s_, vW[s_])
    a(f"""
    s_lshl_b32 s{sT0}, s{s2RB}, 6
    s_lshl_b32 s{sT1}, s{sRH}, 5
    s_add_u32 s{sT0}, s{sT0}, s{sT1}
    v_and_b32 v{u}, 31, v{vL}
    v_add_u32 v{u}, s{sT0}, v{u}
    v_lshlrev_b32 v{u+1}, 3, v{u}
    v_add_u32 v{u+1}, {WS_STATS}, v{u+1}
    v_mul_u32_u24 v{vXO}, 896, v{u}
    v_lshrrev_b32 v{u+2}, 5, v{vL}
    v_lshl_add_u32 v{vXO}, v{u+2}, 3, v{vXO}
    s_and_b32 s{sT1}, s{sCQ}, 1
    s_lshl_b32 s{sT1}, s{sT1}, 6
    s_lshr_b32 s{sXO}, s{sCQ}, 1
    s_lshl_b32 s{sXO}, s{sXO}, 5
    s_add_u32 s{sXO}, s{sXO}, s{sT1}
    s_lshl_b32 s{sT0}, s{s2CB}, 7
    s_add_u32 s{sXO}, s{sXO}, s{sT0}
    v_add_u32 v{vXO}, s{sXO}, v{vXO}
    s_waitcnt lgkmcnt(0)
    s_barrier
    """)
    a.stamp()
    for s_ in range(7, 14):
        for f in wdma_pieces(a, s_, ENT[s_]):
            f()
    a(f"s_mov_b32 s{sSP}, 0")
    a.label("G_HPOLL")
    a(f"""
    buffer_load_dword v{vPOLL}, v{vFA}, {sr(R_WS,4)}, 0 offen sc1
    s_add_u32 s{sSP}, s{sSP}, 1
    s_waitcnt vmcnt(0)
    v_cmp_eq_u32 vcc, v{vONE}, v{vPOLL}
    s_cmp_gt_u32 s{sSP}, 0x10000
    s_cbranch_scc1 G_HPOLL_OK
    s_cmp_eq_u64 vcc, exec
    s_cbranch_scc0 G_HPOLL
    """)
    a.label("G_HPOLL_OK")
    a.vm = []
    a.stamp()
    if PROF:
        a(f"s_add_u32 s{72+2*a.nst}, s72, s{sSP}")
        a.nst += 1
    a("s_mov_b64 exec, 1")
    a.vmem(f"buffer_store_dword v{vONE}, v{vZ}, {sr(R_WS,4)}, s{sTMP} offen sc1", "TF")
    a("s_mov_b64 exec, -1")
    fill = [(lambda T: (lambda: hload(a, T)))(T) for T in range(28)]

    def xloads():
        for i in range(2):
            a.vmem(f"buffer_load_dwordx2 {vr(vXV+2*i,2)}, v{vXO}, {sr(R_X,4)}, 0 offen offset:{16*i}", "XV")
        a.vmem(f"buffer_load_dwordx2 {vr(vST2,2)}, v{u+1}, {sr(R_WS,4)}, 0 offen sc1", "XV")

    def tflag():
        a.vm_wait("TS")
        a("s_mov_b64 exec, 1")
        a.vmem(f"buffer_store_dword v{vONE}, v{vZ}, {sr(R_WS,4)}, s{sTMP} offen sc1", "TF")
        a("s_mov_b64 exec, -1")

    NPRE = int(os.environ.get("NPRE", 10))
    for _ in range(NPRE):
        fill.pop(0)()
    mf(0, vW[0], fill)
    trreads(5, vW[0])
    mf(1, vW[1], fill)
    trreads(6, vW[1])
    for s_ in range(2, 5):
        mf(s_, vW[s_], fill)
    a("s_waitcnt lgkmcnt(0)")
    mf(5, vW[0], fill)
    mf(6, vW[1], fill)
    while fill:
        fill.pop(0)()
    xloads()
    a(f"""
    s_lshr_b32 s{sT0}, s{s2RB}, 4
    s_lshl_b32 s{sT0}, s{sT0}, 1
    s_add_u32 s{sT0}, s{sT0}, s{sRH}
    s_mul_i32 s{sT0}, s{sT0}, {448*128}
    s_lshl_b32 s{sT1}, s{sXO}, 6
    s_add_u32 s{sT0}, s{sT0}, s{sT1}
    s_add_u32 s{sT0}, s{sT0}, {WS_FLT}
    v_and_b32 v{u+2}, 15, v{vL}
    v_lshl_add_u32 v{vF_}, v{u+2}, 7, s{sT0}
    v_lshrrev_b32 v{u+2}, 2, v{vL}
    s_lshr_b32 s{sT1}, s{sXO}, 1
    v_add_u32 v{u+2}, s{sT1}, v{u+2}
    v_lshlrev_b32 v{u+2}, 12, v{u+2}
    v_and_b32 v{u+3}, 3, v{vL}
    v_lshl_add_u32 v{vTG}, v{u+3}, 4, v{u+2}
    s_lshl_b32 s{sT0}, s{s2RB}, 7
    s_lshl_b32 s{sT1}, s{sRH}, 6
    s_add_u32 s{sT0}, s{sT0}, s{sT1}
    s_add_u32 s{sWO}, s{sT0}, {WS_T}
    s_lshl_b32 s{sT1}, s3, 10
    s_add_u32 s{sT1}, s{sT1}, 32768
    v_add_u32 v{vTW}, s{sT1}, v{vLB}
    v_lshrrev_b32 v{u+2}, 5, v{vL}
    v_bfe_u32 v{u+8}, v{vL}, 2, 2
    v_lshl_add_u32 v{u+2}, v{u+2}, 2, v{u+8}
    v_lshlrev_b32 v{u+2}, 6, v{u+2}
    v_bfe_u32 v{u+8}, v{vL}, 4, 1
    v_lshl_add_u32 v{u+2}, v{u+8}, 5, v{u+2}
    v_lshl_add_u32 v{u+2}, v{u+3}, 3, v{u+2}
    v_add_u32 v{vTR}, s{sT1}, v{u+2}
    s_lshl_b32 s{sT0}, s3, 13
    s_add_u32 s{sT0}, s{sT0}, 49152
    v_add_u32 v{u}, s{sT0}, v{vLB}
    s_lshl_b32 s{sT0}, s{sRH}, 15
    s_and_b32 s{sT1}, s{sCQ}, 1
    s_lshl_b32 s{sT1}, s{sT1}, 12
    s_add_u32 s{sT0}, s{sT0}, s{sT1}
    s_lshr_b32 s{sT1}, s{sCQ}, 1
    s_lshl_b32 s{sT1}, s{sT1}, 11
    s_add_u32 s{sT0}, s{sT0}, s{sT1}
    s_add_u32 s{sT0}, s{sT0}, 49152
    v_add_u32 v{u+1}, s{sT0}, v{vLB}
    """)
    groups = [[7, 8, 9], [10, 11], [12, 13]]
    a.stamp()
    a("s_barrier")
    wi = 2
    vX, vXN, vTT, vTD = 144, 152, 160, 164
    for gi, g in enumerate(groups):
        if gi == 2:
            a("s_barrier")
        regs = []
        for s_ in g:
            regs.append(vW[wi % 5])
            trreads(s_, regs[-1])
            wi += 1
        if gi == 1:
            a.vmem(f"buffer_load_dword v{vPOLL}, v{vF_}, {sr(R_WS,4)}, 0 offen sc1", "PT")
        for k, s_ in enumerate(g):
            a(f"s_waitcnt lgkmcnt({min(15, 8*(len(g)-1-k))})")
            mf(s_, regs[k], [])
        if gi == 1:
            pass
    a.stamp()
    a(f"s_mov_b32 s{sSP}, 0")
    a.label("G_TPOLL")
    a(f"""
    s_waitcnt vmcnt(0)
    v_cmp_eq_u32 vcc, v{vONE}, v{vPOLL}
    s_add_u32 s{sSP}, s{sSP}, 1
    s_cmp_gt_u32 s{sSP}, 0x10000
    s_cbranch_scc1 G_TPOLL_OK
    s_cmp_eq_u64 vcc, exec
    s_cbranch_scc1 G_TPOLL_OK
    s_sleep 1
    buffer_load_dword v{vPOLL}, v{vF_}, {sr(R_WS,4)}, 0 offen sc1
    s_branch G_TPOLL
    """)
    a.label("G_TPOLL_OK")
    a.vm = []
    a(f"buffer_load_dwordx4 {vr(vTT,4)}, v{vTG}, {sr(R_WS,4)}, s{sWO} offen sc1")
    a.stamp()
    vP, vE, vS = 44, 76, 96
    a("s_nop 3")
    for q in range(8):
        a(f"ds_write_b128 v{u}, {vr(vA2+4*q,4)} offset:{q*1024}")
    for i in range(4):
        a(f"v_lshlrev_b32 v{vX+2*i}, 16, v{vXV+i}")
        a(f"v_and_b32 v{vX+2*i+1}, 0xffff0000, v{vXV+i}")
    for i in range(8):
        a(f"v_sub_f32 v{vXN+i}, v{vX+i}, v{vST2}")
    for i in range(4):
        round_pair(a, vXN + 2 * i, vXN + 2 * i + 1)
    for i in range(8):
        a(f"v_mul_f32 v{vXN+i}, v{vXN+i}, v{vST2+1}")
    for i in range(4):
        round_pair(a, vXN + 2 * i, vXN + 2 * i + 1)
    a("s_waitcnt lgkmcnt(0)")
    a("s_barrier")
    for src in range(4):
        for q in range(2):
            a(f"ds_read_b128 {vr(vP+8*src+4*q,4)}, v{u+1} offset:{src*8192+q*1024}")
    a("s_waitcnt vmcnt(0)")
    a(f"ds_write_b128 v{vTW}, {vr(vTT,4)}")
    a("s_waitcnt lgkmcnt(1)")
    for i in range(4):
        a(f"v_pk_add_f32 {vr(vP+2*i,2)}, {vr(vP+2*i,2)}, {vr(vP+8+2*i,2)}")
        a(f"v_pk_add_f32 {vr(vP+16+2*i,2)}, {vr(vP+16+2*i,2)}, {vr(vP+24+2*i,2)}")
    a("s_waitcnt lgkmcnt(0)")
    for i in range(2):
        a(f"ds_read_b64_tr_b16 {vr(vTD+2*i,2)}, v{vTR} offset:{512*i}")
    for i in range(4):
        a(f"v_pk_add_f32 {vr(vP+2*i,2)}, {vr(vP+2*i,2)}, {vr(vP+16+2*i,2)}")
    for i in range(4):
        round_pair(a, vP + 2 * i, vP + 2 * i + 1)
    a(f"s_mov_b32 s{sW2}, {f32bits(-1.4426950408889634)}")
    for i in range(8):
        a(f"v_mul_f32 v{vE+i}, s{sW2}, v{vP+i}")
    for i in range(8):
        a(f"v_exp_f32 v{vE+i}, v{vE+i}")
    a("s_waitcnt lgkmcnt(0)")
    for i in range(4):
        a(f"v_lshlrev_b32 v{vS+2*i}, 16, v{vTD+i}")
        a(f"v_and_b32 v{vS+2*i+1}, 0xffff0000, v{vTD+i}")
    for i in range(8):
        a(f"v_add_f32 v{vE+i}, 1.0, v{vE+i}")
    for i in range(8):
        a(f"v_rcp_f32 v{vE+i}, v{vE+i}")
    for i in range(4):
        a(f"v_pk_mul_f32 {vr(vS+2*i,2)}, {vr(vS+2*i,2)}, {vr(vXN+2*i,2)}")
    for i in range(4):
        round_pair(a, vS + 2 * i, vS + 2 * i + 1)
    for i in range(8):
        a(f"v_mul_f32 v{vP+i}, v{vP+i}, v{vE+i}")
    for i in range(4):
        round_pair(a, vP + 2 * i, vP + 2 * i + 1)
    for i in range(4):
        a(f"v_pk_mul_f32 {vr(vS+2*i,2)}, {vr(vS+2*i,2)}, {vr(vP+2*i,2)}")
    for i in range(4):
        round_pair(a, vS + 2 * i, vS + 2 * i + 1)
    for i in range(4):
        a(f"v_pk_add_f32 {vr(vS+2*i,2)}, {vr(vS+2*i,2)}, {vr(vX+2*i,2)}")
    for i in range(4):
        a(f"v_cvt_pk_bf16_f32 v{vTT+i}, v{vS+2*i}, v{vS+2*i+1}")
    for i in range(2):
        a(f"buffer_store_dwordx2 {vr(vTT+2*i,2)}, v{vXO}, {sr(R_O,4)}, 0 offen offset:{16*i}")
    if PROF:
        a("s_waitcnt vmcnt(0)")
    a.stamp()
    a.stamp_flush()
    a("s_endpgm")


def role_prep(a):
    sB = 4
    vTID = 0
    t = 9
    vWC, vCA, vUP = 44, 100, 108
    a(f"""
    s_sub_u32 s{sB}, s2, 224
    s_cmp_ge_u32 s{sB}, 14
    s_cselect_b32 s6, 14, 0
    s_sub_u32 s6, s{sB}, s6
    v_lshrrev_b32 v{t+3}, 4, v{vTID}
    v_mul_u32_u24 v{t+3}, 3584, v{t+3}
    v_and_b32 v{t+4}, 15, v{vTID}
    v_lshl_add_u32 v{t+3}, v{t+4}, 4, v{t+3}
    s_lshl_b32 s5, s6, 8
    v_mov_b32 v{vZ}, 0
    s_waitcnt lgkmcnt(0)
    s_cmp_ge_u32 s{sB}, 14
    s_cselect_b32 s{R_W}, s{S_WU}, s{S_WG}
    s_cselect_b32 s{R_W+1}, s{S_WU+1}, s{S_WG+1}
    s_and_b32 s{R_W+1}, s{R_W+1}, 0xffff
    s_mov_b32 s{R_W+2}, {SZ_W}
    s_mov_b32 s{R_W+3}, 0x20000
    s_cmp_ge_u32 s{sB}, 28
    s_cselect_b32 s{R_W+2}, 0, s{R_W+2}
    """)
    srd(a, R_X, S_X, SZ_X)
    srd(a, R_WS, S_WS, WS_END)
    srd(a, R_DBG, S_DBG, 256)
    a(f"""
    s_add_u32 s{sT0}, s{sB}, s3
    s_cmp_lg_u32 s{sT0}, 0
    s_cbranch_scc1 P_NOTAG
    s_memrealtime s[{sSP}:{sSP+1}]
    s_waitcnt lgkmcnt(0)
    s_lshl_b32 s{sSP+1}, s{sSP+1}, 29
    s_xor_b32 s{sSP}, s{sSP}, s{sSP+1}
    s_or_b32 s{sSP}, s{sSP}, 1
    v_mov_b32 v{vONE}, s{sSP}
    s_mov_b64 exec, 1
    buffer_store_dword v{vONE}, v{vZ}, {sr(R_DBG,4)}, 0 offen sc1
    s_mov_b64 exec, -1
    """)
    a.label("P_NOTAG")
    unit_loads(a)
    for i in range(14):
        a.vmem(f"buffer_load_dwordx4 {vr(vWC+4*i,4)}, v{t+3}, {sr(R_W,4)}, s5 offen", f"C{i}")
        if i < 13:
            a(f"s_add_u32 s5, s5, {32*3584}")
    for i in range(8):
        a(f"v_mov_b32 v{vCA+i}, 0")
    up = unit_pieces(a)
    for f in up[:11]:
        f()
    a("s_waitcnt lgkmcnt(0)")
    a("s_barrier")
    up[11]()
    a.stamp()
    for i in range(14):
        a.vm_wait(f"C{i}")
        for d in range(4):
            a(f"v_lshlrev_b32 v{vUP+2*d}, 16, v{vWC+4*i+d}")
            a(f"v_and_b32 v{vUP+2*d+1}, 0xffff0000, v{vWC+4*i+d}")
        for d in range(8):
            a(f"v_add_f32 v{vCA+d}, v{vCA+d}, v{vUP+d}")
    a(f"""
    v_lshlrev_b32 v{t+5}, 5, v{vTID}
    ds_write_b128 v{t+5}, {vr(vCA,4)}
    ds_write_b128 v{t+5}, {vr(vCA+4,4)} offset:16
    v_lshlrev_b32 v{t+1}, 3, v{vL}
    s_lshl_b32 s5, s3, 11
    v_add_u32 v{t+2}, s5, v{t+1}
    s_lshl_b32 s5, s3, 9
    v_add_u32 v{t+5}, s5, v{t+1}
    s_waitcnt lgkmcnt(0)
    """)
    a.stamp()
    a("s_barrier")
    for i in range(4):
        a(f"ds_read_b64 {vr(vWC+2*i,2)}, v{t+2} offset:{512*i}")
    a("s_waitcnt lgkmcnt(0)")
    a(f"v_pk_add_f32 {vr(vWC,2)}, {vr(vWC,2)}, {vr(vWC+2,2)}")
    a(f"v_pk_add_f32 {vr(vWC+4,2)}, {vr(vWC+4,2)}, {vr(vWC+6,2)}")
    a(f"v_pk_add_f32 {vr(vWC,2)}, {vr(vWC,2)}, {vr(vWC+4,2)}")
    a(f"ds_write_b64 v{t+5}, {vr(vWC,2)} offset:16384")
    a("s_waitcnt vmcnt(0) lgkmcnt(0)")
    a("s_barrier")
    a("s_cmp_lg_u32 s3, 0")
    a("s_cbranch_scc1 P_DONE")
    for i in range(8):
        a(f"ds_read_b64 {vr(vWC+2*i,2)}, v{t+1} offset:{16384+512*i}")
    a(f"""
    v_lshrrev_b32 v{t+2}, 3, v{vL}
    v_lshlrev_b32 v{t+2}, 7, v{t+2}
    v_and_b32 v{t+3}, 7, v{vL}
    v_lshl_add_u32 v{t+2}, v{t+3}, 3, v{t+2}
    s_lshl_b32 s8, s6, 10
    s_cmp_ge_u32 s{sB}, 14
    s_cselect_b32 s9, 64, 0
    s_add_u32 s8, s8, s9
    s_add_u32 s8, s8, {WS_CS}
    s_cmp_ge_u32 s{sB}, 28
    s_cselect_b32 s8, 0x7f000000, s8
    s_waitcnt lgkmcnt(0)
    """)
    n = 8
    while n > 1:
        n //= 2
        for i in range(n):
            a(f"v_pk_add_f32 {vr(vWC+2*i,2)}, {vr(vWC+2*i,2)}, {vr(vWC+2*(i+n),2)}")
    a(f"buffer_store_dwordx2 {vr(vWC,2)}, v{t+2}, {sr(R_WS,4)}, s8 offen sc1")
    a.vm = []
    tag_issue(a)
    tag_block(a, to_lds=False)
    unit_signal(a)
    a.label("P_DONE")
    a("s_barrier")
    if WPF3:
        srd(a, R_WD, S_WD, SZ_W)
        a(f"""
        s_lshr_b32 s5, s{sB}, 3
        s_mul_i32 s5, s5, 401408
        s_add_u32 s9, s5, 200704
        v_lshlrev_b32 v{t}, 7, v{vTID}
        """)
        for half in (1, 0):
            for i in range(4):
                off = i * 65536
                if off >= 200704:
                    continue
                a(f"s_add_u32 s8, s{9 if half else 5}, {off}")
                if i == 3:
                    a(f"v_cmp_gt_u32 vcc, {(200704 - off)//128}, v{vTID}")
                    a("s_and_saveexec_b64 s[10:11], vcc")
                    a(f"s_cbranch_execz P_PF{half}")
                a(f"buffer_load_dword v{t+1}, v{t}, {sr(R_WD,4)}, s8 offen")
                if i == 3:
                    a.label(f"P_PF{half}")
                    a("s_mov_b64 exec, s[10:11]")
    a.stamp()
    a.stamp_flush()
    a("s_endpgm")


def touches(a):
    srd(a, R_WD, S_WD, SZ_W)
    srd(a, R_O, S_OUT, SZ_X)
    srd(a, R_H, S_SSMK, SZ_X)
    L = newlabel("NOTOUCH")
    a(f"""
    s_cmp_lg_u32 s3, 7
    s_cbranch_scc1 {L}
    v_lshlrev_b32 v{vT}, 20, v{vL}
    v_add_u32 v{vT}, 0x1c000, v{vT}
    v_mov_b32 v{vT+1}, 0x1f0000
    v_cmp_le_u32 vcc, 8, v{vL}
    v_lshlrev_b32 v{vT+2}, 21, v{vL}
    v_add_u32 v{vT+2}, {0x1f0000 - 0x800000}, v{vT+2}
    v_cndmask_b32 v{vT}, v{vT}, v{vT+2}, vcc
    v_mov_b32 v{vT+2}, 0xc10000
    v_cmp_le_u32 vcc, 10, v{vL}
    s_nop 1
    v_cndmask_b32 v{vT}, v{vT}, v{vT+2}, vcc
    v_lshlrev_b32 v{vT+1}, 19, v{vL}
    s_mov_b64 exec, 0x7ff
    buffer_load_dword v{vT+3}, v{vT}, {sr(R_WS,4)}, 0 offen
    s_mov_b64 exec, 15
    buffer_load_dword v{vT+3}, v{vT+1}, {sr(R_O,4)}, 0 offen
    buffer_load_dword v{vT+3}, v{vT+1}, {sr(R_H,4)}, 0 offen
    buffer_load_dword v{vT+3}, v{vT+1}, {sr(R_WD,4)}, 0 offen
    s_mov_b64 exec, -1
    """)
    a.label(L)
    if WPF:
        L2 = newlabel("NOWPF")
        a(f"""
        s_cmp_eq_u32 s3, 7
        s_cbranch_scc1 {L2}
        s_lshr_b32 s{sT0}, s2, 3
        s_mul_i32 s{sT0}, s{sT0}, 7
        s_add_u32 s{sT0}, s{sT0}, s3
        s_lshl_b32 s{sT0}, s{sT0}, 13
        v_lshlrev_b32 v{vT}, 7, v{vL}
        buffer_load_dword v{vT+3}, v{vT}, {sr(R_WD,4)}, s{sT0} offen
        """)
        a.label(L2)


def gen(a):
    a.lines.append(f".globl {KNAME}\n.p2align 8\n.type {KNAME},@function")
    a.label(KNAME)
    a("s_cmp_ge_u32 s2, 256")
    a("s_cbranch_scc1 K_END")
    a.stamp()
    a("""
    s_load_dwordx16 s[16:31], s[0:1], 0
    s_load_dwordx8 s[32:39], s[0:1], 64
    s_load_dwordx2 s[40:41], s[0:1], 96
    v_lshrrev_b32 v1, 6, v0
    v_and_b32 v2, 63, v0
    s_nop 0
    v_readfirstlane_b32 s3, v1
    s_cmp_ge_u32 s2, 224
    s_cbranch_scc1 K_PREP
    """)
    gemm1_setup(a)
    a("s_waitcnt lgkmcnt(0)")
    srd(a, R_X, S_X, SZ_X)
    a(f"""
    s_cmp_eq_u32 s{sRH}, 0
    s_cselect_b32 s{R_W}, s{S_WG}, s{S_WU}
    s_cselect_b32 s{R_W+1}, s{S_WG+1}, s{S_WU+1}
    s_and_b32 s{R_W+1}, s{R_W+1}, 0xffff
    s_mov_b32 s{R_W+2}, {SZ_W}
    s_mov_b32 s{R_W+3}, 0x20000
    """)
    for f in dma_pieces(a, 0):
        f()
    gemm1_setup2(a)
    srd(a, R_WS, S_WS, WS_END)
    srd(a, R_DBG, S_DBG, 256)
    a("s_barrier")
    if TOUCH:
        touches(a)
    unit_loads(a)
    for f in dma_pieces(a, 1):
        f()
    a.vm_wait("A0")
    a("s_barrier")
    a.stamp()
    gemm1_main(a)
    gemm1_epilogue(a)
    conv(a)
    gemm2(a)
    a.label("K_PREP")
    a.vm, a.nst = [], 1
    role_prep(a)
    a.label("K_END")
    a("s_endpgm")


def main():
    HEADER = open("cdna_kernels/" + NAME + ".s.ref").read().split("; Override launch")[0]
    a = Asm()
    gen(a)
    out = HEADER
    out += f"; @launch grid=(256,1,1) block=(512,1,1) lds={LDS_BYTES}\n"
    out += '.amdgcn_target "amdgcn-amd-amdhsa--gfx950"\n.text\n'
    out += a.text()
    out += '.section .rodata,"a"\n.p2align 6\n'
    out += descriptor(KNAME, 256, 102)
    path = sys.argv[1] if len(sys.argv) > 1 else "cdna_kernels/" + NAME + ".s"
    open(path, "w").write(out)


if __name__ == "__main__":
    main()
```

```python
import sys, os
from gen2 import (Asm, vr, sr, srd, round_pair, newlabel, f32bits, descriptor, NAME, KNAME, PROF,
                  S_X, S_K, S_V, S_SHK, S_SSMK, S_SSMD, S_WG, S_WU, S_WD, S_OUT, S_DBG, S_WS,
                  R_X, R_W, R_WS, R_DBG, R_A, R_B, SZ_X, SZ_W, SZ_SHK)
import gen12 as G12
from gen12 import (WS_H, WS_KVR, WS_T, WS_STATS, WS_CS, WS_FLU, WS_FLH, WS_FLT, WS_END, SLOT, LDS_BYTES, USCR,
                   CV_ST, CV_A, CV_U, CV_UP, role_prep, explode, vONE, vZ, vL, sSP, sT0, sT1, tag_issue)

STM = int(os.environ.get("STM", 0))
WENT = [49152 + 16384 * i for i in range(7)]
L_FLAG = 45568
sRB, sCB, sE, sCQ = 4, 5, 6, 10
sXO, sWO, sM0X, sM0W, sTMP = 11, 12, 13, 14, 15
s2RB, s2CB, sCH, sUB, sAB, sD, sW2 = 18, 19, 20, 21, 22, 23, 28
sWB, sHF, sCHL, sHO = 29, 68, 69, 70
R_WD, R_O, R_H, R_W2 = R_A, R_B, 92, 88
vLB, vPOLL = 1, 21


def wg_map(a):
    a(f"""
    s_and_b32 s{sT0}, s2, 7
    s_lshr_b32 s{sT1}, s2, 3
    s_mul_i32 s{sRB}, s{sT1}, 37
    s_lshr_b32 s{sRB}, s{sRB}, 8
    s_mul_i32 s{sCB}, s{sRB}, 7
    s_sub_u32 s{sCB}, s{sT1}, s{sCB}
    s_mov_b32 s{sXO}, s{sCB}
    s_lshl_b32 s{sWO}, s{sT0}, 2
    s_add_u32 s{sWO}, s{sWO}, s{sRB}
    s_and_b32 s{sT1}, s{sT0}, 3
    s_lshl_b32 s{sT1}, s{sT1}, 2
    s_add_u32 s{sRB}, s{sRB}, s{sT1}
    s_lshr_b32 s{sT1}, s{sT0}, 2
    s_mul_i32 s{sT1}, s{sT1}, 7
    s_add_u32 s{sCB}, s{sCB}, s{sT1}
    s_and_b32 s{sCQ}, s3, 3
    v_lshlrev_b32 v{vLB}, 4, v{vL}
    v_mov_b32 v{vZ}, 0
    """)


def lds_wait_flag(a, vaddr, off, vtmp, name):
    L, Lok = newlabel(name), newlabel(name + "OK")
    a(f"s_mov_b32 s{sSP}, 0")
    a.label(L)
    a(f"""
    ds_read_b32 v{vtmp}, v{vaddr} offset:{off}
    s_add_u32 s{sSP}, s{sSP}, 1
    s_cmp_gt_u32 s{sSP}, 0x100000
    s_cbranch_scc1 {Lok}
    s_waitcnt lgkmcnt(0)
    v_cmp_eq_u32 vcc, v{vONE}, v{vtmp}
    s_nop 3
    s_cmp_eq_u64 vcc, exec
    s_cbranch_scc0 {L}
    """)
    a.label(Lok)
    a("s_waitcnt lgkmcnt(0)")


def gpoll(a, vaddr, name, first_loaded):
    L, Lok = newlabel(name), newlabel(name + "OK")
    a(f"s_mov_b32 s{sSP}, 0")
    if not first_loaded:
        a(f"buffer_load_dword v{vPOLL}, v{vaddr}, {sr(R_WS,4)}, 0 offen sc1")
        a("s_waitcnt vmcnt(0)")
    a.label(L)
    a(f"""
    v_cmp_eq_u32 vcc, v{vONE}, v{vPOLL}
    s_add_u32 s{sSP}, s{sSP}, 1
    s_cmp_gt_u32 s{sSP}, 0x10000
    s_cbranch_scc1 {Lok}
    s_cmp_eq_u64 vcc, exec
    s_cbranch_scc1 {Lok}
    buffer_load_dword v{vPOLL}, v{vaddr}, {sr(R_WS,4)}, 0 offen sc1
    s_waitcnt vmcnt(0)
    s_branch {L}
    """)
    a.label(Lok)


def role_g(a):
    vXA, vWA = 3, 7
    vXR, vWR0, vWR1 = 9, 10, 11
    t = 12
    vWD, vHO, vRA0 = 0, 19, 22
    vSA0, vSA1, vHS = 24, 25, 26
    vFR = 28
    vACC = 76
    vCS, vSTAT, vR2 = 204, 236, 244
    a(f"""
    s_waitcnt lgkmcnt(0)
    s_mov_b32 s{s2CB}, s{sXO}
    s_mov_b32 s{s2RB}, s{sWO}
    v_and_b32 v{t}, 31, v{vL}
    v_lshrrev_b32 v{t+1}, 5, v{vL}
    v_bfe_u32 v{t+2}, v{vL}, 1, 3
    v_xor_b32 v{t+2}, v{t+2}, v{t+1}
    v_lshlrev_b32 v{t+3}, 7, v{t}
    v_lshl_add_u32 v{vXA}, v{t+2}, 4, v{t+3}
    v_xor_b32 v{vXA+1}, 32, v{vXA}
    v_xor_b32 v{vXA+2}, 64, v{vXA}
    v_xor_b32 v{vXA+3}, 96, v{vXA}
    s_lshl_b32 s{sT0}, s{sRB}, 7
    v_add_u32 v{t}, s{sT0}, v{t}
    v_lshlrev_b32 v{t}, 3, v{t}
    v_add_u32 v{vSA0}, {WS_STATS}, v{t}
    s_lshl_b32 s{sT0}, s{sCB}, 3
    s_lshl_b32 s{sT1}, s{sCQ}, 1
    s_add_u32 s{sT0}, s{sT0}, s{sT1}
    s_lshl_b32 s{sT1}, s{sT0}, 7
    s_add_u32 s{sT1}, s{sT1}, {WS_CS}
    v_lshl_add_u32 v{vSA1}, v{t+1}, 4, s{sT1}
    s_lshl_b32 s{sT1}, s{sRB}, 9
    s_add_u32 s{sT0}, s{sT0}, s{sT1}
    s_lshl_b32 s{sT0}, s{sT0}, 10
    v_add_u32 v{vHS}, s{sT0}, v{vLB}
    v_bfe_u32 v{t}, v{vL}, 4, 1
    v_bfe_u32 v{t+2}, v{vL}, 2, 2
    v_bfe_u32 v{t+3}, v{vL}, 1, 1
    s_lshl_b32 s{sT0}, s{sCQ}, 2
    v_or_b32 v{t+3}, s{sT0}, v{t+3}
    v_lshlrev_b32 v{t+4}, 2, v{t+2}
    v_xor_b32 v{t+3}, v{t+3}, v{t+4}
    v_lshlrev_b32 v{t+4}, 1, v{t}
    v_xor_b32 v{t+3}, v{t+3}, v{t+4}
    v_lshlrev_b32 v{t+3}, 4, v{t+3}
    v_and_b32 v{t+4}, 1, v{vL}
    v_lshl_add_u32 v{t+3}, v{t+4}, 3, v{t+3}
    v_lshl_add_u32 v{t+2}, v{t+1}, 3, v{t+2}
    v_lshl_add_u32 v{t+3}, v{t+2}, 8, v{t+3}
    v_add_u32 v{t}, 1, v{t}
    v_lshl_add_u32 v{vWA}, v{t}, 14, v{t+3}
    v_xor_b32 v{vWA+1}, 32, v{vWA}
    s_mul_i32 s{sE}, s{sRB}, 56
    s_lshl_b32 s{sT0}, s{sCB}, 2
    s_add_u32 s{sE}, s{sE}, s{sT0}
    s_add_u32 s{sE}, s{sE}, s{sCQ}
    s_lshl_b32 s{sE}, s{sE}, 7
    s_add_u32 s{sE}, s{sE}, {WS_FLH}
    s_lshl_b32 s{sWB}, s{sCQ}, 12
    s_lshl_b32 s{sT0}, s{s2RB}, 8
    s_mul_i32 s{sT1}, s{sCQ}, 28
    s_add_u32 s{sT0}, s{sT0}, s{sT1}
    s_lshl_b32 s{sT0}, s{sT0}, 10
    v_add_u32 v{vHO}, s{sT0}, v{vLB}
    v_lshrrev_b32 v{t}, 3, v{vL}
    s_mul_i32 s{sT0}, s{sCQ}, 448
    v_add_u32 v{t}, s{sT0}, v{t}
    v_mul_u32_u24 v{t}, 896, v{t}
    v_bfe_u32 v{t+1}, v{vL}, 4, 1
    v_lshlrev_b32 v{t+1}, 2, v{t+1}
    v_and_b32 v{t+2}, 7, v{vL}
    v_xor_b32 v{t+1}, v{t+1}, v{t+2}
    v_lshl_add_u32 v{vWD}, v{t+1}, 4, v{t}
    s_lshl_b32 s{sT0}, s{s2CB}, 7
    v_add_u32 v{vWD}, s{sT0}, v{vWD}
    v_lshrrev_b32 v{t}, 5, v{vL}
    v_bfe_u32 v{t+1}, v{vL}, 2, 2
    v_lshl_add_u32 v{t}, v{t}, 2, v{t+1}
    v_bfe_u32 v{t+2}, v{vL}, 4, 1
    v_bfe_u32 v{t+3}, v{vL}, 1, 1
    v_lshl_add_u32 v{t+2}, v{t+2}, 1, v{t+3}
    v_bfe_u32 v{t+3}, v{vL}, 3, 1
    v_lshl_add_u32 v{t+2}, v{t+3}, 2, v{t+2}
    v_lshlrev_b32 v{t+2}, 4, v{t+2}
    v_and_b32 v{t+3}, 1, v{vL}
    v_lshl_add_u32 v{t+2}, v{t+3}, 3, v{t+2}
    v_lshl_add_u32 v{t+2}, v{t}, 7, v{t+2}
    v_add_u32 v{vRA0}, s{sWB}, v{t+2}
    s_waitcnt lgkmcnt(0)
    """)
    srd(a, R_X, S_X, SZ_X)
    srd(a, R_WS, S_WS, WS_END)
    srd(a, R_WD, S_WD, SZ_W)
    srd(a, R_O, S_OUT, SZ_X)

    def fx(s_, nt):
        return vFR + 24 * s_ + 4 * nt

    def fw(s_, mt):
        return vFR + 24 * s_ + 16 + 4 * mt

    def read_ops(st, p, s_):
        slot = (st % 3) * SLOT
        ops = []
        pre = []
        if p == 0:
            pre.append(f"v_add_u32 v{vWR0}, {slot}, v{vWA}")
            pre.append(f"v_add_u32 v{vWR1}, {slot}, v{vWA+1}")
        pre.append(f"v_add_u32 v{vXR}, {slot}, v{vXA+p}")
        ops.append(pre + [f"ds_read_b64_tr_b16 {vr(fw(s_,0),2)}, v{vWR0} offset:{4096*p}"])
        ops.append([f"ds_read_b64_tr_b16 {vr(fw(s_,0)+2,2)}, v{vWR0} offset:{4096*p+1024}"])
        for nt in range(4):
            ops.append([f"ds_read_b128 {vr(fx(s_,nt),4)}, v{vXR} offset:{4096*nt}"])
        ops.append([f"ds_read_b64_tr_b16 {vr(fw(s_,1),2)}, v{vWR1} offset:{4096*p}"])
        ops.append([f"ds_read_b64_tr_b16 {vr(fw(s_,1)+2,2)}, v{vWR1} offset:{4096*p+1024}"])
        return ops

    def wdma(r, s_, ent):
        for j in range(4):
            r(f"s_mov_b32 s{sW2}, {(32*s_ + 8*j)*896}")
            r(f"s_add_u32 m0, s{sWB}, {ent + j*1024}")
            r("s_nop 0")
            r.vmem(f"buffer_load_dwordx4 v{vWD}, {sr(R_WD,4)}, s{sW2} offen lds", f"W{s_}")

    def stat_loads(r):
        for nt in range(4):
            r.vmem(f"buffer_load_dwordx2 {vr(vSTAT+2*nt,2)}, v{vSA0}, {sr(R_WS,4)}, 0 offen offset:{256*nt} sc1", "ST")
        for i in range(8):
            r.vmem(f"buffer_load_dwordx4 {vr(vCS+4*i,4)}, v{vSA1}, {sr(R_WS,4)}, 0 offen offset:{32*i} sc1", "ST")

    def tag_read(r):
        r(f"v_mov_b32 v{t}, {USCR+8192}")
        r(f"ds_read_b32 v{vONE}, v{t}")

    WD = lambda s_: (lambda r: wdma(r, s_, WENT[s_]))
    plan = {0: [tag_read], 1: [], 2: [WD(6)], 3: [], 4: [WD(0), WD(1), WD(2)], 5: [stat_loads, WD(3), WD(4), WD(5)], 6: []}
    a("s_barrier")
    a.stamp()
    for ops in read_ops(0, 0, 0):
        for o in ops:
            a(o)
    cur = 0
    fill = []
    order = [(0, 0), (0, 1), (0, 2), (0, 3), (1, 3), (1, 2), (1, 1), (1, 0)]
    for st in range(7):
        for p in range(4):
            a("s_waitcnt lgkmcnt(0)")
            nxt = []
            if p == 3:
                assert not fill
                a("s_barrier")
                if st < 6:
                    nxt = read_ops(st + 1, 0, cur ^ 1)
                fill = explode(a, plan[st])
            else:
                nxt = read_ops(st, p + 1, cur ^ 1)
            slots = 8 * (3 - p) if p < 3 else 32
            for k, (mt, nt) in enumerate(order):
                acc = vACC + 16 * (4 * mt + nt)
                c = "0" if (st == 0 and p == 0) else vr(acc, 16)
                a(f"v_mfma_f32_32x32x16_bf16 {vr(acc,16)}, {vr(fw(cur,mt),4)}, {vr(fx(cur,nt),4)}, {c}")
                for _ in range(2):
                    if nxt:
                        for o in nxt.pop(0):
                            a(o)
                tot = sum(c_ for c_, _ in fill)
                budget = tot / max(1, slots - k)
                used = 0
                while fill and used < budget - 1e-9:
                    c_, e = fill.pop(0)
                    e()
                    used += c_
            cur ^= 1
            if p == 3 and (st in (3, 6) or STM):
                a.stamp()
    a.vm_wait("ST")
    for nt in range(4):
        a(f"v_mul_f32 v{vR2+2*nt}, v{vSTAT+2*nt+1}, v{vSTAT+2*nt+1}")
    for nt in range(1, 4):
        a(f"s_mov_b32 s{sM0X+nt-1}, {nt*128*1024}")
    a("s_nop 4")
    vH = 28
    k = 0
    for nt in range(4):
        for mt in range(2):
            acc = vACC + 16 * (4 * mt + nt)
            cs = vCS + 16 * mt
            m = vSTAT + 2 * nt
            for i in range(8):
                a(f"v_pk_fma_f32 {vr(acc+2*i,2)}, {vr(m,2)}, {vr(cs+2*i,2)}, {vr(acc+2*i,2)} op_sel_hi:[0,1,1] neg_lo:[1,0,0] neg_hi:[1,0,0]")
            for i in range(8):
                a(f"v_max_f32 v{acc+i}, 0, v{acc+i}")
            for i in range(4):
                a(f"v_pk_mul_f32 {vr(acc+8+2*i,2)}, {vr(acc+8+2*i,2)}, {vr(vR2+2*nt,2)} op_sel_hi:[1,0]")
            for i in range(4):
                a(f"v_pk_mul_f32 {vr(acc+2*i,2)}, {vr(acc+2*i,2)}, {vr(acc+8+2*i,2)}")
            o = vH + 4 * k
            for i in range(4):
                a(f"v_cvt_pk_bf16_f32 v{o+i}, v{acc+2*i}, v{acc+2*i+1}")
            so = "0" if nt == 0 else f"s{sM0X+nt-1}"
            a.vmem(f"buffer_store_dwordx4 {vr(o,4)}, v{vHS}, {sr(R_WS,4)}, {so} offen offset:{mt*1024} sc1", "HS")
            k += 1
    a.stamp()
    vA2 = 192
    WR = [60 + 16 * i for i in range(4)]
    HR = [124 + 16 * i for i in range(4)] + [28, 44]
    NHR = len(HR)
    vRB0, vRB1, vH1, vFA = 3, 4, 5, 6
    vXO, vF_, vTG, vTW, vTR, vRW, vRR = 7, 8, 9, 10, 11, 24, 25
    ENT = {s_: WENT[s_ % 7] for s_ in range(14)}

    def trreads(s_, dst):
        a(f"v_add_u32 v{vRB0}, {ENT[s_]}, v{vRA0}")
        a(f"v_xor_b32 v{vRB1}, 64, v{vRB0}")
        for tt in range(2):
            for Td in range(2):
                for hf in range(2):
                    a(f"ds_read_b64_tr_b16 {vr(dst+8*tt+4*Td+2*hf,2)}, v{vRB1 if Td else vRB0} offset:{tt*2048+hf*1024}")

    a(f"""
    v_add_u32 v{vH1}, {128*1024}, v{vHO}
    s_lshr_b32 s{sT0}, s{s2RB}, 1
    s_mul_i32 s{sT0}, s{sT0}, 56
    s_mul_i32 s{sT1}, s{sCQ}, 14
    s_add_u32 s{sT0}, s{sT0}, s{sT1}
    s_lshl_b32 s{sT0}, s{sT0}, 7
    s_add_u32 s{sT0}, s{sT0}, {WS_FLH}
    v_min_u32 v{vFA}, 13, v{vL}
    v_lshl_add_u32 v{vFA}, v{vFA}, 7, s{sT0}
    """)
    for s_ in range(4):
        a.vm_wait(f"W{s_}")
        trreads(s_, WR[s_])
    a("s_waitcnt lgkmcnt(0)")
    for s_ in range(7, 11):
        wdma(a, s_, ENT[s_])
    a.vm_wait("HS")
    a("s_mov_b64 exec, 1")
    a.vmem(f"buffer_store_dword v{vONE}, v{vZ}, {sr(R_WS,4)}, s{sE} offen sc1", "HF")
    a("s_mov_b64 exec, -1")
    a.stamp()
    a(f"""
    s_and_b32 s{sHF}, s3, 1
    s_lshr_b32 s{sCHL}, s3, 1
    s_lshl_b32 s{sT0}, s{s2RB}, 6
    s_lshl_b32 s{sT1}, s{sCHL}, 5
    s_add_u32 s{sT0}, s{sT0}, s{sT1}
    v_and_b32 v{t}, 31, v{vL}
    v_add_u32 v{t+1}, s{sT0}, v{t}
    v_lshlrev_b32 v{t+2}, 3, v{t+1}
    v_add_u32 v{t+2}, {WS_STATS}, v{t+2}
    v_mul_u32_u24 v{vXO}, 896, v{t+1}
    v_lshrrev_b32 v{t+3}, 5, v{vL}
    v_lshl_add_u32 v{vXO}, v{t+3}, 3, v{vXO}
    s_lshl_b32 s{sXO}, s{s2CB}, 6
    s_lshl_b32 s{sT1}, s{sHF}, 5
    s_add_u32 s{sXO}, s{sXO}, s{sT1}
    s_lshl_b32 s{sT1}, s{sXO}, 1
    v_add_u32 v{vXO}, s{sT1}, v{vXO}
    s_lshl_b32 s{sWO}, s{sT0}, 1
    s_add_u32 s{sWO}, s{sWO}, {WS_T}
    s_add_u32 s{sTMP}, s{sWO}, {16*4096}
    s_lshr_b32 s{sT0}, s{s2RB}, 4
    s_mul_i32 s{sT0}, s{sT0}, 448
    s_add_u32 s{sT0}, s{sT0}, s{sXO}
    s_lshl_b32 s{sT0}, s{sT0}, 7
    s_add_u32 s{sT0}, s{sT0}, {WS_FLT}
    v_lshl_add_u32 v{vF_}, v{t}, 7, s{sT0}
    v_lshrrev_b32 v{t}, 2, v{vL}
    v_add_u32 v{t}, s{sXO}, v{t}
    v_lshlrev_b32 v{t}, 12, v{t}
    v_and_b32 v{t+1}, 3, v{vL}
    v_lshl_add_u32 v{vTG}, v{t+1}, 4, v{t}
    s_add_u32 s{sT1}, s{sWB}, {WENT[4]}
    v_add_u32 v{vTW}, s{sT1}, v{vLB}
    v_bfe_u32 v{t}, v{vL}, 2, 2
    v_lshl_add_u32 v{t}, v{t+3}, 2, v{t}
    v_lshlrev_b32 v{t}, 6, v{t}
    v_bfe_u32 v{t+4}, v{vL}, 4, 1
    v_lshl_add_u32 v{t}, v{t+4}, 5, v{t}
    v_lshl_add_u32 v{t}, v{t+1}, 3, v{t}
    v_add_u32 v{vTR}, s{sT1}, v{t}
    s_add_u32 s{sT1}, s{sWB}, {WENT[0]}
    v_add_u32 v{vRW}, s{sT1}, v{vLB}
    s_lshl_b32 s{sT1}, s3, 14
    s_add_u32 s{sT1}, s{sT1}, {WENT[0]}
    v_add_u32 v{vRR}, s{sT1}, v{vLB}
    v_mov_b32 v{t+5}, {L_FLAG + 64}
    """)
    gpoll(a, vFA, "GH", False)
    a.vm = []
    a.stamp()

    def hloads(s_):
        r = HR[s_ % NHR]
        a(f"s_mov_b32 s{sHO}, {2048*s_}")
        for tt in range(2):
            for nt in range(2):
                a.vmem(f"buffer_load_dwordx4 {vr(r+8*tt+4*nt,4)}, v{vH1 if nt else vHO}, {sr(R_WS,4)}, s{sHO} offen offset:{1024*tt} sc1", f"H{s_}")

    for s_ in range(NHR):
        hloads(s_)
    vXV, vST2 = 188, 26
    for s_ in range(14):
        wreg = WR[s_ % 4]
        a.vm_wait(f"H{s_}")
        if s_ >= 4:
            a(f"s_waitcnt lgkmcnt({min(15, 8*min(3, 13 - s_))})")
        for tt in range(2):
            for Td in range(2):
                for nt in range(2):
                    acc = vA2 + 32 * nt + 16 * Td
                    c = "0" if (s_ == 0 and tt == 0) else vr(acc, 16)
                    a(f"v_mfma_f32_32x32x16_bf16 {vr(acc,16)}, {vr(wreg+8*tt+4*Td,4)}, {vr(HR[s_%NHR]+8*tt+4*nt,4)}, {c}")
        if s_ + NHR < 14:
            hloads(s_ + NHR)
        sn = s_ + 4
        if sn < 14:
            a.vm_wait(f"W{sn}")
            trreads(sn, wreg)
            if sn + 7 < 14:
                a("s_waitcnt lgkmcnt(0)")
                wdma(a, sn + 7, ENT[sn + 7])
        if s_ == 8:
            a.vmem(f"buffer_load_dwordx2 {vr(vST2,2)}, v{t+2}, {sr(R_WS,4)}, 0 offen sc1", "XV")
        if s_ == 10:
            a.vmem(f"buffer_load_dword v{vPOLL}, v{vF_}, {sr(R_WS,4)}, 0 offen sc1", "PT")
    a.stamp()
    vXV = 28
    for i in range(4):
        a.vmem(f"buffer_load_dwordx2 {vr(vXV+2*i,2)}, v{vXO}, {sr(R_X,4)}, 0 offen offset:{16*i}", "XV")
    a.vm_wait("PT")
    gpoll(a, vF_, "GT", True)
    vTT, vTD = 36, 44
    a(f"buffer_load_dwordx4 {vr(vTT,4)}, v{vTG}, {sr(R_WS,4)}, s{sWO} offen sc1")
    a(f"buffer_load_dwordx4 {vr(vTT+4,4)}, v{vTG}, {sr(R_WS,4)}, s{sTMP} offen sc1")
    a.stamp()
    for tau in range(4):
        for q in range(4):
            a(f"ds_write_b128 v{vRW}, {vr(vA2+16*tau+4*q,4)} offset:{tau*16384+q*1024}")
    a(f"s_lshl_b32 s{sT0}, s3, 2")
    a(f"v_add_u32 v{t+6}, s{sT0}, v{t+5}")
    a(f"v_and_b32 v{t+4}, 3, v{vL}")
    a(f"v_lshl_add_u32 v{t+4}, v{t+4}, 2, v{t+5}")
    a("s_waitcnt lgkmcnt(0)")
    a(f"ds_write_b32 v{t+6}, v{vONE}")
    vX, vXN, vP, vE, vS = 52, 68, 84, 148, 164
    a("s_waitcnt vmcnt(2)")
    for i in range(8):
        a(f"v_lshlrev_b32 v{vX+2*i}, 16, v{vXV+i}")
        a(f"v_and_b32 v{vX+2*i+1}, 0xffff0000, v{vXV+i}")
    for i in range(16):
        a(f"v_sub_f32 v{vXN+i}, v{vX+i}, v{vST2}")
    for i in range(8):
        round_pair(a, vXN + 2 * i, vXN + 2 * i + 1)
    for i in range(16):
        a(f"v_mul_f32 v{vXN+i}, v{vXN+i}, v{vST2+1}")
    for i in range(8):
        round_pair(a, vXN + 2 * i, vXN + 2 * i + 1)
    a("s_waitcnt vmcnt(0)")
    a(f"ds_write_b128 v{vTW}, {vr(vTT,4)}")
    a(f"ds_write_b128 v{vTW}, {vr(vTT+4,4)} offset:1024")
    lds_wait_flag(a, t + 4, 0, t + 3, "GR")
    for i in range(4):
        a(f"ds_read_b64_tr_b16 {vr(vTD+2*i,2)}, v{vTR} offset:{512*i}")
    for src in range(4):
        for q in range(4):
            a(f"ds_read_b128 {vr(vP+16*src+4*q,4)}, v{vRR} offset:{src*4096+q*1024}")
    a("s_waitcnt lgkmcnt(15)")
    for i in range(8):
        a(f"v_lshlrev_b32 v{vS+2*i}, 16, v{vTD+i}")
        a(f"v_and_b32 v{vS+2*i+1}, 0xffff0000, v{vTD+i}")
    for i in range(8):
        a(f"v_pk_mul_f32 {vr(vS+2*i,2)}, {vr(vS+2*i,2)}, {vr(vXN+2*i,2)}")
    for i in range(8):
        round_pair(a, vS + 2 * i, vS + 2 * i + 1)
    a("s_waitcnt lgkmcnt(0)")
    for i in range(8):
        a(f"v_pk_add_f32 {vr(vP+2*i,2)}, {vr(vP+2*i,2)}, {vr(vP+16+2*i,2)}")
        a(f"v_pk_add_f32 {vr(vP+32+2*i,2)}, {vr(vP+32+2*i,2)}, {vr(vP+48+2*i,2)}")
    for i in range(8):
        a(f"v_pk_add_f32 {vr(vP+2*i,2)}, {vr(vP+2*i,2)}, {vr(vP+32+2*i,2)}")
    for i in range(8):
        round_pair(a, vP + 2 * i, vP + 2 * i + 1)
    a(f"s_mov_b32 s{sW2}, {f32bits(-1.4426950408889634)}")
    for i in range(16):
        a(f"v_mul_f32 v{vE+i}, s{sW2}, v{vP+i}")
    for i in range(16):
        a(f"v_exp_f32 v{vE+i}, v{vE+i}")
    for i in range(16):
        a(f"v_add_f32 v{vE+i}, 1.0, v{vE+i}")
    for i in range(16):
        a(f"v_rcp_f32 v{vE+i}, v{vE+i}")
    a("s_nop 0")
    for i in range(8):
        a(f"v_pk_mul_f32 {vr(vP+2*i,2)}, {vr(vP+2*i,2)}, {vr(vE+2*i,2)}")
    for i in range(8):
        round_pair(a, vP + 2 * i, vP + 2 * i + 1)
    for i in range(8):
        a(f"v_pk_mul_f32 {vr(vS+2*i,2)}, {vr(vS+2*i,2)}, {vr(vP+2*i,2)}")
    for i in range(8):
        round_pair(a, vS + 2 * i, vS + 2 * i + 1)
    for i in range(8):
        a(f"v_pk_add_f32 {vr(vS+2*i,2)}, {vr(vS+2*i,2)}, {vr(vX+2*i,2)}")
    for i in range(8):
        a(f"v_cvt_pk_bf16_f32 v{vTT+i}, v{vS+2*i}, v{vS+2*i+1}")
    for i in range(4):
        a(f"buffer_store_dwordx2 {vr(vTT+2*i,2)}, v{vXO}, {sr(R_O,4)}, 0 offen offset:{16*i}")
    if PROF:
        a("s_waitcnt vmcnt(0)")
    a.stamp()
    a.stamp_flush()
    a("s_endpgm")


def role_b(a):
    R_K, R_V, R_SH = 76, 80, 84
    vXG0, vXG1, vWG = 3, 4, 5
    t = 6
    uA = 24
    uK, uV, uW, uX = 32, 43, 52, 56
    uKU, uWU, uAC, uVU, uO, uS = 64, 86, 94, 110, 112, 120
    vD, vU, vBLD = 144, 168, 176
    vAA, vBA, vKA, vTA, vEXW, vEXR, vFL, vWM, vWX, vWZ, vWP, vPA, vKVA = range(216, 229)
    a(f"""
    v_lshrrev_b32 v{t}, 3, v{vL}
    v_lshrrev_b32 v{t+1}, 4, v{vL}
    v_and_b32 v{t+2}, 7, v{vL}
    s_lshl_b32 s{sT0}, s{sRB}, 7
    s_lshl_b32 s{sT1}, s{sCQ}, 5
    s_add_u32 s{sT0}, s{sT0}, s{sT1}
    v_add_u32 v{t}, s{sT0}, v{t}
    v_mul_u32_u24 v{t}, 896, v{t}
    v_xor_b32 v{t+3}, v{t+2}, v{t+1}
    v_lshl_add_u32 v{vXG0}, v{t+3}, 4, v{t}
    v_xor_b32 v{t+3}, 4, v{t+3}
    v_lshl_add_u32 v{vXG1}, v{t+3}, 4, v{t}
    v_add_u32 v{vXG1}, {8*896}, v{vXG1}
    s_lshr_b32 s{sCHL}, s{sCQ}, 1
    s_and_b32 s{sHF}, s{sCQ}, 1
    v_and_b32 v{t+2}, 15, v{vL}
    v_lshlrev_b32 v{t+3}, 2, v{t+1}
    v_xor_b32 v{t+2}, v{t+2}, v{t+3}
    s_lshl_b32 s{sT0}, s{sCHL}, 1
    v_xor_b32 v{t+2}, s{sT0}, v{t+2}
    s_lshl_b32 s{sT1}, s{sHF}, 5
    v_add_u32 v{t+3}, s{sT1}, v{t+1}
    v_mul_u32_u24 v{t+3}, 3584, v{t+3}
    v_lshl_add_u32 v{vWG}, v{t+2}, 4, v{t+3}
    s_lshl_b32 s{sT0}, s{sCB}, 8
    v_add_u32 v{vWG}, s{sT0}, v{vWG}
    s_lshl_b32 s{sM0X}, s{sCQ}, 12
    s_lshl_b32 s{sM0W}, s{sCQ}, 13
    s_add_u32 s{sM0W}, s{sM0W}, 16384
    s_mov_b32 s{sE}, s{sWO}
    s_waitcnt lgkmcnt(0)
    """)
    srd(a, R_X, S_X, SZ_X)
    a(f"""
    s_cmp_eq_u32 s{sCHL}, 0
    s_cselect_b32 s{R_W}, s{S_WG}, s{S_WU}
    s_cselect_b32 s{R_W+1}, s{S_WG+1}, s{S_WU+1}
    s_and_b32 s{R_W+1}, s{R_W+1}, 0xffff
    s_mov_b32 s{R_W+2}, {SZ_W}
    s_mov_b32 s{R_W+3}, 0x20000
    """)

    def dma(st):
        slot = (st % 3) * SLOT
        for j in range(8):
            a(f"s_mov_b32 s{sWO}, {st*64*3584 + j*4*3584}")
            a(f"s_add_u32 m0, s{sM0W}, {slot+1024*j}")
            a("s_nop 0")
            a.vmem(f"buffer_load_dwordx4 v{vWG}, {sr(R_W,4)}, s{sWO} offen lds", f"A{st}")
            if j % 2 == 1:
                i = j // 2
                a(f"s_mov_b32 s{sXO}, {st*128 + (i//2)*16*896}")
                a(f"s_add_u32 m0, s{sM0X}, {slot+1024*i}")
                a("s_nop 0")
                a.vmem(f"buffer_load_dwordx4 v{vXG1 if i%2 else vXG0}, {sr(R_X,4)}, s{sXO} offen lds", f"A{st}")

    dma(0)
    srd(a, R_K, S_K, SZ_X)
    srd(a, R_V, S_V, SZ_X)
    srd(a, R_SH, S_SHK, SZ_SHK)
    srd(a, R_WS, S_WS, WS_END)
    srd(a, R_DBG, S_DBG, 256)
    a(f"""
    v_cmp_le_u32 vcc, 28, v{vL}
    v_mov_b32 v{uA+4}, 0x7f000000
    s_and_b32 s{sT0}, s2, 7
    v_cndmask_b32 v{uA}, 0, 1, vcc
    v_mul_u32_u24 v{uA+1}, 28, v{uA}
    v_sub_u32 v{uA+1}, v{vL}, v{uA+1}
    s_and_b32 s{sT1}, s2, 0xf8
    s_lshl_b32 s{sTMP}, s{sCQ}, 1
    s_add_u32 s{sT1}, s{sT1}, s{sTMP}
    s_mul_i32 s{sT1}, s{sT1}, {8*896}
    s_mul_i32 s{sT0}, s{sT0}, 112
    s_add_u32 s{sT1}, s{sT1}, s{sT0}
    v_mul_u32_u24 v{uA+2}, {8*896}, v{uA}
    v_lshl_add_u32 v{uA+2}, v{uA+1}, 2, v{uA+2}
    v_add_u32 v{uA+2}, s{sT1}, v{uA+2}
    v_cmp_le_u32 vcc, 56, v{vL}
    v_subrev_u32 v{uA+3}, {3*896}, v{uA+2}
    s_lshl_b32 s{sT0}, s{sT0}, 2
    v_cndmask_b32 v{uA+2}, v{uA+2}, v{uA+4}, vcc
    v_cndmask_b32 v{uA+3}, v{uA+3}, v{uA+4}, vcc
    v_lshl_add_u32 v{uA+5}, v{uA+1}, 4, s{sT0}
    s_lshl_b32 s{sT0}, s2, 3
    s_add_u32 s{sT0}, s{sT0}, s{sTMP}
    s_mul_i32 s{sT0}, s{sT0}, 896
    v_add_u32 v{t}, s{sT0}, v{vLB}
    v_cndmask_b32 v{t}, v{t}, v{uA+4}, vcc
    s_mov_b32 s{sT1}, {4*896}
    """)
    a.vmem(f"buffer_load_dwordx4 {vr(uW,4)}, v{uA+5}, {sr(R_SH,4)}, 0 offen", "UK")
    for i in range(3):
        a.vmem(f"buffer_load_dword v{uK+i}, v{uA+3}, {sr(R_K,4)}, 0 offen offset:{896*i}", "UK")
    for i in range(8):
        a.vmem(f"buffer_load_dword v{uK+3+i}, v{uA+2}, {sr(R_K,4)}, {'0' if i<4 else 's%d'%sT1} offen offset:{896*(i&3)}", "UK")
    for i in range(8):
        a.vmem(f"buffer_load_dword v{uV+i}, v{uA+2}, {sr(R_V,4)}, {'0' if i<4 else 's%d'%sT1} offen offset:{896*(i&3)}", "UK")
    for i in range(2):
        a.vmem(f"buffer_load_dwordx4 {vr(uX+4*i,4)}, v{t}, {sr(R_X,4)}, 0 offen offset:{896*i}", "UX")
    dma(1)
    a.vm_wait("A0")
    a("s_barrier")
    a.stamp()
    a(f"s_lshl_b32 s{sT0}, s{sCQ}, 12")
    a.vmem(f"buffer_load_dword v{vONE}, v{vZ}, {sr(R_DBG,4)}, s{sT0} offen sc1", "TAG")
    dma(2)

    def chunk_kv():
        a.vm_wait("UK")
        for r in range(11):
            a(f"v_lshlrev_b32 v{uKU+2*r}, 16, v{uK+r}")
            a(f"v_and_b32 v{uKU+2*r+1}, 0xffff0000, v{uK+r}")
        for h in range(2):
            a(f"v_lshlrev_b32 v{uWU+0+h}, 16, v{uW+2*h}")
            a(f"v_and_b32 v{uWU+2+h}, 0xffff0000, v{uW+2*h}")
            a(f"v_lshlrev_b32 v{uWU+4+h}, 16, v{uW+2*h+1}")
            a(f"v_and_b32 v{uWU+6+h}, 0xffff0000, v{uW+2*h+1}")
        w = lambda j: vr(uWU + 2 * j, 2)
        for r in range(8):
            ac = vr(uAC + 2 * r, 2)
            a(f"v_pk_mul_f32 {ac}, {vr(uKU+2*r,2)}, {w(3)}")
            a(f"v_pk_fma_f32 {ac}, {vr(uKU+2*(r+1),2)}, {w(2)}, {ac}")
            a(f"v_pk_fma_f32 {ac}, {vr(uKU+2*(r+2),2)}, {w(1)}, {ac}")
            a(f"v_pk_fma_f32 {ac}, {vr(uKU+2*(r+3),2)}, {w(0)}, {ac}")
            a(f"v_cvt_pk_bf16_f32 v{uAC+2*r+1}, v{uAC+2*r}, v{uAC+2*r+1}")
            a(f"v_lshlrev_b32 v{uVU}, 16, v{uV+r}")
            a(f"v_and_b32 v{uVU+1}, 0xffff0000, v{uV+r}")
            a(f"v_lshlrev_b32 v{uAC+2*r}, 16, v{uAC+2*r+1}")
            a(f"v_and_b32 v{uAC+2*r+1}, 0xffff0000, v{uAC+2*r+1}")
            a(f"v_pk_mul_f32 {ac}, {ac}, {vr(uVU,2)}")
        for h in range(2):
            for q in range(4):
                a(f"v_cvt_pk_bf16_f32 v{uO+4*h+q}, v{uAC+2*(7-2*q)+h}, v{uAC+2*(6-2*q)+h}")
        a(f"""
        v_lshlrev_b32 v{uA+2}, 8, v{uA+1}
        v_lshlrev_b32 v{uA+3}, 4, v{uA}
        v_sub_u32 v{uA+2}, v{uA+2}, v{uA+3}
        s_lshl_b32 s{sT0}, s{sCQ}, 5
        s_sub_u32 s{sT0}, {USCR + 7*16}, s{sT0}
        v_add_u32 v{uA+2}, s{sT0}, v{uA+2}
        s_mov_b32 exec_hi, 0xffffff
        ds_write_b128 v{uA+2}, {vr(uO,4)}
        ds_write_b128 v{uA+2}, {vr(uO+4,4)} offset:128
        s_mov_b64 exec, -1
        """)

    def tag_block():
        L, Lok, Lsk = newlabel("TB"), newlabel("TBOK"), newlabel("TBSK")
        a.vm_wait("TAG")
        a(f"s_cmp_lg_u32 s{sCQ}, 0")
        a(f"s_cbranch_scc1 {Lsk}")
        a(f"s_mov_b32 s{sSP}, 0")
        a.label(L)
        a(f"""
        v_readfirstlane_b32 s{sSP+1}, v{vONE}
        s_add_u32 s{sSP}, s{sSP}, 1
        s_cmp_gt_u32 s{sSP}, 0x4000
        s_cbranch_scc1 {Lok}
        s_cmp_lg_u32 s{sSP+1}, 0
        s_cbranch_scc1 {Lok}
        s_sleep 4
        buffer_load_dword v{vONE}, v{vZ}, {sr(R_DBG,4)}, 0 offen sc1
        s_waitcnt vmcnt(0)
        s_branch {L}
        """)
        a.label(Lok)
        a(f"v_mov_b32 v{t}, {USCR+8192}")
        a(f"ds_write_b32 v{t}, v{vONE}")
        a.label(Lsk)

    def chunk_store_stats():
        a(f"""
        v_mov_b32 v{t}, {USCR+8192}
        ds_read_b32 v{vONE}, v{t}
        s_mul_i32 s{sT0}, s{sCQ}, 1792
        s_add_u32 s{sT0}, s{sT0}, {USCR}
        v_add_u32 v{uA+2}, s{sT0}, v{vLB}
        ds_read_b128 {vr(uO,4)}, v{uA+2}
        ds_read_b128 {vr(uO+4,4)}, v{uA+2} offset:896
        v_lshrrev_b32 v{uA+2}, 3, v{vL}
        v_lshlrev_b32 v{uA+2}, 12, v{uA+2}
        v_and_b32 v{uA+3}, 7, v{vL}
        v_lshl_add_u32 v{uA+2}, v{uA+3}, 4, v{uA+2}
        s_and_b32 s{sT0}, s2, 7
        s_mul_i32 s{sT0}, s{sT0}, 56
        s_mul_i32 s{sT1}, s{sCQ}, 14
        s_add_u32 s{sT0}, s{sT0}, s{sT1}
        s_lshl_b32 s{sT0}, s{sT0}, 12
        s_lshr_b32 s{sT1}, s2, 3
        s_lshl_b32 s{sT1}, s{sT1}, 7
        s_sub_u32 s{sT0}, s{sT0}, s{sT1}
        s_add_u32 s{sT0}, s{sT0}, {WS_KVR + 3968}
        s_add_u32 s{sT1}, s{sT0}, {7*4096}
        s_waitcnt lgkmcnt(0)
        s_mov_b32 exec_hi, 0xffffff
        """)
        a.vmem(f"buffer_store_dwordx4 {vr(uO,4)}, v{uA+2}, {sr(R_WS,4)}, s{sT0} offen sc1", "US")
        a.vmem(f"buffer_store_dwordx4 {vr(uO+4,4)}, v{uA+2}, {sr(R_WS,4)}, s{sT1} offen sc1", "US")
        a("s_mov_b64 exec, -1")
        a.vm_wait("UX")
        for i in range(4):
            a(f"v_mov_b32 v{uS+i}, 0")
        a(f"v_mov_b32 v{uS+4}, 0x3f803f80")
        for i in range(4):
            for r in range(2):
                a(f"v_dot2c_f32_bf16 v{uS+2*r}, v{uX+4*r+i}, v{uS+4}")
                a(f"v_dot2c_f32_bf16 v{uS+2*r+1}, v{uX+4*r+i}, v{uX+4*r+i}")
        a("s_nop 2")
        for mode in ("quad_perm:[1,0,3,2]", "quad_perm:[2,3,0,1]", "row_half_mirror", "row_mirror"):
            for i in range(4):
                a(f"v_add_f32_dpp v{uS+i}, v{uS+i}, v{uS+i} {mode} row_mask:0xf bank_mask:0xf")
        for sw in ("v_permlane16_swap_b32", "v_permlane32_swap_b32"):
            for i in range(4):
                a(f"v_mov_b32 v{uS+4+i}, v{uS+i}")
            a("s_nop 1")
            for i in range(4):
                a(f"{sw} v{uS+i}, v{uS+4+i}")
            a("s_nop 1")
            for i in range(4):
                a(f"v_add_f32 v{uS+i}, v{uS+i}, v{uS+4+i}")
        a(f"s_mov_b32 s{sT0}, {f32bits(1.0/448.0)}")
        a(f"s_mov_b32 s{sT1}, {f32bits(1e-5)}")
        for r in range(2):
            m, q = uS + 2 * r, uS + 2 * r + 1
            a(f"""
            v_mul_f32 v{m}, s{sT0}, v{m}
            v_mul_f32 v{q}, s{sT0}, v{q}
            v_fma_f32 v{q}, -v{m}, v{m}, v{q}
            v_max_f32 v{q}, 0, v{q}
            v_cvt_pk_bf16_f32 v{q}, v{m}, v{q}
            v_lshlrev_b32 v{m}, 16, v{q}
            v_and_b32 v{q}, 0xffff0000, v{q}
            v_add_f32 v{q}, s{sT1}, v{q}
            v_cvt_pk_bf16_f32 v{q}, v{q}, v{q}
            v_and_b32 v{q}, 0xffff0000, v{q}
            v_sqrt_f32 v{q}, v{q}
            s_nop 0
            v_cvt_pk_bf16_f32 v{q}, v{q}, v{q}
            v_and_b32 v{q}, 0xffff0000, v{q}
            v_rcp_f32 v{q}, v{q}
            """)
        a(f"""
        s_lshl_b32 s{sT0}, s2, 2
        s_add_u32 s{sT0}, s{sT0}, s{sCQ}
        s_lshl_b32 s{sT0}, s{sT0}, 4
        s_add_u32 s{sT0}, s{sT0}, {WS_STATS}
        s_mov_b64 exec, 1
        """)
        a.vmem(f"buffer_store_dwordx4 {vr(uS,4)}, v{vZ}, {sr(R_WS,4)}, s{sT0} offen sc1", "US")
        a("s_mov_b64 exec, -1")

    def chunk_conv_setup():
        c = t
        a(f"""
        s_lshl_b32 s{sCH}, s2, 1
        s_add_u32 s{sCH}, s{sCH}, s{sCHL}
        s_mul_i32 s{sUB}, s{sCHL}, {8*CV_UP}
        s_add_u32 s{sUB}, s{sUB}, {CV_U}
        s_mul_i32 s{sAB}, s{sCHL}, {CV_A[1]}
        s_lshl_b32 s{sT0}, s{sCH}, 12
        s_add_u32 s{R_H}, s{S_SSMK}, s{sT0}
        s_addc_u32 s{R_H+1}, s{S_SSMK+1}, 0
        s_and_b32 s{R_H+1}, s{R_H+1}, 0xffff
        s_mov_b32 s{R_H+2}, 4096
        s_mov_b32 s{R_H+3}, 0x20000
        s_lshl_b32 s{sT1}, s2, 2
        s_load_dword s{sD}, {sr(S_SSMD,2)}, s{sT1}
        s_lshl_b32 s{sT1}, s{sHF}, 11
        v_add_u32 v{c+1}, s{sT1}, v{vLB}
        v_subrev_u32 v{c+2}, 64, v{vLB}
        v_subrev_u32 v{c+3}, 48, v{vLB}
        s_add_u32 s{sT0}, s{sT0}, {WS_KVR}
        v_add_u32 v{vKVA}, s{sT0}, v{c+1}
        """)
        a.vmem(f"buffer_load_dwordx4 {vr(vD,4)}, v{c+1}, {sr(R_H,4)}, 0 offen", "D")
        a.vmem(f"buffer_load_dwordx4 {vr(vD+4,4)}, v{c+1}, {sr(R_H,4)}, 0 offen offset:16", "D")
        a.vmem(f"buffer_load_dwordx4 {vr(vD+8,4)}, v{c+1}, {sr(R_H,4)}, 0 offen offset:1024", "D")
        a.vmem(f"buffer_load_dwordx4 {vr(vD+12,4)}, v{c+1}, {sr(R_H,4)}, 0 offen offset:1040", "D")
        a.vmem(f"buffer_load_dwordx4 {vr(vD+16,4)}, v{c+2}, {sr(R_H,4)}, 0 offen", "D")
        a.vmem(f"buffer_load_dwordx4 {vr(vD+20,4)}, v{c+3}, {sr(R_H,4)}, 0 offen", "D")
        a(f"""
        v_add_u32 v{vWM}, s{sAB}, v{c+1}
        v_add_u32 v{vWX}, s{sAB}, v{vLB}
        v_mov_b32 v{vBLD+36}, 0
        v_mov_b32 v{vBLD+37}, 0
        v_mov_b32 v{vBLD+38}, 0
        v_mov_b32 v{vBLD+39}, 0
        v_lshrrev_b32 v{c+4}, 4, v{vL}
        s_lshl_b32 s{sT0}, s{sHF}, 2
        v_add_u32 v{vWZ}, s{sT0}, v{c+4}
        v_mul_u32_u24 v{vWZ}, {CV_UP}, v{vWZ}
        v_and_b32 v{c}, 15, v{vL}
        v_lshl_add_u32 v{vWZ}, v{c}, 4, v{vWZ}
        v_add_u32 v{vWZ}, s{sUB}, v{vWZ}
        v_and_b32 v{vWP}, 7, v{vL}
        v_xor_b32 v{vWP}, 4, v{vWP}
        v_mul_u32_u24 v{vWP}, {CV_UP}, v{vWP}
        v_lshrrev_b32 v{c+5}, 3, v{vL}
        v_lshlrev_b32 v{c+5}, 4, v{c+5}
        v_sub_u32 v{vWP}, v{vWP}, v{c+5}
        s_lshl_b32 s{sT0}, s{sHF}, 8
        s_sub_u32 s{sT0}, s{sUB}, s{sT0}
        s_add_u32 s{sT0}, s{sT0}, {(47-8)*16}
        v_add_u32 v{vWP}, s{sT0}, v{vWP}
        v_mul_u32_u24 v{vBA}, {CV_UP}, v{c+4}
        v_lshl_add_u32 v{vBA}, v{c}, 4, v{vBA}
        v_add_u32 v{vBA}, s{sUB}, v{vBA}
        v_sub_u32 v{vKA}, 3, v{c+4}
        v_mul_u32_u24 v{vKA}, {CV_UP}, v{vKA}
        v_lshl_add_u32 v{vKA}, v{c}, 4, v{vKA}
        v_add_u32 v{vKA}, s{sUB}, v{vKA}
        v_lshlrev_b32 v{vTA}, 7, v{c}
        v_lshl_add_u32 v{vTA}, v{c+4}, 4, v{vTA}
        v_lshrrev_b32 v{c}, 2, v{c}
        v_add_u32 v{c}, v{c}, v{c+4}
        v_lshlrev_b32 v{c}, 4, v{c}
        v_add_u32 v{c}, s{sAB}, v{c}
        v_and_b32 v{c+4}, 3, v{vL}
        v_mul_u32_u24 v{vAA}, {CV_ST}, v{c+4}
        v_add_u32 v{vAA}, v{vAA}, v{c}
        s_lshl_b32 s{sT0}, s{sHF}, 12
        s_add_u32 s{sT1}, s{sT0}, s{sAB}
        v_add_u32 v{vEXW}, s{sT1}, v{vLB}
        s_xor_b32 s{sT0}, s{sT0}, 4096
        s_add_u32 s{sT1}, s{sT0}, s{sAB}
        v_add_u32 v{vEXR}, s{sT1}, v{vLB}
        s_lshl_b32 s{sT0}, s{sCHL}, 5
        s_add_u32 s{sT0}, s{sT0}, {L_FLAG}
        v_mov_b32 v{vFL}, s{sT0}
        s_lshl_b32 s{sT0}, s{sRB}, 4
        v_add_u32 v{c+2}, s{sT0}, v{vL}
        s_mul_i32 s{sT1}, s2, 2341
        s_lshr_b32 s{sT1}, s{sT1}, 16
        s_sub_u32 s{sT1}, s{sT1}, 128
        v_lshl_add_u32 v{c+3}, v{vL}, 3, s{sT1}
        v_cmp_le_u32 vcc, 16, v{vL}
        s_add_u32 s{sT1}, s{sCB}, {224 - 48*14}
        v_mul_u32_u24 v{c}, 14, v{vL}
        v_cndmask_b32 v{c+2}, v{c+2}, v{c+3}, vcc
        v_add_u32 v{c+3}, s{sT1}, v{c}
        v_cmp_le_u32 vcc, 48, v{vL}
        s_lshl_b32 s{sT1}, s{sE}, 3
        s_sub_u32 s{sT1}, s{sT1}, 50
        v_cndmask_b32 v{c+2}, v{c+2}, v{c+3}, vcc
        v_add_u32 v{c+3}, s{sT1}, v{vL}
        v_cmp_le_u32 vcc, 50, v{vL}
        v_mov_b32 v{c}, s{sT0}
        s_lshl_b32 s{sT1}, s{sCQ}, 24
        v_cndmask_b32 v{c+2}, v{c+2}, v{c+3}, vcc
        v_cmp_le_u32 vcc, 58, v{vL}
        s_add_u32 s{sT1}, s{sT1}, {WS_FLU}
        s_nop 0
        v_cndmask_b32 v{c+2}, v{c+2}, v{c}, vcc
        v_lshl_add_u32 v{vPA}, v{c+2}, 7, s{sT1}
        """)

    def signal():
        L = newlabel("NOSIG")
        a(f"""
        s_cmp_lg_u32 s{sCQ}, 0
        s_cbranch_scc1 {L}
        s_lshl_b32 s{sT0}, s2, 7
        s_add_u32 s{sT0}, s{sT0}, {WS_FLU}
        s_mov_b64 exec, 1
        buffer_store_dword v{vONE}, v{vZ}, {sr(R_WS,4)}, s{sT0} offen sc1
        s_mov_b64 exec, -1
        """)
        a.label(L)

    def chunk_build():
        a.vm_wait("D")
        for rnd in range(3):
            d, b = vD + 8 * rnd, vBLD + 12 * rnd
            for i in range(4):
                a(f"v_mov_b32 v{b+i}, v{d+1+i}")
            for i in range(4):
                a(f"v_alignbit_b32 v{b+4+i}, v{d+i+1}, v{d+i}, 16")
            for i in range(4):
                a(f"v_alignbit_b32 v{b+8+i}, v{d+i+2}, v{d+i+1}, 16")

    def poll_block():
        L = newlabel("NOPOLL")
        a(f"s_cmp_lg_u32 s{sCQ}, 0")
        a(f"s_cbranch_scc1 {L}")
        gpoll(a, vPA, "BP", False)
        a.label(L)

    for st in range(7):
        if st == 0:
            chunk_kv()
            tag_block()
        if st == 1:
            chunk_store_stats()
        if st == 2:
            chunk_conv_setup()
        if st == 3:
            signal()
        if st == 4:
            chunk_build()
        if st == 6:
            a.vmem(f"buffer_load_dwordx4 {vr(vU,4)}, v{vKVA}, {sr(R_WS,4)}, 0 offen sc1", "U")
            a.vmem(f"buffer_load_dwordx4 {vr(vU+4,4)}, v{vKVA}, {sr(R_WS,4)}, 0 offen offset:1024 sc1", "U")
        a("s_waitcnt lgkmcnt(0)")
        if st + 1 < 7:
            a.vm_wait(f"A{st+1}")
        if st == 2:
            a.vm_wait("US")
        if st == 5:
            poll_block()
        a("s_barrier")
        if st + 3 < 7:
            dma(st + 3)
        if st in (3, 6) or STM:
            a.stamp()
    for rnd in range(3):
        d, b = vD + 8 * rnd, vBLD + 12 * rnd
        if rnd == 2:
            a("s_mov_b64 exec, 15")
        srcs = [b + 4, b, b + 8, d + 2]
        for cc in range(4):
            a(f"ds_write_b128 v{vWX if rnd == 2 else vWM}, {vr(srcs[cc],4)} offset:{cc*CV_ST + (0 if rnd == 2 else 64 + 1024*rnd)}")
        if rnd == 2:
            a("s_mov_b64 exec, -1")
    a(f"ds_write_b128 v{vWZ}, {vr(vBLD+36,4)}")
    a.vm_wait("U")
    a(f"ds_write_b128 v{vWP}, {vr(vU,4)} offset:128")
    a(f"ds_write_b128 v{vWP}, {vr(vU+4,4)}")
    a("s_waitcnt lgkmcnt(0)")
    a(f"s_cmp_eq_u32 s{sHF}, 1")
    a("s_cbranch_scc1 C_HALF1")
    vF, vB, vAC = 32, 68, 100
    nst_save = a.nst
    for half in range(2):
        if half:
            a.label("C_HALF1")
            a.nst = nst_save
        own, oth = half, half ^ 1
        a(f"ds_write_b32 v{vFL}, v{vONE} offset:{4*own}")
        lds_wait_flag(a, vFL, 4 * oth, t, "CR")
        a.stamp()

        def F(psi):
            return vF + 6 * (psi % 6)

        def rdA(psi):
            off = 4 * psi * 16
            a(f"ds_read_b128 {vr(F(psi),4)}, v{vAA} offset:{off}")
            a(f"ds_read_b64 {vr(F(psi)+4,2)}, v{vAA} offset:{off+16}")
            return 2

        def nus(dl):
            return (0, 1) if dl < 16 else (1,)

        def rdB(dl):
            n = 0
            for kc in range(2):
                for nu in nus(dl):
                    a(f"ds_read_b128 {vr(vB+16*(dl&1)+8*kc+4*nu,4)}, v{vBA} offset:{kc*4*CV_UP+(16+16*nu-dl)*16}")
                    n += 1
            return n

        dls = list(range(0, 12)) if half == 0 else list(range(12, 32))
        if half:
            rdA(2 * dls[0] - 1)
        rdA(2 * dls[0]); rdA(2 * dls[0] + 1); rdB(dls[0])
        inited = set()
        for dl in dls:
            n = 0
            if dl != dls[-1]:
                n += rdA(2 * dl + 2); n += rdA(2 * dl + 3); n += rdB(dl + 1)
            a(f"s_waitcnt lgkmcnt({n})")
            for kc in range(2):
                for p in range(2):
                    psi = 2 * dl + p - kc
                    if psi < 0:
                        continue
                    for par in range(2):
                        for nu in nus(dl):
                            acc = vAC + 16 * nu + 8 * p + 4 * par
                            csrc = vr(acc, 4) if acc in inited else "0"
                            inited.add(acc)
                            a(f"v_mfma_f32_16x16x32_bf16 {vr(acc,4)}, {vr(F(psi)+2*par,4)}, {vr(vB+16*(dl&1)+8*kc+4*nu,4)}, {csrc}")
        a.stamp()
        a(f"ds_write_b32 v{vFL}, v{vONE} offset:{8+4*own}")
        a(f"ds_read_b128 {vr(vU,4)}, v{vKA} offset:{(16+16*own)*16}")
        a(f"ds_read_b128 {vr(vU+4,4)}, v{vKA} offset:{4*CV_UP+(16+16*own)*16}")
        a(f"""
        s_lshl_b32 s{sT0}, s{sCH}, 12
        s_add_u32 s{sT0}, s{sT0}, {WS_T + own*2048}
        s_lshl_b32 s{sT1}, s{sCHL}, 4
        s_lshr_b32 s{sD}, s{sD}, s{sT1}
        s_lshl_b32 s{sD}, s{sD}, 16
        s_lshl_b32 s{sTMP}, s{sCH}, 7
        s_add_u32 s{sTMP}, s{sTMP}, {WS_FLT + own*448*128}
        """)
        lds_wait_flag(a, vFL, 8 + 4 * oth, t, "CD")
        for q in range(4):
            a(f"ds_write_b128 v{vEXW}, {vr(vAC+16*oth+4*q,4)} offset:{1024*q}")
        a("s_waitcnt lgkmcnt(0)")
        a(f"ds_write_b32 v{vFL}, v{vONE} offset:{16+4*own}")
        vK = vF
        for p in range(2):
            for dq in range(4):
                a(f"v_lshlrev_b32 v{vK+8*p+7-2*dq}, 16, v{vU+4*p+dq}")
                a(f"v_and_b32 v{vK+8*p+6-2*dq}, 0xffff0000, v{vU+4*p+dq}")
        for i in range(16):
            a(f"v_mul_f32 v{vK+i}, s{sD}, v{vK+i}")
        for i in range(8):
            round_pair(a, vK + 2 * i, vK + 2 * i + 1)
        lds_wait_flag(a, vFL, 16 + 4 * oth, t, "CX")
        vR = vB
        for q in range(4):
            a(f"ds_read_b128 {vr(vR+4*q,4)}, v{vEXR} offset:{1024*q}")
        a("s_waitcnt lgkmcnt(0)")
        y = vAC + 16 * own
        for i in range(8):
            a(f"v_pk_add_f32 {vr(y+2*i,2)}, {vr(y+2*i,2)}, {vr(vR+2*i,2)}")
        for i in range(8):
            round_pair(a, y + 2 * i, y + 2 * i + 1)
        for i in range(8):
            a(f"v_pk_add_f32 {vr(y+2*i,2)}, {vr(y+2*i,2)}, {vr(vK+2*i,2)}")
        for i in range(8):
            a(f"v_cvt_pk_bf16_f32 v{vB+16+i}, v{y+2*i}, v{y+2*i+1}")
        a(f"buffer_store_dwordx4 {vr(vB+16,4)}, v{vTA}, {sr(R_WS,4)}, s{sT0} offen sc1")
        a(f"buffer_store_dwordx4 {vr(vB+20,4)}, v{vTA}, {sr(R_WS,4)}, s{sT0} offen offset:64 sc1")
        a.stamp()
        a("s_waitcnt vmcnt(0)")
        a("s_mov_b64 exec, 1")
        a(f"buffer_store_dword v{vONE}, v{vZ}, {sr(R_WS,4)}, s{sTMP} offen sc1")
        a.stamp()
        a.stamp_flush()
        a("s_endpgm")


def gen(a):
    a.lines.append(f".globl {KNAME}\n.p2align 8\n.type {KNAME},@function")
    a.label(KNAME)
    a("s_cmp_ge_u32 s2, 256")
    a("s_cbranch_scc1 K_END")
    a.stamp()
    a("""
    s_load_dwordx16 s[16:31], s[0:1], 0
    s_load_dwordx8 s[32:39], s[0:1], 64
    s_load_dwordx2 s[40:41], s[0:1], 96
    v_lshrrev_b32 v1, 6, v0
    v_and_b32 v2, 63, v0
    s_nop 0
    v_readfirstlane_b32 s3, v1
    s_cmp_ge_u32 s2, 224
    s_cbranch_scc1 K_PREP
    """)
    wg_map(a)
    a("s_cmp_ge_u32 s3, 4")
    a("s_cbranch_scc1 K_B")
    role_g(a)
    a.label("K_B")
    a.vm, a.nst = [], 1
    role_b(a)
    a.label("K_PREP")
    a.vm, a.nst = [], 1
    role_prep(a)
    a.label("K_END")
    a("s_endpgm")


def main():
    HEADER = open("cdna_kernels/" + NAME + ".s.ref").read().split("; Override launch")[0]
    a = Asm()
    gen(a)
    out = HEADER
    out += f"; @launch grid=(256,1,1) block=(512,1,1) lds={LDS_BYTES}\n"
    out += '.amdgcn_target "amdgcn-amd-amdhsa--gfx950"\n.text\n'
    out += a.text()
    out += '.section .rodata,"a"\n.p2align 6\n'
    out += descriptor(KNAME, 256, 102)
    path = sys.argv[1] if len(sys.argv) > 1 else "cdna_kernels/" + NAME + ".s"
    open(path, "w").write(out)


if __name__ == "__main__":
    main()
```

```python
import sys, os, struct

NAME = "recurrent_scan__ssm_conv_h3__glu_gated_reglu__prompt"
KNAME = NAME + "_kernel"
PROF = int(os.environ.get("PROF", "0"))

WS_H = 0
WS_KVR = 0x700000
WS_T = 0x8C0000
WS_STATS = 0xA80000
WS_CS = 0xA84000
WS_FLT = 0xA88000
WS_FLH = 0xA89000
WS_FLEND = 0xA8AC00
WS_END = 0xA8B000
WS_PROF = 0x1000000

SZ_X = 2048 * 448 * 2
SZ_W = 448 * 1792 * 2
SZ_SHK = 448 * 4 * 2

SLOT = 49152
G2_BASE = 49152
CV_ST = (1600, 2880)
CV_CH = 8 * (CV_ST[0] + CV_ST[1])
CV_A = (0, 114688)
CV_UP = 768
CV_U = 35840
T_ST = 150528
L_FLAG = 158720
LDS_BYTES = 158784


def f32bits(x):
    return "0x%08x" % struct.unpack("<I", struct.pack("<f", x))[0]


class Asm:
    def __init__(self):
        self.lines = []
        self.vm = []
        self.nst = 0

    def __call__(self, s):
        for ln in s.strip("\n").split("\n"):
            ln = ln.strip()
            if ln:
                self.lines.append("    " + ln)

    def label(self, l):
        self.lines.append(l + ":")

    def text(self):
        return "\n".join(self.lines) + "\n"

    def vmem(self, s, tag):
        self(s)
        self.vm.append(tag)

    def vm_wait(self, tag):
        idx = [i for i, t in enumerate(self.vm) if t == tag]
        if not idx:
            return
        n = len(self.vm) - 1 - idx[-1]
        assert n <= 63, n
        self(f"s_waitcnt vmcnt({n})")
        self.vm = self.vm[idx[-1] + 1:]

    def vm_all(self):
        self("s_waitcnt vmcnt(0)")
        self.vm = []

    def stamp(self):
        if not PROF:
            return
        i = self.nst
        if i >= 14:
            return
        self.nst += 1
        self(f"s_memtime s[{S_STAMP+2*i}:{S_STAMP+2*i+1}]")

    def stamp_flush(self):
        if not PROF:
            return
        n = self.nst
        DW = os.environ.get("DBGW")
        if DW:
            wg, wv = DW.split(",")
            L = newlabel("DBGSK")
            self("s_waitcnt lgkmcnt(0)")
            self(f"s_cmp_lg_u32 s2, {wg}")
            self(f"s_cbranch_scc1 {L}")
            self(f"s_cmp_lg_u32 s3, {wv}")
            self(f"s_cbranch_scc1 {L}")
            self("s_mov_b64 exec, 1")
            self(f"s_mov_b32 s{S_STAMP-4}, s{S_DBG}")
            self(f"s_and_b32 s{S_STAMP-3}, s{S_DBG+1}, 0xffff")
            self(f"s_mov_b32 s{S_STAMP-2}, 256")
            self(f"s_mov_b32 s{S_STAMP-1}, 0x20000")
            self("v_mov_b32 v0, 0")
            for i in range(1, n):
                self(f"s_sub_u32 s100, s{S_STAMP+2*i}, s{S_STAMP}")
                self("v_mov_b32 v1, s100")
                self(f"buffer_store_dword v1, v0, s[{S_STAMP-4}:{S_STAMP-1}], 0 offen offset:{4*i}")
            self("s_mov_b64 exec, -1")
            self.label(L)
            return
        self("s_waitcnt lgkmcnt(0)")
        self("s_mov_b64 exec, 1")
        self(f"s_mov_b32 s{S_STAMP-4}, s{S_WS}")
        self(f"s_and_b32 s{S_STAMP-3}, s{S_WS+1}, 0xffff")
        self(f"s_mov_b32 s{S_STAMP-2}, 0x2000000")
        self(f"s_mov_b32 s{S_STAMP-1}, 0x20000")
        self("s_lshl_b32 s100, s2, 3")
        self("s_add_u32 s100, s100, s3")
        self("s_lshl_b32 s100, s100, 6")
        self(f"s_add_u32 s100, s100, {WS_PROF}")
        self("v_mov_b32 v0, 0")
        for i in range(n):
            self(f"v_mov_b32 v1, s{S_STAMP+2*i}")
            self(f"buffer_store_dword v1, v0, s[{S_STAMP-4}:{S_STAMP-1}], s100 offen offset:{4*i}")
        self("s_mov_b64 exec, -1")


S_STAMP = 72


def vr(a, n=1):
    return f"v{a}" if n == 1 else f"v[{a}:{a+n-1}]"


def sr(a, n=1):
    return f"s{a}" if n == 1 else f"s[{a}:{a+n-1}]"


S_X, S_K, S_V, S_SHK, S_SSMK, S_SSMD, S_BX, S_WG = 16, 18, 20, 22, 24, 26, 28, 30
S_WU, S_WD, S_OUT, S_DBG = 32, 34, 36, 38
S_WS = 40
R_X, R_W, R_WS, R_DBG, R_A, R_B = 44, 48, 52, 56, 60, 64


def srd(a, d, base, size):
    a(f"s_mov_b32 s{d}, s{base}")
    a(f"s_and_b32 s{d+1}, s{base+1}, 0xffff")
    a(f"s_mov_b32 s{d+2}, {size}")
    a(f"s_mov_b32 s{d+3}, 0x20000")


def round_pair(a, lo, hi):
    a(f"v_cvt_pk_bf16_f32 v{hi}, v{lo}, v{hi}")
    a(f"v_lshlrev_b32 v{lo}, 16, v{hi}")
    a(f"v_and_b32 v{hi}, 0xffff0000, v{hi}")


_lbl = [0]


def newlabel(p):
    _lbl[0] += 1
    return f"{p}_{_lbl[0]}"


def spin_counter(a, vtmp, vzero, off, target, scnt):
    L, Lok = newlabel("SPIN"), newlabel("SPINOK")
    a(f"s_mov_b32 s{scnt}, 0")
    a.label(L)
    a(f"""
    v_readfirstlane_b32 s{scnt+1}, v{vtmp}
    s_add_u32 s{scnt}, s{scnt}, 1
    s_cmp_ge_u32 s{scnt+1}, {target}
    s_cbranch_scc1 {Lok}
    s_cmp_gt_u32 s{scnt}, 0x20000
    s_cbranch_scc1 {Lok}
    s_sleep 1
    buffer_load_dword v{vtmp}, v{vzero}, {sr(R_DBG,4)}, 0 offen offset:{off} sc1
    s_waitcnt vmcnt(0)
    s_branch {L}
    """)
    a.label(Lok)


sRB, sCB, sE, sT0, sT1, sRH, sCQ = 4, 5, 6, 7, 8, 9, 10
sXO, sWO, sM0X, sM0W, sTMP = 11, 12, 13, 14, 15
sOFF = 68
sSP = 42
vL = 2
vXG0, vXG1, vWG = 3, 4, 5
vXA = 6
vWA = 10
vXR, vWR0, vWR1 = 12, 13, 14
vT = 15
vZ, vPOLL = 20, 21
vSTAT = 24
vFR = 28
vACC = 64
vCS = 128


def gemm1_setup(a):
    a(f"""
    s_and_b32 s{sT0}, s2, 7
    s_lshr_b32 s{sT1}, s2, 3
    s_mul_i32 s{sRB}, s{sT1}, 37
    s_lshr_b32 s{sRB}, s{sRB}, 8
    s_mul_i32 s{sCB}, s{sRB}, 7
    s_sub_u32 s{sCB}, s{sT1}, s{sCB}
    s_and_b32 s{sT1}, s{sT0}, 3
    s_lshl_b32 s{sT1}, s{sT1}, 2
    s_add_u32 s{sRB}, s{sRB}, s{sT1}
    s_lshr_b32 s{sT1}, s{sT0}, 2
    s_mul_i32 s{sT1}, s{sT1}, 7
    s_add_u32 s{sCB}, s{sCB}, s{sT1}
    s_lshr_b32 s{sRH}, s3, 2
    s_and_b32 s{sCQ}, s3, 3
    """)
    a(f"""
    v_lshrrev_b32 v{vT}, 3, v{vL}
    v_lshrrev_b32 v{vT+1}, 4, v{vL}
    v_and_b32 v{vT+2}, 7, v{vL}
    s_lshl_b32 s{sT0}, s{sRB}, 7
    s_lshl_b32 s{sT1}, s3, 4
    s_add_u32 s{sT0}, s{sT0}, s{sT1}
    v_add_u32 v{vT}, s{sT0}, v{vT}
    v_mul_u32_u24 v{vT}, 896, v{vT}
    v_xor_b32 v{vT+3}, v{vT+2}, v{vT+1}
    v_lshl_add_u32 v{vXG0}, v{vT+3}, 4, v{vT}
    v_xor_b32 v{vT+3}, 4, v{vT+3}
    v_lshl_add_u32 v{vXG1}, v{vT+3}, 4, v{vT}
    v_add_u32 v{vXG1}, {8*896}, v{vXG1}
    v_and_b32 v{vT+2}, 15, v{vL}
    v_lshlrev_b32 v{vT+3}, 2, v{vT+1}
    v_xor_b32 v{vT+2}, v{vT+2}, v{vT+3}
    s_lshl_b32 s{sT0}, s{sRH}, 1
    v_xor_b32 v{vT+2}, s{sT0}, v{vT+2}
    s_lshl_b32 s{sT1}, s{sCQ}, 4
    v_add_u32 v{vT+3}, s{sT1}, v{vT+1}
    v_mul_u32_u24 v{vT+3}, 3584, v{vT+3}
    v_lshl_add_u32 v{vWG}, v{vT+2}, 4, v{vT+3}
    s_lshl_b32 s{sT0}, s{sCB}, 8
    v_add_u32 v{vWG}, s{sT0}, v{vWG}
    s_lshl_b32 s{sM0X}, s3, 11
    s_lshl_b32 s{sM0W}, s3, 12
    s_add_u32 s{sM0W}, s{sM0W}, 16384
    """)


def gemm1_setup2(a):
    a(f"""
    v_and_b32 v{vT}, 31, v{vL}
    v_lshrrev_b32 v{vT+1}, 5, v{vL}
    v_bfe_u32 v{vT+2}, v{vL}, 1, 3
    v_xor_b32 v{vT+2}, v{vT+2}, v{vT+1}
    s_lshl_b32 s{sT1}, s{sRH}, 6
    v_add_u32 v{vT}, s{sT1}, v{vT}
    v_lshlrev_b32 v{vT}, 7, v{vT}
    v_lshl_add_u32 v{vXA}, v{vT+2}, 4, v{vT}
    v_xor_b32 v{vXA+1}, 32, v{vXA}
    v_xor_b32 v{vXA+2}, 64, v{vXA}
    v_xor_b32 v{vXA+3}, 96, v{vXA}
    v_bfe_u32 v{vT}, v{vL}, 4, 1
    v_bfe_u32 v{vT+2}, v{vL}, 2, 2
    v_bfe_u32 v{vT+3}, v{vL}, 1, 1
    s_lshl_b32 s{sT0}, s{sCQ}, 2
    v_or_b32 v{vT+3}, s{sT0}, v{vT+3}
    v_lshlrev_b32 v{vT+4}, 2, v{vT+2}
    v_xor_b32 v{vT+3}, v{vT+3}, v{vT+4}
    v_lshlrev_b32 v{vT+4}, 1, v{vT}
    v_xor_b32 v{vT+3}, v{vT+3}, v{vT+4}
    v_lshlrev_b32 v{vT+3}, 4, v{vT+3}
    v_and_b32 v{vT+4}, 1, v{vL}
    v_lshl_add_u32 v{vT+3}, v{vT+4}, 3, v{vT+3}
    v_lshl_add_u32 v{vT+2}, v{vT+1}, 3, v{vT+2}
    v_lshl_add_u32 v{vT+3}, v{vT+2}, 8, v{vT+3}
    v_add_u32 v{vT}, 1, v{vT}
    v_lshl_add_u32 v{vWA}, v{vT}, 14, v{vT+3}
    v_xor_b32 v{vWA+1}, 32, v{vWA}
    v_mov_b32 v{vZ}, 0
    """)
    for i in range(64):
        a(f"v_mov_b32 v{vACC+i}, 0")


def dma_stage(a, st):
    slot = (st % 3) * SLOT
    a(f"s_mov_b32 s{sXO}, {st*128}")
    a(f"s_add_u32 m0, s{sM0X}, {slot}")
    a(f"s_mov_b32 s{sWO}, {st*64*3584}")
    a.vmem(f"buffer_load_dwordx4 v{vXG0}, {sr(R_X,4)}, s{sXO} offen lds", f"A{st}")
    a(f"s_add_u32 m0, s{sM0X}, {slot+1024}")
    a("s_nop 0")
    a.vmem(f"buffer_load_dwordx4 v{vXG1}, {sr(R_X,4)}, s{sXO} offen lds", f"A{st}")
    for j in range(4):
        a(f"s_add_u32 m0, s{sM0W}, {slot+1024*j}")
        if j:
            a(f"s_add_u32 s{sWO}, s{sWO}, {4*3584}")
        else:
            a("s_nop 0")
        a.vmem(f"buffer_load_dwordx4 v{vWG}, {sr(R_W,4)}, s{sWO} offen lds", f"A{st}")


def frag(setno, which):
    return vFR + 16 * setno + 4 * which


def g1_reads(a, st, p, setno):
    slot = (st % 3) * SLOT
    if p == 0:
        a(f"v_add_u32 v{vWR0}, {slot}, v{vWA}")
        a(f"v_add_u32 v{vWR1}, {slot}, v{vWA+1}")
    a(f"v_add_u32 v{vXR}, {slot}, v{vXA+p}")
    a(f"ds_read_b64_tr_b16 {vr(frag(setno,2),2)}, v{vWR0} offset:{4096*p}")
    a(f"ds_read_b64_tr_b16 {vr(frag(setno,2)+2,2)}, v{vWR0} offset:{4096*p+1024}")
    a(f"ds_read_b128 {vr(frag(setno,0),4)}, v{vXR}")
    a(f"ds_read_b128 {vr(frag(setno,1),4)}, v{vXR} offset:4096")
    a(f"ds_read_b64_tr_b16 {vr(frag(setno,3),2)}, v{vWR1} offset:{4096*p}")
    a(f"ds_read_b64_tr_b16 {vr(frag(setno,3)+2,2)}, v{vWR1} offset:{4096*p+1024}")


def g1_mfmas(a, setno):
    x = [frag(setno, 0), frag(setno, 1)]
    w = [frag(setno, 2), frag(setno, 3)]
    for mt, nt in [(0, 0), (0, 1), (1, 1), (1, 0)]:
        acc = vACC + 16 * (2 * mt + nt)
        a(f"v_mfma_f32_32x32x16_bf16 {vr(acc,16)}, {vr(w[mt],4)}, {vr(x[nt],4)}, {vr(acc,16)}")


def gemm1_main(a, hook):
    NST = 7
    g1_reads(a, 0, 0, 0)
    cur = 0
    for st in range(NST):
        for p in range(4):
            if p < 3:
                g1_reads(a, st, p + 1, cur ^ 1)
                a("s_waitcnt lgkmcnt(6)")
                g1_mfmas(a, cur)
            else:
                a("s_waitcnt lgkmcnt(0)")
                if st + 1 < NST:
                    a.vm_wait(f"A{st+1}")
                a("s_barrier")
                if st + 3 < NST:
                    dma_stage(a, st + 3)
                if st + 1 < NST:
                    g1_reads(a, st + 1, 0, cur ^ 1)
                g1_mfmas(a, cur)
                hook(st)
                if st in (3, 6):
                    a.stamp()
            cur ^= 1


def stat_loads(a):
    a(f"""
    s_lshl_b32 s{sT0}, s{sRB}, 7
    s_lshl_b32 s{sT1}, s{sRH}, 6
    s_add_u32 s{sT0}, s{sT0}, s{sT1}
    v_and_b32 v{vT}, 31, v{vL}
    v_add_u32 v{vT}, s{sT0}, v{vT}
    v_lshlrev_b32 v{vT}, 3, v{vT}
    s_lshl_b32 s{sT0}, s{sCB}, 3
    s_lshl_b32 s{sT1}, s{sCQ}, 1
    s_add_u32 s{sT0}, s{sT0}, s{sT1}
    s_lshl_b32 s{sT0}, s{sT0}, 7
    s_add_u32 s{sT0}, s{sT0}, {WS_CS}
    s_mov_b32 s{sT1}, {WS_STATS}
    v_lshrrev_b32 v{vT+1}, 5, v{vL}
    v_lshlrev_b32 v{vT+1}, 4, v{vT+1}
    """)
    a.vmem(f"buffer_load_dwordx2 {vr(vSTAT,2)}, v{vT}, {sr(R_WS,4)}, s{sT1} offen sc1", "ST")
    a.vmem(f"buffer_load_dwordx2 {vr(vSTAT+2,2)}, v{vT}, {sr(R_WS,4)}, s{sT1} offen offset:256 sc1", "ST")
    for i in range(8):
        a.vmem(f"buffer_load_dwordx4 {vr(vCS+4*i,4)}, v{vT+1}, {sr(R_WS,4)}, s{sT0} offen offset:{32*i} sc1", "ST")


def gemm1_epilogue(a):
    a.vm_wait("ST")
    vR2 = 60
    a(f"""
    v_mul_f32 v{vR2}, v{vSTAT+1}, v{vSTAT+1}
    v_mul_f32 v{vR2+2}, v{vSTAT+3}, v{vSTAT+3}
    s_lshl_b32 s{sT0}, s{sRB}, 2
    s_lshl_b32 s{sT1}, s{sRH}, 1
    s_add_u32 s{sT0}, s{sT0}, s{sT1}
    s_mul_i32 s{sT0}, s{sT0}, 112
    s_lshl_b32 s{sT1}, s{sCB}, 3
    s_add_u32 s{sT0}, s{sT0}, s{sT1}
    s_lshl_b32 s{sT1}, s{sCQ}, 1
    s_add_u32 s{sT0}, s{sT0}, s{sT1}
    s_lshl_b32 s{sT0}, s{sT0}, 10
    s_add_u32 s{sT1}, s{sT0}, {112*1024}
    v_lshlrev_b32 v{vT}, 4, v{vL}
    s_nop 4
    """)
    vH = 28
    k = 0
    for mt in range(2):
        for nt in range(2):
            acc = vACC + 16 * (2 * mt + nt)
            cs = vCS + 16 * mt
            m = vSTAT + 2 * nt
            for i in range(8):
                a(f"v_pk_fma_f32 {vr(acc+2*i,2)}, {vr(m,2)}, {vr(cs+2*i,2)}, {vr(acc+2*i,2)} op_sel_hi:[0,1,1] neg_lo:[1,0,0] neg_hi:[1,0,0]")
            for i in range(8):
                a(f"v_max_f32 v{acc+i}, 0, v{acc+i}")
            for i in range(4):
                a(f"v_pk_mul_f32 {vr(acc+8+2*i,2)}, {vr(acc+8+2*i,2)}, {vr(vR2+2*nt,2)} op_sel_hi:[1,0]")
            for i in range(4):
                a(f"v_pk_mul_f32 {vr(acc+2*i,2)}, {vr(acc+2*i,2)}, {vr(acc+8+2*i,2)}")
            o = vH + 4 * k
            for i in range(4):
                a(f"v_cvt_pk_bf16_f32 v{o+i}, v{acc+2*i}, v{acc+2*i+1}")
            a.vmem(f"buffer_store_dwordx4 {vr(o,4)}, v{vT}, {sr(R_WS,4)}, s{sT1 if nt else sT0} offen offset:{mt*1024} sc1", "HS")
            k += 1
    a(f"""
    s_lshl_b32 s{sE}, s{sRB}, 1
    s_add_u32 s{sE}, s{sE}, s{sRH}
    s_mul_i32 s{sE}, s{sE}, 56
    s_lshl_b32 s{sT0}, s{sCB}, 2
    s_add_u32 s{sE}, s{sE}, s{sT0}
    s_add_u32 s{sE}, s{sE}, s{sCQ}
    s_lshl_b32 s{sE}, s{sE}, 2
    s_add_u32 s{sE}, s{sE}, {WS_FLH}
    """)


def h_flag(a, vone):
    a.vm_wait("HS")
    a(f"v_mov_b32 v{vone}, 1")
    a("s_mov_b64 exec, 1")
    a.vmem(f"buffer_store_dword v{vone}, v{vZ}, {sr(R_WS,4)}, s{sE} offen sc1", "HF")
    a("s_mov_b64 exec, -1")


def role_g(a):
    s2RB, s2CB, sTD, sTN, sWB, sHO, sW2 = 18, 19, 20, 21, 22, 23, 28
    vWD, vRA0, vRA1 = 160, 161, 162
    vH0, vH1, vXO = 163, 164, 165
    u = 166
    R_WD = R_A
    R_O = R_B

    def g2_setup():
        a(f"""
        s_and_b32 s{sT0}, s2, 7
        s_lshr_b32 s{sT1}, s2, 3
        s_mul_i32 s{s2RB}, s{sT1}, 37
        s_lshr_b32 s{s2RB}, s{s2RB}, 8
        s_mul_i32 s{s2CB}, s{s2RB}, 7
        s_sub_u32 s{s2CB}, s{sT1}, s{s2CB}
        s_lshl_b32 s{sT1}, s{sT0}, 2
        s_add_u32 s{s2RB}, s{s2RB}, s{sT1}
        s_and_b32 s{sTD}, s3, 1
        s_lshr_b32 s{sTN}, s3, 1
        s_lshl_b32 s{sWB}, s3, 12
        s_add_u32 s{sWB}, s{sWB}, {G2_BASE}
        s_mul_i32 s{sT0}, s{s2RB}, 224
        s_mul_i32 s{sT1}, s3, 28
        s_add_u32 s{sT0}, s{sT0}, s{sT1}
        s_lshl_b32 s{sT0}, s{sT0}, 10
        v_lshl_add_u32 v{vH0}, v{vL}, 4, s{sT0}
        v_add_u32 v{vH1}, {112*1024}, v{vH0}
        v_lshrrev_b32 v{u}, 3, v{vL}
        s_mul_i32 s{sT0}, s3, 448
        v_add_u32 v{u}, s{sT0}, v{u}
        v_mul_u32_u24 v{u}, 896, v{u}
        v_bfe_u32 v{u+1}, v{vL}, 4, 1
        v_lshlrev_b32 v{u+1}, 2, v{u+1}
        v_and_b32 v{u+2}, 7, v{vL}
        v_xor_b32 v{u+1}, v{u+1}, v{u+2}
        v_lshl_add_u32 v{vWD}, v{u+1}, 4, v{u}
        s_lshl_b32 s{sT0}, s{s2CB}, 7
        v_add_u32 v{vWD}, s{sT0}, v{vWD}
        v_lshrrev_b32 v{u}, 5, v{vL}
        v_bfe_u32 v{u+1}, v{vL}, 2, 2
        v_lshl_add_u32 v{u}, v{u}, 2, v{u+1}
        v_bfe_u32 v{u+2}, v{vL}, 4, 1
        v_bfe_u32 v{u+3}, v{vL}, 1, 1
        v_lshl_add_u32 v{u+2}, v{u+2}, 1, v{u+3}
        v_bfe_u32 v{u+3}, v{vL}, 3, 1
        v_lshl_add_u32 v{u+2}, v{u+3}, 2, v{u+2}
        v_lshlrev_b32 v{u+2}, 4, v{u+2}
        v_and_b32 v{u+3}, 1, v{vL}
        v_lshl_add_u32 v{u+2}, v{u+3}, 3, v{u+2}
        v_lshl_add_u32 v{u+2}, v{u}, 7, v{u+2}
        v_add_u32 v{vRA0}, s{sWB}, v{u+2}
        v_xor_b32 v{vRA1}, 64, v{vRA0}
        """)
        srd(a, R_WD, S_WD, SZ_W)
        srd(a, R_O, S_OUT, SZ_X)

    def wdma(s):
        ring = s & 3
        a(f"s_mov_b32 s{sW2}, {32*s*896}")
        for j in range(4):
            a(f"s_add_u32 m0, s{sWB}, {ring*16384+j*1024}")
            if j:
                a(f"s_add_u32 s{sW2}, s{sW2}, {8*896}")
            else:
                a("s_nop 0")
            a.vmem(f"buffer_load_dwordx4 v{vWD}, {sr(R_WD,4)}, s{sW2} offen lds", f"W{s}")

    def hook(st):
        if st == 1:
            g2_setup()
        if st == 4:
            a.vmem(f"buffer_load_dword v{vPOLL}, v{vZ}, {sr(R_DBG,4)}, 0 offen sc1", "P0")
            for s in range(3):
                wdma(s)
        if st == 5:
            a.vm_wait("P0")
            spin_counter(a, vPOLL, vZ, 0, 32, sSP)
            stat_loads(a)
            wdma(3)

    gemm1_main(a, hook)
    gemm1_epilogue(a)
    a.stamp()
    NS = 14
    NREG = 7
    vW = [44 + 16 * i for i in range(5)] + [172 + 16 * i for i in range(2)]
    vA2 = 124
    vA2 = 192
    vW = [44 + 16 * i for i in range(5)] + [124, 140]
    vHR = None
    NREG = 6
    vW = [44 + 16 * i for i in range(6)]
    HR = [140, 172, 28]
    vXV, vST2 = 4, 12

    def trreads(s, dst):
        ring = s & 3
        for tt in range(2):
            for Td in range(2):
                for hf in range(2):
                    a(f"ds_read_b64_tr_b16 {vr(dst+8*tt+4*Td+2*hf,2)}, v{vRA1 if Td else vRA0} offset:{ring*16384+tt*2048+hf*1024}")

    for i in range(64):
        a(f"v_mov_b32 v{vA2+i}, 0")
    for s in range(NREG):
        a.vm_wait(f"W{s}")
        trreads(s, vW[s])
        a("s_waitcnt lgkmcnt(0)")
        wdma(s + 4)
        if s == 3:
            h_flag(a, u)
            a.stamp()
    a(f"""
    s_lshl_b32 s{sT0}, s{s2RB}, 6
    s_lshl_b32 s{sT1}, s{sTN}, 5
    s_add_u32 s{sT0}, s{sT0}, s{sT1}
    v_and_b32 v{u}, 31, v{vL}
    v_add_u32 v{u}, s{sT0}, v{u}
    v_lshlrev_b32 v{u+1}, 3, v{u}
    v_add_u32 v{u+1}, {WS_STATS}, v{u+1}
    v_mul_u32_u24 v{vXO}, 896, v{u}
    v_lshrrev_b32 v{u+2}, 5, v{vL}
    v_lshl_add_u32 v{vXO}, v{u+2}, 3, v{vXO}
    s_lshl_b32 s{sT0}, s{s2CB}, 7
    s_lshl_b32 s{sT1}, s{sTD}, 6
    s_add_u32 s{sT0}, s{sT0}, s{sT1}
    v_add_u32 v{vXO}, s{sT0}, v{vXO}
    """)
    for i in range(4):
        a.vmem(f"buffer_load_dwordx2 {vr(vXV+2*i,2)}, v{vXO}, {sr(R_X,4)}, 0 offen offset:{16*i}", "XV")
    a.vmem(f"buffer_load_dwordx2 {vr(vST2,2)}, v{u+1}, {sr(R_WS,4)}, 0 offen sc1", "XV")
    a(f"""
    s_mul_i32 s{sT0}, s{s2RB}, 56
    s_mul_i32 s{sT1}, s3, 14
    s_add_u32 s{sT0}, s{sT0}, s{sT1}
    s_lshl_b32 s{sT0}, s{sT0}, 2
    s_add_u32 s{sT0}, s{sT0}, {WS_FLH}
    v_min_u32 v{u+2}, 13, v{vL}
    v_lshlrev_b32 v{u+2}, 2, v{u+2}
    s_mov_b32 s{sSP}, 0
    """)
    a.stamp()
    a.label("G_HPOLL")
    a(f"""
    buffer_load_dword v{u+3}, v{u+2}, {sr(R_WS,4)}, s{sT0} offen sc1
    s_add_u32 s{sSP}, s{sSP}, 1
    s_cmp_gt_u32 s{sSP}, 0x20000
    s_cbranch_scc1 G_HPOLL_OK
    s_waitcnt vmcnt(0)
    v_cmp_ne_u32 vcc, 0, v{u+3}
    s_nop 3
    s_cmp_eq_u64 vcc, exec
    s_cbranch_scc0 G_HPOLL
    """)
    a.label("G_HPOLL_OK")
    a.vm_all()
    a.stamp()

    def hloads(s):
        r = HR[s % 3]
        a(f"s_mov_b32 s{sHO}, {2048*s}")
        for tt in range(2):
            for nt in range(2):
                a.vmem(f"buffer_load_dwordx4 {vr(r+8*tt+4*nt,4)}, v{vH1 if nt else vH0}, {sr(R_WS,4)}, s{sHO} offen offset:{1024*tt} sc1", f"H{s}")

    for s in range(3):
        hloads(s)
    for s in range(NS):
        wreg = vW[s % NREG]
        a.vm_wait(f"H{s}")
        if s >= NREG:
            a("s_waitcnt lgkmcnt(0)")
        for tt in range(2):
            for Td in range(2):
                for nt in range(2):
                    acc = vA2 + 32 * nt + 16 * Td
                    a(f"v_mfma_f32_32x32x16_bf16 {vr(acc,16)}, {vr(wreg+8*tt+4*Td,4)}, {vr(HR[s%3]+8*tt+4*nt,4)}, {vr(acc,16)}")
        if s + 3 < NS:
            hloads(s + 3)
        sn = s + NREG
        if sn < NS:
            a.vm_wait(f"W{sn}")
            trreads(sn, wreg)
            if sn + 4 < NS:
                a("s_waitcnt lgkmcnt(0)")
                wdma(sn + 4)
    a.stamp()
    vX, vXN, vP, vE = 28, 44, 64, 128
    a(f"v_lshlrev_b32 v{u}, 4, v{vL}")
    a(f"v_add_u32 v{u+1}, s{sWB}, v{u}")
    a(f"s_lshl_b32 s{sT0}, s3, 14")
    a(f"s_add_u32 s{sT0}, s{sT0}, {G2_BASE}")
    a(f"v_add_u32 v{u+2}, s{sT0}, v{u}")
    a(f"v_mov_b32 v{u+3}, {L_FLAG+32}")
    a(f"v_mov_b32 v{u+4}, 1")
    a("s_nop 7")
    for tau in range(4):
        for q in range(4):
            a(f"ds_write_b128 v{u+1}, {vr(vA2+16*tau+4*q,4)} offset:{tau*16384+q*1024}")
    for i in range(8):
        a(f"v_lshlrev_b32 v{vX+2*i}, 16, v{vXV+i}")
        a(f"v_and_b32 v{vX+2*i+1}, 0xffff0000, v{vXV+i}")
    a("s_waitcnt lgkmcnt(0)")
    a("s_mov_b64 exec, 1")
    a(f"ds_add_u32 v{u+3}, v{u+4}")
    a("s_mov_b64 exec, -1")
    for i in range(16):
        a(f"v_sub_f32 v{vXN+i}, v{vX+i}, v{vST2}")
    for i in range(8):
        round_pair(a, vXN + 2 * i, vXN + 2 * i + 1)
    for i in range(16):
        a(f"v_mul_f32 v{vXN+i}, v{vXN+i}, v{vST2+1}")
    for i in range(8):
        round_pair(a, vXN + 2 * i, vXN + 2 * i + 1)
    vF, vTG, vTW, vTR = 4, 5, 6, 7
    a(f"""
    s_lshr_b32 s{sT0}, s{s2RB}, 4
    s_mul_i32 s{sT0}, s{sT0}, 448
    s_lshl_b32 s{sT1}, s{s2CB}, 6
    s_add_u32 s{sT0}, s{sT0}, s{sT1}
    s_lshl_b32 s{sHO}, s{sTD}, 5
    s_add_u32 s{sT0}, s{sT0}, s{sHO}
    s_add_u32 s{sT1}, s{sT1}, s{sHO}
    v_and_b32 v8, 31, v{vL}
    v_add_u32 v8, s{sT0}, v8
    v_lshlrev_b32 v8, 2, v8
    v_add_u32 v{vF}, {WS_FLT}, v8
    v_lshrrev_b32 v8, 2, v{vL}
    v_add_u32 v8, s{sT1}, v8
    v_lshlrev_b32 v8, 12, v8
    v_and_b32 v9, 3, v{vL}
    v_lshl_add_u32 v{vTG}, v9, 4, v8
    s_lshl_b32 s{sT0}, s{s2RB}, 7
    s_lshl_b32 s{sT1}, s{sTN}, 6
    s_add_u32 s{sT0}, s{sT0}, s{sT1}
    s_add_u32 s{sT0}, s{sT0}, {WS_T}
    s_add_u32 s{sT1}, s{sT0}, {16*4096}
    s_lshl_b32 s{sHO}, s3, 11
    s_add_u32 s{sHO}, s{sHO}, {T_ST}
    v_lshl_add_u32 v{vTW}, v{vL}, 4, s{sHO}
    v_lshrrev_b32 v8, 5, v{vL}
    v_bfe_u32 v9, v{vL}, 2, 2
    v_lshl_add_u32 v8, v8, 2, v9
    v_lshlrev_b32 v8, 6, v8
    v_bfe_u32 v9, v{vL}, 4, 1
    v_lshl_add_u32 v8, v9, 5, v8
    v_and_b32 v9, 3, v{vL}
    v_lshl_add_u32 v8, v9, 3, v8
    v_add_u32 v{vTR}, s{sHO}, v8
    buffer_load_dword v10, v{vF}, {sr(R_WS,4)}, 0 offen sc1
    s_mov_b32 s{sSP}, 0
    """)
    a.label("G_RPOLL")
    a(f"""
    ds_read_b32 v9, v{u+3}
    s_add_u32 s{sSP}, s{sSP}, 1
    s_cmp_gt_u32 s{sSP}, 0x100000
    s_cbranch_scc1 G_RPOLL_OK
    s_waitcnt lgkmcnt(0)
    v_readfirstlane_b32 s{sSP+1}, v9
    s_cmp_lt_u32 s{sSP+1}, 4
    s_cbranch_scc1 G_RPOLL
    """)
    a.label("G_RPOLL_OK")
    a("s_waitcnt lgkmcnt(0)")
    a.stamp()
    for src in range(4):
        for q in range(4):
            a(f"ds_read_b128 {vr(vP+16*src+4*q,4)}, v{u+2} offset:{src*4096+q*1024}")
    a("s_waitcnt lgkmcnt(8)")
    for i in range(16):
        a(f"v_add_f32 v{vP+i}, v{vP+i}, v{vP+16+i}")
    a("s_waitcnt lgkmcnt(0)")
    for i in range(16):
        a(f"v_add_f32 v{vP+32+i}, v{vP+32+i}, v{vP+48+i}")
    for i in range(16):
        a(f"v_add_f32 v{vP+i}, v{vP+i}, v{vP+32+i}")
    for i in range(8):
        round_pair(a, vP + 2 * i, vP + 2 * i + 1)
    a(f"s_mov_b32 s{sW2}, {f32bits(-1.4426950408889634)}")
    for i in range(16):
        a(f"v_mul_f32 v{vE+i}, s{sW2}, v{vP+i}")
    for i in range(16):
        a(f"v_exp_f32 v{vE+i}, v{vE+i}")
    for i in range(16):
        a(f"v_add_f32 v{vE+i}, 1.0, v{vE+i}")
    for i in range(16):
        a(f"v_rcp_f32 v{vE+i}, v{vE+i}")
    for i in range(16):
        a(f"v_mul_f32 v{vP+i}, v{vP+i}, v{vE+i}")
    for i in range(8):
        round_pair(a, vP + 2 * i, vP + 2 * i + 1)
    a(f"s_mov_b32 s{sSP}, 0")
    a.label("G_TPOLL")
    a(f"""
    s_waitcnt vmcnt(0)
    v_cmp_ne_u32 vcc, 0, v10
    s_add_u32 s{sSP}, s{sSP}, 1
    s_cmp_gt_u32 s{sSP}, 0x20000
    s_cbranch_scc1 G_TPOLL_OK
    s_cmp_eq_u64 vcc, exec
    s_cbranch_scc1 G_TPOLL_OK
    buffer_load_dword v10, v{vF}, {sr(R_WS,4)}, 0 offen sc1
    s_branch G_TPOLL
    """)
    a.label("G_TPOLL_OK")
    a.stamp()
    vTT, vTD, vS = 96, 104, 112
    a(f"buffer_load_dwordx4 {vr(vTT,4)}, v{vTG}, {sr(R_WS,4)}, s{sT0} offen sc1")
    a(f"buffer_load_dwordx4 {vr(vTT+4,4)}, v{vTG}, {sr(R_WS,4)}, s{sT1} offen sc1")
    a("s_waitcnt vmcnt(1)")
    a(f"ds_write_b128 v{vTW}, {vr(vTT,4)}")
    a("s_waitcnt vmcnt(0)")
    a(f"ds_write_b128 v{vTW}, {vr(vTT+4,4)} offset:1024")
    a("s_waitcnt lgkmcnt(0)")
    for i in range(4):
        a(f"ds_read_b64_tr_b16 {vr(vTD+2*i,2)}, v{vTR} offset:{512*i}")
    a("s_waitcnt lgkmcnt(0)")
    for i in range(8):
        a(f"v_lshlrev_b32 v{vS+2*i}, 16, v{vTD+i}")
        a(f"v_and_b32 v{vS+2*i+1}, 0xffff0000, v{vTD+i}")
    for i in range(8):
        a(f"v_pk_mul_f32 {vr(vS+2*i,2)}, {vr(vS+2*i,2)}, {vr(vXN+2*i,2)}")
    for i in range(8):
        round_pair(a, vS + 2 * i, vS + 2 * i + 1)
    for i in range(8):
        a(f"v_pk_mul_f32 {vr(vS+2*i,2)}, {vr(vS+2*i,2)}, {vr(vP+2*i,2)}")
    for i in range(8):
        round_pair(a, vS + 2 * i, vS + 2 * i + 1)
    for i in range(8):
        a(f"v_pk_add_f32 {vr(vS+2*i,2)}, {vr(vS+2*i,2)}, {vr(vX+2*i,2)}")
    for i in range(8):
        a(f"v_cvt_pk_bf16_f32 v{vTT+i}, v{vS+2*i}, v{vS+2*i+1}")
    for i in range(4):
        a(f"buffer_store_dwordx2 {vr(vTT+2*i,2)}, v{vXO}, {sr(R_O,4)}, 0 offen offset:{16*i}")
    if PROF:
        a("s_waitcnt vmcnt(0)")
    a.stamp()
    a.stamp_flush()
    a("s_endpgm")


def role_c(a):
    sCHL, sHF, sCH, sUB, sAB, sD, sPB = 18, 19, 20, 21, 22, 23, 28
    R_H = R_A
    vD = 160
    vU = 184
    c = 192
    vLB = 200

    def c_setup():
        a(f"""
        s_sub_u32 s{sT0}, s3, 4
        s_lshr_b32 s{sCHL}, s{sT0}, 1
        s_and_b32 s{sHF}, s{sT0}, 1
        s_lshl_b32 s{sCH}, s2, 1
        s_add_u32 s{sCH}, s{sCH}, s{sCHL}
        s_mul_i32 s{sUB}, s{sCHL}, {8*CV_UP}
        s_add_u32 s{sUB}, s{sUB}, {CV_U}
        s_mul_i32 s{sAB}, s{sCHL}, {CV_A[1]}
        s_mul_i32 s{sT0}, s{sHF}, {8*CV_ST[0]}
        s_xor_b32 s{sT1}, s{sHF}, 1
        s_mul_i32 s{sT1}, s{sT1}, {8*CV_ST[0]}
        s_add_u32 s{sPB}, s{sAB}, s{sT1}
        s_add_u32 s{sAB}, s{sAB}, s{sT0}
        s_lshl_b32 s{sT0}, s{sCH}, 12
        s_add_u32 s{R_H}, s{S_SSMK}, s{sT0}
        s_addc_u32 s{R_H+1}, s{S_SSMK+1}, 0
        s_and_b32 s{R_H+1}, s{R_H+1}, 0xffff
        s_mov_b32 s{R_H+2}, 4096
        s_mov_b32 s{R_H+3}, 0x20000
        v_lshlrev_b32 v{vLB}, 4, v{vL}
        s_mul_i32 s{sT1}, s{sHF}, {92*16}
        s_sub_u32 s{sT1}, s{sT1}, 64
        v_add_u32 v{c+1}, s{sT1}, v{vLB}
        v_add_u32 v{c+2}, 16, v{c+1}
        v_add_u32 v{c+3}, 1024, v{c+1}
        """)

    def hook(st):
        if st == 1:
            c_setup()
        if st == 4:
            a.vmem(f"buffer_load_dword v{vPOLL}, v{vZ}, {sr(R_DBG,4)}, 0 offen sc1", "P0")
            a.vmem(f"buffer_load_dwordx4 {vr(vD,4)}, v{c+1}, {sr(R_H,4)}, 0 offen", "D0")
            a.vmem(f"buffer_load_dwordx4 {vr(vD+4,4)}, v{c+2}, {sr(R_H,4)}, 0 offen", "D0")
            a.vmem(f"buffer_load_dwordx4 {vr(vD+8,4)}, v{c+3}, {sr(R_H,4)}, 0 offen", "D1")
            a.vmem(f"buffer_load_dwordx4 {vr(vD+12,4)}, v{c+3}, {sr(R_H,4)}, 0 offen offset:16", "D1")
            a.vmem(f"buffer_load_dwordx4 {vr(vD+16,4)}, v{c+3}, {sr(R_H,4)}, 0 offen offset:1024", "D2")
            a.vmem(f"buffer_load_dwordx4 {vr(vD+20,4)}, v{c+3}, {sr(R_H,4)}, 0 offen offset:1040", "D2")
        if st == 5:
            a.vm_wait("P0")
            spin_counter(a, vPOLL, vZ, 0, 32, sSP)
            stat_loads(a)
            a.vmem(f"buffer_load_dword v{vPOLL}, v{vZ}, {sr(R_DBG,4)}, 0 offen offset:128 sc1", "P1")

    gemm1_main(a, hook)
    a.vm_wait("P1")
    spin_counter(a, vPOLL, vZ, 128, 32, sSP)
    a(f"""
    s_lshl_b32 s{sT0}, s{sCH}, 12
    s_lshl_b32 s{sT1}, s{sHF}, 11
    s_add_u32 s{sT0}, s{sT0}, s{sT1}
    s_add_u32 s{sT0}, s{sT0}, {WS_KVR}
    s_lshl_b32 s{sT1}, s2, 2
    s_load_dword s{sD}, {sr(S_SSMD,2)}, s{sT1}
    """)
    a.vmem(f"buffer_load_dwordx4 {vr(vU,4)}, v{vLB}, {sr(R_WS,4)}, s{sT0} offen sc1", "U")
    a.vmem(f"buffer_load_dwordx4 {vr(vU+4,4)}, v{vLB}, {sr(R_WS,4)}, s{sT0} offen offset:1024 sc1", "U")
    gemm1_epilogue(a)
    a.stamp()
    vE_, vO_, vO2 = 44, 50, 56
    vAA, vBA = 3, 4
    vF, vB, vAC = 64, 112, 208
    a(f"""
    v_mov_b32 v{vE_}, 0
    v_mov_b32 v{vE_+1}, 0
    v_mov_b32 v{vE_+2}, 0
    v_mov_b32 v{vE_+3}, 0
    v_lshrrev_b32 v{c+1}, 4, v{vL}
    s_lshl_b32 s{sT0}, s{sHF}, 2
    v_add_u32 v{c+1}, s{sT0}, v{c+1}
    v_mul_u32_u24 v{c+1}, {CV_UP}, v{c+1}
    v_and_b32 v{c+2}, 15, v{vL}
    v_lshl_add_u32 v{c+1}, v{c+2}, 4, v{c+1}
    v_add_u32 v{c+1}, s{sUB}, v{c+1}
    ds_write_b128 v{c+1}, {vr(vE_,4)}
    v_and_b32 v{c+1}, 7, v{vL}
    v_xor_b32 v{c+1}, 4, v{c+1}
    v_mul_u32_u24 v{c+1}, {CV_UP}, v{c+1}
    v_lshrrev_b32 v{c+2}, 3, v{vL}
    v_lshlrev_b32 v{c+2}, 4, v{c+2}
    v_sub_u32 v{c+1}, v{c+1}, v{c+2}
    s_lshl_b32 s{sT0}, s{sHF}, 8
    s_sub_u32 s{sT0}, s{sUB}, s{sT0}
    s_add_u32 s{sT0}, s{sT0}, {(47-8)*16}
    v_add_u32 v{c+1}, s{sT0}, v{c+1}
    """)
    a.vm_wait("U")
    a(f"""
    ds_write_b128 v{c+1}, {vr(vU,4)} offset:128
    ds_write_b128 v{c+1}, {vr(vU+4,4)}
    v_and_b32 v{c+1}, 15, v{vL}
    v_lshrrev_b32 v{c+2}, 4, v{vL}
    v_mul_u32_u24 v{vBA}, {CV_UP}, v{c+2}
    v_lshl_add_u32 v{vBA}, v{c+1}, 4, v{vBA}
    v_add_u32 v{vBA}, s{sUB}, v{vBA}
    v_lshrrev_b32 v{c+3}, 2, v{c+1}
    v_add_u32 v{c+3}, v{c+3}, v{c+2}
    v_lshlrev_b32 v{c+3}, 4, v{c+3}
    v_add_u32 v{c+3}, s{sAB}, v{c+3}
    v_and_b32 v{c+4}, 3, v{vL}
    v_add_u32 v{c+5}, s{sAB}, v{vLB}
    v_mov_b32 v{c+2}, {L_FLAG}
    s_lshl_b32 s{sT0}, s{sCHL}, 4
    v_add_u32 v{c+2}, s{sT0}, v{c+2}
    v_mov_b32 v{c+6}, 1
    s_waitcnt lgkmcnt(0)
    """)
    for i in range(32):
        a(f"v_mov_b32 v{vAC+i}, 0")
    a(f"s_cmp_eq_u32 s{sHF}, 1")
    a("s_cbranch_scc1 C_HALF1")
    vm_save = list(a.vm)
    nst_save = a.nst
    for half in range(2):
        if half:
            a.label("C_HALF1")
            a.vm = list(vm_save)
            a.nst = nst_save
        own, oth = half, half ^ 1
        a(f"ds_write_b32 v{c+2}, v{c+6} offset:{4*own}")
        st = CV_ST[half]
        g0 = (-4, 88)[half]
        nsl = (99, 167)[half]
        a(f"v_mul_u32_u24 v{vAA}, {st}, v{c+4}")
        a(f"v_add_u32 v{vAA}, v{vAA}, v{c+3}")
        nr = (nsl + 63) // 64
        for rho in range(nr):
            d = vD + 8 * rho
            for i in range(6):
                a(f"v_mov_b32 v{vE_+i}, v{d+1+i}")
            for i in range(6):
                a(f"v_alignbit_b32 v{vO_+i}, v{d+i+1}, v{d+i}, 16")
            for i in range(6):
                a(f"v_alignbit_b32 v{vO2+i}, v{d+i+2}, v{d+i+1}, 16")
            last = rho == nr - 1
            if last:
                rem = nsl - 64 * rho
                a(f"s_mov_b32 exec_hi, {hex((1 << (rem - 32)) - 1)}")
            srcs = [vO_, vE_, vO2, d + 2, vO_ + 2, vE_ + 2, vO2 + 2, d + 4]
            for cc in range(8):
                a(f"ds_write_b128 v{c+5}, {vr(srcs[cc],4)} offset:{cc*st+rho*1024}")
            if last:
                a("s_mov_b64 exec, -1")
            else:
                a("s_nop 1")
        h_flag(a, c + 7)
        a.stamp()
        Lp, Lok = f"C_UPOLL{half}", f"C_UPOLL_OK{half}"
        a(f"s_mov_b32 s{sSP}, 0")
        a.label(Lp)
        a(f"""
        ds_read_b32 v{c+7}, v{c+2} offset:{4*oth}
        s_add_u32 s{sSP}, s{sSP}, 1
        s_cmp_gt_u32 s{sSP}, 0x100000
        s_cbranch_scc1 {Lok}
        s_waitcnt lgkmcnt(0)
        v_readfirstlane_b32 s{sSP+1}, v{c+7}
        s_cmp_eq_u32 s{sSP+1}, 0
        s_cbranch_scc1 {Lp}
        """)
        a.label(Lok)
        a("s_waitcnt lgkmcnt(0)")
        a.stamp()

        def F(psi, par):
            return vF + 8 * (psi % 6) + 4 * par

        def rdA(psi):
            for par in range(2):
                a(f"ds_read_b128 {vr(F(psi,par),4)}, v{vAA} offset:{par*4*st+(4*psi-4-g0)*16}")
            return 2

        def nus(dl):
            return (0, 1) if dl < 16 else (1,)

        def rdB(dl):
            n = 0
            for kc in range(2):
                for nu in nus(dl):
                    a(f"ds_read_b128 {vr(vB+16*(dl&1)+8*kc+4*nu,4)}, v{vBA} offset:{kc*4*CV_UP+(16+16*nu-dl)*16}")
                    n += 1
            return n

        dls = list(range(0, 12)) if half == 0 else list(range(12, 32))
        if half:
            rdA(2 * dls[0] - 1)
        rdA(2 * dls[0]); rdA(2 * dls[0] + 1); rdB(dls[0])
        for dl in dls:
            n = 0
            if dl != dls[-1]:
                n += rdA(2 * dl + 2); n += rdA(2 * dl + 3); n += rdB(dl + 1)
            a(f"s_waitcnt lgkmcnt({n})")
            for kc in range(2):
                for p in range(2):
                    psi = 2 * dl + p - kc
                    if psi < 0:
                        continue
                    for par in range(2):
                        for nu in nus(dl):
                            acc = vAC + 16 * nu + 8 * p + 4 * par
                            a(f"v_mfma_f32_16x16x32_bf16 {vr(acc,4)}, {vr(F(psi,par),4)}, {vr(vB+16*(dl&1)+8*kc+4*nu,4)}, {vr(acc,4)}")
        a.stamp()
        a(f"v_add_u32 v{c+1}, s{sPB}, v{vLB}")
        a("s_nop 7")
        for q in range(4):
            a(f"ds_write_b128 v{c+5}, {vr(vAC+16*oth+4*q,4)} offset:{1024*q}")
        a("s_waitcnt lgkmcnt(0)")
        a(f"ds_write_b32 v{c+2}, v{c+6} offset:{8+4*own}")
        a(f"""
        v_lshrrev_b32 v{c+3}, 4, v{vL}
        v_sub_u32 v{c+4}, 3, v{c+3}
        v_mul_u32_u24 v{c+4}, {CV_UP}, v{c+4}
        v_and_b32 v{c+7}, 15, v{vL}
        v_lshl_add_u32 v{c+4}, v{c+7}, 4, v{c+4}
        v_add_u32 v{c+4}, s{sUB}, v{c+4}
        ds_read_b128 {vr(vU,4)}, v{c+4} offset:{(16+16*own)*16}
        ds_read_b128 {vr(vU+4,4)}, v{c+4} offset:{4*CV_UP+(16+16*own)*16}
        v_lshlrev_b32 v{c+7}, 7, v{c+7}
        v_lshl_add_u32 v{c+7}, v{c+3}, 4, v{c+7}
        s_lshl_b32 s{sT0}, s{sCH}, 12
        s_add_u32 s{sT0}, s{sT0}, {WS_T + own*2048}
        s_lshl_b32 s{sT1}, s{sCHL}, 4
        s_lshr_b32 s{sD}, s{sD}, s{sT1}
        s_lshl_b32 s{sD}, s{sD}, 16
        s_waitcnt lgkmcnt(0)
        """)
        vK = vF
        for p in range(2):
            for dq in range(4):
                a(f"v_lshlrev_b32 v{vK+8*p+7-2*dq}, 16, v{vU+4*p+dq}")
                a(f"v_and_b32 v{vK+8*p+6-2*dq}, 0xffff0000, v{vU+4*p+dq}")
        for i in range(16):
            a(f"v_mul_f32 v{vK+i}, s{sD}, v{vK+i}")
        for i in range(8):
            round_pair(a, vK + 2 * i, vK + 2 * i + 1)
        Lp, Lok = f"C_XPOLL{half}", f"C_XPOLL_OK{half}"
        a(f"s_mov_b32 s{sSP}, 0")
        a.label(Lp)
        a(f"""
        ds_read_b32 v{c+3}, v{c+2} offset:{8+4*oth}
        s_add_u32 s{sSP}, s{sSP}, 1
        s_cmp_gt_u32 s{sSP}, 0x100000
        s_cbranch_scc1 {Lok}
        s_waitcnt lgkmcnt(0)
        v_readfirstlane_b32 s{sSP+1}, v{c+3}
        s_cmp_eq_u32 s{sSP+1}, 0
        s_cbranch_scc1 {Lp}
        """)
        a.label(Lok)
        a.stamp()
        vR = vD
        for q in range(4):
            a(f"ds_read_b128 {vr(vR+4*q,4)}, v{c+1} offset:{1024*q}")
        a("s_waitcnt lgkmcnt(0)")
        y = vAC + 16 * own
        for i in range(8):
            a(f"v_pk_add_f32 {vr(y+2*i,2)}, {vr(y+2*i,2)}, {vr(vR+2*i,2)}")
        for i in range(8):
            round_pair(a, y + 2 * i, y + 2 * i + 1)
        for i in range(8):
            a(f"v_pk_add_f32 {vr(y+2*i,2)}, {vr(y+2*i,2)}, {vr(vK+2*i,2)}")
        for i in range(8):
            a(f"v_cvt_pk_bf16_f32 v{vB+i}, v{y+2*i}, v{y+2*i+1}")
        a(f"buffer_store_dwordx4 {vr(vB,4)}, v{c+7}, {sr(R_WS,4)}, s{sT0} offen sc1")
        a(f"buffer_store_dwordx4 {vr(vB+4,4)}, v{c+7}, {sr(R_WS,4)}, s{sT0} offen offset:64 sc1")
        a(f"""
        s_lshl_b32 s{sT1}, s{sCH}, 2
        s_add_u32 s{sT1}, s{sT1}, {WS_FLT + own*448*4}
        """)
        a.stamp()
        a("s_waitcnt vmcnt(0)")
        a.stamp()
        a(f"""
        s_mov_b64 exec, 1
        buffer_store_dword v{c+6}, v{vZ}, {sr(R_WS,4)}, s{sT1} offen sc1
        """)
        a.stamp_flush()
        a("s_endpgm")


def role_prep(a):
    R_K, R_V, R_SH = R_A, R_B, 68
    sB = 4
    vTID = 0
    vTB, vCG = 3, 4
    vO0, vO1, vOH, vOS = 5, 6, 7, 8
    t = 9
    vXS = 16
    vWC = 44
    vKR = 100
    vVR = 144
    vSH = 176
    vCA = 192
    a(f"""
    s_sub_u32 s{sB}, s2, 224
    v_mul_u32_u24 v{vTB}, 1171, v{vTID}
    v_lshrrev_b32 v{vTB}, 16, v{vTB}
    v_mul_u32_u24 v{vCG}, 56, v{vTB}
    v_sub_u32 v{vCG}, v{vTID}, v{vCG}
    s_lshl_b32 s5, s{sB}, 6
    v_lshl_add_u32 v{vO0}, v{vTB}, 3, s5
    v_mul_u32_u24 v{vO0}, 896, v{vO0}
    v_lshl_add_u32 v{vO0}, v{vCG}, 4, v{vO0}
    v_add_u32 v{vO1}, {4*896}, v{vO0}
    v_subrev_u32 v{vOH}, {3*896}, v{vO0}
    v_lshlrev_b32 v{vOS}, 6, v{vCG}
    v_lshrrev_b32 v{t}, 3, v{vTID}
    v_add_u32 v{t}, s5, v{t}
    v_mul_u32_u24 v{t+1}, 896, v{t}
    v_and_b32 v{t+2}, 7, v{vTID}
    v_lshl_add_u32 v{t+1}, v{t+2}, 4, v{t+1}
    s_cmp_ge_u32 s{sB}, 14
    s_cselect_b32 s6, 14, 0
    s_sub_u32 s6, s{sB}, s6
    v_lshrrev_b32 v{t+3}, 4, v{vTID}
    v_mul_u32_u24 v{t+3}, 3584, v{t+3}
    v_and_b32 v{t+4}, 15, v{vTID}
    v_lshl_add_u32 v{t+3}, v{t+4}, 4, v{t+3}
    s_lshl_b32 s7, s6, 8
    v_mov_b32 v{vZ+180}, 0
    s_waitcnt lgkmcnt(0)
    """)
    vZZ = vZ + 180
    srd(a, R_X, S_X, SZ_X)
    a(f"""
    s_cmp_ge_u32 s{sB}, 14
    s_cselect_b32 s{R_W}, s{S_WU}, s{S_WG}
    s_cselect_b32 s{R_W+1}, s{S_WU+1}, s{S_WG+1}
    s_and_b32 s{R_W+1}, s{R_W+1}, 0xffff
    s_mov_b32 s{R_W+2}, {SZ_W}
    s_mov_b32 s{R_W+3}, 0x20000
    s_cmp_ge_u32 s{sB}, 28
    s_cselect_b32 s{R_W+2}, 0, s{R_W+2}
    """)
    for i in range(7):
        a.vmem(f"buffer_load_dwordx4 {vr(vXS+4*i,4)}, v{t+1}, {sr(R_X,4)}, 0 offen offset:{128*i}", "X")
    for i in range(14):
        a.vmem(f"buffer_load_dwordx4 {vr(vWC+4*i,4)}, v{t+3}, {sr(R_W,4)}, s7 offen", f"C{i}")
        if i < 13:
            a(f"s_add_u32 s7, s7, {32*3584}")
    srd(a, R_K, S_K, SZ_X)
    srd(a, R_V, S_V, SZ_X)
    srd(a, R_SH, S_SHK, SZ_SHK)
    srd(a, R_WS, S_WS, WS_END)
    srd(a, R_DBG, S_DBG, 256)
    a(f"""
    v_cmp_le_u32 vcc, 448, v{vTID}
    v_mov_b32 v{t+5}, 0x7f000000
    s_nop 0
    v_cndmask_b32 v{vO0}, v{vO0}, v{t+5}, vcc
    v_cndmask_b32 v{vO1}, v{vO1}, v{t+5}, vcc
    v_cndmask_b32 v{vOH}, v{vOH}, v{t+5}, vcc
    """)
    for i in range(4):
        a.vmem(f"buffer_load_dwordx4 {vr(vSH+4*i,4)}, v{vOS}, {sr(R_SH,4)}, 0 offen offset:{16*i}", "KV")
    for i in range(3):
        a.vmem(f"buffer_load_dwordx4 {vr(vKR+4*i,4)}, v{vOH}, {sr(R_K,4)}, 0 offen offset:{896*i}", "KV")
    for i in range(8):
        a.vmem(f"buffer_load_dwordx4 {vr(vKR+12+4*i,4)}, v{vO0 if i<4 else vO1}, {sr(R_K,4)}, 0 offen offset:{896*(i&3)}", "KV")
    for i in range(8):
        a.vmem(f"buffer_load_dwordx4 {vr(vVR+4*i,4)}, v{vO0 if i<4 else vO1}, {sr(R_V,4)}, 0 offen offset:{896*(i&3)}", "KV")
    a(f"""
    v_mov_b32 v{vCA}, 0
    v_mov_b32 v{vCA+1}, 0
    v_mov_b32 v{vCA+2}, 0
    v_mov_b32 v{vCA+3}, 0
    v_mov_b32 v{vCA+4}, 0
    v_mov_b32 v{vCA+5}, 0
    v_mov_b32 v{vCA+6}, 0
    v_mov_b32 v{vCA+7}, 0
    v_lshlrev_b32 v{t+5}, 4, v{vTID}
    v_cmp_gt_u32 vcc, 22, v{vTID}
    v_mov_b32 v{t+6}, 0x7f000000
    s_mul_i32 s7, s{sB}, {22*16}
    v_cndmask_b32 v{t+5}, v{t+6}, v{t+5}, vcc
    s_add_u32 s7, s7, {WS_FLT}
    """)
    a.vmem(f"buffer_store_dwordx4 {vr(vCA,4)}, v{t+5}, {sr(R_WS,4)}, s7 offen sc1", "Z")
    vS1, vS2, vONE = t + 5, t + 6, t + 4
    a(f"v_mov_b32 v{vS1}, 0")
    a(f"v_mov_b32 v{vS2}, 0")
    a(f"v_mov_b32 v{vONE}, 0x3f803f80")
    a.vm_wait("X")
    a.stamp()
    for i in range(28):
        a(f"v_dot2c_f32_bf16 v{vS1}, v{vXS+i}, v{vONE}")
        a(f"v_dot2c_f32_bf16 v{vS2}, v{vXS+i}, v{vXS+i}")
    a("s_nop 3")
    for mode in ("quad_perm:[1,0,3,2]", "quad_perm:[2,3,0,1]", "row_half_mirror"):
        a(f"v_add_f32_dpp v{vS1}, v{vS1}, v{vS1} {mode} row_mask:0xf bank_mask:0xf")
        a(f"v_add_f32_dpp v{vS2}, v{vS2}, v{vS2} {mode} row_mask:0xf bank_mask:0xf")
        a("s_nop 1")
    a(f"""
    s_mov_b32 s8, {f32bits(1.0/448.0)}
    s_mov_b32 s9, {f32bits(1e-5)}
    v_mul_f32 v{vS1}, s8, v{vS1}
    v_mul_f32 v{vS2}, s8, v{vS2}
    v_fma_f32 v{vS2}, -v{vS1}, v{vS1}, v{vS2}
    v_max_f32 v{vS2}, 0, v{vS2}
    v_cvt_pk_bf16_f32 v{vS2}, v{vS1}, v{vS2}
    v_lshlrev_b32 v{vXS}, 16, v{vS2}
    v_and_b32 v{vS2}, 0xffff0000, v{vS2}
    v_add_f32 v{vS2}, s9, v{vS2}
    v_cvt_pk_bf16_f32 v{vS2}, v{vS2}, v{vS2}
    v_and_b32 v{vS2}, 0xffff0000, v{vS2}
    v_sqrt_f32 v{vS2}, v{vS2}
    s_nop 0
    v_cvt_pk_bf16_f32 v{vS2}, v{vS2}, v{vS2}
    v_and_b32 v{vS2}, 0xffff0000, v{vS2}
    v_rcp_f32 v{vXS+1}, v{vS2}
    v_lshlrev_b32 v{t}, 3, v{t}
    v_cmp_eq_u32 vcc, 0, v{t+2}
    v_mov_b32 v{vS1}, 0x7f000000
    s_mov_b32 s7, {WS_STATS}
    v_cndmask_b32 v{t}, v{vS1}, v{t}, vcc
    """)
    a.vmem(f"buffer_store_dwordx2 {vr(vXS,2)}, v{t}, {sr(R_WS,4)}, s7 offen sc1", "Z")
    vUP = 20
    for i in range(14):
        a.vm_wait(f"C{i}")
        for d in range(4):
            a(f"v_lshlrev_b32 v{vUP+2*d}, 16, v{vWC+4*i+d}")
            a(f"v_and_b32 v{vUP+2*d+1}, 0xffff0000, v{vWC+4*i+d}")
        for d in range(4):
            a(f"v_pk_add_f32 {vr(vCA+2*d,2)}, {vr(vCA+2*d,2)}, {vr(vUP+2*d,2)}")
    a(f"""
    v_lshlrev_b32 v{t+5}, 5, v{vTID}
    v_add_u32 v{t+5}, 65536, v{t+5}
    ds_write_b128 v{t+5}, {vr(vCA,4)}
    ds_write_b128 v{t+5}, {vr(vCA+4,4)} offset:16
    v_and_b32 v{t+5}, 127, v{vTID}
    v_lshrrev_b32 v{t+6}, 7, v{vTID}
    v_lshlrev_b32 v{t+6}, 12, v{t+6}
    v_lshl_add_u32 v{t+6}, v{t+5}, 2, v{t+6}
    v_add_u32 v{t+6}, 65536, v{t+6}
    s_waitcnt lgkmcnt(0)
    s_barrier
    """)
    for i in range(8):
        a(f"ds_read_b32 v{vUP+i}, v{t+6} offset:{512*i}")
    a("s_waitcnt lgkmcnt(0)")
    for i in (0, 2, 4, 6):
        a(f"v_add_f32 v{vUP+i}, v{vUP+i}, v{vUP+i+1}")
    a(f"v_add_f32 v{vUP}, v{vUP}, v{vUP+2}")
    a(f"v_add_f32 v{vUP+4}, v{vUP+4}, v{vUP+6}")
    a(f"v_add_f32 v{vUP}, v{vUP}, v{vUP+4}")
    a(f"""
    v_lshlrev_b32 v{t+6}, 2, v{vTID}
    v_add_u32 v{t+6}, 98304, v{t+6}
    ds_write_b32 v{t+6}, v{vUP}
    v_lshlrev_b32 v{t+6}, 2, v{t+5}
    v_add_u32 v{t+6}, 98304, v{t+6}
    s_waitcnt lgkmcnt(0)
    s_barrier
    ds_read_b32 v{vUP}, v{t+6}
    ds_read_b32 v{vUP+1}, v{t+6} offset:512
    ds_read_b32 v{vUP+2}, v{t+6} offset:1024
    ds_read_b32 v{vUP+3}, v{t+6} offset:1536
    v_lshrrev_b32 v{t+6}, 4, v{t+5}
    v_lshlrev_b32 v{t+6}, 7, v{t+6}
    v_and_b32 v{t+5}, 15, v{t+5}
    v_lshl_add_u32 v{t+6}, v{t+5}, 2, v{t+6}
    v_cmp_gt_u32 vcc, 128, v{vTID}
    v_mov_b32 v{t+5}, 0x7f000000
    s_lshl_b32 s7, s6, 10
    v_cndmask_b32 v{t+6}, v{t+5}, v{t+6}, vcc
    s_cmp_ge_u32 s{sB}, 14
    s_cselect_b32 s8, 64, 0
    s_add_u32 s7, s7, s8
    s_add_u32 s7, s7, {WS_CS}
    s_cmp_ge_u32 s{sB}, 28
    s_cselect_b32 s7, 0x7f000000, s7
    s_waitcnt lgkmcnt(0)
    v_add_f32 v{vUP}, v{vUP}, v{vUP+1}
    v_add_f32 v{vUP+2}, v{vUP+2}, v{vUP+3}
    v_add_f32 v{vUP}, v{vUP}, v{vUP+2}
    """)
    a.vmem(f"buffer_store_dword v{vUP}, v{t+6}, {sr(R_WS,4)}, s7 offen sc1", "Z")
    a.vm_all()
    a.stamp()
    a(f"""
    s_barrier
    v_mov_b32 v{t+5}, 1
    s_cmp_lg_u32 s3, 0
    s_cbranch_scc1 P_NOSIG0
    s_mov_b64 exec, 1
    buffer_atomic_add v{t+5}, v{vZZ}, {sr(R_DBG,4)}, 0 offen sc1
    s_mov_b64 exec, -1
    """)
    a.label("P_NOSIG0")
    vWU, vKU, vAC, vVU, vG = 16, 48, 70, 86, 202
    vG = 204
    for cp in range(4):
        for h in range(2):
            cc = 2 * cp + h
            a(f"v_lshlrev_b32 v{vWU+8*cp+0+h}, 16, v{vSH+2*cc}")
            a(f"v_and_b32 v{vWU+8*cp+2+h}, 0xffff0000, v{vSH+2*cc}")
            a(f"v_lshlrev_b32 v{vWU+8*cp+4+h}, 16, v{vSH+2*cc+1}")
            a(f"v_and_b32 v{vWU+8*cp+6+h}, 0xffff0000, v{vSH+2*cc+1}")
    for cp in range(4):
        for r in range(11):
            a(f"v_lshlrev_b32 v{vKU+2*r}, 16, v{vKR+4*r+cp}")
            a(f"v_and_b32 v{vKU+2*r+1}, 0xffff0000, v{vKR+4*r+cp}")
        w = lambda j: vr(vWU + 8 * cp + 2 * j, 2)
        for r in range(8):
            ac = vr(vAC + 2 * r, 2)
            a(f"v_pk_mul_f32 {ac}, {vr(vKU+2*r,2)}, {w(3)}")
            a(f"v_pk_fma_f32 {ac}, {vr(vKU+2*(r+1),2)}, {w(2)}, {ac}")
            a(f"v_pk_fma_f32 {ac}, {vr(vKU+2*(r+2),2)}, {w(1)}, {ac}")
            a(f"v_pk_fma_f32 {ac}, {vr(vKU+2*(r+3),2)}, {w(0)}, {ac}")
            a(f"v_cvt_pk_bf16_f32 v{vAC+2*r+1}, v{vAC+2*r}, v{vAC+2*r+1}")
            a(f"v_lshlrev_b32 v{vVU}, 16, v{vVR+4*r+cp}")
            a(f"v_and_b32 v{vVU+1}, 0xffff0000, v{vVR+4*r+cp}")
            a(f"v_lshlrev_b32 v{vAC+2*r}, 16, v{vAC+2*r+1}")
            a(f"v_and_b32 v{vAC+2*r+1}, 0xffff0000, v{vAC+2*r+1}")
            a(f"v_pk_mul_f32 {ac}, {ac}, {vr(vVU,2)}")
        for h in range(2):
            cc = 2 * cp + h
            for q in range(4):
                a(f"v_cvt_pk_bf16_f32 v{vG+4*cc+q}, v{vAC+2*(7-2*q)+h}, v{vAC+2*(6-2*q)+h}")
    a(f"""
    v_sub_u32 v{vO0}, 7, v{vTB}
    v_and_b32 v{vO1}, 7, v{vCG}
    v_xor_b32 v{vO0}, v{vO0}, v{vO1}
    v_lshlrev_b32 v{vO0}, 4, v{vO0}
    v_lshl_add_u32 v{vO0}, v{vCG}, 10, v{vO0}
    s_cmp_eq_u32 s3, 7
    s_cbranch_scc1 P_SKIPW
    """)
    for cc in range(8):
        a(f"ds_write_b128 v{vO0}, {vr(vG+4*cc,4)} offset:{128*cc}")
    a.label("P_SKIPW")
    a(f"""
    s_waitcnt lgkmcnt(0)
    s_barrier
    v_lshlrev_b32 v{vO0}, 4, v{vTID}
    """)
    for i in range(7):
        a(f"ds_read_b128 {vr(vG+4*i,4)}, v{vO0} offset:{8192*i}")
    a(f"""
    v_lshrrev_b32 v{vO1}, 3, v{vTID}
    v_and_b32 v{vOH}, 7, v{vTID}
    v_lshrrev_b32 v{vOS}, 6, v{vTID}
    v_xor_b32 v{vOH}, v{vOH}, v{vOS}
    v_lshlrev_b32 v{vOH}, 4, v{vOH}
    v_lshl_add_u32 v{vO1}, v{vO1}, 12, v{vOH}
    s_lshl_b32 s5, s{sB}, 7
    s_sub_u32 s5, {WS_KVR + 3968}, s5
    """)
    for i in range(7):
        a(f"s_waitcnt lgkmcnt({6-i})")
        a(f"buffer_store_dwordx4 {vr(vG+4*i,4)}, v{vO1}, {sr(R_WS,4)}, s5 offen sc1")
        if i < 6:
            a(f"s_add_u32 s5, s5, {64*4096}")
    a.stamp()
    a("s_waitcnt vmcnt(0)")
    a.stamp()
    a(f"""
    s_barrier
    s_cmp_lg_u32 s3, 0
    s_cbranch_scc1 P_NOSIG1
    s_mov_b64 exec, 1
    buffer_atomic_add v{t+5}, v{vZZ}, {sr(R_DBG,4)}, 0 offen offset:128 sc1
    s_mov_b64 exec, -1
    """)
    a.label("P_NOSIG1")
    a.stamp_flush()
    a("s_endpgm")


def gen(a):
    a.lines.append(f".globl {KNAME}\n.p2align 8\n.type {KNAME},@function")
    a.label(KNAME)
    a("s_cmp_ge_u32 s2, 256")
    a("s_cbranch_scc1 K_END")
    a.stamp()
    a("""
    s_load_dwordx16 s[16:31], s[0:1], 0
    s_load_dwordx8 s[32:39], s[0:1], 64
    s_load_dwordx2 s[40:41], s[0:1], 96
    v_lshrrev_b32 v1, 6, v0
    v_and_b32 v2, 63, v0
    s_nop 0
    v_readfirstlane_b32 s3, v1
    s_cmp_ge_u32 s2, 224
    s_cbranch_scc1 K_PREP
    """)
    gemm1_setup(a)
    a("s_waitcnt lgkmcnt(0)")
    srd(a, R_X, S_X, SZ_X)
    a(f"""
    s_cmp_eq_u32 s{sRH}, 0
    s_cselect_b32 s{R_W}, s{S_WG}, s{S_WU}
    s_cselect_b32 s{R_W+1}, s{S_WG+1}, s{S_WU+1}
    s_and_b32 s{R_W+1}, s{R_W+1}, 0xffff
    s_mov_b32 s{R_W+2}, {SZ_W}
    s_mov_b32 s{R_W+3}, 0x20000
    """)
    a.stamp()
    dma_stage(a, 0)
    gemm1_setup2(a)
    a(f"v_mov_b32 v{vT}, {L_FLAG}")
    a(f"ds_write_b128 v{vT}, {vr(vACC,4)}")
    a(f"ds_write_b128 v{vT}, {vr(vACC,4)} offset:16")
    a(f"ds_write_b128 v{vT}, {vr(vACC,4)} offset:32")
    srd(a, R_WS, S_WS, WS_END)
    srd(a, R_DBG, S_DBG, 256)
    a("s_barrier")
    dma_stage(a, 1)
    dma_stage(a, 2)
    a.stamp()
    a.vm_wait("A0")
    a("s_waitcnt lgkmcnt(0)")
    a("s_barrier")
    a.stamp()
    a("s_cmp_ge_u32 s3, 4")
    a("s_cbranch_scc1 K_ROLEC")
    vm_save, nst_save = list(a.vm), a.nst
    role_g(a)
    a.label("K_ROLEC")
    a.vm, a.nst = list(vm_save), nst_save
    role_c(a)
    a.label("K_PREP")
    a.vm, a.nst = [], 1
    role_prep(a)
    a.label("K_END")
    a("s_endpgm")


def descriptor(name, vgpr, sgpr):
    acc = (vgpr + 3) // 4 * 4
    return f""".amdhsa_kernel {name}
  .amdhsa_next_free_vgpr {vgpr}
  .amdhsa_next_free_sgpr {sgpr}
  .amdhsa_accum_offset {acc}
  .amdhsa_group_segment_fixed_size 0
  .amdhsa_kernarg_size 104
  .amdhsa_user_sgpr_count 2
  .amdhsa_user_sgpr_kernarg_segment_ptr 1
  .amdhsa_system_sgpr_workgroup_id_x 1
  .amdhsa_float_denorm_mode_32 3
.end_amdhsa_kernel
"""


def main():
    HEADER = open("cdna_kernels/" + NAME + ".s.ref").read().split("; Override launch")[0]
    a = Asm()
    gen(a)
    out = HEADER
    out += f"; @launch grid=(256,1,1) block=(512,1,1) lds={LDS_BYTES}\n"
    out += '.amdgcn_target "amdgcn-amd-amdhsa--gfx950"\n.text\n'
    out += a.text()
    out += '.section .rodata,"a"\n.p2align 6\n'
    out += descriptor(KNAME, 256, 102)
    path = sys.argv[1] if len(sys.argv) > 1 else "cdna_kernels/" + NAME + ".s"
    open(path, "w").write(out)


if __name__ == "__main__":
    main()
```

```python
import sys, os
from gen2 import (Asm, vr, sr, srd, round_pair, newlabel, f32bits, descriptor, NAME, KNAME, PROF,
                  S_X, S_K, S_V, S_SHK, S_SSMK, S_SSMD, S_WG, S_WU, S_WD, S_OUT, S_DBG, S_WS,
                  R_X, R_W, R_WS, R_DBG, R_A, R_B, SZ_X, SZ_W, SZ_SHK)
import gen12 as G12
from gen12 import (WS_H, WS_KVR, WS_T, WS_STATS, WS_CS, WS_FLU, WS_FLH, WS_FLT, WS_END, SLOT, LDS_BYTES, USCR,
                   CV_ST, CV_A, CV_U, CV_UP, role_prep, explode, vONE, vZ, vL, sSP, sT0, sT1, tag_issue)

STM = int(os.environ.get("STM", 0))
BPRIO = int(os.environ.get("BPRIO", 0))
SIGST = int(os.environ.get("SIGST", 2))
HSLEEP = int(os.environ.get("HSLEEP", 0))
WENT = [49152 + 16384 * i for i in range(7)]
L_FLAG = 45568
sRB, sCB, sE, sCQ = 4, 5, 6, 10
sXO, sWO, sM0X, sM0W, sTMP = 11, 12, 13, 14, 15
s2RB, s2CB, sCH, sUB, sAB, sD, sW2 = 18, 19, 20, 21, 22, 23, 28
sWB, sHF, sCHL, sHO = 29, 68, 69, 70
R_WD, R_O, R_H, R_W2 = R_A, R_B, 92, 88
vLB, vPOLL = 1, 21


def wg_map(a):
    a(f"""
    s_and_b32 s{sT0}, s2, 7
    s_lshr_b32 s{sT1}, s2, 3
    s_mul_i32 s{sRB}, s{sT1}, 37
    s_lshr_b32 s{sRB}, s{sRB}, 8
    s_mul_i32 s{sCB}, s{sRB}, 7
    s_sub_u32 s{sCB}, s{sT1}, s{sCB}
    s_mov_b32 s{sXO}, s{sCB}
    s_lshl_b32 s{sWO}, s{sT0}, 2
    s_add_u32 s{sWO}, s{sWO}, s{sRB}
    s_and_b32 s{sT1}, s{sT0}, 3
    s_lshl_b32 s{sT1}, s{sT1}, 2
    s_add_u32 s{sRB}, s{sRB}, s{sT1}
    s_lshr_b32 s{sT1}, s{sT0}, 2
    s_mul_i32 s{sT1}, s{sT1}, 7
    s_add_u32 s{sCB}, s{sCB}, s{sT1}
    s_and_b32 s{sCQ}, s3, 3
    v_lshlrev_b32 v{vLB}, 4, v{vL}
    v_mov_b32 v{vZ}, 0
    """)


def lds_wait_flag(a, vaddr, off, vtmp, name):
    L, Lok = newlabel(name), newlabel(name + "OK")
    a(f"s_mov_b32 s{sSP}, 0")
    a.label(L)
    a(f"""
    ds_read_b32 v{vtmp}, v{vaddr} offset:{off}
    s_add_u32 s{sSP}, s{sSP}, 1
    s_cmp_gt_u32 s{sSP}, 0x100000
    s_cbranch_scc1 {Lok}
    s_waitcnt lgkmcnt(0)
    v_cmp_eq_u32 vcc, v{vONE}, v{vtmp}
    s_nop 3
    s_cmp_eq_u64 vcc, exec
    s_cbranch_scc0 {L}
    """)
    a.label(Lok)
    a("s_waitcnt lgkmcnt(0)")


def gpoll(a, vaddr, name, first_loaded, sleep=8):
    L, Lok = newlabel(name), newlabel(name + "OK")
    a(f"s_mov_b32 s{sSP}, 0")
    if not first_loaded:
        a(f"buffer_load_dword v{vPOLL}, v{vaddr}, {sr(R_WS,4)}, 0 offen sc1")
        a("s_waitcnt vmcnt(0)")
    a.label(L)
    a(f"""
    v_cmp_eq_u32 vcc, v{vONE}, v{vPOLL}
    s_add_u32 s{sSP}, s{sSP}, 1
    s_cmp_gt_u32 s{sSP}, 0x10000
    s_cbranch_scc1 {Lok}
    s_cmp_eq_u64 vcc, exec
    s_cbranch_scc1 {Lok}
    s_sleep {sleep}
    buffer_load_dword v{vPOLL}, v{vaddr}, {sr(R_WS,4)}, 0 offen sc1
    s_waitcnt vmcnt(0)
    s_branch {L}
    """)
    a.label(Lok)


def role_g(a):
    vXA, vWA = 3, 7
    vXR, vWR0, vWR1 = 9, 10, 11
    t = 12
    vWD, vHO, vRA0 = 0, 19, 22
    vSA0, vSA1, vHS = 24, 25, 26
    vFR = 28
    vACC = 76
    vCS, vSTAT, vR2 = 204, 236, 244
    a(f"""
    s_waitcnt lgkmcnt(0)
    s_mov_b32 s{s2CB}, s{sXO}
    s_mov_b32 s{s2RB}, s{sWO}
    v_and_b32 v{t}, 31, v{vL}
    v_lshrrev_b32 v{t+1}, 5, v{vL}
    v_bfe_u32 v{t+2}, v{vL}, 1, 3
    v_xor_b32 v{t+2}, v{t+2}, v{t+1}
    v_lshlrev_b32 v{t+3}, 7, v{t}
    v_lshl_add_u32 v{vXA}, v{t+2}, 4, v{t+3}
    v_xor_b32 v{vXA+1}, 32, v{vXA}
    v_xor_b32 v{vXA+2}, 64, v{vXA}
    v_xor_b32 v{vXA+3}, 96, v{vXA}
    s_lshl_b32 s{sT0}, s{sRB}, 7
    v_add_u32 v{t}, s{sT0}, v{t}
    v_lshlrev_b32 v{t}, 3, v{t}
    v_add_u32 v{vSA0}, {WS_STATS}, v{t}
    s_lshl_b32 s{sT0}, s{sCB}, 3
    s_lshl_b32 s{sT1}, s{sCQ}, 1
    s_add_u32 s{sT0}, s{sT0}, s{sT1}
    s_lshl_b32 s{sT1}, s{sT0}, 7
    s_add_u32 s{sT1}, s{sT1}, {WS_CS}
    v_lshl_add_u32 v{vSA1}, v{t+1}, 4, s{sT1}
    s_lshl_b32 s{sT1}, s{sRB}, 9
    s_add_u32 s{sT0}, s{sT0}, s{sT1}
    s_lshl_b32 s{sT0}, s{sT0}, 10
    v_add_u32 v{vHS}, s{sT0}, v{vLB}
    v_bfe_u32 v{t}, v{vL}, 4, 1
    v_bfe_u32 v{t+2}, v{vL}, 2, 2
    v_bfe_u32 v{t+3}, v{vL}, 1, 1
    s_lshl_b32 s{sT0}, s{sCQ}, 2
    v_or_b32 v{t+3}, s{sT0}, v{t+3}
    v_lshlrev_b32 v{t+4}, 2, v{t+2}
    v_xor_b32 v{t+3}, v{t+3}, v{t+4}
    v_lshlrev_b32 v{t+4}, 1, v{t}
    v_xor_b32 v{t+3}, v{t+3}, v{t+4}
    v_lshlrev_b32 v{t+3}, 4, v{t+3}
    v_and_b32 v{t+4}, 1, v{vL}
    v_lshl_add_u32 v{t+3}, v{t+4}, 3, v{t+3}
    v_lshl_add_u32 v{t+2}, v{t+1}, 3, v{t+2}
    v_lshl_add_u32 v{t+3}, v{t+2}, 8, v{t+3}
    v_add_u32 v{t}, 1, v{t}
    v_lshl_add_u32 v{vWA}, v{t}, 14, v{t+3}
    v_xor_b32 v{vWA+1}, 32, v{vWA}
    s_mul_i32 s{sE}, s{sRB}, 56
    s_lshl_b32 s{sT0}, s{sCB}, 2
    s_add_u32 s{sE}, s{sE}, s{sT0}
    s_add_u32 s{sE}, s{sE}, s{sCQ}
    s_lshl_b32 s{sE}, s{sE}, 7
    s_add_u32 s{sE}, s{sE}, {WS_FLH}
    s_lshl_b32 s{sWB}, s{sCQ}, 12
    s_lshl_b32 s{sT0}, s{s2RB}, 8
    s_mul_i32 s{sT1}, s{sCQ}, 28
    s_add_u32 s{sT0}, s{sT0}, s{sT1}
    s_lshl_b32 s{sT0}, s{sT0}, 10
    v_add_u32 v{vHO}, s{sT0}, v{vLB}
    v_lshrrev_b32 v{t}, 3, v{vL}
    s_mul_i32 s{sT0}, s{sCQ}, 448
    v_add_u32 v{t}, s{sT0}, v{t}
    v_mul_u32_u24 v{t}, 896, v{t}
    v_bfe_u32 v{t+1}, v{vL}, 4, 1
    v_lshlrev_b32 v{t+1}, 2, v{t+1}
    v_and_b32 v{t+2}, 7, v{vL}
    v_xor_b32 v{t+1}, v{t+1}, v{t+2}
    v_lshl_add_u32 v{vWD}, v{t+1}, 4, v{t}
    s_lshl_b32 s{sT0}, s{s2CB}, 7
    v_add_u32 v{vWD}, s{sT0}, v{vWD}
    v_lshrrev_b32 v{t}, 5, v{vL}
    v_bfe_u32 v{t+1}, v{vL}, 2, 2
    v_lshl_add_u32 v{t}, v{t}, 2, v{t+1}
    v_bfe_u32 v{t+2}, v{vL}, 4, 1
    v_bfe_u32 v{t+3}, v{vL}, 1, 1
    v_lshl_add_u32 v{t+2}, v{t+2}, 1, v{t+3}
    v_bfe_u32 v{t+3}, v{vL}, 3, 1
    v_lshl_add_u32 v{t+2}, v{t+3}, 2, v{t+2}
    v_lshlrev_b32 v{t+2}, 4, v{t+2}
    v_and_b32 v{t+3}, 1, v{vL}
    v_lshl_add_u32 v{t+2}, v{t+3}, 3, v{t+2}
    v_lshl_add_u32 v{t+2}, v{t}, 7, v{t+2}
    v_add_u32 v{vRA0}, s{sWB}, v{t+2}
    s_waitcnt lgkmcnt(0)
    """)
    srd(a, R_X, S_X, SZ_X)
    srd(a, R_WS, S_WS, WS_END)
    srd(a, R_WD, S_WD, SZ_W)
    srd(a, R_O, S_OUT, SZ_X)

    def fx(s_, nt):
        return vFR + 24 * s_ + 4 * nt

    def fw(s_, mt):
        return vFR + 24 * s_ + 16 + 4 * mt

    def read_ops(st, p, s_):
        slot = (st % 3) * SLOT
        ops = []
        pre = []
        if p == 0:
            pre.append(f"v_add_u32 v{vWR0}, {slot}, v{vWA}")
            pre.append(f"v_add_u32 v{vWR1}, {slot}, v{vWA+1}")
        pre.append(f"v_add_u32 v{vXR}, {slot}, v{vXA+p}")
        ops.append(pre + [f"ds_read_b64_tr_b16 {vr(fw(s_,0),2)}, v{vWR0} offset:{4096*p}"])
        ops.append([f"ds_read_b64_tr_b16 {vr(fw(s_,0)+2,2)}, v{vWR0} offset:{4096*p+1024}"])
        for nt in range(4):
            ops.append([f"ds_read_b128 {vr(fx(s_,nt),4)}, v{vXR} offset:{4096*nt}"])
        ops.append([f"ds_read_b64_tr_b16 {vr(fw(s_,1),2)}, v{vWR1} offset:{4096*p}"])
        ops.append([f"ds_read_b64_tr_b16 {vr(fw(s_,1)+2,2)}, v{vWR1} offset:{4096*p+1024}"])
        return ops

    def wdma(r, s_, ent):
        for j in range(4):
            r(f"s_mov_b32 s{sW2}, {(32*s_ + 8*j)*896}")
            r(f"s_add_u32 m0, s{sWB}, {ent + j*1024}")
            r("s_nop 0")
            r.vmem(f"buffer_load_dwordx4 v{vWD}, {sr(R_WD,4)}, s{sW2} offen lds", f"W{s_}")

    def stat_loads(r):
        for nt in range(4):
            r.vmem(f"buffer_load_dwordx2 {vr(vSTAT+2*nt,2)}, v{vSA0}, {sr(R_WS,4)}, 0 offen offset:{256*nt} sc1", "ST")
        for i in range(8):
            r.vmem(f"buffer_load_dwordx4 {vr(vCS+4*i,4)}, v{vSA1}, {sr(R_WS,4)}, 0 offen offset:{32*i} sc1", "ST")

    def tag_read(r):
        r(f"v_mov_b32 v{t}, {USCR+8192}")
        r(f"ds_read_b32 v{vONE}, v{t}")

    WD = lambda s_: (lambda r: wdma(r, s_, WENT[s_]))
    plan = {0: [tag_read], 1: [], 2: [WD(6)], 3: [], 4: [WD(0), WD(1), WD(2)], 5: [stat_loads, WD(3), WD(4), WD(5)], 6: []}
    a("s_barrier")
    a.stamp()
    for ops in read_ops(0, 0, 0):
        for o in ops:
            a(o)
    cur = 0
    fill = []
    order = [(0, 0), (0, 1), (0, 2), (0, 3), (1, 3), (1, 2), (1, 1), (1, 0)]
    for st in range(7):
        for p in range(4):
            a("s_waitcnt lgkmcnt(0)")
            nxt = []
            if p == 3:
                assert not fill
                a("s_barrier")
                if st < 6:
                    nxt = read_ops(st + 1, 0, cur ^ 1)
                fill = explode(a, plan[st])
            else:
                nxt = read_ops(st, p + 1, cur ^ 1)
            slots = 8 * (3 - p) if p < 3 else 32
            for k, (mt, nt) in enumerate(order):
                acc = vACC + 16 * (4 * mt + nt)
                c = "0" if (st == 0 and p == 0) else vr(acc, 16)
                a(f"v_mfma_f32_32x32x16_bf16 {vr(acc,16)}, {vr(fw(cur,mt),4)}, {vr(fx(cur,nt),4)}, {c}")
                for _ in range(2):
                    if nxt:
                        for o in nxt.pop(0):
                            a(o)
                tot = sum(c_ for c_, _ in fill)
                budget = tot / max(1, slots - k)
                used = 0
                while fill and used < budget - 1e-9:
                    c_, e = fill.pop(0)
                    e()
                    used += c_
            cur ^= 1
            if p == 3 and (st in (3, 6) or STM):
                a.stamp()
    a.vm_wait("ST")
    for nt in range(4):
        a(f"v_mul_f32 v{vR2+2*nt}, v{vSTAT+2*nt+1}, v{vSTAT+2*nt+1}")
    for nt in range(1, 4):
        a(f"s_mov_b32 s{sM0X+nt-1}, {nt*128*1024}")
    a("s_nop 4")
    vH = 28
    k = 0
    for nt in range(4):
        for mt in range(2):
            acc = vACC + 16 * (4 * mt + nt)
            cs = vCS + 16 * mt
            m = vSTAT + 2 * nt
            for i in range(8):
                a(f"v_pk_fma_f32 {vr(acc+2*i,2)}, {vr(m,2)}, {vr(cs+2*i,2)}, {vr(acc+2*i,2)} op_sel_hi:[0,1,1] neg_lo:[1,0,0] neg_hi:[1,0,0]")
            for i in range(8):
                a(f"v_max_f32 v{acc+i}, 0, v{acc+i}")
            for i in range(4):
                a(f"v_pk_mul_f32 {vr(acc+8+2*i,2)}, {vr(acc+8+2*i,2)}, {vr(vR2+2*nt,2)} op_sel_hi:[1,0]")
            for i in range(4):
                a(f"v_pk_mul_f32 {vr(acc+2*i,2)}, {vr(acc+2*i,2)}, {vr(acc+8+2*i,2)}")
            o = vH + 4 * k
            for i in range(4):
                a(f"v_cvt_pk_bf16_f32 v{o+i}, v{acc+2*i}, v{acc+2*i+1}")
            so = "0" if nt == 0 else f"s{sM0X+nt-1}"
            a.vmem(f"buffer_store_dwordx4 {vr(o,4)}, v{vHS}, {sr(R_WS,4)}, {so} offen offset:{mt*1024} sc1", "HS")
            k += 1
    a.stamp()
    vA2 = 192
    WR = [60 + 16 * i for i in range(4)]
    HR = [124 + 16 * i for i in range(4)] + [28, 44]
    NHR = len(HR)
    vRB0, vRB1, vH1, vFA = 3, 4, 5, 6
    vXO, vF_, vTG, vTW, vTR, vRW, vRR = 7, 8, 9, 10, 11, 24, 25
    ENT = {s_: WENT[s_ % 7] for s_ in range(14)}

    def trreads(s_, dst):
        a(f"v_add_u32 v{vRB0}, {ENT[s_]}, v{vRA0}")
        a(f"v_xor_b32 v{vRB1}, 64, v{vRB0}")
        for tt in range(2):
            for Td in range(2):
                for hf in range(2):
                    a(f"ds_read_b64_tr_b16 {vr(dst+8*tt+4*Td+2*hf,2)}, v{vRB1 if Td else vRB0} offset:{tt*2048+hf*1024}")

    a(f"""
    v_add_u32 v{vH1}, {128*1024}, v{vHO}
    s_lshr_b32 s{sT0}, s{s2RB}, 1
    s_mul_i32 s{sT0}, s{sT0}, 56
    s_mul_i32 s{sT1}, s{sCQ}, 14
    s_add_u32 s{sT0}, s{sT0}, s{sT1}
    s_lshl_b32 s{sT0}, s{sT0}, 7
    s_add_u32 s{sT0}, s{sT0}, {WS_FLH}
    v_min_u32 v{vFA}, 13, v{vL}
    v_lshl_add_u32 v{vFA}, v{vFA}, 7, s{sT0}
    """)
    for s_ in range(4):
        a.vm_wait(f"W{s_}")
        trreads(s_, WR[s_])
    a("s_waitcnt lgkmcnt(0)")
    for s_ in range(7, 11):
        wdma(a, s_, ENT[s_])
    a.vm_wait("HS")
    a("s_mov_b64 exec, 1")
    a.vmem(f"buffer_store_dword v{vONE}, v{vZ}, {sr(R_WS,4)}, s{sE} offen sc1", "HF")
    a("s_mov_b64 exec, -1")
    a.stamp()
    a(f"""
    s_and_b32 s{sHF}, s3, 1
    s_lshr_b32 s{sCHL}, s3, 1
    s_lshl_b32 s{sT0}, s{s2RB}, 6
    s_lshl_b32 s{sT1}, s{sCHL}, 5
    s_add_u32 s{sT0}, s{sT0}, s{sT1}
    v_and_b32 v{t}, 31, v{vL}
    v_add_u32 v{t+1}, s{sT0}, v{t}
    v_lshlrev_b32 v{t+2}, 3, v{t+1}
    v_add_u32 v{t+2}, {WS_STATS}, v{t+2}
    v_mul_u32_u24 v{vXO}, 896, v{t+1}
    v_lshrrev_b32 v{t+3}, 5, v{vL}
    v_lshl_add_u32 v{vXO}, v{t+3}, 3, v{vXO}
    s_lshl_b32 s{sXO}, s{s2CB}, 6
    s_lshl_b32 s{sT1}, s{sHF}, 5
    s_add_u32 s{sXO}, s{sXO}, s{sT1}
    s_lshl_b32 s{sT1}, s{sXO}, 1
    v_add_u32 v{vXO}, s{sT1}, v{vXO}
    s_lshl_b32 s{sWO}, s{sT0}, 1
    s_add_u32 s{sWO}, s{sWO}, {WS_T}
    s_add_u32 s{sTMP}, s{sWO}, {16*4096}
    s_lshr_b32 s{sT0}, s{s2RB}, 4
    s_mul_i32 s{sT0}, s{sT0}, 448
    s_add_u32 s{sT0}, s{sT0}, s{sXO}
    s_lshl_b32 s{sT0}, s{sT0}, 7
    s_add_u32 s{sT0}, s{sT0}, {WS_FLT}
    v_lshl_add_u32 v{vF_}, v{t}, 7, s{sT0}
    v_lshrrev_b32 v{t}, 2, v{vL}
    v_add_u32 v{t}, s{sXO}, v{t}
    v_lshlrev_b32 v{t}, 12, v{t}
    v_and_b32 v{t+1}, 3, v{vL}
    v_lshl_add_u32 v{vTG}, v{t+1}, 4, v{t}
    s_add_u32 s{sT1}, s{sWB}, {WENT[4]}
    v_add_u32 v{vTW}, s{sT1}, v{vLB}
    v_bfe_u32 v{t}, v{vL}, 2, 2
    v_lshl_add_u32 v{t}, v{t+3}, 2, v{t}
    v_lshlrev_b32 v{t}, 6, v{t}
    v_bfe_u32 v{t+4}, v{vL}, 4, 1
    v_lshl_add_u32 v{t}, v{t+4}, 5, v{t}
    v_lshl_add_u32 v{t}, v{t+1}, 3, v{t}
    v_add_u32 v{vTR}, s{sT1}, v{t}
    s_add_u32 s{sT1}, s{sWB}, {WENT[0]}
    v_add_u32 v{vRW}, s{sT1}, v{vLB}
    s_lshl_b32 s{sT1}, s3, 14
    s_add_u32 s{sT1}, s{sT1}, {WENT[0]}
    v_add_u32 v{vRR}, s{sT1}, v{vLB}
    v_mov_b32 v{t+5}, {L_FLAG + 64}
    """)
    gpoll(a, vFA, "GH", False)
    a.vm = []
    a.stamp()

    def hloads(s_):
        r = HR[s_ % NHR]
        a(f"s_mov_b32 s{sHO}, {2048*s_}")
        for tt in range(2):
            for nt in range(2):
                a.vmem(f"buffer_load_dwordx4 {vr(r+8*tt+4*nt,4)}, v{vH1 if nt else vHO}, {sr(R_WS,4)}, s{sHO} offen offset:{1024*tt} sc1", f"H{s_}")

    for s_ in range(NHR):
        hloads(s_)
    vXV, vST2 = 188, 26
    for s_ in range(14):
        wreg = WR[s_ % 4]
        a.vm_wait(f"H{s_}")
        if s_ >= 4:
            a(f"s_waitcnt lgkmcnt({min(15, 8*min(3, 13 - s_))})")
        for tt in range(2):
            for Td in range(2):
                for nt in range(2):
                    acc = vA2 + 32 * nt + 16 * Td
                    c = "0" if (s_ == 0 and tt == 0) else vr(acc, 16)
                    a(f"v_mfma_f32_32x32x16_bf16 {vr(acc,16)}, {vr(wreg+8*tt+4*Td,4)}, {vr(HR[s_%NHR]+8*tt+4*nt,4)}, {c}")
        if s_ + NHR < 14:
            hloads(s_ + NHR)
        sn = s_ + 4
        if sn < 14:
            a.vm_wait(f"W{sn}")
            trreads(sn, wreg)
            if sn + 7 < 14:
                a("s_waitcnt lgkmcnt(0)")
                wdma(a, sn + 7, ENT[sn + 7])
        if s_ == 8:
            a.vmem(f"buffer_load_dwordx2 {vr(vST2,2)}, v{t+2}, {sr(R_WS,4)}, 0 offen sc1", "XV")
        if s_ == 10:
            a.vmem(f"buffer_load_dword v{vPOLL}, v{vF_}, {sr(R_WS,4)}, 0 offen sc1", "PT")
    a.stamp()
    vXV = 28
    for i in range(4):
        a.vmem(f"buffer_load_dwordx2 {vr(vXV+2*i,2)}, v{vXO}, {sr(R_X,4)}, 0 offen offset:{16*i}", "XV")
    a.vm_wait("PT")
    gpoll(a, vF_, "GT", True)
    vTT, vTD = 36, 44
    a(f"buffer_load_dwordx4 {vr(vTT,4)}, v{vTG}, {sr(R_WS,4)}, s{sWO} offen sc1")
    a(f"buffer_load_dwordx4 {vr(vTT+4,4)}, v{vTG}, {sr(R_WS,4)}, s{sTMP} offen sc1")
    a.stamp()
    for tau in range(4):
        for q in range(4):
            a(f"ds_write_b128 v{vRW}, {vr(vA2+16*tau+4*q,4)} offset:{tau*16384+q*1024}")
    a(f"s_lshl_b32 s{sT0}, s3, 2")
    a(f"v_add_u32 v{t+6}, s{sT0}, v{t+5}")
    a(f"v_and_b32 v{t+4}, 3, v{vL}")
    a(f"v_lshl_add_u32 v{t+4}, v{t+4}, 2, v{t+5}")
    a("s_waitcnt lgkmcnt(0)")
    a(f"ds_write_b32 v{t+6}, v{vONE}")
    vX, vXN, vP, vE, vS = 52, 68, 84, 148, 164
    a("s_waitcnt vmcnt(2)")
    for i in range(8):
        a(f"v_lshlrev_b32 v{vX+2*i}, 16, v{vXV+i}")
        a(f"v_and_b32 v{vX+2*i+1}, 0xffff0000, v{vXV+i}")
    for i in range(16):
        a(f"v_sub_f32 v{vXN+i}, v{vX+i}, v{vST2}")
    for i in range(8):
        round_pair(a, vXN + 2 * i, vXN + 2 * i + 1)
    for i in range(16):
        a(f"v_mul_f32 v{vXN+i}, v{vXN+i}, v{vST2+1}")
    for i in range(8):
        round_pair(a, vXN + 2 * i, vXN + 2 * i + 1)
    a("s_waitcnt vmcnt(0)")
    a(f"ds_write_b128 v{vTW}, {vr(vTT,4)}")
    a(f"ds_write_b128 v{vTW}, {vr(vTT+4,4)} offset:1024")
    lds_wait_flag(a, t + 4, 0, t + 3, "GR")
    for i in range(4):
        a(f"ds_read_b64_tr_b16 {vr(vTD+2*i,2)}, v{vTR} offset:{512*i}")
    for src in range(4):
        for q in range(4):
            a(f"ds_read_b128 {vr(vP+16*src+4*q,4)}, v{vRR} offset:{src*4096+q*1024}")
    a("s_waitcnt lgkmcnt(15)")
    for i in range(8):
        a(f"v_lshlrev_b32 v{vS+2*i}, 16, v{vTD+i}")
        a(f"v_and_b32 v{vS+2*i+1}, 0xffff0000, v{vTD+i}")
    for i in range(8):
        a(f"v_pk_mul_f32 {vr(vS+2*i,2)}, {vr(vS+2*i,2)}, {vr(vXN+2*i,2)}")
    for i in range(8):
        round_pair(a, vS + 2 * i, vS + 2 * i + 1)
    a("s_waitcnt lgkmcnt(0)")
    for i in range(8):
        a(f"v_pk_add_f32 {vr(vP+2*i,2)}, {vr(vP+2*i,2)}, {vr(vP+16+2*i,2)}")
        a(f"v_pk_add_f32 {vr(vP+32+2*i,2)}, {vr(vP+32+2*i,2)}, {vr(vP+48+2*i,2)}")
    for i in range(8):
        a(f"v_pk_add_f32 {vr(vP+2*i,2)}, {vr(vP+2*i,2)}, {vr(vP+32+2*i,2)}")
    for i in range(8):
        round_pair(a, vP + 2 * i, vP + 2 * i + 1)
    a(f"s_mov_b32 s{sW2}, {f32bits(-1.4426950408889634)}")
    for i in range(16):
        a(f"v_mul_f32 v{vE+i}, s{sW2}, v{vP+i}")
    for i in range(16):
        a(f"v_exp_f32 v{vE+i}, v{vE+i}")
    for i in range(16):
        a(f"v_add_f32 v{vE+i}, 1.0, v{vE+i}")
    for i in range(16):
        a(f"v_rcp_f32 v{vE+i}, v{vE+i}")
    a("s_nop 0")
    for i in range(8):
        a(f"v_pk_mul_f32 {vr(vP+2*i,2)}, {vr(vP+2*i,2)}, {vr(vE+2*i,2)}")
    for i in range(8):
        round_pair(a, vP + 2 * i, vP + 2 * i + 1)
    for i in range(8):
        a(f"v_pk_mul_f32 {vr(vS+2*i,2)}, {vr(vS+2*i,2)}, {vr(vP+2*i,2)}")
    for i in range(8):
        round_pair(a, vS + 2 * i, vS + 2 * i + 1)
    for i in range(8):
        a(f"v_pk_add_f32 {vr(vS+2*i,2)}, {vr(vS+2*i,2)}, {vr(vX+2*i,2)}")
    for i in range(8):
        a(f"v_cvt_pk_bf16_f32 v{vTT+i}, v{vS+2*i}, v{vS+2*i+1}")
    for i in range(4):
        a(f"buffer_store_dwordx2 {vr(vTT+2*i,2)}, v{vXO}, {sr(R_O,4)}, 0 offen offset:{16*i}")
    if PROF:
        a("s_waitcnt vmcnt(0)")
    a.stamp()
    a.stamp_flush()
    a("s_endpgm")


def role_b(a):
    R_K, R_V, R_SH = 76, 80, 84
    vXG0, vXG1, vWG = 3, 4, 5
    t = 6
    uA = 24
    uK, uV, uW, uX = 32, 43, 52, 56
    uKU, uWU, uAC, uVU, uO, uS = 64, 86, 94, 110, 112, 120
    vD, vU, vBLD = 144, 168, 176
    vAA, vBA, vKA, vTA, vEXW, vEXR, vFL, vWM, vWX, vWZ, vWP, vPA, vKVA = range(216, 229)
    a(f"""
    v_lshrrev_b32 v{t}, 3, v{vL}
    v_lshrrev_b32 v{t+1}, 4, v{vL}
    v_and_b32 v{t+2}, 7, v{vL}
    s_lshl_b32 s{sT0}, s{sRB}, 7
    s_lshl_b32 s{sT1}, s{sCQ}, 5
    s_add_u32 s{sT0}, s{sT0}, s{sT1}
    v_add_u32 v{t}, s{sT0}, v{t}
    v_mul_u32_u24 v{t}, 896, v{t}
    v_xor_b32 v{t+3}, v{t+2}, v{t+1}
    v_lshl_add_u32 v{vXG0}, v{t+3}, 4, v{t}
    v_xor_b32 v{t+3}, 4, v{t+3}
    v_lshl_add_u32 v{vXG1}, v{t+3}, 4, v{t}
    v_add_u32 v{vXG1}, {8*896}, v{vXG1}
    s_lshr_b32 s{sCHL}, s{sCQ}, 1
    s_and_b32 s{sHF}, s{sCQ}, 1
    v_and_b32 v{t+2}, 15, v{vL}
    v_lshlrev_b32 v{t+3}, 2, v{t+1}
    v_xor_b32 v{t+2}, v{t+2}, v{t+3}
    s_lshl_b32 s{sT0}, s{sCHL}, 1
    v_xor_b32 v{t+2}, s{sT0}, v{t+2}
    s_lshl_b32 s{sT1}, s{sHF}, 5
    v_add_u32 v{t+3}, s{sT1}, v{t+1}
    v_mul_u32_u24 v{t+3}, 3584, v{t+3}
    v_lshl_add_u32 v{vWG}, v{t+2}, 4, v{t+3}
    s_lshl_b32 s{sT0}, s{sCB}, 8
    v_add_u32 v{vWG}, s{sT0}, v{vWG}
    s_lshl_b32 s{sM0X}, s{sCQ}, 12
    s_lshl_b32 s{sM0W}, s{sCQ}, 13
    s_add_u32 s{sM0W}, s{sM0W}, 16384
    s_mov_b32 s{sE}, s{sWO}
    s_waitcnt lgkmcnt(0)
    """)
    srd(a, R_X, S_X, SZ_X)
    a(f"""
    s_cmp_eq_u32 s{sCHL}, 0
    s_cselect_b32 s{R_W}, s{S_WG}, s{S_WU}
    s_cselect_b32 s{R_W+1}, s{S_WG+1}, s{S_WU+1}
    s_and_b32 s{R_W+1}, s{R_W+1}, 0xffff
    s_mov_b32 s{R_W+2}, {SZ_W}
    s_mov_b32 s{R_W+3}, 0x20000
    """)

    def dma(st):
        slot = (st % 3) * SLOT
        for j in range(8):
            a(f"s_mov_b32 s{sWO}, {st*64*3584 + j*4*3584}")
            a(f"s_add_u32 m0, s{sM0W}, {slot+1024*j}")
            a("s_nop 0")
            a.vmem(f"buffer_load_dwordx4 v{vWG}, {sr(R_W,4)}, s{sWO} offen lds", f"A{st}")
            if j % 2 == 1:
                i = j // 2
                a(f"s_mov_b32 s{sXO}, {st*128 + (i//2)*16*896}")
                a(f"s_add_u32 m0, s{sM0X}, {slot+1024*i}")
                a("s_nop 0")
                a.vmem(f"buffer_load_dwordx4 v{vXG1 if i%2 else vXG0}, {sr(R_X,4)}, s{sXO} offen lds", f"A{st}")

    dma(0)
    srd(a, R_K, S_K, SZ_X)
    srd(a, R_V, S_V, SZ_X)
    srd(a, R_SH, S_SHK, SZ_SHK)
    srd(a, R_WS, S_WS, WS_END)
    srd(a, R_DBG, S_DBG, 256)
    a(f"""
    v_cmp_le_u32 vcc, 28, v{vL}
    v_mov_b32 v{uA+4}, 0x7f000000
    s_and_b32 s{sT0}, s2, 7
    v_cndmask_b32 v{uA}, 0, 1, vcc
    v_mul_u32_u24 v{uA+1}, 28, v{uA}
    v_sub_u32 v{uA+1}, v{vL}, v{uA+1}
    s_and_b32 s{sT1}, s2, 0xf8
    s_lshl_b32 s{sTMP}, s{sCQ}, 1
    s_add_u32 s{sT1}, s{sT1}, s{sTMP}
    s_mul_i32 s{sT1}, s{sT1}, {8*896}
    s_mul_i32 s{sT0}, s{sT0}, 112
    s_add_u32 s{sT1}, s{sT1}, s{sT0}
    v_mul_u32_u24 v{uA+2}, {8*896}, v{uA}
    v_lshl_add_u32 v{uA+2}, v{uA+1}, 2, v{uA+2}
    v_add_u32 v{uA+2}, s{sT1}, v{uA+2}
    v_cmp_le_u32 vcc, 56, v{vL}
    v_subrev_u32 v{uA+3}, {3*896}, v{uA+2}
    s_lshl_b32 s{sT0}, s{sT0}, 2
    v_cndmask_b32 v{uA+2}, v{uA+2}, v{uA+4}, vcc
    v_cndmask_b32 v{uA+3}, v{uA+3}, v{uA+4}, vcc
    v_lshl_add_u32 v{uA+5}, v{uA+1}, 4, s{sT0}
    s_lshl_b32 s{sT0}, s2, 3
    s_add_u32 s{sT0}, s{sT0}, s{sTMP}
    s_mul_i32 s{sT0}, s{sT0}, 896
    v_add_u32 v{t}, s{sT0}, v{vLB}
    v_cndmask_b32 v{t}, v{t}, v{uA+4}, vcc
    s_mov_b32 s{sT1}, {4*896}
    """)
    a.vmem(f"buffer_load_dwordx4 {vr(uW,4)}, v{uA+5}, {sr(R_SH,4)}, 0 offen", "UK")
    for i in range(3):
        a.vmem(f"buffer_load_dword v{uK+i}, v{uA+3}, {sr(R_K,4)}, 0 offen offset:{896*i}", "UK")
    for i in range(8):
        a.vmem(f"buffer_load_dword v{uK+3+i}, v{uA+2}, {sr(R_K,4)}, {'0' if i<4 else 's%d'%sT1} offen offset:{896*(i&3)}", "UK")
    for i in range(8):
        a.vmem(f"buffer_load_dword v{uV+i}, v{uA+2}, {sr(R_V,4)}, {'0' if i<4 else 's%d'%sT1} offen offset:{896*(i&3)}", "UK")
    for i in range(2):
        a.vmem(f"buffer_load_dwordx4 {vr(uX+4*i,4)}, v{t}, {sr(R_X,4)}, 0 offen offset:{896*i}", "UX")
    dma(1)
    a.vm_wait("A0")
    a("s_barrier")
    if BPRIO:
        a(f"s_setprio {BPRIO}")
    a.stamp()
    a(f"s_lshl_b32 s{sT0}, s{sCQ}, 12")
    a.vmem(f"buffer_load_dword v{vONE}, v{vZ}, {sr(R_DBG,4)}, s{sT0} offen sc1", "TAG")
    dma(2)

    def chunk_kv():
        a.vm_wait("UK")
        for r in range(11):
            a(f"v_lshlrev_b32 v{uKU+2*r}, 16, v{uK+r}")
            a(f"v_and_b32 v{uKU+2*r+1}, 0xffff0000, v{uK+r}")
        for h in range(2):
            a(f"v_lshlrev_b32 v{uWU+0+h}, 16, v{uW+2*h}")
            a(f"v_and_b32 v{uWU+2+h}, 0xffff0000, v{uW+2*h}")
            a(f"v_lshlrev_b32 v{uWU+4+h}, 16, v{uW+2*h+1}")
            a(f"v_and_b32 v{uWU+6+h}, 0xffff0000, v{uW+2*h+1}")
        w = lambda j: vr(uWU + 2 * j, 2)
        for r in range(8):
            ac = vr(uAC + 2 * r, 2)
            a(f"v_pk_mul_f32 {ac}, {vr(uKU+2*r,2)}, {w(3)}")
            a(f"v_pk_fma_f32 {ac}, {vr(uKU+2*(r+1),2)}, {w(2)}, {ac}")
            a(f"v_pk_fma_f32 {ac}, {vr(uKU+2*(r+2),2)}, {w(1)}, {ac}")
            a(f"v_pk_fma_f32 {ac}, {vr(uKU+2*(r+3),2)}, {w(0)}, {ac}")
            a(f"v_cvt_pk_bf16_f32 v{uAC+2*r+1}, v{uAC+2*r}, v{uAC+2*r+1}")
            a(f"v_lshlrev_b32 v{uVU}, 16, v{uV+r}")
            a(f"v_and_b32 v{uVU+1}, 0xffff0000, v{uV+r}")
            a(f"v_lshlrev_b32 v{uAC+2*r}, 16, v{uAC+2*r+1}")
            a(f"v_and_b32 v{uAC+2*r+1}, 0xffff0000, v{uAC+2*r+1}")
            a(f"v_pk_mul_f32 {ac}, {ac}, {vr(uVU,2)}")
        for h in range(2):
            for q in range(4):
                a(f"v_cvt_pk_bf16_f32 v{uO+4*h+q}, v{uAC+2*(7-2*q)+h}, v{uAC+2*(6-2*q)+h}")
        a(f"""
        v_lshlrev_b32 v{uA+2}, 8, v{uA+1}
        v_lshlrev_b32 v{uA+3}, 4, v{uA}
        v_sub_u32 v{uA+2}, v{uA+2}, v{uA+3}
        s_lshl_b32 s{sT0}, s{sCQ}, 5
        s_sub_u32 s{sT0}, {USCR + 7*16}, s{sT0}
        v_add_u32 v{uA+2}, s{sT0}, v{uA+2}
        s_mov_b32 exec_hi, 0xffffff
        ds_write_b128 v{uA+2}, {vr(uO,4)}
        ds_write_b128 v{uA+2}, {vr(uO+4,4)} offset:128
        s_mov_b64 exec, -1
        """)

    def tag_block():
        L, Lok, Lsk = newlabel("TB"), newlabel("TBOK"), newlabel("TBSK")
        a.vm_wait("TAG")
        a(f"s_cmp_lg_u32 s{sCQ}, 0")
        a(f"s_cbranch_scc1 {Lsk}")
        a(f"s_mov_b32 s{sSP}, 0")
        a.label(L)
        a(f"""
        v_readfirstlane_b32 s{sSP+1}, v{vONE}
        s_add_u32 s{sSP}, s{sSP}, 1
        s_cmp_gt_u32 s{sSP}, 0x4000
        s_cbranch_scc1 {Lok}
        s_cmp_lg_u32 s{sSP+1}, 0
        s_cbranch_scc1 {Lok}
        s_sleep 4
        buffer_load_dword v{vONE}, v{vZ}, {sr(R_DBG,4)}, 0 offen sc1
        s_waitcnt vmcnt(0)
        s_branch {L}
        """)
        a.label(Lok)
        a(f"v_mov_b32 v{t}, {USCR+8192}")
        a(f"ds_write_b32 v{t}, v{vONE}")
        a.label(Lsk)

    def chunk_store_stats():
        a(f"""
        v_mov_b32 v{t}, {USCR+8192}
        ds_read_b32 v{vONE}, v{t}
        s_mul_i32 s{sT0}, s{sCQ}, 1792
        s_add_u32 s{sT0}, s{sT0}, {USCR}
        v_add_u32 v{uA+2}, s{sT0}, v{vLB}
        ds_read_b128 {vr(uO,4)}, v{uA+2}
        ds_read_b128 {vr(uO+4,4)}, v{uA+2} offset:896
        v_lshrrev_b32 v{uA+2}, 3, v{vL}
        v_lshlrev_b32 v{uA+2}, 12, v{uA+2}
        v_and_b32 v{uA+3}, 7, v{vL}
        v_lshl_add_u32 v{uA+2}, v{uA+3}, 4, v{uA+2}
        s_and_b32 s{sT0}, s2, 7
        s_mul_i32 s{sT0}, s{sT0}, 56
        s_mul_i32 s{sT1}, s{sCQ}, 14
        s_add_u32 s{sT0}, s{sT0}, s{sT1}
        s_lshl_b32 s{sT0}, s{sT0}, 12
        s_lshr_b32 s{sT1}, s2, 3
        s_lshl_b32 s{sT1}, s{sT1}, 7
        s_sub_u32 s{sT0}, s{sT0}, s{sT1}
        s_add_u32 s{sT0}, s{sT0}, {WS_KVR + 3968}
        s_add_u32 s{sT1}, s{sT0}, {7*4096}
        s_waitcnt lgkmcnt(0)
        s_mov_b32 exec_hi, 0xffffff
        """)
        a.vmem(f"buffer_store_dwordx4 {vr(uO,4)}, v{uA+2}, {sr(R_WS,4)}, s{sT0} offen sc1", "US")
        a.vmem(f"buffer_store_dwordx4 {vr(uO+4,4)}, v{uA+2}, {sr(R_WS,4)}, s{sT1} offen sc1", "US")
        a("s_mov_b64 exec, -1")
        a.vm_wait("UX")
        for i in range(4):
            a(f"v_mov_b32 v{uS+i}, 0")
        a(f"v_mov_b32 v{uS+4}, 0x3f803f80")
        for i in range(4):
            for r in range(2):
                a(f"v_dot2c_f32_bf16 v{uS+2*r}, v{uX+4*r+i}, v{uS+4}")
                a(f"v_dot2c_f32_bf16 v{uS+2*r+1}, v{uX+4*r+i}, v{uX+4*r+i}")
        a("s_nop 2")
        for mode in ("quad_perm:[1,0,3,2]", "quad_perm:[2,3,0,1]", "row_half_mirror", "row_mirror"):
            for i in range(4):
                a(f"v_add_f32_dpp v{uS+i}, v{uS+i}, v{uS+i} {mode} row_mask:0xf bank_mask:0xf")
        for sw in ("v_permlane16_swap_b32", "v_permlane32_swap_b32"):
            for i in range(4):
                a(f"v_mov_b32 v{uS+4+i}, v{uS+i}")
            a("s_nop 1")
            for i in range(4):
                a(f"{sw} v{uS+i}, v{uS+4+i}")
            a("s_nop 1")
            for i in range(4):
                a(f"v_add_f32 v{uS+i}, v{uS+i}, v{uS+4+i}")
        a(f"s_mov_b32 s{sT0}, {f32bits(1.0/448.0)}")
        a(f"s_mov_b32 s{sT1}, {f32bits(1e-5)}")
        for r in range(2):
            m, q = uS + 2 * r, uS + 2 * r + 1
            a(f"""
            v_mul_f32 v{m}, s{sT0}, v{m}
            v_mul_f32 v{q}, s{sT0}, v{q}
            v_fma_f32 v{q}, -v{m}, v{m}, v{q}
            v_max_f32 v{q}, 0, v{q}
            v_cvt_pk_bf16_f32 v{q}, v{m}, v{q}
            v_lshlrev_b32 v{m}, 16, v{q}
            v_and_b32 v{q}, 0xffff0000, v{q}
            v_add_f32 v{q}, s{sT1}, v{q}
            v_cvt_pk_bf16_f32 v{q}, v{q}, v{q}
            v_and_b32 v{q}, 0xffff0000, v{q}
            v_sqrt_f32 v{q}, v{q}
            s_nop 0
            v_cvt_pk_bf16_f32 v{q}, v{q}, v{q}
            v_and_b32 v{q}, 0xffff0000, v{q}
            v_rcp_f32 v{q}, v{q}
            """)
        a(f"""
        s_lshl_b32 s{sT0}, s2, 2
        s_add_u32 s{sT0}, s{sT0}, s{sCQ}
        s_lshl_b32 s{sT0}, s{sT0}, 4
        s_add_u32 s{sT0}, s{sT0}, {WS_STATS}
        s_mov_b64 exec, 1
        """)
        a.vmem(f"buffer_store_dwordx4 {vr(uS,4)}, v{vZ}, {sr(R_WS,4)}, s{sT0} offen sc1", "US")
        a("s_mov_b64 exec, -1")

    def chunk_conv_setup():
        c = t
        a(f"""
        s_lshl_b32 s{sCH}, s2, 1
        s_add_u32 s{sCH}, s{sCH}, s{sCHL}
        s_mul_i32 s{sUB}, s{sCHL}, {8*CV_UP}
        s_add_u32 s{sUB}, s{sUB}, {CV_U}
        s_mul_i32 s{sAB}, s{sCHL}, {CV_A[1]}
        s_lshl_b32 s{sT0}, s{sCH}, 12
        s_add_u32 s{R_H}, s{S_SSMK}, s{sT0}
        s_addc_u32 s{R_H+1}, s{S_SSMK+1}, 0
        s_and_b32 s{R_H+1}, s{R_H+1}, 0xffff
        s_mov_b32 s{R_H+2}, 4096
        s_mov_b32 s{R_H+3}, 0x20000
        s_lshl_b32 s{sT1}, s2, 2
        s_load_dword s{sD}, {sr(S_SSMD,2)}, s{sT1}
        s_lshl_b32 s{sT1}, s{sHF}, 11
        v_add_u32 v{c+1}, s{sT1}, v{vLB}
        v_subrev_u32 v{c+2}, 64, v{vLB}
        v_subrev_u32 v{c+3}, 48, v{vLB}
        s_add_u32 s{sT0}, s{sT0}, {WS_KVR}
        v_add_u32 v{vKVA}, s{sT0}, v{c+1}
        """)
        a.vmem(f"buffer_load_dwordx4 {vr(vD,4)}, v{c+1}, {sr(R_H,4)}, 0 offen", "D")
        a.vmem(f"buffer_load_dwordx4 {vr(vD+4,4)}, v{c+1}, {sr(R_H,4)}, 0 offen offset:16", "D")
        a.vmem(f"buffer_load_dwordx4 {vr(vD+8,4)}, v{c+1}, {sr(R_H,4)}, 0 offen offset:1024", "D")
        a.vmem(f"buffer_load_dwordx4 {vr(vD+12,4)}, v{c+1}, {sr(R_H,4)}, 0 offen offset:1040", "D")
        a.vmem(f"buffer_load_dwordx4 {vr(vD+16,4)}, v{c+2}, {sr(R_H,4)}, 0 offen", "D")
        a.vmem(f"buffer_load_dwordx4 {vr(vD+20,4)}, v{c+3}, {sr(R_H,4)}, 0 offen", "D")
        a(f"""
        v_add_u32 v{vWM}, s{sAB}, v{c+1}
        v_add_u32 v{vWX}, s{sAB}, v{vLB}
        v_mov_b32 v{vBLD+36}, 0
        v_mov_b32 v{vBLD+37}, 0
        v_mov_b32 v{vBLD+38}, 0
        v_mov_b32 v{vBLD+39}, 0
        v_lshrrev_b32 v{c+4}, 4, v{vL}
        s_lshl_b32 s{sT0}, s{sHF}, 2
        v_add_u32 v{vWZ}, s{sT0}, v{c+4}
        v_mul_u32_u24 v{vWZ}, {CV_UP}, v{vWZ}
        v_and_b32 v{c}, 15, v{vL}
        v_lshl_add_u32 v{vWZ}, v{c}, 4, v{vWZ}
        v_add_u32 v{vWZ}, s{sUB}, v{vWZ}
        v_and_b32 v{vWP}, 7, v{vL}
        v_xor_b32 v{vWP}, 4, v{vWP}
        v_mul_u32_u24 v{vWP}, {CV_UP}, v{vWP}
        v_lshrrev_b32 v{c+5}, 3, v{vL}
        v_lshlrev_b32 v{c+5}, 4, v{c+5}
        v_sub_u32 v{vWP}, v{vWP}, v{c+5}
        s_lshl_b32 s{sT0}, s{sHF}, 8
        s_sub_u32 s{sT0}, s{sUB}, s{sT0}
        s_add_u32 s{sT0}, s{sT0}, {(47-8)*16}
        v_add_u32 v{vWP}, s{sT0}, v{vWP}
        v_mul_u32_u24 v{vBA}, {CV_UP}, v{c+4}
        v_lshl_add_u32 v{vBA}, v{c}, 4, v{vBA}
        v_add_u32 v{vBA}, s{sUB}, v{vBA}
        v_sub_u32 v{vKA}, 3, v{c+4}
        v_mul_u32_u24 v{vKA}, {CV_UP}, v{vKA}
        v_lshl_add_u32 v{vKA}, v{c}, 4, v{vKA}
        v_add_u32 v{vKA}, s{sUB}, v{vKA}
        v_lshlrev_b32 v{vTA}, 7, v{c}
        v_lshl_add_u32 v{vTA}, v{c+4}, 4, v{vTA}
        v_lshrrev_b32 v{c}, 2, v{c}
        v_add_u32 v{c}, v{c}, v{c+4}
        v_lshlrev_b32 v{c}, 4, v{c}
        v_add_u32 v{c}, s{sAB}, v{c}
        v_and_b32 v{c+4}, 3, v{vL}
        v_mul_u32_u24 v{vAA}, {CV_ST}, v{c+4}
        v_add_u32 v{vAA}, v{vAA}, v{c}
        s_lshl_b32 s{sT0}, s{sHF}, 12
        s_add_u32 s{sT1}, s{sT0}, s{sAB}
        v_add_u32 v{vEXW}, s{sT1}, v{vLB}
        s_xor_b32 s{sT0}, s{sT0}, 4096
        s_add_u32 s{sT1}, s{sT0}, s{sAB}
        v_add_u32 v{vEXR}, s{sT1}, v{vLB}
        s_lshl_b32 s{sT0}, s{sCHL}, 5
        s_add_u32 s{sT0}, s{sT0}, {L_FLAG}
        v_mov_b32 v{vFL}, s{sT0}
        s_lshl_b32 s{sT0}, s{sRB}, 4
        v_add_u32 v{c+2}, s{sT0}, v{vL}
        s_mul_i32 s{sT1}, s2, 2341
        s_lshr_b32 s{sT1}, s{sT1}, 16
        s_sub_u32 s{sT1}, s{sT1}, 128
        v_lshl_add_u32 v{c+3}, v{vL}, 3, s{sT1}
        v_cmp_le_u32 vcc, 16, v{vL}
        s_add_u32 s{sT1}, s{sCB}, {224 - 48*14}
        v_mul_u32_u24 v{c}, 14, v{vL}
        v_cndmask_b32 v{c+2}, v{c+2}, v{c+3}, vcc
        v_add_u32 v{c+3}, s{sT1}, v{c}
        v_cmp_le_u32 vcc, 48, v{vL}
        s_lshl_b32 s{sT1}, s{sE}, 3
        s_sub_u32 s{sT1}, s{sT1}, 50
        v_cndmask_b32 v{c+2}, v{c+2}, v{c+3}, vcc
        v_add_u32 v{c+3}, s{sT1}, v{vL}
        v_cmp_le_u32 vcc, 50, v{vL}
        v_mov_b32 v{c}, s{sT0}
        s_lshl_b32 s{sT1}, s{sCQ}, 24
        v_cndmask_b32 v{c+2}, v{c+2}, v{c+3}, vcc
        v_cmp_le_u32 vcc, 58, v{vL}
        s_add_u32 s{sT1}, s{sT1}, {WS_FLU}
        s_nop 0
        v_cndmask_b32 v{c+2}, v{c+2}, v{c}, vcc
        v_lshl_add_u32 v{vPA}, v{c+2}, 7, s{sT1}
        """)

    def signal():
        L = newlabel("NOSIG")
        a(f"""
        s_cmp_lg_u32 s{sCQ}, 0
        s_cbranch_scc1 {L}
        s_lshl_b32 s{sT0}, s2, 7
        s_add_u32 s{sT0}, s{sT0}, {WS_FLU}
        s_mov_b64 exec, 1
        buffer_store_dword v{vONE}, v{vZ}, {sr(R_WS,4)}, s{sT0} offen sc1
        s_mov_b64 exec, -1
        """)
        a.label(L)

    def chunk_build():
        a.vm_wait("D")
        for rnd in range(3):
            d, b = vD + 8 * rnd, vBLD + 12 * rnd
            for i in range(4):
                a(f"v_mov_b32 v{b+i}, v{d+1+i}")
            for i in range(4):
                a(f"v_alignbit_b32 v{b+4+i}, v{d+i+1}, v{d+i}, 16")
            for i in range(4):
                a(f"v_alignbit_b32 v{b+8+i}, v{d+i+2}, v{d+i+1}, 16")

    def poll_block():
        L = newlabel("NOPOLL")
        a(f"s_cmp_lg_u32 s{sCQ}, 0")
        a(f"s_cbranch_scc1 {L}")
        gpoll(a, vPA, "BP", False)
        a.label(L)

    for st in range(7):
        if st == 0:
            chunk_kv()
            tag_block()
        if st == 1:
            chunk_store_stats()
        if st == 2:
            chunk_conv_setup()
        if st == 3:
            signal()
        if st == 4:
            chunk_build()
        if st == 6:
            a.vmem(f"buffer_load_dwordx4 {vr(vU,4)}, v{vKVA}, {sr(R_WS,4)}, 0 offen sc1", "U")
            a.vmem(f"buffer_load_dwordx4 {vr(vU+4,4)}, v{vKVA}, {sr(R_WS,4)}, 0 offen offset:1024 sc1", "U")
        a("s_waitcnt lgkmcnt(0)")
        if st + 1 < 7:
            a.vm_wait(f"A{st+1}")
        if st == 2:
            a.vm_wait("US")
        if st == 5:
            poll_block()
        a("s_barrier")
        if st + 3 < 7:
            dma(st + 3)
        if st in (3, 6) or STM:
            a.stamp()
    for rnd in range(3):
        d, b = vD + 8 * rnd, vBLD + 12 * rnd
        if rnd == 2:
            a("s_mov_b64 exec, 15")
        srcs = [b + 4, b, b + 8, d + 2]
        for cc in range(4):
            a(f"ds_write_b128 v{vWX if rnd == 2 else vWM}, {vr(srcs[cc],4)} offset:{cc*CV_ST + (0 if rnd == 2 else 64 + 1024*rnd)}")
        if rnd == 2:
            a("s_mov_b64 exec, -1")
    a(f"ds_write_b128 v{vWZ}, {vr(vBLD+36,4)}")
    a.vm_wait("U")
    a(f"ds_write_b128 v{vWP}, {vr(vU,4)} offset:128")
    a(f"ds_write_b128 v{vWP}, {vr(vU+4,4)}")
    a("s_waitcnt lgkmcnt(0)")
    a(f"s_cmp_eq_u32 s{sHF}, 1")
    a("s_cbranch_scc1 C_HALF1")
    vF, vB, vAC = 32, 68, 100
    nst_save = a.nst
    for half in range(2):
        if half:
            a.label("C_HALF1")
            a.nst = nst_save
        own, oth = half, half ^ 1
        a(f"ds_write_b32 v{vFL}, v{vONE} offset:{4*own}")
        lds_wait_flag(a, vFL, 4 * oth, t, "CR")
        a.stamp()

        def F(psi):
            return vF + 6 * (psi % 6)

        def rdA(psi):
            off = 4 * psi * 16
            a(f"ds_read_b128 {vr(F(psi),4)}, v{vAA} offset:{off}")
            a(f"ds_read_b64 {vr(F(psi)+4,2)}, v{vAA} offset:{off+16}")
            return 2

        def nus(dl):
            return (0, 1) if dl < 16 else (1,)

        def rdB(dl):
            n = 0
            for kc in range(2):
                for nu in nus(dl):
                    a(f"ds_read_b128 {vr(vB+16*(dl&1)+8*kc+4*nu,4)}, v{vBA} offset:{kc*4*CV_UP+(16+16*nu-dl)*16}")
                    n += 1
            return n

        dls = list(range(0, 12)) if half == 0 else list(range(12, 32))
        if half:
            rdA(2 * dls[0] - 1)
        rdA(2 * dls[0]); rdA(2 * dls[0] + 1); rdB(dls[0])
        inited = set()
        for dl in dls:
            n = 0
            if dl != dls[-1]:
                n += rdA(2 * dl + 2); n += rdA(2 * dl + 3); n += rdB(dl + 1)
            a(f"s_waitcnt lgkmcnt({n})")
            for kc in range(2):
                for p in range(2):
                    psi = 2 * dl + p - kc
                    if psi < 0:
                        continue
                    for par in range(2):
                        for nu in nus(dl):
                            acc = vAC + 16 * nu + 8 * p + 4 * par
                            csrc = vr(acc, 4) if acc in inited else "0"
                            inited.add(acc)
                            a(f"v_mfma_f32_16x16x32_bf16 {vr(acc,4)}, {vr(F(psi)+2*par,4)}, {vr(vB+16*(dl&1)+8*kc+4*nu,4)}, {csrc}")
        a.stamp()
        a(f"ds_write_b32 v{vFL}, v{vONE} offset:{8+4*own}")
        a(f"ds_read_b128 {vr(vU,4)}, v{vKA} offset:{(16+16*own)*16}")
        a(f"ds_read_b128 {vr(vU+4,4)}, v{vKA} offset:{4*CV_UP+(16+16*own)*16}")
        a(f"""
        s_lshl_b32 s{sT0}, s{sCH}, 12
        s_add_u32 s{sT0}, s{sT0}, {WS_T + own*2048}
        s_lshl_b32 s{sT1}, s{sCHL}, 4
        s_lshr_b32 s{sD}, s{sD}, s{sT1}
        s_lshl_b32 s{sD}, s{sD}, 16
        s_lshl_b32 s{sTMP}, s{sCH}, 7
        s_add_u32 s{sTMP}, s{sTMP}, {WS_FLT + own*448*128}
        """)
        lds_wait_flag(a, vFL, 8 + 4 * oth, t, "CD")
        for q in range(4):
            a(f"ds_write_b128 v{vEXW}, {vr(vAC+16*oth+4*q,4)} offset:{1024*q}")
        a("s_waitcnt lgkmcnt(0)")
        a(f"ds_write_b32 v{vFL}, v{vONE} offset:{16+4*own}")
        vK = vF
        for p in range(2):
            for dq in range(4):
                a(f"v_lshlrev_b32 v{vK+8*p+7-2*dq}, 16, v{vU+4*p+dq}")
                a(f"v_and_b32 v{vK+8*p+6-2*dq}, 0xffff0000, v{vU+4*p+dq}")
        for i in range(16):
            a(f"v_mul_f32 v{vK+i}, s{sD}, v{vK+i}")
        for i in range(8):
            round_pair(a, vK + 2 * i, vK + 2 * i + 1)
        lds_wait_flag(a, vFL, 16 + 4 * oth, t, "CX")
        vR = vB
        for q in range(4):
            a(f"ds_read_b128 {vr(vR+4*q,4)}, v{vEXR} offset:{1024*q}")
        a("s_waitcnt lgkmcnt(0)")
        y = vAC + 16 * own
        for i in range(8):
            a(f"v_pk_add_f32 {vr(y+2*i,2)}, {vr(y+2*i,2)}, {vr(vR+2*i,2)}")
        for i in range(8):
            round_pair(a, y + 2 * i, y + 2 * i + 1)
        for i in range(8):
            a(f"v_pk_add_f32 {vr(y+2*i,2)}, {vr(y+2*i,2)}, {vr(vK+2*i,2)}")
        for i in range(8):
            a(f"v_cvt_pk_bf16_f32 v{vB+16+i}, v{y+2*i}, v{y+2*i+1}")
        a(f"buffer_store_dwordx4 {vr(vB+16,4)}, v{vTA}, {sr(R_WS,4)}, s{sT0} offen sc1")
        a(f"buffer_store_dwordx4 {vr(vB+20,4)}, v{vTA}, {sr(R_WS,4)}, s{sT0} offen offset:64 sc1")
        a.stamp()
        a("s_waitcnt vmcnt(0)")
        a("s_mov_b64 exec, 1")
        a(f"buffer_store_dword v{vONE}, v{vZ}, {sr(R_WS,4)}, s{sTMP} offen sc1")
        a.stamp()
        a.stamp_flush()
        a("s_endpgm")


def gen(a):
    a.lines.append(f".globl {KNAME}\n.p2align 8\n.type {KNAME},@function")
    a.label(KNAME)
    a("s_cmp_ge_u32 s2, 256")
    a("s_cbranch_scc1 K_END")
    a.stamp()
    a("""
    s_load_dwordx16 s[16:31], s[0:1], 0
    s_load_dwordx8 s[32:39], s[0:1], 64
    s_load_dwordx2 s[40:41], s[0:1], 96
    v_lshrrev_b32 v1, 6, v0
    v_and_b32 v2, 63, v0
    s_nop 0
    v_readfirstlane_b32 s3, v1
    s_cmp_ge_u32 s2, 224
    s_cbranch_scc1 K_PREP
    """)
    wg_map(a)
    a("s_cmp_ge_u32 s3, 4")
    a("s_cbranch_scc1 K_B")
    role_g(a)
    a.label("K_B")
    a.vm, a.nst = [], 1
    role_b(a)
    a.label("K_PREP")
    a.vm, a.nst = [], 1
    role_prep(a)
    a.label("K_END")
    a("s_endpgm")


def main():
    HEADER = open("cdna_kernels/" + NAME + ".s.ref").read().split("; Override launch")[0]
    a = Asm()
    gen(a)
    out = HEADER
    out += f"; @launch grid=(256,1,1) block=(512,1,1) lds={LDS_BYTES}\n"
    out += '.amdgcn_target "amdgcn-amd-amdhsa--gfx950"\n.text\n'
    out += a.text()
    out += '.section .rodata,"a"\n.p2align 6\n'
    out += descriptor(KNAME, 256, 102)
    path = sys.argv[1] if len(sys.argv) > 1 else "cdna_kernels/" + NAME + ".s"
    open(path, "w").write(out)


if __name__ == "__main__":
    main()
```

```python
import sys, os
from gen2 import (Asm, vr, sr, srd, round_pair, newlabel, f32bits, descriptor, NAME, KNAME, PROF,
                  S_X, S_K, S_V, S_SHK, S_SSMK, S_SSMD, S_WG, S_WU, S_WD, S_OUT, S_DBG, S_WS,
                  R_X, R_W, R_WS, R_DBG, R_A, R_B, SZ_X, SZ_W, SZ_SHK)
import gen12 as G12
from gen12 import (WS_H, WS_KVR, WS_T, WS_STATS, WS_CS, WS_FLU, WS_FLH, WS_FLT, WS_END, SLOT, LDS_BYTES, USCR,
                   CV_ST, CV_A, CV_U, CV_UP, role_prep, explode, vONE, vZ, vL, sSP, sT0, sT1, tag_issue)

STM = int(os.environ.get("STM", 0))
BPRIO = int(os.environ.get("BPRIO", 2))
TGATE = int(os.environ.get("TGATE", 8))
P0ST = int(os.environ.get("P0ST", 5))
SIGST = int(os.environ.get("SIGST", 2))
WENT = [49152 + 16384 * i for i in range(7)]
L_FLAG = 45568
sRB, sCB, sE, sCQ = 4, 5, 6, 10
sXO, sWO, sM0X, sM0W, sTMP = 11, 12, 13, 14, 15
s2RB, s2CB, sCH, sUB, sAB, sD, sW2 = 18, 19, 20, 21, 22, 23, 28
sWB, sHF, sCHL, sHO, sG2C = 29, 68, 69, 70, 9
R_WD, R_O, R_H, R_W2 = R_A, R_B, 92, 88
vLB, vPOLL = 1, 21


def wg_map(a):
    a(f"""
    s_and_b32 s{sT0}, s2, 7
    s_lshr_b32 s{sT1}, s2, 3
    s_mul_i32 s{sRB}, s{sT1}, 37
    s_lshr_b32 s{sRB}, s{sRB}, 8
    s_mul_i32 s{sCB}, s{sRB}, 7
    s_sub_u32 s{sCB}, s{sT1}, s{sCB}
    s_mov_b32 s{sXO}, s{sCB}
    s_lshl_b32 s{sWO}, s{sT0}, 2
    s_add_u32 s{sWO}, s{sWO}, s{sRB}
    s_and_b32 s{sT1}, s{sT0}, 3
    s_lshl_b32 s{sT1}, s{sT1}, 2
    s_add_u32 s{sRB}, s{sRB}, s{sT1}
    s_lshr_b32 s{sT1}, s{sT0}, 2
    s_mul_i32 s{sT1}, s{sT1}, 7
    s_add_u32 s{sCB}, s{sCB}, s{sT1}
    s_and_b32 s{sCQ}, s3, 3
    v_lshlrev_b32 v{vLB}, 4, v{vL}
    v_mov_b32 v{vZ}, 0
    """)


def lds_wait_flag(a, vaddr, off, vtmp, name, sleep=False):
    L, Lok = newlabel(name), newlabel(name + "OK")
    a(f"s_mov_b32 s{sSP}, 0")
    a.label(L)
    if sleep:
        a("s_sleep 1")
    a(f"""
    ds_read_b32 v{vtmp}, v{vaddr} offset:{off}
    s_add_u32 s{sSP}, s{sSP}, 1
    s_cmp_gt_u32 s{sSP}, 0x100000
    s_cbranch_scc1 {Lok}
    s_waitcnt lgkmcnt(0)
    v_cmp_eq_u32 vcc, v{vONE}, v{vtmp}
    s_nop 3
    s_cmp_eq_u64 vcc, exec
    s_cbranch_scc0 {L}
    """)
    a.label(Lok)
    a("s_waitcnt lgkmcnt(0)")


def gpoll(a, vaddr, name, first_loaded, sleep=8):
    L, Lok = newlabel(name), newlabel(name + "OK")
    a(f"s_mov_b32 s{sSP}, 0")
    if not first_loaded:
        a(f"buffer_load_dword v{vPOLL}, v{vaddr}, {sr(R_WS,4)}, 0 offen sc1")
        a("s_waitcnt vmcnt(0)")
    a.label(L)
    a(f"""
    v_cmp_eq_u32 vcc, v{vONE}, v{vPOLL}
    s_add_u32 s{sSP}, s{sSP}, 1
    s_cmp_gt_u32 s{sSP}, 0x10000
    s_cbranch_scc1 {Lok}
    s_cmp_eq_u64 vcc, exec
    s_cbranch_scc1 {Lok}
    s_sleep {sleep}
    buffer_load_dword v{vPOLL}, v{vaddr}, {sr(R_WS,4)}, 0 offen sc1
    s_waitcnt vmcnt(0)
    s_branch {L}
    """)
    a.label(Lok)


vXG0, vXG1, vWG = 246, 247, 248


def dma_setup(a, t):
    a(f"""
    v_lshrrev_b32 v{t}, 3, v{vL}
    v_lshrrev_b32 v{t+1}, 4, v{vL}
    v_and_b32 v{t+2}, 7, v{vL}
    s_lshl_b32 s{sT0}, s{sRB}, 7
    s_lshl_b32 s{sT1}, s{sCQ}, 5
    s_add_u32 s{sT0}, s{sT0}, s{sT1}
    v_add_u32 v{t}, s{sT0}, v{t}
    v_mul_u32_u24 v{t}, 896, v{t}
    v_xor_b32 v{t+3}, v{t+2}, v{t+1}
    v_lshl_add_u32 v{vXG0}, v{t+3}, 4, v{t}
    v_xor_b32 v{t+3}, 4, v{t+3}
    v_lshl_add_u32 v{vXG1}, v{t+3}, 4, v{t}
    v_add_u32 v{vXG1}, {8*896}, v{vXG1}
    s_lshr_b32 s{sCHL}, s{sCQ}, 1
    s_and_b32 s{sHF}, s{sCQ}, 1
    v_and_b32 v{t+2}, 15, v{vL}
    v_lshlrev_b32 v{t+3}, 2, v{t+1}
    v_xor_b32 v{t+2}, v{t+2}, v{t+3}
    s_lshl_b32 s{sT0}, s{sCHL}, 1
    v_xor_b32 v{t+2}, s{sT0}, v{t+2}
    s_lshl_b32 s{sT1}, s{sHF}, 5
    v_add_u32 v{t+3}, s{sT1}, v{t+1}
    v_mul_u32_u24 v{t+3}, 3584, v{t+3}
    v_lshl_add_u32 v{vWG}, v{t+2}, 4, v{t+3}
    s_lshl_b32 s{sT0}, s{sCB}, 8
    v_add_u32 v{vWG}, s{sT0}, v{vWG}
    s_lshl_b32 s{sM0X}, s{sCQ}, 12
    s_lshl_b32 s{sM0W}, s{sCQ}, 13
    s_add_u32 s{sM0W}, s{sM0W}, 16384
    s_mov_b32 s{sE}, s{sWO}
    s_mov_b32 s{sG2C}, s{sXO}
    s_waitcnt lgkmcnt(0)
    """)
    srd(a, R_X, S_X, SZ_X)
    a(f"""
    s_cmp_eq_u32 s{sCHL}, 0
    s_cselect_b32 s{R_W}, s{S_WG}, s{S_WU}
    s_cselect_b32 s{R_W+1}, s{S_WG+1}, s{S_WU+1}
    s_and_b32 s{R_W+1}, s{R_W+1}, 0xffff
    s_mov_b32 s{R_W+2}, {SZ_W}
    s_mov_b32 s{R_W+3}, 0x20000
    """)


def dma(a, st):
    slot = (st % 3) * SLOT
    for j in range(8):
        a(f"s_mov_b32 s{sWO}, {st*64*3584 + j*4*3584}")
        a(f"s_add_u32 m0, s{sM0W}, {slot+1024*j}")
        a("s_nop 0")
        a.vmem(f"buffer_load_dwordx4 v{vWG}, {sr(R_W,4)}, s{sWO} offen lds", f"A{st}")
        if j % 2 == 1:
            i = j // 2
            a(f"s_mov_b32 s{sXO}, {st*128 + (i//2)*16*896}")
            a(f"s_add_u32 m0, s{sM0X}, {slot+1024*i}")
            a("s_nop 0")
            a.vmem(f"buffer_load_dwordx4 v{vXG1 if i%2 else vXG0}, {sr(R_X,4)}, s{sXO} offen lds", f"A{st}")


GDMA = [int(c) for c in os.environ.get("GDMA", "0123")]


def role_g(a):
    vXA, vWA = 3, 7
    vXR, vWR0, vWR1 = 9, 10, 11
    t = 12
    vWD, vHO, vRA0 = 0, 19, 22
    vSA0, vSA1, vHS = 24, 25, 26
    vFR = 28
    vACC = 76
    vCS, vSTAT, vR2 = 204, 236, 60
    if 0 in GDMA:
        dma(a, 0)
    a(f"""
    s_mov_b32 s{s2CB}, s{sG2C}
    s_mov_b32 s{s2RB}, s{sE}
    v_and_b32 v{t}, 31, v{vL}
    v_lshrrev_b32 v{t+1}, 5, v{vL}
    v_bfe_u32 v{t+2}, v{vL}, 1, 3
    v_xor_b32 v{t+2}, v{t+2}, v{t+1}
    v_lshlrev_b32 v{t+3}, 7, v{t}
    v_lshl_add_u32 v{vXA}, v{t+2}, 4, v{t+3}
    v_xor_b32 v{vXA+1}, 32, v{vXA}
    v_xor_b32 v{vXA+2}, 64, v{vXA}
    v_xor_b32 v{vXA+3}, 96, v{vXA}
    s_lshl_b32 s{sT0}, s{sRB}, 7
    v_add_u32 v{t}, s{sT0}, v{t}
    v_lshlrev_b32 v{t}, 3, v{t}
    v_add_u32 v{vSA0}, {WS_STATS}, v{t}
    s_lshl_b32 s{sT0}, s{sCB}, 3
    s_lshl_b32 s{sT1}, s{sCQ}, 1
    s_add_u32 s{sT0}, s{sT0}, s{sT1}
    s_lshl_b32 s{sT1}, s{sT0}, 7
    s_add_u32 s{sT1}, s{sT1}, {WS_CS}
    v_lshl_add_u32 v{vSA1}, v{t+1}, 4, s{sT1}
    s_lshl_b32 s{sT1}, s{sRB}, 9
    s_add_u32 s{sT0}, s{sT0}, s{sT1}
    s_lshl_b32 s{sT0}, s{sT0}, 10
    v_add_u32 v{vHS}, s{sT0}, v{vLB}
    v_bfe_u32 v{t}, v{vL}, 4, 1
    v_bfe_u32 v{t+2}, v{vL}, 2, 2
    v_bfe_u32 v{t+3}, v{vL}, 1, 1
    s_lshl_b32 s{sT0}, s{sCQ}, 2
    v_or_b32 v{t+3}, s{sT0}, v{t+3}
    v_lshlrev_b32 v{t+4}, 2, v{t+2}
    v_xor_b32 v{t+3}, v{t+3}, v{t+4}
    v_lshlrev_b32 v{t+4}, 1, v{t}
    v_xor_b32 v{t+3}, v{t+3}, v{t+4}
    v_lshlrev_b32 v{t+3}, 4, v{t+3}
    v_and_b32 v{t+4}, 1, v{vL}
    v_lshl_add_u32 v{t+3}, v{t+4}, 3, v{t+3}
    v_lshl_add_u32 v{t+2}, v{t+1}, 3, v{t+2}
    v_lshl_add_u32 v{t+3}, v{t+2}, 8, v{t+3}
    v_add_u32 v{t}, 1, v{t}
    v_lshl_add_u32 v{vWA}, v{t}, 14, v{t+3}
    v_xor_b32 v{vWA+1}, 32, v{vWA}
    s_mul_i32 s{sE}, s{sRB}, 56
    s_lshl_b32 s{sT0}, s{sCB}, 2
    s_add_u32 s{sE}, s{sE}, s{sT0}
    s_add_u32 s{sE}, s{sE}, s{sCQ}
    s_lshl_b32 s{sE}, s{sE}, 7
    s_add_u32 s{sE}, s{sE}, {WS_FLH}
    s_lshl_b32 s{sWB}, s{sCQ}, 12
    s_lshl_b32 s{sT0}, s{s2RB}, 8
    s_mul_i32 s{sT1}, s{sCQ}, 28
    s_add_u32 s{sT0}, s{sT0}, s{sT1}
    s_lshl_b32 s{sT0}, s{sT0}, 10
    v_add_u32 v{vHO}, s{sT0}, v{vLB}
    v_lshrrev_b32 v{t}, 3, v{vL}
    s_mul_i32 s{sT0}, s{sCQ}, 448
    v_add_u32 v{t}, s{sT0}, v{t}
    v_mul_u32_u24 v{t}, 896, v{t}
    v_bfe_u32 v{t+1}, v{vL}, 4, 1
    v_lshlrev_b32 v{t+1}, 2, v{t+1}
    v_and_b32 v{t+2}, 7, v{vL}
    v_xor_b32 v{t+1}, v{t+1}, v{t+2}
    v_lshl_add_u32 v{vWD}, v{t+1}, 4, v{t}
    s_lshl_b32 s{sT0}, s{s2CB}, 7
    v_add_u32 v{vWD}, s{sT0}, v{vWD}
    v_lshrrev_b32 v{t}, 5, v{vL}
    v_bfe_u32 v{t+1}, v{vL}, 2, 2
    v_lshl_add_u32 v{t}, v{t}, 2, v{t+1}
    v_bfe_u32 v{t+2}, v{vL}, 4, 1
    v_bfe_u32 v{t+3}, v{vL}, 1, 1
    v_lshl_add_u32 v{t+2}, v{t+2}, 1, v{t+3}
    v_bfe_u32 v{t+3}, v{vL}, 3, 1
    v_lshl_add_u32 v{t+2}, v{t+3}, 2, v{t+2}
    v_lshlrev_b32 v{t+2}, 4, v{t+2}
    v_and_b32 v{t+3}, 1, v{vL}
    v_lshl_add_u32 v{t+2}, v{t+3}, 3, v{t+2}
    v_lshl_add_u32 v{t+2}, v{t}, 7, v{t+2}
    v_add_u32 v{vRA0}, s{sWB}, v{t+2}
    """)
    srd(a, R_WS, S_WS, WS_END)
    srd(a, R_WD, S_WD, SZ_W)

    def fx(s_, nt):
        return vFR + 24 * s_ + 4 * nt

    def fw(s_, mt):
        return vFR + 24 * s_ + 16 + 4 * mt

    def read_ops(st, p, s_):
        slot = (st % 3) * SLOT
        ops = []
        pre = []
        if p == 0:
            pre.append(f"v_add_u32 v{vWR0}, {slot}, v{vWA}")
            pre.append(f"v_add_u32 v{vWR1}, {slot}, v{vWA+1}")
        pre.append(f"v_add_u32 v{vXR}, {slot}, v{vXA+p}")
        ops.append(pre + [f"ds_read_b64_tr_b16 {vr(fw(s_,0),2)}, v{vWR0} offset:{4096*p}"])
        ops.append([f"ds_read_b64_tr_b16 {vr(fw(s_,0)+2,2)}, v{vWR0} offset:{4096*p+1024}"])
        for nt in range(4):
            ops.append([f"ds_read_b128 {vr(fx(s_,nt),4)}, v{vXR} offset:{4096*nt}"])
        ops.append([f"ds_read_b64_tr_b16 {vr(fw(s_,1),2)}, v{vWR1} offset:{4096*p}"])
        ops.append([f"ds_read_b64_tr_b16 {vr(fw(s_,1)+2,2)}, v{vWR1} offset:{4096*p+1024}"])
        return ops

    def wdma(r, s_, ent):
        for j in range(4):
            r(f"s_mov_b32 s{sW2}, {(32*s_ + 8*j)*896}")
            r(f"s_add_u32 m0, s{sWB}, {ent + j*1024}")
            r("s_nop 0")
            r.vmem(f"buffer_load_dwordx4 v{vWD}, {sr(R_WD,4)}, s{sW2} offen lds", f"W{s_}")

    def stat_loads(r):
        for nt in range(4):
            r.vmem(f"buffer_load_dwordx2 {vr(vSTAT+2*nt,2)}, v{vSA0}, {sr(R_WS,4)}, 0 offen offset:{256*nt} sc1", "ST")
        for i in range(8):
            r.vmem(f"buffer_load_dwordx4 {vr(vCS+4*i,4)}, v{vSA1}, {sr(R_WS,4)}, 0 offen offset:{32*i} sc1", "ST")

    def tag_read(r):
        r(f"v_mov_b32 v{t}, {USCR+8192}")
        r(f"ds_read_b32 v{vONE}, v{t}")

    WD = lambda s_: (lambda r: wdma(r, s_, WENT[s_]))
    plan = {0: [tag_read], 1: [], 2: [WD(6)], 3: [], 4: [WD(0), WD(1), WD(2)], 5: [stat_loads, WD(3), WD(4), WD(5)], 6: []}
    for st_ in GDMA:
        if st_ >= 3:
            plan[st_ - 3] = plan[st_ - 3] + [(lambda q: (lambda r: dma(r, q)))(st_)]
    if 1 in GDMA:
        dma(a, 1)
    a.vm_wait("A0")
    a("s_barrier")
    a.stamp()
    for ops in read_ops(0, 0, 0):
        for o in ops:
            a(o)
    cur = 0
    fill = explode(a, [lambda r: dma(r, 2)]) if 2 in GDMA else []
    order = [(0, 0), (0, 1), (0, 2), (0, 3), (1, 3), (1, 2), (1, 1), (1, 0)]
    for st in range(7):
        for p in range(4):
            a("s_waitcnt lgkmcnt(0)")
            nxt = []
            if p == 3:
                assert not fill
                a.vm_wait(f"A{st+1}")
                a("s_barrier")
                if st < 6:
                    nxt = read_ops(st + 1, 0, cur ^ 1)
                fill = explode(a, plan[st])
            else:
                nxt = read_ops(st, p + 1, cur ^ 1)
            slots = 8 * (3 - p) if p < 3 else 32
            for k, (mt, nt) in enumerate(order):
                acc = vACC + 16 * (4 * mt + nt)
                c = "0" if (st == 0 and p == 0) else vr(acc, 16)
                a(f"v_mfma_f32_32x32x16_bf16 {vr(acc,16)}, {vr(fw(cur,mt),4)}, {vr(fx(cur,nt),4)}, {c}")
                for _ in range(2):
                    if nxt:
                        for o in nxt.pop(0):
                            a(o)
                tot = sum(c_ for c_, _ in fill)
                budget = tot / max(1, slots - k)
                used = 0
                while fill and used < budget - 1e-9:
                    c_, e = fill.pop(0)
                    e()
                    used += c_
            cur ^= 1
            if p == 3 and (st in (3, 6) or STM):
                a.stamp()
    a.vm_wait("ST")
    for nt in range(4):
        a(f"v_mul_f32 v{vR2+2*nt}, v{vSTAT+2*nt+1}, v{vSTAT+2*nt+1}")
    for nt in range(1, 4):
        a(f"s_mov_b32 s{sM0X+nt-1}, {nt*128*1024}")
    a("s_nop 4")
    vH = 28
    k = 0
    for nt in range(4):
        for mt in range(2):
            acc = vACC + 16 * (4 * mt + nt)
            cs = vCS + 16 * mt
            m = vSTAT + 2 * nt
            for i in range(8):
                a(f"v_pk_fma_f32 {vr(acc+2*i,2)}, {vr(m,2)}, {vr(cs+2*i,2)}, {vr(acc+2*i,2)} op_sel_hi:[0,1,1] neg_lo:[1,0,0] neg_hi:[1,0,0]")
            for i in range(8):
                a(f"v_max_f32 v{acc+i}, 0, v{acc+i}")
            for i in range(4):
                a(f"v_pk_mul_f32 {vr(acc+8+2*i,2)}, {vr(acc+8+2*i,2)}, {vr(vR2+2*nt,2)} op_sel_hi:[1,0]")
            for i in range(4):
                a(f"v_pk_mul_f32 {vr(acc+2*i,2)}, {vr(acc+2*i,2)}, {vr(acc+8+2*i,2)}")
            o = vH + 4 * k
            for i in range(4):
                a(f"v_cvt_pk_bf16_f32 v{o+i}, v{acc+2*i}, v{acc+2*i+1}")
            so = "0" if nt == 0 else f"s{sM0X+nt-1}"
            a.vmem(f"buffer_store_dwordx4 {vr(o,4)}, v{vHS}, {sr(R_WS,4)}, {so} offen offset:{mt*1024} sc1", "HS")
            k += 1
    a.stamp()
    vA2 = 192
    WR = [60 + 16 * i for i in range(4)]
    HR = [124 + 16 * i for i in range(4)] + [28, 44]
    NHR = len(HR)
    vRB0, vRB1, vH1, vFA = 3, 4, 5, 6
    vXO, vF_, vTG, vTW, vTR, vRW, vRR = 7, 8, 9, 10, 11, 24, 25
    ENT = {s_: WENT[s_ % 7] for s_ in range(14)}

    def trreads(s_, dst):
        a(f"v_add_u32 v{vRB0}, {ENT[s_]}, v{vRA0}")
        a(f"v_xor_b32 v{vRB1}, 64, v{vRB0}")
        for tt in range(2):
            for Td in range(2):
                for hf in range(2):
                    a(f"ds_read_b64_tr_b16 {vr(dst+8*tt+4*Td+2*hf,2)}, v{vRB1 if Td else vRB0} offset:{tt*2048+hf*1024}")

    a(f"""
    v_add_u32 v{vH1}, {128*1024}, v{vHO}
    s_lshr_b32 s{sT0}, s{s2RB}, 1
    s_mul_i32 s{sT0}, s{sT0}, 56
    s_mul_i32 s{sT1}, s{sCQ}, 14
    s_add_u32 s{sT0}, s{sT0}, s{sT1}
    s_lshl_b32 s{sT0}, s{sT0}, 7
    s_add_u32 s{sT0}, s{sT0}, {WS_FLH}
    v_min_u32 v{vFA}, 13, v{vL}
    v_lshl_add_u32 v{vFA}, v{vFA}, 7, s{sT0}
    """)
    for s_ in range(4):
        a.vm_wait(f"W{s_}")
        trreads(s_, WR[s_])
    a("s_waitcnt lgkmcnt(0)")
    for s_ in range(7, 11):
        wdma(a, s_, ENT[s_])
    a.vm_wait("HS")
    a("s_mov_b64 exec, 1")
    a.vmem(f"buffer_store_dword v{vONE}, v{vZ}, {sr(R_WS,4)}, s{sE} offen sc1", "HF")
    a("s_mov_b64 exec, -1")
    a.stamp()
    a(f"""
    s_add_u32 s{sT1}, s{sWB}, {WENT[0]}
    v_add_u32 v{vRW}, s{sT1}, v{vLB}
    s_lshl_b32 s{sT0}, s3, 2
    s_add_u32 s{sT0}, s{sT0}, {L_FLAG + 64}
    v_mov_b32 v{t+6}, s{sT0}
    """)
    gpoll(a, vFA, "GH", False)
    a.vm = []
    a.stamp()

    def hloads(s_):
        r = HR[s_ % NHR]
        a(f"s_mov_b32 s{sHO}, {2048*s_}")
        for tt in range(2):
            for nt in range(2):
                a.vmem(f"buffer_load_dwordx4 {vr(r+8*tt+4*nt,4)}, v{vH1 if nt else vHO}, {sr(R_WS,4)}, s{sHO} offen offset:{1024*tt} sc1", f"H{s_}")

    for s_ in range(NHR):
        hloads(s_)
    vXV, vST2 = 188, 26
    for s_ in range(14):
        wreg = WR[s_ % 4]
        a.vm_wait(f"H{s_}")
        if s_ >= 4:
            a(f"s_waitcnt lgkmcnt({min(15, 8*min(3, 13 - s_))})")
        for tt in range(2):
            for Td in range(2):
                for nt in range(2):
                    acc = vA2 + 32 * nt + 16 * Td
                    c = "0" if (s_ == 0 and tt == 0) else vr(acc, 16)
                    a(f"v_mfma_f32_32x32x16_bf16 {vr(acc,16)}, {vr(wreg+8*tt+4*Td,4)}, {vr(HR[s_%NHR]+8*tt+4*nt,4)}, {c}")
        if s_ == TGATE:
            a(f"ds_write_b32 v{t+6}, v{vONE} offset:16")
        if s_ + NHR < 14:
            hloads(s_ + NHR)
        sn = s_ + 4
        if sn < 14:
            a.vm_wait(f"W{sn}")
            trreads(sn, wreg)
            if sn + 7 < 14:
                a("s_waitcnt lgkmcnt(0)")
                wdma(a, sn + 7, ENT[sn + 7])
    a.stamp()
    a("s_nop 7")
    a("s_nop 3")
    for tau in range(4):
        for q in range(4):
            a(f"ds_write_b128 v{vRW}, {vr(vA2+16*tau+4*q,4)} offset:{tau*16384+q*1024}")
    a("s_waitcnt lgkmcnt(0)")
    a(f"ds_write_b32 v{t+6}, v{vONE}")
    a.stamp()
    a.stamp_flush()
    a("s_endpgm")


def role_b(a):
    R_K, R_V, R_SH = 76, 80, 84
    t = 6
    uA = 24
    uK, uV, uW, uX = 32, 43, 52, 56
    uKU, uWU, uAC, uVU, uO, uS = 64, 86, 94, 110, 112, 120
    vD, vU, vBLD = 144, 168, 176
    vAA, vBA, vKA, vTA, vEXW, vEXR, vFL, vWM, vWX, vWZ, vWP, vPA, vKVA = range(216, 229)
    if 0 not in GDMA:
        dma(a, 0)
    srd(a, R_K, S_K, SZ_X)
    srd(a, R_V, S_V, SZ_X)
    srd(a, R_SH, S_SHK, SZ_SHK)
    srd(a, R_WS, S_WS, WS_END)
    srd(a, R_DBG, S_DBG, 256)
    a(f"""
    v_cmp_le_u32 vcc, 28, v{vL}
    v_mov_b32 v{uA+4}, 0x7f000000
    s_and_b32 s{sT0}, s2, 7
    v_cndmask_b32 v{uA}, 0, 1, vcc
    v_mul_u32_u24 v{uA+1}, 28, v{uA}
    v_sub_u32 v{uA+1}, v{vL}, v{uA+1}
    s_and_b32 s{sT1}, s2, 0xf8
    s_lshl_b32 s{sTMP}, s{sCQ}, 1
    s_add_u32 s{sT1}, s{sT1}, s{sTMP}
    s_mul_i32 s{sT1}, s{sT1}, {8*896}
    s_mul_i32 s{sT0}, s{sT0}, 112
    s_add_u32 s{sT1}, s{sT1}, s{sT0}
    v_mul_u32_u24 v{uA+2}, {8*896}, v{uA}
    v_lshl_add_u32 v{uA+2}, v{uA+1}, 2, v{uA+2}
    v_add_u32 v{uA+2}, s{sT1}, v{uA+2}
    v_cmp_le_u32 vcc, 56, v{vL}
    v_subrev_u32 v{uA+3}, {3*896}, v{uA+2}
    s_lshl_b32 s{sT0}, s{sT0}, 2
    v_cndmask_b32 v{uA+2}, v{uA+2}, v{uA+4}, vcc
    v_cndmask_b32 v{uA+3}, v{uA+3}, v{uA+4}, vcc
    v_lshl_add_u32 v{uA+5}, v{uA+1}, 4, s{sT0}
    s_lshl_b32 s{sT0}, s2, 3
    s_add_u32 s{sT0}, s{sT0}, s{sTMP}
    s_mul_i32 s{sT0}, s{sT0}, 896
    v_add_u32 v{t}, s{sT0}, v{vLB}
    v_cndmask_b32 v{t}, v{t}, v{uA+4}, vcc
    s_mov_b32 s{sT1}, {4*896}
    """)
    a.vmem(f"buffer_load_dwordx4 {vr(uW,4)}, v{uA+5}, {sr(R_SH,4)}, 0 offen", "UK")
    for i in range(3):
        a.vmem(f"buffer_load_dword v{uK+i}, v{uA+3}, {sr(R_K,4)}, 0 offen offset:{896*i}", "UK")
    for i in range(8):
        a.vmem(f"buffer_load_dword v{uK+3+i}, v{uA+2}, {sr(R_K,4)}, {'0' if i<4 else 's%d'%sT1} offen offset:{896*(i&3)}", "UK")
    for i in range(8):
        a.vmem(f"buffer_load_dword v{uV+i}, v{uA+2}, {sr(R_V,4)}, {'0' if i<4 else 's%d'%sT1} offen offset:{896*(i&3)}", "UK")
    for i in range(2):
        a.vmem(f"buffer_load_dwordx4 {vr(uX+4*i,4)}, v{t}, {sr(R_X,4)}, 0 offen offset:{896*i}", "UX")
    if 1 not in GDMA:
        dma(a, 1)
    a.vm_wait("A0")
    if BPRIO:
        a(f"s_setprio {BPRIO}")
    EARLY = int(os.environ.get("EARLY", 1))
    a.stamp()
    a(f"s_lshl_b32 s{sT0}, s{sCQ}, 12")
    tagl = lambda: a.vmem(f"buffer_load_dword v{vONE}, v{vZ}, {sr(R_DBG,4)}, s{sT0} offen sc1", "TAG")

    def chunk_kv():
        a.vm_wait("UK")
        for r in range(11):
            a(f"v_lshlrev_b32 v{uKU+2*r}, 16, v{uK+r}")
            a(f"v_and_b32 v{uKU+2*r+1}, 0xffff0000, v{uK+r}")
        for h in range(2):
            a(f"v_lshlrev_b32 v{uWU+0+h}, 16, v{uW+2*h}")
            a(f"v_and_b32 v{uWU+2+h}, 0xffff0000, v{uW+2*h}")
            a(f"v_lshlrev_b32 v{uWU+4+h}, 16, v{uW+2*h+1}")
            a(f"v_and_b32 v{uWU+6+h}, 0xffff0000, v{uW+2*h+1}")
        w = lambda j: vr(uWU + 2 * j, 2)
        for r in range(8):
            ac = vr(uAC + 2 * r, 2)
            a(f"v_pk_mul_f32 {ac}, {vr(uKU+2*r,2)}, {w(3)}")
            a(f"v_pk_fma_f32 {ac}, {vr(uKU+2*(r+1),2)}, {w(2)}, {ac}")
            a(f"v_pk_fma_f32 {ac}, {vr(uKU+2*(r+2),2)}, {w(1)}, {ac}")
            a(f"v_pk_fma_f32 {ac}, {vr(uKU+2*(r+3),2)}, {w(0)}, {ac}")
            a(f"v_cvt_pk_bf16_f32 v{uAC+2*r+1}, v{uAC+2*r}, v{uAC+2*r+1}")
            a(f"v_lshlrev_b32 v{uVU}, 16, v{uV+r}")
            a(f"v_and_b32 v{uVU+1}, 0xffff0000, v{uV+r}")
            a(f"v_lshlrev_b32 v{uAC+2*r}, 16, v{uAC+2*r+1}")
            a(f"v_and_b32 v{uAC+2*r+1}, 0xffff0000, v{uAC+2*r+1}")
            a(f"v_pk_mul_f32 {ac}, {ac}, {vr(uVU,2)}")
        for h in range(2):
            for q in range(4):
                a(f"v_cvt_pk_bf16_f32 v{uO+4*h+q}, v{uAC+2*(7-2*q)+h}, v{uAC+2*(6-2*q)+h}")
        a(f"""
        v_lshlrev_b32 v{uA+2}, 8, v{uA+1}
        v_lshlrev_b32 v{uA+3}, 4, v{uA}
        v_sub_u32 v{uA+2}, v{uA+2}, v{uA+3}
        s_lshl_b32 s{sT0}, s{sCQ}, 5
        s_sub_u32 s{sT0}, {USCR + 7*16}, s{sT0}
        v_add_u32 v{uA+2}, s{sT0}, v{uA+2}
        s_mov_b32 exec_hi, 0xffffff
        ds_write_b128 v{uA+2}, {vr(uO,4)}
        ds_write_b128 v{uA+2}, {vr(uO+4,4)} offset:128
        s_mov_b64 exec, -1
        """)

    def tag_block():
        L, Lok, Lsk = newlabel("TB"), newlabel("TBOK"), newlabel("TBSK")
        a.vm_wait("TAG")
        a(f"s_cmp_lg_u32 s{sCQ}, 0")
        a(f"s_cbranch_scc1 {Lsk}")
        a(f"s_mov_b32 s{sSP}, 0")
        a.label(L)
        a(f"""
        v_readfirstlane_b32 s{sSP+1}, v{vONE}
        s_add_u32 s{sSP}, s{sSP}, 1
        s_cmp_gt_u32 s{sSP}, 0x4000
        s_cbranch_scc1 {Lok}
        s_cmp_lg_u32 s{sSP+1}, 0
        s_cbranch_scc1 {Lok}
        s_sleep 4
        buffer_load_dword v{vONE}, v{vZ}, {sr(R_DBG,4)}, 0 offen sc1
        s_waitcnt vmcnt(0)
        s_branch {L}
        """)
        a.label(Lok)
        a(f"v_mov_b32 v{t}, {USCR+8192}")
        a(f"ds_write_b32 v{t}, v{vONE}")
        a.label(Lsk)

    def chunk_store_stats():
        if not EARLY:
            a(f"v_mov_b32 v{t}, {USCR+8192}")
            a(f"ds_read_b32 v{vONE}, v{t}")
        a(f"""
        s_mul_i32 s{sT0}, s{sCQ}, 1792
        s_add_u32 s{sT0}, s{sT0}, {USCR}
        v_add_u32 v{uA+2}, s{sT0}, v{vLB}
        ds_read_b128 {vr(uO,4)}, v{uA+2}
        ds_read_b128 {vr(uO+4,4)}, v{uA+2} offset:896
        v_lshrrev_b32 v{uA+2}, 3, v{vL}
        v_lshlrev_b32 v{uA+2}, 12, v{uA+2}
        v_and_b32 v{uA+3}, 7, v{vL}
        v_lshl_add_u32 v{uA+2}, v{uA+3}, 4, v{uA+2}
        s_and_b32 s{sT0}, s2, 7
        s_mul_i32 s{sT0}, s{sT0}, 56
        s_mul_i32 s{sT1}, s{sCQ}, 14
        s_add_u32 s{sT0}, s{sT0}, s{sT1}
        s_lshl_b32 s{sT0}, s{sT0}, 12
        s_lshr_b32 s{sT1}, s2, 3
        s_lshl_b32 s{sT1}, s{sT1}, 7
        s_sub_u32 s{sT0}, s{sT0}, s{sT1}
        s_add_u32 s{sT0}, s{sT0}, {WS_KVR + 3968}
        s_add_u32 s{sT1}, s{sT0}, {7*4096}
        s_waitcnt lgkmcnt(0)
        s_mov_b32 exec_hi, 0xffffff
        """)
        a.vmem(f"buffer_store_dwordx4 {vr(uO,4)}, v{uA+2}, {sr(R_WS,4)}, s{sT0} offen sc1", "US")
        a.vmem(f"buffer_store_dwordx4 {vr(uO+4,4)}, v{uA+2}, {sr(R_WS,4)}, s{sT1} offen sc1", "US")
        a("s_mov_b64 exec, -1")
        a.vm_wait("UX")
        for i in range(4):
            a(f"v_mov_b32 v{uS+i}, 0")
        a(f"v_mov_b32 v{uS+4}, 0x3f803f80")
        for i in range(4):
            for r in range(2):
                a(f"v_dot2c_f32_bf16 v{uS+2*r}, v{uX+4*r+i}, v{uS+4}")
                a(f"v_dot2c_f32_bf16 v{uS+2*r+1}, v{uX+4*r+i}, v{uX+4*r+i}")
        a("s_nop 2")
        for mode in ("quad_perm:[1,0,3,2]", "quad_perm:[2,3,0,1]", "row_half_mirror", "row_mirror"):
            for i in range(4):
                a(f"v_add_f32_dpp v{uS+i}, v{uS+i}, v{uS+i} {mode} row_mask:0xf bank_mask:0xf")
        for sw in ("v_permlane16_swap_b32", "v_permlane32_swap_b32"):
            for i in range(4):
                a(f"v_mov_b32 v{uS+4+i}, v{uS+i}")
            a("s_nop 1")
            for i in range(4):
                a(f"{sw} v{uS+i}, v{uS+4+i}")
            a("s_nop 1")
            for i in range(4):
                a(f"v_add_f32 v{uS+i}, v{uS+i}, v{uS+4+i}")
        a(f"s_mov_b32 s{sT0}, {f32bits(1.0/448.0)}")
        a(f"s_mov_b32 s{sT1}, {f32bits(1e-5)}")
        for r in range(2):
            m, q = uS + 2 * r, uS + 2 * r + 1
            a(f"""
            v_mul_f32 v{m}, s{sT0}, v{m}
            v_mul_f32 v{q}, s{sT0}, v{q}
            v_fma_f32 v{q}, -v{m}, v{m}, v{q}
            v_max_f32 v{q}, 0, v{q}
            v_cvt_pk_bf16_f32 v{q}, v{m}, v{q}
            v_lshlrev_b32 v{m}, 16, v{q}
            v_and_b32 v{q}, 0xffff0000, v{q}
            v_add_f32 v{q}, s{sT1}, v{q}
            v_cvt_pk_bf16_f32 v{q}, v{q}, v{q}
            v_and_b32 v{q}, 0xffff0000, v{q}
            v_sqrt_f32 v{q}, v{q}
            s_nop 0
            v_cvt_pk_bf16_f32 v{q}, v{q}, v{q}
            v_and_b32 v{q}, 0xffff0000, v{q}
            v_rcp_f32 v{q}, v{q}
            """)
        a(f"""
        s_lshl_b32 s{sT0}, s2, 2
        s_add_u32 s{sT0}, s{sT0}, s{sCQ}
        s_lshl_b32 s{sT0}, s{sT0}, 4
        s_add_u32 s{sT0}, s{sT0}, {WS_STATS}
        s_mov_b64 exec, 1
        """)
        a.vmem(f"buffer_store_dwordx4 {vr(uS,4)}, v{vZ}, {sr(R_WS,4)}, s{sT0} offen sc1", "US")
        a("s_mov_b64 exec, -1")

    def chunk_conv_setup():
        c = t
        a(f"""
        s_lshl_b32 s{sCH}, s2, 1
        s_add_u32 s{sCH}, s{sCH}, s{sCHL}
        s_mul_i32 s{sUB}, s{sCHL}, {8*CV_UP}
        s_add_u32 s{sUB}, s{sUB}, {CV_U}
        s_mul_i32 s{sAB}, s{sCHL}, {CV_A[1]}
        s_lshl_b32 s{sT0}, s{sCH}, 12
        s_add_u32 s{R_H}, s{S_SSMK}, s{sT0}
        s_addc_u32 s{R_H+1}, s{S_SSMK+1}, 0
        s_and_b32 s{R_H+1}, s{R_H+1}, 0xffff
        s_mov_b32 s{R_H+2}, 4096
        s_mov_b32 s{R_H+3}, 0x20000
        s_lshl_b32 s{sT1}, s2, 2
        s_load_dword s{sD}, {sr(S_SSMD,2)}, s{sT1}
        s_lshl_b32 s{sT1}, s{sHF}, 11
        v_add_u32 v{c+1}, s{sT1}, v{vLB}
        v_subrev_u32 v{c+2}, 64, v{vLB}
        v_subrev_u32 v{c+3}, 48, v{vLB}
        s_add_u32 s{sT0}, s{sT0}, {WS_KVR}
        v_add_u32 v{vKVA}, s{sT0}, v{c+1}
        """)
        a.vmem(f"buffer_load_dwordx4 {vr(vD,4)}, v{c+1}, {sr(R_H,4)}, 0 offen", "D")
        a.vmem(f"buffer_load_dwordx4 {vr(vD+4,4)}, v{c+1}, {sr(R_H,4)}, 0 offen offset:16", "D")
        a.vmem(f"buffer_load_dwordx4 {vr(vD+8,4)}, v{c+1}, {sr(R_H,4)}, 0 offen offset:1024", "D")
        a.vmem(f"buffer_load_dwordx4 {vr(vD+12,4)}, v{c+1}, {sr(R_H,4)}, 0 offen offset:1040", "D")
        a.vmem(f"buffer_load_dwordx4 {vr(vD+16,4)}, v{c+2}, {sr(R_H,4)}, 0 offen", "D")
        a.vmem(f"buffer_load_dwordx4 {vr(vD+20,4)}, v{c+3}, {sr(R_H,4)}, 0 offen", "D")
        a(f"""
        v_add_u32 v{vWM}, s{sAB}, v{c+1}
        v_add_u32 v{vWX}, s{sAB}, v{vLB}
        v_mov_b32 v{vBLD+36}, 0
        v_mov_b32 v{vBLD+37}, 0
        v_mov_b32 v{vBLD+38}, 0
        v_mov_b32 v{vBLD+39}, 0
        v_lshrrev_b32 v{c+4}, 4, v{vL}
        s_lshl_b32 s{sT0}, s{sHF}, 2
        v_add_u32 v{vWZ}, s{sT0}, v{c+4}
        v_mul_u32_u24 v{vWZ}, {CV_UP}, v{vWZ}
        v_and_b32 v{c}, 15, v{vL}
        v_lshl_add_u32 v{vWZ}, v{c}, 4, v{vWZ}
        v_add_u32 v{vWZ}, s{sUB}, v{vWZ}
        v_and_b32 v{vWP}, 7, v{vL}
        v_xor_b32 v{vWP}, 4, v{vWP}
        v_mul_u32_u24 v{vWP}, {CV_UP}, v{vWP}
        v_lshrrev_b32 v{c+5}, 3, v{vL}
        v_lshlrev_b32 v{c+5}, 4, v{c+5}
        v_sub_u32 v{vWP}, v{vWP}, v{c+5}
        s_lshl_b32 s{sT0}, s{sHF}, 8
        s_sub_u32 s{sT0}, s{sUB}, s{sT0}
        s_add_u32 s{sT0}, s{sT0}, {(47-8)*16}
        v_add_u32 v{vWP}, s{sT0}, v{vWP}
        v_mul_u32_u24 v{vBA}, {CV_UP}, v{c+4}
        v_lshl_add_u32 v{vBA}, v{c}, 4, v{vBA}
        v_add_u32 v{vBA}, s{sUB}, v{vBA}
        v_sub_u32 v{vKA}, 3, v{c+4}
        v_mul_u32_u24 v{vKA}, {CV_UP}, v{vKA}
        v_lshl_add_u32 v{vKA}, v{c}, 4, v{vKA}
        v_add_u32 v{vKA}, s{sUB}, v{vKA}
        v_lshlrev_b32 v{vTA}, 7, v{c}
        v_lshl_add_u32 v{vTA}, v{c+4}, 4, v{vTA}
        v_lshrrev_b32 v{c}, 2, v{c}
        v_add_u32 v{c}, v{c}, v{c+4}
        v_lshlrev_b32 v{c}, 4, v{c}
        v_add_u32 v{c}, s{sAB}, v{c}
        v_and_b32 v{c+4}, 3, v{vL}
        v_mul_u32_u24 v{vAA}, {CV_ST}, v{c+4}
        v_add_u32 v{vAA}, v{vAA}, v{c}
        s_lshl_b32 s{sT0}, s{sHF}, 12
        s_add_u32 s{sT1}, s{sT0}, s{sAB}
        v_add_u32 v{vEXW}, s{sT1}, v{vLB}
        s_xor_b32 s{sT0}, s{sT0}, 4096
        s_add_u32 s{sT1}, s{sT0}, s{sAB}
        v_add_u32 v{vEXR}, s{sT1}, v{vLB}
        s_lshl_b32 s{sT0}, s{sCHL}, 5
        s_add_u32 s{sT0}, s{sT0}, {L_FLAG}
        v_mov_b32 v{vFL}, s{sT0}
        s_lshl_b32 s{sT0}, s{sRB}, 4
        v_add_u32 v{c+2}, s{sT0}, v{vL}
        s_mul_i32 s{sT1}, s2, 2341
        s_lshr_b32 s{sT1}, s{sT1}, 16
        s_sub_u32 s{sT1}, s{sT1}, 128
        v_lshl_add_u32 v{c+3}, v{vL}, 3, s{sT1}
        v_cmp_le_u32 vcc, 16, v{vL}
        s_add_u32 s{sT1}, s{sCB}, {224 - 48*14}
        v_mul_u32_u24 v{c}, 14, v{vL}
        v_cndmask_b32 v{c+2}, v{c+2}, v{c+3}, vcc
        v_add_u32 v{c+3}, s{sT1}, v{c}
        v_cmp_le_u32 vcc, 48, v{vL}
        s_lshl_b32 s{sT1}, s{sE}, 3
        s_sub_u32 s{sT1}, s{sT1}, 50
        v_cndmask_b32 v{c+2}, v{c+2}, v{c+3}, vcc
        v_add_u32 v{c+3}, s{sT1}, v{vL}
        v_cmp_le_u32 vcc, 50, v{vL}
        v_mov_b32 v{c}, s{sT0}
        s_lshl_b32 s{sT1}, s{sCQ}, 24
        v_cndmask_b32 v{c+2}, v{c+2}, v{c+3}, vcc
        v_cmp_le_u32 vcc, 58, v{vL}
        s_add_u32 s{sT1}, s{sT1}, {WS_FLU}
        s_nop 0
        v_cndmask_b32 v{c+2}, v{c+2}, v{c}, vcc
        v_lshl_add_u32 v{vPA}, v{c+2}, 7, s{sT1}
        """)

    def signal():
        L = newlabel("NOSIG")
        a(f"""
        s_cmp_lg_u32 s{sCQ}, 0
        s_cbranch_scc1 {L}
        s_lshl_b32 s{sT0}, s2, 7
        s_add_u32 s{sT0}, s{sT0}, {WS_FLU}
        s_mov_b64 exec, 1
        buffer_store_dword v{vONE}, v{vZ}, {sr(R_WS,4)}, s{sT0} offen sc1
        s_mov_b64 exec, -1
        """)
        a.label(L)

    def chunk_build():
        a.vm_wait("D")
        for rnd in range(3):
            d, b = vD + 8 * rnd, vBLD + 12 * rnd
            for i in range(4):
                a(f"v_mov_b32 v{b+i}, v{d+1+i}")
            for i in range(4):
                a(f"v_alignbit_b32 v{b+4+i}, v{d+i+1}, v{d+i}, 16")
            for i in range(4):
                a(f"v_alignbit_b32 v{b+8+i}, v{d+i+2}, v{d+i+1}, 16")

    def poll_block():
        L = newlabel("NOPOLL")
        a.vm_wait("P0")
        a(f"s_cmp_lg_u32 s{sCQ}, 0")
        a(f"s_cbranch_scc1 {L}")
        gpoll(a, vPA, "BP", True)
        a.label(L)

    if EARLY:
        chunk_kv()
        a("s_waitcnt lgkmcnt(0)")
    a("s_barrier")
    a(f"s_lshl_b32 s{sT0}, s{sCQ}, 12")
    tagl()
    if 2 not in GDMA:
        dma(a, 2)
    for st in range(7):
        if EARLY:
            if st == 0:
                chunk_store_stats()
                tag_block()
            if st == 1:
                a(f"v_mov_b32 v{t}, {USCR+8192}")
                a(f"ds_read_b32 v{vONE}, v{t}")
                chunk_conv_setup()
        else:
            if st == 0:
                chunk_kv()
                tag_block()
            if st == 1:
                chunk_store_stats()
            if st == 2:
                chunk_conv_setup()
        if st == SIGST + 1:
            signal()
        if st == 4:
            chunk_build()
        if st == 6:
            a.vmem(f"buffer_load_dwordx4 {vr(vU,4)}, v{vKVA}, {sr(R_WS,4)}, 0 offen sc1", "U")
            a.vmem(f"buffer_load_dwordx4 {vr(vU+4,4)}, v{vKVA}, {sr(R_WS,4)}, 0 offen offset:1024 sc1", "U")
        a("s_waitcnt lgkmcnt(0)")
        if st + 1 < 7:
            a.vm_wait(f"A{st+1}")
        if st == SIGST:
            a.vm_wait("US")
        if st == 5:
            if P0ST == 5:
                a.vmem(f"buffer_load_dword v{vPOLL}, v{vPA}, {sr(R_WS,4)}, 0 offen sc1", "P0")
            poll_block()
        a("s_barrier")
        if st == 4 and P0ST == 4:
            a.vmem(f"buffer_load_dword v{vPOLL}, v{vPA}, {sr(R_WS,4)}, 0 offen sc1", "P0")
        if st + 3 < 7 and st + 3 not in GDMA:
            dma(a, st + 3)
        if st in (3, 6) or STM:
            a.stamp()
    for rnd in range(3):
        d, b = vD + 8 * rnd, vBLD + 12 * rnd
        if rnd == 2:
            a("s_mov_b64 exec, 15")
        srcs = [b + 4, b, b + 8, d + 2]
        for cc in range(4):
            a(f"ds_write_b128 v{vWX if rnd == 2 else vWM}, {vr(srcs[cc],4)} offset:{cc*CV_ST + (0 if rnd == 2 else 64 + 1024*rnd)}")
        if rnd == 2:
            a("s_mov_b64 exec, -1")
    a(f"ds_write_b128 v{vWZ}, {vr(vBLD+36,4)}")
    a.vm_wait("U")
    a(f"ds_write_b128 v{vWP}, {vr(vU,4)} offset:128")
    a(f"ds_write_b128 v{vWP}, {vr(vU+4,4)}")
    a("s_waitcnt lgkmcnt(0)")
    a(f"s_cmp_eq_u32 s{sHF}, 1")
    a("s_cbranch_scc1 C_HALF1")
    vF, vB, vAC = 32, 68, 100
    nst_save = a.nst
    for half in range(2):
        if half:
            a.label("C_HALF1")
            a.nst = nst_save
        own, oth = half, half ^ 1
        a(f"ds_write_b32 v{vFL}, v{vONE} offset:{4*own}")
        lds_wait_flag(a, vFL, 4 * oth, t, "CR")
        a.stamp()

        def F(psi):
            return vF + 6 * (psi % 6)

        def rdA(psi):
            off = 4 * psi * 16
            a(f"ds_read_b128 {vr(F(psi),4)}, v{vAA} offset:{off}")
            a(f"ds_read_b64 {vr(F(psi)+4,2)}, v{vAA} offset:{off+16}")
            return 2

        def nus(dl):
            return (0, 1) if dl < 16 else (1,)

        def rdB(dl):
            n = 0
            for kc in range(2):
                for nu in nus(dl):
                    a(f"ds_read_b128 {vr(vB+16*(dl&1)+8*kc+4*nu,4)}, v{vBA} offset:{kc*4*CV_UP+(16+16*nu-dl)*16}")
                    n += 1
            return n

        dls = list(range(0, 12)) if half == 0 else list(range(12, 32))
        if half:
            rdA(2 * dls[0] - 1)
        rdA(2 * dls[0]); rdA(2 * dls[0] + 1); rdB(dls[0])
        inited = set()
        for dl in dls:
            n = 0
            if dl != dls[-1]:
                n += rdA(2 * dl + 2); n += rdA(2 * dl + 3); n += rdB(dl + 1)
            a(f"s_waitcnt lgkmcnt({n})")
            for kc in range(2):
                for p in range(2):
                    psi = 2 * dl + p - kc
                    if psi < 0:
                        continue
                    for par in range(2):
                        for nu in nus(dl):
                            acc = vAC + 16 * nu + 8 * p + 4 * par
                            csrc = vr(acc, 4) if acc in inited else "0"
                            inited.add(acc)
                            a(f"v_mfma_f32_16x16x32_bf16 {vr(acc,4)}, {vr(F(psi)+2*par,4)}, {vr(vB+16*(dl&1)+8*kc+4*nu,4)}, {csrc}")
        a.stamp()
        a(f"ds_write_b32 v{vFL}, v{vONE} offset:{8+4*own}")
        a(f"ds_read_b128 {vr(vU,4)}, v{vKA} offset:{(16+16*own)*16}")
        a(f"ds_read_b128 {vr(vU+4,4)}, v{vKA} offset:{4*CV_UP+(16+16*own)*16}")
        a(f"""
        s_lshl_b32 s{sT0}, s{sCH}, 12
        s_add_u32 s{sT0}, s{sT0}, {WS_T + own*2048}
        s_lshl_b32 s{sT1}, s{sCHL}, 4
        s_lshr_b32 s{sD}, s{sD}, s{sT1}
        s_lshl_b32 s{sD}, s{sD}, 16
        s_lshl_b32 s{sTMP}, s{sCH}, 7
        s_add_u32 s{sTMP}, s{sTMP}, {WS_FLT + own*448*128}
        """)
        lds_wait_flag(a, vFL, 8 + 4 * oth, t, "CD")
        for q in range(4):
            a(f"ds_write_b128 v{vEXW}, {vr(vAC+16*oth+4*q,4)} offset:{1024*q}")
        a("s_waitcnt lgkmcnt(0)")
        a(f"ds_write_b32 v{vFL}, v{vONE} offset:{16+4*own}")
        vK = vF
        for p in range(2):
            for dq in range(4):
                a(f"v_lshlrev_b32 v{vK+8*p+7-2*dq}, 16, v{vU+4*p+dq}")
                a(f"v_and_b32 v{vK+8*p+6-2*dq}, 0xffff0000, v{vU+4*p+dq}")
        for i in range(16):
            a(f"v_mul_f32 v{vK+i}, s{sD}, v{vK+i}")
        for i in range(8):
            round_pair(a, vK + 2 * i, vK + 2 * i + 1)
        lds_wait_flag(a, vFL, 16 + 4 * oth, t, "CX")
        vR = vB
        for q in range(4):
            a(f"ds_read_b128 {vr(vR+4*q,4)}, v{vEXR} offset:{1024*q}")
        a("s_waitcnt lgkmcnt(0)")
        y = vAC + 16 * own
        for i in range(8):
            a(f"v_pk_add_f32 {vr(y+2*i,2)}, {vr(y+2*i,2)}, {vr(vR+2*i,2)}")
        for i in range(8):
            round_pair(a, y + 2 * i, y + 2 * i + 1)
        for i in range(8):
            a(f"v_pk_add_f32 {vr(y+2*i,2)}, {vr(y+2*i,2)}, {vr(vK+2*i,2)}")
        for i in range(8):
            a(f"v_cvt_pk_bf16_f32 v{vB+16+i}, v{y+2*i}, v{y+2*i+1}")
        a(f"buffer_store_dwordx4 {vr(vB+16,4)}, v{vTA}, {sr(R_WS,4)}, s{sT0} offen sc1")
        a(f"buffer_store_dwordx4 {vr(vB+20,4)}, v{vTA}, {sr(R_WS,4)}, s{sT0} offen offset:64 sc1")
        a.stamp()
        if half == 0:
            a("s_branch B_FINAL")
    a.label("B_FINAL")
    b_final(a)


def b_final(a):
    t = 12
    vXO, vF_, vTG, vTW, vTR, vRR, vST2 = 7, 8, 9, 10, 11, 25, 26
    sT2 = sW2
    srd(a, R_O, S_OUT, SZ_X)
    a(f"""
    s_lshl_b32 s{sT0}, s{sE}, 6
    s_lshl_b32 s{sT1}, s{sCHL}, 5
    s_add_u32 s{sT0}, s{sT0}, s{sT1}
    v_and_b32 v{t}, 31, v{vL}
    v_add_u32 v{t+1}, s{sT0}, v{t}
    v_lshlrev_b32 v{t+2}, 3, v{t+1}
    v_add_u32 v{t+2}, {WS_STATS}, v{t+2}
    v_mul_u32_u24 v{vXO}, 896, v{t+1}
    v_lshrrev_b32 v{t+3}, 5, v{vL}
    v_lshl_add_u32 v{vXO}, v{t+3}, 3, v{vXO}
    s_lshl_b32 s{sXO}, s{sG2C}, 6
    s_lshl_b32 s{sT1}, s{sHF}, 5
    s_add_u32 s{sXO}, s{sXO}, s{sT1}
    s_lshl_b32 s{sT1}, s{sXO}, 1
    v_add_u32 v{vXO}, s{sT1}, v{vXO}
    s_lshl_b32 s{sWO}, s{sT0}, 1
    s_add_u32 s{sWO}, s{sWO}, {WS_T}
    s_add_u32 s{sT2}, s{sWO}, {16*4096}
    s_lshr_b32 s{sT0}, s{sE}, 4
    s_mul_i32 s{sT0}, s{sT0}, 448
    s_add_u32 s{sT0}, s{sT0}, s{sXO}
    s_lshl_b32 s{sT0}, s{sT0}, 7
    s_add_u32 s{sT0}, s{sT0}, {WS_FLT}
    v_lshl_add_u32 v{vF_}, v{t}, 7, s{sT0}
    v_lshrrev_b32 v{t}, 2, v{vL}
    v_add_u32 v{t}, s{sXO}, v{t}
    v_lshlrev_b32 v{t}, 12, v{t}
    v_and_b32 v{t+1}, 3, v{vL}
    v_lshl_add_u32 v{vTG}, v{t+1}, 4, v{t}
    s_lshl_b32 s{sT1}, s{sHF}, 11
    s_add_u32 s{sT1}, s{sT1}, s{sAB}
    s_add_u32 s{sT1}, s{sT1}, 8192
    v_add_u32 v{vTW}, s{sT1}, v{vLB}
    v_bfe_u32 v{t}, v{vL}, 2, 2
    v_lshl_add_u32 v{t}, v{t+3}, 2, v{t}
    v_lshlrev_b32 v{t}, 6, v{t}
    v_bfe_u32 v{t+4}, v{vL}, 4, 1
    v_lshl_add_u32 v{t}, v{t+4}, 5, v{t}
    v_lshl_add_u32 v{t}, v{t+1}, 3, v{t}
    v_add_u32 v{vTR}, s{sT1}, v{t}
    s_lshl_b32 s{sT1}, s{sCQ}, 14
    s_add_u32 s{sT1}, s{sT1}, {WENT[0]}
    v_add_u32 v{vRR}, s{sT1}, v{vLB}
    v_lshlrev_b32 v{t+4}, 2, v{t+1}
    v_add_u32 v{t+4}, {L_FLAG + 64}, v{t+4}
    s_waitcnt vmcnt(0)
    s_mov_b64 exec, 1
    buffer_store_dword v{vONE}, v{vZ}, {sr(R_WS,4)}, s{sTMP} offen sc1
    s_mov_b64 exec, -1
    """)
    a.stamp()
    vXV, vTT, vTD = 28, 36, 44
    vX, vXN, vP, vE, vS = 52, 68, 84, 148, 164
    for i in range(4):
        a(f"buffer_load_dwordx2 {vr(vXV+2*i,2)}, v{vXO}, {sr(R_X,4)}, 0 offen offset:{16*i}")
    a(f"buffer_load_dwordx2 {vr(vST2,2)}, v{t+2}, {sr(R_WS,4)}, 0 offen sc1")
    lds_wait_flag(a, t + 4, 16, t + 3, "TG", sleep=True)
    gpoll(a, vF_, "BT", False, 8)
    a(f"buffer_load_dwordx4 {vr(vTT,4)}, v{vTG}, {sr(R_WS,4)}, s{sWO} offen sc1")
    a(f"buffer_load_dwordx4 {vr(vTT+4,4)}, v{vTG}, {sr(R_WS,4)}, s{sT2} offen sc1")
    a.stamp()
    for i in range(8):
        a(f"v_lshlrev_b32 v{vX+2*i}, 16, v{vXV+i}")
        a(f"v_and_b32 v{vX+2*i+1}, 0xffff0000, v{vXV+i}")
    for i in range(16):
        a(f"v_sub_f32 v{vXN+i}, v{vX+i}, v{vST2}")
    for i in range(8):
        round_pair(a, vXN + 2 * i, vXN + 2 * i + 1)
    for i in range(16):
        a(f"v_mul_f32 v{vXN+i}, v{vXN+i}, v{vST2+1}")
    for i in range(8):
        round_pair(a, vXN + 2 * i, vXN + 2 * i + 1)
    a("s_waitcnt vmcnt(0)")
    a(f"ds_write_b128 v{vTW}, {vr(vTT,4)}")
    a(f"ds_write_b128 v{vTW}, {vr(vTT+4,4)} offset:1024")
    a("s_waitcnt lgkmcnt(0)")
    for i in range(4):
        a(f"ds_read_b64_tr_b16 {vr(vTD+2*i,2)}, v{vTR} offset:{512*i}")
    a("s_waitcnt lgkmcnt(0)")
    for i in range(8):
        a(f"v_lshlrev_b32 v{vS+2*i}, 16, v{vTD+i}")
        a(f"v_and_b32 v{vS+2*i+1}, 0xffff0000, v{vTD+i}")
    for i in range(8):
        a(f"v_pk_mul_f32 {vr(vS+2*i,2)}, {vr(vS+2*i,2)}, {vr(vXN+2*i,2)}")
    for i in range(8):
        round_pair(a, vS + 2 * i, vS + 2 * i + 1)
    a(f"s_mov_b32 s{sW2}, {f32bits(-1.4426950408889634)}")
    a.stamp()
    lds_wait_flag(a, t + 4, 0, t + 3, "GR", sleep=True)
    a.stamp()
    for src in range(4):
        for q in range(4):
            a(f"ds_read_b128 {vr(vP+16*src+4*q,4)}, v{vRR} offset:{src*4096+q*1024}")
    a("s_waitcnt lgkmcnt(8)")
    for i in range(8):
        a(f"v_pk_add_f32 {vr(vP+2*i,2)}, {vr(vP+2*i,2)}, {vr(vP+16+2*i,2)}")
    a("s_waitcnt lgkmcnt(0)")
    for i in range(8):
        a(f"v_pk_add_f32 {vr(vP+32+2*i,2)}, {vr(vP+32+2*i,2)}, {vr(vP+48+2*i,2)}")
    for i in range(8):
        a(f"v_pk_add_f32 {vr(vP+2*i,2)}, {vr(vP+2*i,2)}, {vr(vP+32+2*i,2)}")
    for i in range(8):
        round_pair(a, vP + 2 * i, vP + 2 * i + 1)
    for i in range(16):
        a(f"v_mul_f32 v{vE+i}, s{sW2}, v{vP+i}")
    for i in range(16):
        a(f"v_exp_f32 v{vE+i}, v{vE+i}")
    for i in range(16):
        a(f"v_add_f32 v{vE+i}, 1.0, v{vE+i}")
    for i in range(16):
        a(f"v_rcp_f32 v{vE+i}, v{vE+i}")
    a("s_nop 0")
    for i in range(8):
        a(f"v_pk_mul_f32 {vr(vP+2*i,2)}, {vr(vP+2*i,2)}, {vr(vE+2*i,2)}")
    for i in range(8):
        round_pair(a, vP + 2 * i, vP + 2 * i + 1)
    for i in range(8):
        a(f"v_pk_mul_f32 {vr(vS+2*i,2)}, {vr(vS+2*i,2)}, {vr(vP+2*i,2)}")
    for i in range(8):
        round_pair(a, vS + 2 * i, vS + 2 * i + 1)
    for i in range(8):
        a(f"v_pk_add_f32 {vr(vS+2*i,2)}, {vr(vS+2*i,2)}, {vr(vX+2*i,2)}")
    for i in range(8):
        a(f"v_cvt_pk_bf16_f32 v{vTT+i}, v{vS+2*i}, v{vS+2*i+1}")
    for i in range(4):
        a(f"buffer_store_dwordx2 {vr(vTT+2*i,2)}, v{vXO}, {sr(R_O,4)}, 0 offen offset:{16*i}")
    if PROF:
        a("s_waitcnt vmcnt(0)")
    a.stamp()
    a.stamp_flush()
    a("s_endpgm")


def gen(a):
    a.lines.append(f".globl {KNAME}\n.p2align 8\n.type {KNAME},@function")
    a.label(KNAME)
    a("s_cmp_ge_u32 s2, 256")
    a("s_cbranch_scc1 K_END")
    a.stamp()
    a("""
    s_load_dwordx16 s[16:31], s[0:1], 0
    s_load_dwordx8 s[32:39], s[0:1], 64
    s_load_dwordx2 s[40:41], s[0:1], 96
    v_lshrrev_b32 v1, 6, v0
    v_and_b32 v2, 63, v0
    s_nop 0
    v_readfirstlane_b32 s3, v1
    s_cmp_ge_u32 s2, 224
    s_cbranch_scc1 K_PREP
    """)
    wg_map(a)
    dma_setup(a, 12)
    a("s_cmp_ge_u32 s3, 4")
    a("s_cbranch_scc1 K_B")
    role_g(a)
    a.label("K_B")
    a.vm, a.nst = [], 1
    role_b(a)
    a.label("K_PREP")
    a.vm, a.nst = [], 1
    role_prep(a)
    a.label("K_END")
    a("s_endpgm")


def main():
    HEADER = open("cdna_kernels/" + NAME + ".s.ref").read().split("; Override launch")[0]
    a = Asm()
    gen(a)
    out = HEADER
    out += f"; @launch grid=(256,1,1) block=(512,1,1) lds={LDS_BYTES}\n"
    out += '.amdgcn_target "amdgcn-amd-amdhsa--gfx950"\n.text\n'
    out += a.text()
    out += '.section .rodata,"a"\n.p2align 6\n'
    out += descriptor(KNAME, 256, 102)
    path = sys.argv[1] if len(sys.argv) > 1 else "cdna_kernels/" + NAME + ".s"
    open(path, "w").write(out)


if __name__ == "__main__":
    main()
```

```python
import sys, os
from gen2 import (Asm, vr, sr, srd, round_pair, newlabel, f32bits, descriptor, NAME, KNAME, PROF,
                  S_X, S_K, S_V, S_SHK, S_SSMK, S_SSMD, S_WG, S_WU, S_WD, S_OUT, S_DBG, S_WS,
                  R_X, R_W, R_WS, R_DBG, R_A, R_B, SZ_X, SZ_W, SZ_SHK)
import gen12 as G12
from gen12 import (WS_H, WS_KVR, WS_T, WS_STATS, WS_CS, WS_FLU, WS_FLH, WS_FLT, WS_END, SLOT, LDS_BYTES, USCR,
                   CV_ST, CV_A, CV_U, CV_UP, role_prep, explode, vONE, vZ, vL, sSP, sT0, sT1, tag_issue)

STM = int(os.environ.get("STM", 0))
BPRIO = int(os.environ.get("BPRIO", 2))
TGATE = int(os.environ.get("TGATE", 8))
P0ST = int(os.environ.get("P0ST", 5))
SIGST = int(os.environ.get("SIGST", 1))
WENT = [49152 + 16384 * i for i in range(7)]
L_FLAG = 45568
sRB, sCB, sE, sCQ = 4, 5, 6, 10
sXO, sWO, sM0X, sM0W, sTMP = 11, 12, 13, 14, 15
s2RB, s2CB, sCH, sUB, sAB, sD, sW2 = 18, 19, 20, 21, 22, 23, 28
sWB, sHF, sCHL, sHO, sG2C = 29, 68, 69, 70, 9
R_WD, R_O, R_H, R_W2 = R_A, R_B, 92, 88
vLB, vPOLL = 1, 21


def wg_map(a):
    a(f"""
    s_and_b32 s{sT0}, s2, 7
    s_lshr_b32 s{sT1}, s2, 3
    s_mul_i32 s{sRB}, s{sT1}, 37
    s_lshr_b32 s{sRB}, s{sRB}, 8
    s_mul_i32 s{sCB}, s{sRB}, 7
    s_sub_u32 s{sCB}, s{sT1}, s{sCB}
    s_mov_b32 s{sXO}, s{sCB}
    s_lshl_b32 s{sWO}, s{sT0}, 2
    s_add_u32 s{sWO}, s{sWO}, s{sRB}
    s_and_b32 s{sT1}, s{sT0}, 3
    s_lshl_b32 s{sT1}, s{sT1}, 2
    s_add_u32 s{sRB}, s{sRB}, s{sT1}
    s_lshr_b32 s{sT1}, s{sT0}, 2
    s_mul_i32 s{sT1}, s{sT1}, 7
    s_add_u32 s{sCB}, s{sCB}, s{sT1}
    s_and_b32 s{sCQ}, s3, 3
    v_lshlrev_b32 v{vLB}, 4, v{vL}
    v_mov_b32 v{vZ}, 0
    """)


def lds_wait_flag(a, vaddr, off, vtmp, name, sleep=False):
    L, Lok = newlabel(name), newlabel(name + "OK")
    a(f"s_mov_b32 s{sSP}, 0")
    a.label(L)
    if sleep:
        a("s_sleep 1")
    a(f"""
    ds_read_b32 v{vtmp}, v{vaddr} offset:{off}
    s_add_u32 s{sSP}, s{sSP}, 1
    s_cmp_gt_u32 s{sSP}, 0x100000
    s_cbranch_scc1 {Lok}
    s_waitcnt lgkmcnt(0)
    v_cmp_eq_u32 vcc, v{vONE}, v{vtmp}
    s_nop 3
    s_cmp_eq_u64 vcc, exec
    s_cbranch_scc0 {L}
    """)
    a.label(Lok)
    a("s_waitcnt lgkmcnt(0)")


def gpoll(a, vaddr, name, first_loaded, sleep=8):
    L, Lok = newlabel(name), newlabel(name + "OK")
    a(f"s_mov_b32 s{sSP}, 0")
    if not first_loaded:
        a(f"buffer_load_dword v{vPOLL}, v{vaddr}, {sr(R_WS,4)}, 0 offen sc1")
        a("s_waitcnt vmcnt(0)")
    a.label(L)
    a(f"""
    v_cmp_eq_u32 vcc, v{vONE}, v{vPOLL}
    s_add_u32 s{sSP}, s{sSP}, 1
    s_cmp_gt_u32 s{sSP}, 0x10000
    s_cbranch_scc1 {Lok}
    s_cmp_eq_u64 vcc, exec
    s_cbranch_scc1 {Lok}
    s_sleep {sleep}
    buffer_load_dword v{vPOLL}, v{vaddr}, {sr(R_WS,4)}, 0 offen sc1
    s_waitcnt vmcnt(0)
    s_branch {L}
    """)
    a.label(Lok)


vXG0, vXG1, vWG = 246, 247, 248


def dma_setup(a, t):
    a(f"""
    v_lshrrev_b32 v{t}, 3, v{vL}
    v_lshrrev_b32 v{t+1}, 4, v{vL}
    v_and_b32 v{t+2}, 7, v{vL}
    s_lshl_b32 s{sT0}, s{sRB}, 7
    s_lshl_b32 s{sT1}, s{sCQ}, 5
    s_add_u32 s{sT0}, s{sT0}, s{sT1}
    v_add_u32 v{t}, s{sT0}, v{t}
    v_mul_u32_u24 v{t}, 896, v{t}
    v_xor_b32 v{t+3}, v{t+2}, v{t+1}
    v_lshl_add_u32 v{vXG0}, v{t+3}, 4, v{t}
    v_xor_b32 v{t+3}, 4, v{t+3}
    v_lshl_add_u32 v{vXG1}, v{t+3}, 4, v{t}
    v_add_u32 v{vXG1}, {8*896}, v{vXG1}
    s_lshr_b32 s{sCHL}, s{sCQ}, 1
    s_and_b32 s{sHF}, s{sCQ}, 1
    v_and_b32 v{t+2}, 15, v{vL}
    v_lshlrev_b32 v{t+3}, 2, v{t+1}
    v_xor_b32 v{t+2}, v{t+2}, v{t+3}
    s_lshl_b32 s{sT0}, s{sCHL}, 1
    v_xor_b32 v{t+2}, s{sT0}, v{t+2}
    s_lshl_b32 s{sT1}, s{sHF}, 5
    v_add_u32 v{t+3}, s{sT1}, v{t+1}
    v_mul_u32_u24 v{t+3}, 3584, v{t+3}
    v_lshl_add_u32 v{vWG}, v{t+2}, 4, v{t+3}
    s_lshl_b32 s{sT0}, s{sCB}, 8
    v_add_u32 v{vWG}, s{sT0}, v{vWG}
    s_lshl_b32 s{sM0X}, s{sCQ}, 12
    s_lshl_b32 s{sM0W}, s{sCQ}, 13
    s_add_u32 s{sM0W}, s{sM0W}, 16384
    s_mov_b32 s{sE}, s{sWO}
    s_mov_b32 s{sG2C}, s{sXO}
    s_waitcnt lgkmcnt(0)
    """)
    srd(a, R_X, S_X, SZ_X)
    a(f"""
    s_cmp_eq_u32 s{sCHL}, 0
    s_cselect_b32 s{R_W}, s{S_WG}, s{S_WU}
    s_cselect_b32 s{R_W+1}, s{S_WG+1}, s{S_WU+1}
    s_and_b32 s{R_W+1}, s{R_W+1}, 0xffff
    s_mov_b32 s{R_W+2}, {SZ_W}
    s_mov_b32 s{R_W+3}, 0x20000
    """)


def dma(a, st):
    slot = (st % 3) * SLOT
    for j in range(8):
        a(f"s_mov_b32 s{sWO}, {st*64*3584 + j*4*3584}")
        a(f"s_add_u32 m0, s{sM0W}, {slot+1024*j}")
        a("s_nop 0")
        a.vmem(f"buffer_load_dwordx4 v{vWG}, {sr(R_W,4)}, s{sWO} offen lds", f"A{st}")
        if j % 2 == 1:
            i = j // 2
            a(f"s_mov_b32 s{sXO}, {st*128 + (i//2)*16*896}")
            a(f"s_add_u32 m0, s{sM0X}, {slot+1024*i}")
            a("s_nop 0")
            a.vmem(f"buffer_load_dwordx4 v{vXG1 if i%2 else vXG0}, {sr(R_X,4)}, s{sXO} offen lds", f"A{st}")


GDMA = [int(c) for c in os.environ.get("GDMA", "012")]


def role_g(a):
    vXA, vWA = 3, 7
    vXR, vWR0, vWR1 = 9, 10, 11
    t = 12
    vWD, vHO, vRA0 = 0, 19, 22
    vSA0, vSA1, vHS = 24, 25, 26
    vFR = 28
    vACC = 76
    vCS, vSTAT, vR2 = 204, 236, 60
    if 0 in GDMA:
        dma(a, 0)
    a(f"""
    s_mov_b32 s{s2CB}, s{sG2C}
    s_mov_b32 s{s2RB}, s{sE}
    v_and_b32 v{t}, 31, v{vL}
    v_lshrrev_b32 v{t+1}, 5, v{vL}
    v_bfe_u32 v{t+2}, v{vL}, 1, 3
    v_xor_b32 v{t+2}, v{t+2}, v{t+1}
    v_lshlrev_b32 v{t+3}, 7, v{t}
    v_lshl_add_u32 v{vXA}, v{t+2}, 4, v{t+3}
    v_xor_b32 v{vXA+1}, 32, v{vXA}
    v_xor_b32 v{vXA+2}, 64, v{vXA}
    v_xor_b32 v{vXA+3}, 96, v{vXA}
    s_lshl_b32 s{sT0}, s{sRB}, 7
    v_add_u32 v{t}, s{sT0}, v{t}
    v_lshlrev_b32 v{t}, 3, v{t}
    v_add_u32 v{vSA0}, {WS_STATS}, v{t}
    s_lshl_b32 s{sT0}, s{sCB}, 3
    s_lshl_b32 s{sT1}, s{sCQ}, 1
    s_add_u32 s{sT0}, s{sT0}, s{sT1}
    s_lshl_b32 s{sT1}, s{sT0}, 7
    s_add_u32 s{sT1}, s{sT1}, {WS_CS}
    v_lshl_add_u32 v{vSA1}, v{t+1}, 4, s{sT1}
    s_lshl_b32 s{sT1}, s{sRB}, 9
    s_add_u32 s{sT0}, s{sT0}, s{sT1}
    s_lshl_b32 s{sT0}, s{sT0}, 10
    v_add_u32 v{vHS}, s{sT0}, v{vLB}
    v_bfe_u32 v{t}, v{vL}, 4, 1
    v_bfe_u32 v{t+2}, v{vL}, 2, 2
    v_bfe_u32 v{t+3}, v{vL}, 1, 1
    s_lshl_b32 s{sT0}, s{sCQ}, 2
    v_or_b32 v{t+3}, s{sT0}, v{t+3}
    v_lshlrev_b32 v{t+4}, 2, v{t+2}
    v_xor_b32 v{t+3}, v{t+3}, v{t+4}
    v_lshlrev_b32 v{t+4}, 1, v{t}
    v_xor_b32 v{t+3}, v{t+3}, v{t+4}
    v_lshlrev_b32 v{t+3}, 4, v{t+3}
    v_and_b32 v{t+4}, 1, v{vL}
    v_lshl_add_u32 v{t+3}, v{t+4}, 3, v{t+3}
    v_lshl_add_u32 v{t+2}, v{t+1}, 3, v{t+2}
    v_lshl_add_u32 v{t+3}, v{t+2}, 8, v{t+3}
    v_add_u32 v{t}, 1, v{t}
    v_lshl_add_u32 v{vWA}, v{t}, 14, v{t+3}
    v_xor_b32 v{vWA+1}, 32, v{vWA}
    s_mul_i32 s{sE}, s{sRB}, 56
    s_lshl_b32 s{sT0}, s{sCB}, 2
    s_add_u32 s{sE}, s{sE}, s{sT0}
    s_add_u32 s{sE}, s{sE}, s{sCQ}
    s_lshl_b32 s{sE}, s{sE}, 7
    s_add_u32 s{sE}, s{sE}, {WS_FLH}
    s_lshl_b32 s{sWB}, s{sCQ}, 12
    s_lshl_b32 s{sT0}, s{s2RB}, 8
    s_mul_i32 s{sT1}, s{sCQ}, 28
    s_add_u32 s{sT0}, s{sT0}, s{sT1}
    s_lshl_b32 s{sT0}, s{sT0}, 10
    v_add_u32 v{vHO}, s{sT0}, v{vLB}
    v_lshrrev_b32 v{t}, 3, v{vL}
    s_mul_i32 s{sT0}, s{sCQ}, 448
    v_add_u32 v{t}, s{sT0}, v{t}
    v_mul_u32_u24 v{t}, 896, v{t}
    v_bfe_u32 v{t+1}, v{vL}, 4, 1
    v_lshlrev_b32 v{t+1}, 2, v{t+1}
    v_and_b32 v{t+2}, 7, v{vL}
    v_xor_b32 v{t+1}, v{t+1}, v{t+2}
    v_lshl_add_u32 v{vWD}, v{t+1}, 4, v{t}
    s_lshl_b32 s{sT0}, s{s2CB}, 7
    v_add_u32 v{vWD}, s{sT0}, v{vWD}
    v_lshrrev_b32 v{t}, 5, v{vL}
    v_bfe_u32 v{t+1}, v{vL}, 2, 2
    v_lshl_add_u32 v{t}, v{t}, 2, v{t+1}
    v_bfe_u32 v{t+2}, v{vL}, 4, 1
    v_bfe_u32 v{t+3}, v{vL}, 1, 1
    v_lshl_add_u32 v{t+2}, v{t+2}, 1, v{t+3}
    v_bfe_u32 v{t+3}, v{vL}, 3, 1
    v_lshl_add_u32 v{t+2}, v{t+3}, 2, v{t+2}
    v_lshlrev_b32 v{t+2}, 4, v{t+2}
    v_and_b32 v{t+3}, 1, v{vL}
    v_lshl_add_u32 v{t+2}, v{t+3}, 3, v{t+2}
    v_lshl_add_u32 v{t+2}, v{t}, 7, v{t+2}
    v_add_u32 v{vRA0}, s{sWB}, v{t+2}
    """)
    srd(a, R_WS, S_WS, WS_END)
    srd(a, R_WD, S_WD, SZ_W)

    def fx(s_, nt):
        return vFR + 24 * s_ + 4 * nt

    def fw(s_, mt):
        return vFR + 24 * s_ + 16 + 4 * mt

    def read_ops(st, p, s_):
        slot = (st % 3) * SLOT
        ops = []
        pre = []
        if p == 0:
            pre.append(f"v_add_u32 v{vWR0}, {slot}, v{vWA}")
            pre.append(f"v_add_u32 v{vWR1}, {slot}, v{vWA+1}")
        pre.append(f"v_add_u32 v{vXR}, {slot}, v{vXA+p}")
        ops.append(pre + [f"ds_read_b64_tr_b16 {vr(fw(s_,0),2)}, v{vWR0} offset:{4096*p}"])
        ops.append([f"ds_read_b64_tr_b16 {vr(fw(s_,0)+2,2)}, v{vWR0} offset:{4096*p+1024}"])
        for nt in range(4):
            ops.append([f"ds_read_b128 {vr(fx(s_,nt),4)}, v{vXR} offset:{4096*nt}"])
        ops.append([f"ds_read_b64_tr_b16 {vr(fw(s_,1),2)}, v{vWR1} offset:{4096*p}"])
        ops.append([f"ds_read_b64_tr_b16 {vr(fw(s_,1)+2,2)}, v{vWR1} offset:{4096*p+1024}"])
        return ops

    def wdma(r, s_, ent):
        for j in range(4):
            r(f"s_mov_b32 s{sW2}, {(32*s_ + 8*j)*896}")
            r(f"s_add_u32 m0, s{sWB}, {ent + j*1024}")
            r("s_nop 0")
            r.vmem(f"buffer_load_dwordx4 v{vWD}, {sr(R_WD,4)}, s{sW2} offen lds", f"W{s_}")

    def stat_loads(r):
        for nt in range(4):
            r.vmem(f"buffer_load_dwordx2 {vr(vSTAT+2*nt,2)}, v{vSA0}, {sr(R_WS,4)}, 0 offen offset:{256*nt} sc1", "ST")
        for i in range(8):
            r.vmem(f"buffer_load_dwordx4 {vr(vCS+4*i,4)}, v{vSA1}, {sr(R_WS,4)}, 0 offen offset:{32*i} sc1", "ST")

    def tag_read(r):
        r(f"v_mov_b32 v{t}, {USCR+8192}")
        r(f"ds_read_b32 v{vONE}, v{t}")

    WD = lambda s_: (lambda r: wdma(r, s_, WENT[s_]))
    plan = {0: [tag_read], 1: [], 2: [WD(6)], 3: [], 4: [WD(0), WD(1), WD(2)], 5: [stat_loads, WD(3), WD(4), WD(5)], 6: []}
    for st_ in GDMA:
        if st_ >= 3:
            plan[st_ - 3] = plan[st_ - 3] + [(lambda q: (lambda r: dma(r, q)))(st_)]
    if 1 in GDMA:
        dma(a, 1)
    a.vm_wait("A0")
    a("s_barrier")
    a.stamp()
    for ops in read_ops(0, 0, 0):
        for o in ops:
            a(o)
    cur = 0
    fill = explode(a, [lambda r: dma(r, 2)]) if 2 in GDMA else []
    order = [(0, 0), (0, 1), (0, 2), (0, 3), (1, 3), (1, 2), (1, 1), (1, 0)]
    for st in range(7):
        for p in range(4):
            a("s_waitcnt lgkmcnt(0)")
            nxt = []
            if p == 3:
                assert not fill
                a.vm_wait(f"A{st+1}")
                a("s_barrier")
                if st < 6:
                    nxt = read_ops(st + 1, 0, cur ^ 1)
                fill = explode(a, plan[st])
            else:
                nxt = read_ops(st, p + 1, cur ^ 1)
            slots = 8 * (3 - p) if p < 3 else 32
            for k, (mt, nt) in enumerate(order):
                acc = vACC + 16 * (4 * mt + nt)
                c = "0" if (st == 0 and p == 0) else vr(acc, 16)
                a(f"v_mfma_f32_32x32x16_bf16 {vr(acc,16)}, {vr(fw(cur,mt),4)}, {vr(fx(cur,nt),4)}, {c}")
                for _ in range(2):
                    if nxt:
                        for o in nxt.pop(0):
                            a(o)
                tot = sum(c_ for c_, _ in fill)
                budget = tot / max(1, slots - k)
                used = 0
                while fill and used < budget - 1e-9:
                    c_, e = fill.pop(0)
                    e()
                    used += c_
            cur ^= 1
            if p == 3 and (st in (3, 6) or STM):
                a.stamp()
    a.vm_wait("ST")
    for nt in range(4):
        a(f"v_mul_f32 v{vR2+2*nt}, v{vSTAT+2*nt+1}, v{vSTAT+2*nt+1}")
    for nt in range(1, 4):
        a(f"s_mov_b32 s{sM0X+nt-1}, {nt*128*1024}")
    a("s_nop 4")
    vH = 28
    k = 0
    for nt in range(4):
        for mt in range(2):
            acc = vACC + 16 * (4 * mt + nt)
            cs = vCS + 16 * mt
            m = vSTAT + 2 * nt
            for i in range(8):
                a(f"v_pk_fma_f32 {vr(acc+2*i,2)}, {vr(m,2)}, {vr(cs+2*i,2)}, {vr(acc+2*i,2)} op_sel_hi:[0,1,1] neg_lo:[1,0,0] neg_hi:[1,0,0]")
            for i in range(8):
                a(f"v_max_f32 v{acc+i}, 0, v{acc+i}")
            for i in range(4):
                a(f"v_pk_mul_f32 {vr(acc+8+2*i,2)}, {vr(acc+8+2*i,2)}, {vr(vR2+2*nt,2)} op_sel_hi:[1,0]")
            for i in range(4):
                a(f"v_pk_mul_f32 {vr(acc+2*i,2)}, {vr(acc+2*i,2)}, {vr(acc+8+2*i,2)}")
            o = vH + 4 * k
            for i in range(4):
                a(f"v_cvt_pk_bf16_f32 v{o+i}, v{acc+2*i}, v{acc+2*i+1}")
            so = "0" if nt == 0 else f"s{sM0X+nt-1}"
            a.vmem(f"buffer_store_dwordx4 {vr(o,4)}, v{vHS}, {sr(R_WS,4)}, {so} offen offset:{mt*1024} sc1", "HS")
            k += 1
    a.stamp()
    vA2 = 192
    WR = [60 + 16 * i for i in range(4)]
    HR = [124 + 16 * i for i in range(4)] + [28, 44]
    NHR = len(HR)
    vRB0, vRB1, vH1, vFA = 3, 4, 5, 6
    vXO, vF_, vTG, vTW, vTR, vRW, vRR = 7, 8, 9, 10, 11, 24, 25
    ENT = {s_: WENT[s_ % 7] for s_ in range(14)}

    def trreads(s_, dst):
        a(f"v_add_u32 v{vRB0}, {ENT[s_]}, v{vRA0}")
        a(f"v_xor_b32 v{vRB1}, 64, v{vRB0}")
        for tt in range(2):
            for Td in range(2):
                for hf in range(2):
                    a(f"ds_read_b64_tr_b16 {vr(dst+8*tt+4*Td+2*hf,2)}, v{vRB1 if Td else vRB0} offset:{tt*2048+hf*1024}")

    a(f"""
    v_add_u32 v{vH1}, {128*1024}, v{vHO}
    s_lshr_b32 s{sT0}, s{s2RB}, 1
    s_mul_i32 s{sT0}, s{sT0}, 56
    s_mul_i32 s{sT1}, s{sCQ}, 14
    s_add_u32 s{sT0}, s{sT0}, s{sT1}
    s_lshl_b32 s{sT0}, s{sT0}, 7
    s_add_u32 s{sT0}, s{sT0}, {WS_FLH}
    v_min_u32 v{vFA}, 13, v{vL}
    v_lshl_add_u32 v{vFA}, v{vFA}, 7, s{sT0}
    """)
    for s_ in range(4):
        a.vm_wait(f"W{s_}")
        trreads(s_, WR[s_])
    a("s_waitcnt lgkmcnt(0)")
    for s_ in range(7, 11):
        wdma(a, s_, ENT[s_])
    a.vm_wait("HS")
    a("s_mov_b64 exec, 1")
    a.vmem(f"buffer_store_dword v{vONE}, v{vZ}, {sr(R_WS,4)}, s{sE} offen sc1", "HF")
    a("s_mov_b64 exec, -1")
    a.stamp()
    a(f"""
    s_add_u32 s{sT1}, s{sWB}, {WENT[0]}
    v_add_u32 v{vRW}, s{sT1}, v{vLB}
    s_lshl_b32 s{sT0}, s3, 2
    s_add_u32 s{sT0}, s{sT0}, {L_FLAG + 64}
    v_mov_b32 v{t+6}, s{sT0}
    """)
    gpoll(a, vFA, "GH", False)
    a.vm = []
    a.stamp()

    def hloads(s_):
        r = HR[s_ % NHR]
        a(f"s_mov_b32 s{sHO}, {2048*s_}")
        for tt in range(2):
            for nt in range(2):
                a.vmem(f"buffer_load_dwordx4 {vr(r+8*tt+4*nt,4)}, v{vH1 if nt else vHO}, {sr(R_WS,4)}, s{sHO} offen offset:{1024*tt} sc1", f"H{s_}")

    for s_ in range(NHR):
        hloads(s_)
    vXV, vST2 = 188, 26
    for s_ in range(14):
        wreg = WR[s_ % 4]
        a.vm_wait(f"H{s_}")
        if s_ >= 4:
            a(f"s_waitcnt lgkmcnt({min(15, 8*min(3, 13 - s_))})")
        for tt in range(2):
            for Td in range(2):
                for nt in range(2):
                    acc = vA2 + 32 * nt + 16 * Td
                    c = "0" if (s_ == 0 and tt == 0) else vr(acc, 16)
                    a(f"v_mfma_f32_32x32x16_bf16 {vr(acc,16)}, {vr(wreg+8*tt+4*Td,4)}, {vr(HR[s_%NHR]+8*tt+4*nt,4)}, {c}")
        if s_ == TGATE:
            a(f"ds_write_b32 v{t+6}, v{vONE} offset:16")
        if s_ + NHR < 14:
            hloads(s_ + NHR)
        sn = s_ + 4
        if sn < 14:
            a.vm_wait(f"W{sn}")
            trreads(sn, wreg)
            if sn + 7 < 14:
                a("s_waitcnt lgkmcnt(0)")
                wdma(a, sn + 7, ENT[sn + 7])
    a.stamp()
    a("s_nop 7")
    a("s_nop 3")
    for tau in range(4):
        for q in range(4):
            a(f"ds_write_b128 v{vRW}, {vr(vA2+16*tau+4*q,4)} offset:{tau*16384+q*1024}")
    a("s_waitcnt lgkmcnt(0)")
    a(f"ds_write_b32 v{t+6}, v{vONE}")
    a.stamp()
    a.stamp_flush()
    a("s_endpgm")


def role_b(a):
    R_K, R_V, R_SH = 76, 80, 84
    t = 6
    uA = 24
    uK, uV, uW, uX = 32, 43, 52, 56
    uKU, uWU, uAC, uVU, uO, uS = 64, 86, 94, 110, 112, 120
    vD, vU, vBLD = 144, 168, 176
    vAA, vBA, vKA, vTA, vEXW, vEXR, vFL, vWM, vWX, vWZ, vWP, vPA, vKVA = range(216, 229)
    if 0 not in GDMA:
        dma(a, 0)
    srd(a, R_K, S_K, SZ_X)
    srd(a, R_V, S_V, SZ_X)
    srd(a, R_SH, S_SHK, SZ_SHK)
    srd(a, R_WS, S_WS, WS_END)
    srd(a, R_DBG, S_DBG, 256)
    a(f"""
    v_cmp_le_u32 vcc, 28, v{vL}
    v_mov_b32 v{uA+4}, 0x7f000000
    s_and_b32 s{sT0}, s2, 7
    v_cndmask_b32 v{uA}, 0, 1, vcc
    v_mul_u32_u24 v{uA+1}, 28, v{uA}
    v_sub_u32 v{uA+1}, v{vL}, v{uA+1}
    s_and_b32 s{sT1}, s2, 0xf8
    s_lshl_b32 s{sTMP}, s{sCQ}, 1
    s_add_u32 s{sT1}, s{sT1}, s{sTMP}
    s_mul_i32 s{sT1}, s{sT1}, {8*896}
    s_mul_i32 s{sT0}, s{sT0}, 112
    s_add_u32 s{sT1}, s{sT1}, s{sT0}
    v_mul_u32_u24 v{uA+2}, {8*896}, v{uA}
    v_lshl_add_u32 v{uA+2}, v{uA+1}, 2, v{uA+2}
    v_add_u32 v{uA+2}, s{sT1}, v{uA+2}
    v_cmp_le_u32 vcc, 56, v{vL}
    v_subrev_u32 v{uA+3}, {3*896}, v{uA+2}
    s_lshl_b32 s{sT0}, s{sT0}, 2
    v_cndmask_b32 v{uA+2}, v{uA+2}, v{uA+4}, vcc
    v_cndmask_b32 v{uA+3}, v{uA+3}, v{uA+4}, vcc
    v_lshl_add_u32 v{uA+5}, v{uA+1}, 4, s{sT0}
    s_lshl_b32 s{sT0}, s2, 3
    s_add_u32 s{sT0}, s{sT0}, s{sTMP}
    s_mul_i32 s{sT0}, s{sT0}, 896
    v_add_u32 v{t}, s{sT0}, v{vLB}
    v_cndmask_b32 v{t}, v{t}, v{uA+4}, vcc
    s_mov_b32 s{sT1}, {4*896}
    """)
    a.vmem(f"buffer_load_dwordx4 {vr(uW,4)}, v{uA+5}, {sr(R_SH,4)}, 0 offen", "UK")
    for i in range(3):
        a.vmem(f"buffer_load_dword v{uK+i}, v{uA+3}, {sr(R_K,4)}, 0 offen offset:{896*i}", "UK")
    for i in range(8):
        a.vmem(f"buffer_load_dword v{uK+3+i}, v{uA+2}, {sr(R_K,4)}, {'0' if i<4 else 's%d'%sT1} offen offset:{896*(i&3)}", "UK")
    for i in range(8):
        a.vmem(f"buffer_load_dword v{uV+i}, v{uA+2}, {sr(R_V,4)}, {'0' if i<4 else 's%d'%sT1} offen offset:{896*(i&3)}", "UK")
    for i in range(2):
        a.vmem(f"buffer_load_dwordx4 {vr(uX+4*i,4)}, v{t}, {sr(R_X,4)}, 0 offen offset:{896*i}", "UX")
    if 1 not in GDMA:
        dma(a, 1)
    a.vm_wait("A0")
    if BPRIO:
        a(f"s_setprio {BPRIO}")
    EARLY = int(os.environ.get("EARLY", 1))
    a.stamp()
    a(f"s_lshl_b32 s{sT0}, s{sCQ}, 12")
    tagl = lambda: a.vmem(f"buffer_load_dword v{vONE}, v{vZ}, {sr(R_DBG,4)}, s{sT0} offen sc1", "TAG")

    def chunk_kv():
        a.vm_wait("UK")
        for r in range(11):
            a(f"v_lshlrev_b32 v{uKU+2*r}, 16, v{uK+r}")
            a(f"v_and_b32 v{uKU+2*r+1}, 0xffff0000, v{uK+r}")
        for h in range(2):
            a(f"v_lshlrev_b32 v{uWU+0+h}, 16, v{uW+2*h}")
            a(f"v_and_b32 v{uWU+2+h}, 0xffff0000, v{uW+2*h}")
            a(f"v_lshlrev_b32 v{uWU+4+h}, 16, v{uW+2*h+1}")
            a(f"v_and_b32 v{uWU+6+h}, 0xffff0000, v{uW+2*h+1}")
        w = lambda j: vr(uWU + 2 * j, 2)
        for r in range(8):
            ac = vr(uAC + 2 * r, 2)
            a(f"v_pk_mul_f32 {ac}, {vr(uKU+2*r,2)}, {w(3)}")
            a(f"v_pk_fma_f32 {ac}, {vr(uKU+2*(r+1),2)}, {w(2)}, {ac}")
            a(f"v_pk_fma_f32 {ac}, {vr(uKU+2*(r+2),2)}, {w(1)}, {ac}")
            a(f"v_pk_fma_f32 {ac}, {vr(uKU+2*(r+3),2)}, {w(0)}, {ac}")
            a(f"v_cvt_pk_bf16_f32 v{uAC+2*r+1}, v{uAC+2*r}, v{uAC+2*r+1}")
            a(f"v_lshlrev_b32 v{uVU}, 16, v{uV+r}")
            a(f"v_and_b32 v{uVU+1}, 0xffff0000, v{uV+r}")
            a(f"v_lshlrev_b32 v{uAC+2*r}, 16, v{uAC+2*r+1}")
            a(f"v_and_b32 v{uAC+2*r+1}, 0xffff0000, v{uAC+2*r+1}")
            a(f"v_pk_mul_f32 {ac}, {ac}, {vr(uVU,2)}")
        for h in range(2):
            for q in range(4):
                a(f"v_cvt_pk_bf16_f32 v{uO+4*h+q}, v{uAC+2*(7-2*q)+h}, v{uAC+2*(6-2*q)+h}")
        a(f"""
        v_lshlrev_b32 v{uA+2}, 8, v{uA+1}
        v_lshlrev_b32 v{uA+3}, 4, v{uA}
        v_sub_u32 v{uA+2}, v{uA+2}, v{uA+3}
        s_lshl_b32 s{sT0}, s{sCQ}, 5
        s_sub_u32 s{sT0}, {USCR + 7*16}, s{sT0}
        v_add_u32 v{uA+2}, s{sT0}, v{uA+2}
        s_mov_b32 exec_hi, 0xffffff
        ds_write_b128 v{uA+2}, {vr(uO,4)}
        ds_write_b128 v{uA+2}, {vr(uO+4,4)} offset:128
        s_mov_b64 exec, -1
        """)

    def tag_block():
        L, Lok, Lsk = newlabel("TB"), newlabel("TBOK"), newlabel("TBSK")
        a.vm_wait("TAG")
        a(f"s_cmp_lg_u32 s{sCQ}, 0")
        a(f"s_cbranch_scc1 {Lsk}")
        a(f"s_mov_b32 s{sSP}, 0")
        a.label(L)
        a(f"""
        v_readfirstlane_b32 s{sSP+1}, v{vONE}
        s_add_u32 s{sSP}, s{sSP}, 1
        s_cmp_gt_u32 s{sSP}, 0x4000
        s_cbranch_scc1 {Lok}
        s_cmp_lg_u32 s{sSP+1}, 0
        s_cbranch_scc1 {Lok}
        s_sleep 4
        buffer_load_dword v{vONE}, v{vZ}, {sr(R_DBG,4)}, 0 offen sc1
        s_waitcnt vmcnt(0)
        s_branch {L}
        """)
        a.label(Lok)
        a(f"v_mov_b32 v{t}, {USCR+8192}")
        a(f"ds_write_b32 v{t}, v{vONE}")
        a.label(Lsk)

    def chunk_store_stats():
        if not EARLY:
            a(f"v_mov_b32 v{t}, {USCR+8192}")
            a(f"ds_read_b32 v{vONE}, v{t}")
        a(f"""
        s_mul_i32 s{sT0}, s{sCQ}, 1792
        s_add_u32 s{sT0}, s{sT0}, {USCR}
        v_add_u32 v{uA+2}, s{sT0}, v{vLB}
        ds_read_b128 {vr(uO,4)}, v{uA+2}
        ds_read_b128 {vr(uO+4,4)}, v{uA+2} offset:896
        v_lshrrev_b32 v{uA+2}, 3, v{vL}
        v_lshlrev_b32 v{uA+2}, 12, v{uA+2}
        v_and_b32 v{uA+3}, 7, v{vL}
        v_lshl_add_u32 v{uA+2}, v{uA+3}, 4, v{uA+2}
        s_and_b32 s{sT0}, s2, 7
        s_mul_i32 s{sT0}, s{sT0}, 56
        s_mul_i32 s{sT1}, s{sCQ}, 14
        s_add_u32 s{sT0}, s{sT0}, s{sT1}
        s_lshl_b32 s{sT0}, s{sT0}, 12
        s_lshr_b32 s{sT1}, s2, 3
        s_lshl_b32 s{sT1}, s{sT1}, 7
        s_sub_u32 s{sT0}, s{sT0}, s{sT1}
        s_add_u32 s{sT0}, s{sT0}, {WS_KVR + 3968}
        s_add_u32 s{sT1}, s{sT0}, {7*4096}
        s_waitcnt lgkmcnt(0)
        s_mov_b32 exec_hi, 0xffffff
        """)
        a.vmem(f"buffer_store_dwordx4 {vr(uO,4)}, v{uA+2}, {sr(R_WS,4)}, s{sT0} offen sc1", "US")
        a.vmem(f"buffer_store_dwordx4 {vr(uO+4,4)}, v{uA+2}, {sr(R_WS,4)}, s{sT1} offen sc1", "US")
        a("s_mov_b64 exec, -1")
        a.vm_wait("UX")
        for i in range(4):
            a(f"v_mov_b32 v{uS+i}, 0")
        a(f"v_mov_b32 v{uS+4}, 0x3f803f80")
        for i in range(4):
            for r in range(2):
                a(f"v_dot2c_f32_bf16 v{uS+2*r}, v{uX+4*r+i}, v{uS+4}")
                a(f"v_dot2c_f32_bf16 v{uS+2*r+1}, v{uX+4*r+i}, v{uX+4*r+i}")
        a("s_nop 2")
        for mode in ("quad_perm:[1,0,3,2]", "quad_perm:[2,3,0,1]", "row_half_mirror", "row_mirror"):
            for i in range(4):
                a(f"v_add_f32_dpp v{uS+i}, v{uS+i}, v{uS+i} {mode} row_mask:0xf bank_mask:0xf")
        for sw in ("v_permlane16_swap_b32", "v_permlane32_swap_b32"):
            for i in range(4):
                a(f"v_mov_b32 v{uS+4+i}, v{uS+i}")
            a("s_nop 1")
            for i in range(4):
                a(f"{sw} v{uS+i}, v{uS+4+i}")
            a("s_nop 1")
            for i in range(4):
                a(f"v_add_f32 v{uS+i}, v{uS+i}, v{uS+4+i}")
        a(f"s_mov_b32 s{sT0}, {f32bits(1.0/448.0)}")
        a(f"s_mov_b32 s{sT1}, {f32bits(1e-5)}")
        for r in range(2):
            m, q = uS + 2 * r, uS + 2 * r + 1
            a(f"""
            v_mul_f32 v{m}, s{sT0}, v{m}
            v_mul_f32 v{q}, s{sT0}, v{q}
            v_fma_f32 v{q}, -v{m}, v{m}, v{q}
            v_max_f32 v{q}, 0, v{q}
            v_cvt_pk_bf16_f32 v{q}, v{m}, v{q}
            v_lshlrev_b32 v{m}, 16, v{q}
            v_and_b32 v{q}, 0xffff0000, v{q}
            v_add_f32 v{q}, s{sT1}, v{q}
            v_cvt_pk_bf16_f32 v{q}, v{q}, v{q}
            v_and_b32 v{q}, 0xffff0000, v{q}
            v_sqrt_f32 v{q}, v{q}
            s_nop 0
            v_cvt_pk_bf16_f32 v{q}, v{q}, v{q}
            v_and_b32 v{q}, 0xffff0000, v{q}
            v_rcp_f32 v{q}, v{q}
            """)
        a(f"""
        s_lshl_b32 s{sT0}, s2, 2
        s_add_u32 s{sT0}, s{sT0}, s{sCQ}
        s_lshl_b32 s{sT0}, s{sT0}, 4
        s_add_u32 s{sT0}, s{sT0}, {WS_STATS}
        s_mov_b64 exec, 1
        """)
        a.vmem(f"buffer_store_dwordx4 {vr(uS,4)}, v{vZ}, {sr(R_WS,4)}, s{sT0} offen sc1", "US")
        a("s_mov_b64 exec, -1")

    def chunk_conv_setup():
        c = t
        a(f"""
        s_lshl_b32 s{sCH}, s2, 1
        s_add_u32 s{sCH}, s{sCH}, s{sCHL}
        s_mul_i32 s{sUB}, s{sCHL}, {8*CV_UP}
        s_add_u32 s{sUB}, s{sUB}, {CV_U}
        s_mul_i32 s{sAB}, s{sCHL}, {CV_A[1]}
        s_lshl_b32 s{sT0}, s{sCH}, 12
        s_add_u32 s{R_H}, s{S_SSMK}, s{sT0}
        s_addc_u32 s{R_H+1}, s{S_SSMK+1}, 0
        s_and_b32 s{R_H+1}, s{R_H+1}, 0xffff
        s_mov_b32 s{R_H+2}, 4096
        s_mov_b32 s{R_H+3}, 0x20000
        s_lshl_b32 s{sT1}, s2, 2
        s_load_dword s{sD}, {sr(S_SSMD,2)}, s{sT1}
        s_lshl_b32 s{sT1}, s{sHF}, 11
        v_add_u32 v{c+1}, s{sT1}, v{vLB}
        v_subrev_u32 v{c+2}, 64, v{vLB}
        v_subrev_u32 v{c+3}, 48, v{vLB}
        s_add_u32 s{sT0}, s{sT0}, {WS_KVR}
        v_add_u32 v{vKVA}, s{sT0}, v{c+1}
        """)
        a.vmem(f"buffer_load_dwordx4 {vr(vD,4)}, v{c+1}, {sr(R_H,4)}, 0 offen", "D")
        a.vmem(f"buffer_load_dwordx4 {vr(vD+4,4)}, v{c+1}, {sr(R_H,4)}, 0 offen offset:16", "D")
        a.vmem(f"buffer_load_dwordx4 {vr(vD+8,4)}, v{c+1}, {sr(R_H,4)}, 0 offen offset:1024", "D")
        a.vmem(f"buffer_load_dwordx4 {vr(vD+12,4)}, v{c+1}, {sr(R_H,4)}, 0 offen offset:1040", "D")
        a.vmem(f"buffer_load_dwordx4 {vr(vD+16,4)}, v{c+2}, {sr(R_H,4)}, 0 offen", "D")
        a.vmem(f"buffer_load_dwordx4 {vr(vD+20,4)}, v{c+3}, {sr(R_H,4)}, 0 offen", "D")
        a(f"""
        v_add_u32 v{vWM}, s{sAB}, v{c+1}
        v_add_u32 v{vWX}, s{sAB}, v{vLB}
        v_mov_b32 v{vBLD+36}, 0
        v_mov_b32 v{vBLD+37}, 0
        v_mov_b32 v{vBLD+38}, 0
        v_mov_b32 v{vBLD+39}, 0
        v_lshrrev_b32 v{c+4}, 4, v{vL}
        s_lshl_b32 s{sT0}, s{sHF}, 2
        v_add_u32 v{vWZ}, s{sT0}, v{c+4}
        v_mul_u32_u24 v{vWZ}, {CV_UP}, v{vWZ}
        v_and_b32 v{c}, 15, v{vL}
        v_lshl_add_u32 v{vWZ}, v{c}, 4, v{vWZ}
        v_add_u32 v{vWZ}, s{sUB}, v{vWZ}
        v_and_b32 v{vWP}, 7, v{vL}
        v_xor_b32 v{vWP}, 4, v{vWP}
        v_mul_u32_u24 v{vWP}, {CV_UP}, v{vWP}
        v_lshrrev_b32 v{c+5}, 3, v{vL}
        v_lshlrev_b32 v{c+5}, 4, v{c+5}
        v_sub_u32 v{vWP}, v{vWP}, v{c+5}
        s_lshl_b32 s{sT0}, s{sHF}, 8
        s_sub_u32 s{sT0}, s{sUB}, s{sT0}
        s_add_u32 s{sT0}, s{sT0}, {(47-8)*16}
        v_add_u32 v{vWP}, s{sT0}, v{vWP}
        v_mul_u32_u24 v{vBA}, {CV_UP}, v{c+4}
        v_lshl_add_u32 v{vBA}, v{c}, 4, v{vBA}
        v_add_u32 v{vBA}, s{sUB}, v{vBA}
        v_sub_u32 v{vKA}, 3, v{c+4}
        v_mul_u32_u24 v{vKA}, {CV_UP}, v{vKA}
        v_lshl_add_u32 v{vKA}, v{c}, 4, v{vKA}
        v_add_u32 v{vKA}, s{sUB}, v{vKA}
        v_lshlrev_b32 v{vTA}, 7, v{c}
        v_lshl_add_u32 v{vTA}, v{c+4}, 4, v{vTA}
        v_lshrrev_b32 v{c}, 2, v{c}
        v_add_u32 v{c}, v{c}, v{c+4}
        v_lshlrev_b32 v{c}, 4, v{c}
        v_add_u32 v{c}, s{sAB}, v{c}
        v_and_b32 v{c+4}, 3, v{vL}
        v_mul_u32_u24 v{vAA}, {CV_ST}, v{c+4}
        v_add_u32 v{vAA}, v{vAA}, v{c}
        s_lshl_b32 s{sT0}, s{sHF}, 12
        s_add_u32 s{sT1}, s{sT0}, s{sAB}
        v_add_u32 v{vEXW}, s{sT1}, v{vLB}
        s_xor_b32 s{sT0}, s{sT0}, 4096
        s_add_u32 s{sT1}, s{sT0}, s{sAB}
        v_add_u32 v{vEXR}, s{sT1}, v{vLB}
        s_lshl_b32 s{sT0}, s{sCHL}, 5
        s_add_u32 s{sT0}, s{sT0}, {L_FLAG}
        v_mov_b32 v{vFL}, s{sT0}
        s_lshl_b32 s{sT0}, s{sRB}, 4
        v_add_u32 v{c+2}, s{sT0}, v{vL}
        s_mul_i32 s{sT1}, s2, 2341
        s_lshr_b32 s{sT1}, s{sT1}, 16
        s_sub_u32 s{sT1}, s{sT1}, 128
        v_lshl_add_u32 v{c+3}, v{vL}, 3, s{sT1}
        v_cmp_le_u32 vcc, 16, v{vL}
        s_add_u32 s{sT1}, s{sCB}, {224 - 48*14}
        v_mul_u32_u24 v{c}, 14, v{vL}
        v_cndmask_b32 v{c+2}, v{c+2}, v{c+3}, vcc
        v_add_u32 v{c+3}, s{sT1}, v{c}
        v_cmp_le_u32 vcc, 48, v{vL}
        s_lshl_b32 s{sT1}, s{sE}, 3
        s_sub_u32 s{sT1}, s{sT1}, 50
        v_cndmask_b32 v{c+2}, v{c+2}, v{c+3}, vcc
        v_add_u32 v{c+3}, s{sT1}, v{vL}
        v_cmp_le_u32 vcc, 50, v{vL}
        v_mov_b32 v{c}, s{sT0}
        s_lshl_b32 s{sT1}, s{sCQ}, 24
        v_cndmask_b32 v{c+2}, v{c+2}, v{c+3}, vcc
        v_cmp_le_u32 vcc, 58, v{vL}
        s_add_u32 s{sT1}, s{sT1}, {WS_FLU}
        s_nop 0
        v_cndmask_b32 v{c+2}, v{c+2}, v{c}, vcc
        v_lshl_add_u32 v{vPA}, v{c+2}, 7, s{sT1}
        """)

    def signal():
        L = newlabel("NOSIG")
        a(f"""
        s_cmp_lg_u32 s{sCQ}, 0
        s_cbranch_scc1 {L}
        s_lshl_b32 s{sT0}, s2, 7
        s_add_u32 s{sT0}, s{sT0}, {WS_FLU}
        s_mov_b64 exec, 1
        buffer_store_dword v{vONE}, v{vZ}, {sr(R_WS,4)}, s{sT0} offen sc1
        s_mov_b64 exec, -1
        """)
        a.label(L)

    def chunk_build():
        a.vm_wait("D")
        for rnd in range(3):
            d, b = vD + 8 * rnd, vBLD + 12 * rnd
            for i in range(4):
                a(f"v_mov_b32 v{b+i}, v{d+1+i}")
            for i in range(4):
                a(f"v_alignbit_b32 v{b+4+i}, v{d+i+1}, v{d+i}, 16")
            for i in range(4):
                a(f"v_alignbit_b32 v{b+8+i}, v{d+i+2}, v{d+i+1}, 16")

    def poll_block():
        L = newlabel("NOPOLL")
        a.vm_wait("P0")
        a(f"s_cmp_lg_u32 s{sCQ}, 0")
        a(f"s_cbranch_scc1 {L}")
        gpoll(a, vPA, "BP", True)
        a.label(L)

    if EARLY:
        chunk_kv()
        a("s_waitcnt lgkmcnt(0)")
    a("s_barrier")
    a(f"s_lshl_b32 s{sT0}, s{sCQ}, 12")
    tagl()
    if 2 not in GDMA:
        dma(a, 2)
    for st in range(7):
        if EARLY:
            if st == 0:
                chunk_store_stats()
                tag_block()
            if st == 1:
                a(f"v_mov_b32 v{t}, {USCR+8192}")
                a(f"ds_read_b32 v{vONE}, v{t}")
                chunk_conv_setup()
        else:
            if st == 0:
                chunk_kv()
                tag_block()
            if st == 1:
                chunk_store_stats()
            if st == 2:
                chunk_conv_setup()
        if st == SIGST + 1:
            signal()
        if st == 4:
            chunk_build()
        if st == 6:
            a.vmem(f"buffer_load_dwordx4 {vr(vU,4)}, v{vKVA}, {sr(R_WS,4)}, 0 offen sc1", "U")
            a.vmem(f"buffer_load_dwordx4 {vr(vU+4,4)}, v{vKVA}, {sr(R_WS,4)}, 0 offen offset:1024 sc1", "U")
        a("s_waitcnt lgkmcnt(0)")
        if st + 1 < 7:
            a.vm_wait(f"A{st+1}")
        if st == SIGST:
            a.vm_wait("US")
        if st == 5:
            if P0ST == 5:
                a.vmem(f"buffer_load_dword v{vPOLL}, v{vPA}, {sr(R_WS,4)}, 0 offen sc1", "P0")
            poll_block()
        a("s_barrier")
        if st == 4 and P0ST == 4:
            a.vmem(f"buffer_load_dword v{vPOLL}, v{vPA}, {sr(R_WS,4)}, 0 offen sc1", "P0")
        if st + 3 < 7 and st + 3 not in GDMA:
            dma(a, st + 3)
        if st in (3, 6) or STM:
            a.stamp()
    if os.environ.get("CPRIO"):
        a(f"s_setprio {os.environ['CPRIO']}")
    for rnd in range(3):
        d, b = vD + 8 * rnd, vBLD + 12 * rnd
        if rnd == 2:
            a("s_mov_b64 exec, 15")
        srcs = [b + 4, b, b + 8, d + 2]
        for cc in range(4):
            a(f"ds_write_b128 v{vWX if rnd == 2 else vWM}, {vr(srcs[cc],4)} offset:{cc*CV_ST + (0 if rnd == 2 else 64 + 1024*rnd)}")
        if rnd == 2:
            a("s_mov_b64 exec, -1")
    a(f"ds_write_b128 v{vWZ}, {vr(vBLD+36,4)}")
    a.vm_wait("U")
    a(f"ds_write_b128 v{vWP}, {vr(vU,4)} offset:128")
    a(f"ds_write_b128 v{vWP}, {vr(vU+4,4)}")
    a("s_waitcnt lgkmcnt(0)")
    a(f"s_cmp_eq_u32 s{sHF}, 1")
    a("s_cbranch_scc1 C_HALF1")
    vF, vB, vAC = 32, 68, 100
    nst_save = a.nst
    for half in range(2):
        if half:
            a.label("C_HALF1")
            a.nst = nst_save
        own, oth = half, half ^ 1
        a(f"ds_write_b32 v{vFL}, v{vONE} offset:{4*own}")
        lds_wait_flag(a, vFL, 4 * oth, t, "CR")
        a.stamp()

        def F(psi):
            return vF + 6 * (psi % 6)

        def rdA(psi):
            off = 4 * psi * 16
            a(f"ds_read_b128 {vr(F(psi),4)}, v{vAA} offset:{off}")
            a(f"ds_read_b64 {vr(F(psi)+4,2)}, v{vAA} offset:{off+16}")
            return 2

        def nus(dl):
            return (0, 1) if dl < 16 else (1,)

        def rdB(dl):
            n = 0
            for kc in range(2):
                for nu in nus(dl):
                    a(f"ds_read_b128 {vr(vB+16*(dl&1)+8*kc+4*nu,4)}, v{vBA} offset:{kc*4*CV_UP+(16+16*nu-dl)*16}")
                    n += 1
            return n

        dls = list(range(0, 12)) if half == 0 else list(range(12, 32))
        if half:
            rdA(2 * dls[0] - 1)
        rdA(2 * dls[0]); rdA(2 * dls[0] + 1); rdB(dls[0])
        inited = set()
        for dl in dls:
            n = 0
            if dl != dls[-1]:
                n += rdA(2 * dl + 2); n += rdA(2 * dl + 3); n += rdB(dl + 1)
            a(f"s_waitcnt lgkmcnt({n})")
            for kc in range(2):
                for p in range(2):
                    psi = 2 * dl + p - kc
                    if psi < 0:
                        continue
                    for par in range(2):
                        for nu in nus(dl):
                            acc = vAC + 16 * nu + 8 * p + 4 * par
                            csrc = vr(acc, 4) if acc in inited else "0"
                            inited.add(acc)
                            a(f"v_mfma_f32_16x16x32_bf16 {vr(acc,4)}, {vr(F(psi)+2*par,4)}, {vr(vB+16*(dl&1)+8*kc+4*nu,4)}, {csrc}")
        a.stamp()
        a(f"ds_write_b32 v{vFL}, v{vONE} offset:{8+4*own}")
        a(f"ds_read_b128 {vr(vU,4)}, v{vKA} offset:{(16+16*own)*16}")
        a(f"ds_read_b128 {vr(vU+4,4)}, v{vKA} offset:{4*CV_UP+(16+16*own)*16}")
        a(f"""
        s_lshl_b32 s{sT0}, s{sCH}, 12
        s_add_u32 s{sT0}, s{sT0}, {WS_T + own*2048}
        s_lshl_b32 s{sT1}, s{sCHL}, 4
        s_lshr_b32 s{sD}, s{sD}, s{sT1}
        s_lshl_b32 s{sD}, s{sD}, 16
        s_lshl_b32 s{sTMP}, s{sCH}, 7
        s_add_u32 s{sTMP}, s{sTMP}, {WS_FLT + own*448*128}
        """)
        lds_wait_flag(a, vFL, 8 + 4 * oth, t, "CD")
        for q in range(4):
            a(f"ds_write_b128 v{vEXW}, {vr(vAC+16*oth+4*q,4)} offset:{1024*q}")
        a("s_waitcnt lgkmcnt(0)")
        a(f"ds_write_b32 v{vFL}, v{vONE} offset:{16+4*own}")
        vK = vF
        for p in range(2):
            for dq in range(4):
                a(f"v_lshlrev_b32 v{vK+8*p+7-2*dq}, 16, v{vU+4*p+dq}")
                a(f"v_and_b32 v{vK+8*p+6-2*dq}, 0xffff0000, v{vU+4*p+dq}")
        for i in range(16):
            a(f"v_mul_f32 v{vK+i}, s{sD}, v{vK+i}")
        for i in range(8):
            round_pair(a, vK + 2 * i, vK + 2 * i + 1)
        lds_wait_flag(a, vFL, 16 + 4 * oth, t, "CX")
        vR = vB
        for q in range(4):
            a(f"ds_read_b128 {vr(vR+4*q,4)}, v{vEXR} offset:{1024*q}")
        a("s_waitcnt lgkmcnt(0)")
        y = vAC + 16 * own
        for i in range(8):
            a(f"v_pk_add_f32 {vr(y+2*i,2)}, {vr(y+2*i,2)}, {vr(vR+2*i,2)}")
        for i in range(8):
            round_pair(a, y + 2 * i, y + 2 * i + 1)
        for i in range(8):
            a(f"v_pk_add_f32 {vr(y+2*i,2)}, {vr(y+2*i,2)}, {vr(vK+2*i,2)}")
        for i in range(8):
            a(f"v_cvt_pk_bf16_f32 v{vB+16+i}, v{y+2*i}, v{y+2*i+1}")
        a(f"buffer_store_dwordx4 {vr(vB+16,4)}, v{vTA}, {sr(R_WS,4)}, s{sT0} offen sc1")
        a(f"buffer_store_dwordx4 {vr(vB+20,4)}, v{vTA}, {sr(R_WS,4)}, s{sT0} offen offset:64 sc1")
        a.stamp()
        if half == 0:
            a("s_branch B_FINAL")
    a.label("B_FINAL")
    b_final(a)


def b_final(a):
    t = 12
    vXO, vF_, vTG, vTW, vTR, vRR, vST2 = 7, 8, 9, 10, 11, 25, 26
    sT2 = sW2
    srd(a, R_O, S_OUT, SZ_X)
    a(f"""
    s_lshl_b32 s{sT0}, s{sE}, 6
    s_lshl_b32 s{sT1}, s{sCHL}, 5
    s_add_u32 s{sT0}, s{sT0}, s{sT1}
    v_and_b32 v{t}, 31, v{vL}
    v_add_u32 v{t+1}, s{sT0}, v{t}
    v_lshlrev_b32 v{t+2}, 3, v{t+1}
    v_add_u32 v{t+2}, {WS_STATS}, v{t+2}
    v_mul_u32_u24 v{vXO}, 896, v{t+1}
    v_lshrrev_b32 v{t+3}, 5, v{vL}
    v_lshl_add_u32 v{vXO}, v{t+3}, 3, v{vXO}
    s_lshl_b32 s{sXO}, s{sG2C}, 6
    s_lshl_b32 s{sT1}, s{sHF}, 5
    s_add_u32 s{sXO}, s{sXO}, s{sT1}
    s_lshl_b32 s{sT1}, s{sXO}, 1
    v_add_u32 v{vXO}, s{sT1}, v{vXO}
    s_lshl_b32 s{sWO}, s{sT0}, 1
    s_add_u32 s{sWO}, s{sWO}, {WS_T}
    s_add_u32 s{sT2}, s{sWO}, {16*4096}
    s_lshr_b32 s{sT0}, s{sE}, 4
    s_mul_i32 s{sT0}, s{sT0}, 448
    s_add_u32 s{sT0}, s{sT0}, s{sXO}
    s_lshl_b32 s{sT0}, s{sT0}, 7
    s_add_u32 s{sT0}, s{sT0}, {WS_FLT}
    v_lshl_add_u32 v{vF_}, v{t}, 7, s{sT0}
    v_lshrrev_b32 v{t}, 2, v{vL}
    v_add_u32 v{t}, s{sXO}, v{t}
    v_lshlrev_b32 v{t}, 12, v{t}
    v_and_b32 v{t+1}, 3, v{vL}
    v_lshl_add_u32 v{vTG}, v{t+1}, 4, v{t}
    s_lshl_b32 s{sT1}, s{sHF}, 11
    s_add_u32 s{sT1}, s{sT1}, s{sAB}
    s_add_u32 s{sT1}, s{sT1}, 8192
    v_add_u32 v{vTW}, s{sT1}, v{vLB}
    v_bfe_u32 v{t}, v{vL}, 2, 2
    v_lshl_add_u32 v{t}, v{t+3}, 2, v{t}
    v_lshlrev_b32 v{t}, 6, v{t}
    v_bfe_u32 v{t+4}, v{vL}, 4, 1
    v_lshl_add_u32 v{t}, v{t+4}, 5, v{t}
    v_lshl_add_u32 v{t}, v{t+1}, 3, v{t}
    v_add_u32 v{vTR}, s{sT1}, v{t}
    s_lshl_b32 s{sT1}, s{sCQ}, 14
    s_add_u32 s{sT1}, s{sT1}, {WENT[0]}
    v_add_u32 v{vRR}, s{sT1}, v{vLB}
    v_lshlrev_b32 v{t+4}, 2, v{t+1}
    v_add_u32 v{t+4}, {L_FLAG + 64}, v{t+4}
    s_waitcnt vmcnt(0)
    s_mov_b64 exec, 1
    buffer_store_dword v{vONE}, v{vZ}, {sr(R_WS,4)}, s{sTMP} offen sc1
    s_mov_b64 exec, -1
    """)
    a.stamp()
    vXV, vTT, vTD = 28, 36, 44
    vX, vXN, vP, vE, vS = 52, 68, 84, 148, 164
    for i in range(4):
        a(f"buffer_load_dwordx2 {vr(vXV+2*i,2)}, v{vXO}, {sr(R_X,4)}, 0 offen offset:{16*i}")
    a(f"buffer_load_dwordx2 {vr(vST2,2)}, v{t+2}, {sr(R_WS,4)}, 0 offen sc1")
    lds_wait_flag(a, t + 4, 16, t + 3, "TG", sleep=True)
    gpoll(a, vF_, "BT", False, 8)
    a(f"buffer_load_dwordx4 {vr(vTT,4)}, v{vTG}, {sr(R_WS,4)}, s{sWO} offen sc1")
    a(f"buffer_load_dwordx4 {vr(vTT+4,4)}, v{vTG}, {sr(R_WS,4)}, s{sT2} offen sc1")
    a.stamp()
    for i in range(8):
        a(f"v_lshlrev_b32 v{vX+2*i}, 16, v{vXV+i}")
        a(f"v_and_b32 v{vX+2*i+1}, 0xffff0000, v{vXV+i}")
    for i in range(16):
        a(f"v_sub_f32 v{vXN+i}, v{vX+i}, v{vST2}")
    for i in range(8):
        round_pair(a, vXN + 2 * i, vXN + 2 * i + 1)
    for i in range(16):
        a(f"v_mul_f32 v{vXN+i}, v{vXN+i}, v{vST2+1}")
    for i in range(8):
        round_pair(a, vXN + 2 * i, vXN + 2 * i + 1)
    a("s_waitcnt vmcnt(0)")
    a(f"ds_write_b128 v{vTW}, {vr(vTT,4)}")
    a(f"ds_write_b128 v{vTW}, {vr(vTT+4,4)} offset:1024")
    a("s_waitcnt lgkmcnt(0)")
    for i in range(4):
        a(f"ds_read_b64_tr_b16 {vr(vTD+2*i,2)}, v{vTR} offset:{512*i}")
    a("s_waitcnt lgkmcnt(0)")
    for i in range(8):
        a(f"v_lshlrev_b32 v{vS+2*i}, 16, v{vTD+i}")
        a(f"v_and_b32 v{vS+2*i+1}, 0xffff0000, v{vTD+i}")
    for i in range(8):
        a(f"v_pk_mul_f32 {vr(vS+2*i,2)}, {vr(vS+2*i,2)}, {vr(vXN+2*i,2)}")
    for i in range(8):
        round_pair(a, vS + 2 * i, vS + 2 * i + 1)
    a(f"s_mov_b32 s{sW2}, {f32bits(-1.4426950408889634)}")
    a.stamp()
    lds_wait_flag(a, t + 4, 0, t + 3, "GR", sleep=True)
    a.stamp()
    for src in range(4):
        for q in range(4):
            a(f"ds_read_b128 {vr(vP+16*src+4*q,4)}, v{vRR} offset:{src*4096+q*1024}")
    a("s_waitcnt lgkmcnt(8)")
    for i in range(8):
        a(f"v_pk_add_f32 {vr(vP+2*i,2)}, {vr(vP+2*i,2)}, {vr(vP+16+2*i,2)}")
    a("s_waitcnt lgkmcnt(0)")
    for i in range(8):
        a(f"v_pk_add_f32 {vr(vP+32+2*i,2)}, {vr(vP+32+2*i,2)}, {vr(vP+48+2*i,2)}")
    for i in range(8):
        a(f"v_pk_add_f32 {vr(vP+2*i,2)}, {vr(vP+2*i,2)}, {vr(vP+32+2*i,2)}")
    for i in range(8):
        round_pair(a, vP + 2 * i, vP + 2 * i + 1)
    for i in range(16):
        a(f"v_mul_f32 v{vE+i}, s{sW2}, v{vP+i}")
    for i in range(16):
        a(f"v_exp_f32 v{vE+i}, v{vE+i}")
    for i in range(16):
        a(f"v_add_f32 v{vE+i}, 1.0, v{vE+i}")
    for i in range(16):
        a(f"v_rcp_f32 v{vE+i}, v{vE+i}")
    a("s_nop 0")
    for i in range(8):
        a(f"v_pk_mul_f32 {vr(vP+2*i,2)}, {vr(vP+2*i,2)}, {vr(vE+2*i,2)}")
    for i in range(8):
        round_pair(a, vP + 2 * i, vP + 2 * i + 1)
    for i in range(8):
        a(f"v_pk_mul_f32 {vr(vS+2*i,2)}, {vr(vS+2*i,2)}, {vr(vP+2*i,2)}")
    for i in range(8):
        round_pair(a, vS + 2 * i, vS + 2 * i + 1)
    for i in range(8):
        a(f"v_pk_add_f32 {vr(vS+2*i,2)}, {vr(vS+2*i,2)}, {vr(vX+2*i,2)}")
    for i in range(8):
        a(f"v_cvt_pk_bf16_f32 v{vTT+i}, v{vS+2*i}, v{vS+2*i+1}")
    for i in range(4):
        a(f"buffer_store_dwordx2 {vr(vTT+2*i,2)}, v{vXO}, {sr(R_O,4)}, 0 offen offset:{16*i}")
    if PROF:
        a("s_waitcnt vmcnt(0)")
    a.stamp()
    a.stamp_flush()
    a("s_endpgm")


def gen(a):
    a.lines.append(f".globl {KNAME}\n.p2align 8\n.type {KNAME},@function")
    a.label(KNAME)
    a("s_cmp_ge_u32 s2, 256")
    a("s_cbranch_scc1 K_END")
    if int(os.environ.get("REMAP", 1)):
        a("s_add_u32 s2, s2, 224")
        a("s_and_b32 s2, s2, 255")
    a.stamp()
    a("""
    s_load_dwordx16 s[16:31], s[0:1], 0
    s_load_dwordx8 s[32:39], s[0:1], 64
    s_load_dwordx2 s[40:41], s[0:1], 96
    v_lshrrev_b32 v1, 6, v0
    v_and_b32 v2, 63, v0
    s_nop 0
    v_readfirstlane_b32 s3, v1
    s_cmp_ge_u32 s2, 224
    s_cbranch_scc1 K_PREP
    """)
    wg_map(a)
    dma_setup(a, 12)
    a("s_cmp_ge_u32 s3, 4")
    a("s_cbranch_scc1 K_B")
    role_g(a)
    a.label("K_B")
    a.vm, a.nst = [], 1
    role_b(a)
    a.label("K_PREP")
    a.vm, a.nst = [], 1
    role_prep(a)
    a.label("K_END")
    a("s_endpgm")


def main():
    HEADER = open("cdna_kernels/" + NAME + ".s.ref").read().split("; Override launch")[0]
    a = Asm()
    gen(a)
    out = HEADER
    out += f"; @launch grid=(256,1,1) block=(512,1,1) lds={LDS_BYTES}\n"
    out += '.amdgcn_target "amdgcn-amd-amdhsa--gfx950"\n.text\n'
    out += a.text()
    out += '.section .rodata,"a"\n.p2align 6\n'
    out += descriptor(KNAME, 256, 102)
    path = sys.argv[1] if len(sys.argv) > 1 else "cdna_kernels/" + NAME + ".s"
    open(path, "w").write(out)


if __name__ == "__main__":
    main()
```

```python
import sys, os
from gen2 import (Asm, vr, sr, srd, round_pair, newlabel, f32bits, descriptor, NAME, KNAME, PROF,
                  S_X, S_K, S_V, S_SHK, S_SSMK, S_SSMD, S_WG, S_WU, S_WD, S_OUT, S_DBG, S_WS,
                  R_X, R_W, R_WS, R_DBG, R_A, R_B, SZ_X, SZ_W, SZ_SHK)
import gen12 as G12
from gen12 import (WS_H, WS_KVR, WS_T, WS_STATS, WS_CS, WS_FLU, WS_FLH, WS_FLT, WS_END, SLOT, LDS_BYTES, USCR,
                   CV_ST, CV_A, CV_U, CV_UP, role_prep, explode, vONE, vZ, vL, sSP, sT0, sT1, tag_issue)

STM = int(os.environ.get("STM", 0))
BPRIO = int(os.environ.get("BPRIO", 2))
TGATE = int(os.environ.get("TGATE", 8))
P0ST = int(os.environ.get("P0ST", 5))
SIGST = int(os.environ.get("SIGST", 1))
WENT = [49152 + 16384 * i for i in range(7)]
L_FLAG = 45568
sRB, sCB, sE, sCQ = 4, 5, 6, 10
sXO, sWO, sM0X, sM0W, sTMP = 11, 12, 13, 14, 15
s2RB, s2CB, sCH, sUB, sAB, sD, sW2 = 18, 19, 20, 21, 22, 23, 28
sWB, sHF, sCHL, sHO, sG2C = 29, 68, 69, 70, 9
R_WD, R_O, R_H, R_W2 = R_A, R_B, 92, 88
vLB, vPOLL = 1, 21


def wg_map(a):
    a(f"""
    s_and_b32 s{sT0}, s2, 7
    s_lshr_b32 s{sT1}, s2, 3
    s_mul_i32 s{sRB}, s{sT1}, 37
    s_lshr_b32 s{sRB}, s{sRB}, 8
    s_mul_i32 s{sCB}, s{sRB}, 7
    s_sub_u32 s{sCB}, s{sT1}, s{sCB}
    s_mov_b32 s{sXO}, s{sCB}
    s_lshl_b32 s{sWO}, s{sT0}, 2
    s_add_u32 s{sWO}, s{sWO}, s{sRB}
    s_and_b32 s{sT1}, s{sT0}, 3
    s_lshl_b32 s{sT1}, s{sT1}, 2
    s_add_u32 s{sRB}, s{sRB}, s{sT1}
    s_lshr_b32 s{sT1}, s{sT0}, 2
    s_mul_i32 s{sT1}, s{sT1}, 7
    s_add_u32 s{sCB}, s{sCB}, s{sT1}
    s_and_b32 s{sCQ}, s3, 3
    v_lshlrev_b32 v{vLB}, 4, v{vL}
    v_mov_b32 v{vZ}, 0
    """)


def lds_wait_flag(a, vaddr, off, vtmp, name, sleep=False):
    L, Lok = newlabel(name), newlabel(name + "OK")
    a(f"s_mov_b32 s{sSP}, 0")
    a.label(L)
    if sleep:
        a("s_sleep 1")
    a(f"""
    ds_read_b32 v{vtmp}, v{vaddr} offset:{off}
    s_add_u32 s{sSP}, s{sSP}, 1
    s_cmp_gt_u32 s{sSP}, 0x100000
    s_cbranch_scc1 {Lok}
    s_waitcnt lgkmcnt(0)
    v_cmp_eq_u32 vcc, v{vONE}, v{vtmp}
    s_nop 3
    s_cmp_eq_u64 vcc, exec
    s_cbranch_scc0 {L}
    """)
    a.label(Lok)
    a("s_waitcnt lgkmcnt(0)")


def gpoll(a, vaddr, name, first_loaded, sleep=8):
    L, Lok = newlabel(name), newlabel(name + "OK")
    a(f"s_mov_b32 s{sSP}, 0")
    if not first_loaded:
        a(f"buffer_load_dword v{vPOLL}, v{vaddr}, {sr(R_WS,4)}, 0 offen sc1")
        a("s_waitcnt vmcnt(0)")
    a.label(L)
    a(f"""
    v_cmp_eq_u32 vcc, v{vONE}, v{vPOLL}
    s_add_u32 s{sSP}, s{sSP}, 1
    s_cmp_gt_u32 s{sSP}, 0x10000
    s_cbranch_scc1 {Lok}
    s_cmp_eq_u64 vcc, exec
    s_cbranch_scc1 {Lok}
    s_sleep {sleep}
    buffer_load_dword v{vPOLL}, v{vaddr}, {sr(R_WS,4)}, 0 offen sc1
    s_waitcnt vmcnt(0)
    s_branch {L}
    """)
    a.label(Lok)


vXG0, vXG1, vWG = 246, 247, 248


def dma_setup(a, t):
    a(f"""
    v_lshrrev_b32 v{t}, 3, v{vL}
    v_lshrrev_b32 v{t+1}, 4, v{vL}
    v_and_b32 v{t+2}, 7, v{vL}
    s_lshl_b32 s{sT0}, s{sRB}, 7
    s_lshl_b32 s{sT1}, s{sCQ}, 5
    s_add_u32 s{sT0}, s{sT0}, s{sT1}
    v_add_u32 v{t}, s{sT0}, v{t}
    v_mul_u32_u24 v{t}, 896, v{t}
    v_xor_b32 v{t+3}, v{t+2}, v{t+1}
    v_lshl_add_u32 v{vXG0}, v{t+3}, 4, v{t}
    v_xor_b32 v{t+3}, 4, v{t+3}
    v_lshl_add_u32 v{vXG1}, v{t+3}, 4, v{t}
    v_add_u32 v{vXG1}, {8*896}, v{vXG1}
    s_lshr_b32 s{sCHL}, s{sCQ}, 1
    s_and_b32 s{sHF}, s{sCQ}, 1
    v_and_b32 v{t+2}, 15, v{vL}
    v_lshlrev_b32 v{t+3}, 2, v{t+1}
    v_xor_b32 v{t+2}, v{t+2}, v{t+3}
    s_lshl_b32 s{sT0}, s{sCHL}, 1
    v_xor_b32 v{t+2}, s{sT0}, v{t+2}
    s_lshl_b32 s{sT1}, s{sHF}, 5
    v_add_u32 v{t+3}, s{sT1}, v{t+1}
    v_mul_u32_u24 v{t+3}, 3584, v{t+3}
    v_lshl_add_u32 v{vWG}, v{t+2}, 4, v{t+3}
    s_lshl_b32 s{sT0}, s{sCB}, 8
    v_add_u32 v{vWG}, s{sT0}, v{vWG}
    s_lshl_b32 s{sM0X}, s{sCQ}, 12
    s_lshl_b32 s{sM0W}, s{sCQ}, 13
    s_add_u32 s{sM0W}, s{sM0W}, 16384
    s_mov_b32 s{sE}, s{sWO}
    s_mov_b32 s{sG2C}, s{sXO}
    s_waitcnt lgkmcnt(0)
    """)
    srd(a, R_X, S_X, SZ_X)
    a(f"""
    s_cmp_eq_u32 s{sCHL}, 0
    s_cselect_b32 s{R_W}, s{S_WG}, s{S_WU}
    s_cselect_b32 s{R_W+1}, s{S_WG+1}, s{S_WU+1}
    s_and_b32 s{R_W+1}, s{R_W+1}, 0xffff
    s_mov_b32 s{R_W+2}, {SZ_W}
    s_mov_b32 s{R_W+3}, 0x20000
    """)


def dma(a, st):
    slot = (st % 3) * SLOT
    for j in range(8):
        a(f"s_mov_b32 s{sWO}, {st*64*3584 + j*4*3584}")
        a(f"s_add_u32 m0, s{sM0W}, {slot+1024*j}")
        a("s_nop 0")
        a.vmem(f"buffer_load_dwordx4 v{vWG}, {sr(R_W,4)}, s{sWO} offen lds", f"A{st}")
        if j % 2 == 1:
            i = j // 2
            a(f"s_mov_b32 s{sXO}, {st*128 + (i//2)*16*896}")
            a(f"s_add_u32 m0, s{sM0X}, {slot+1024*i}")
            a("s_nop 0")
            a.vmem(f"buffer_load_dwordx4 v{vXG1 if i%2 else vXG0}, {sr(R_X,4)}, s{sXO} offen lds", f"A{st}")


GDMA = [int(c) for c in os.environ.get("GDMA", "012")]


def role_g(a):
    vXA, vWA = 3, 7
    vXR, vWR0, vWR1 = 9, 10, 11
    t = 12
    vWD, vHO, vRA0 = 0, 19, 22
    vSA0, vSA1, vHS = 24, 25, 26
    vFR = 28
    vACC = 76
    vCS, vSTAT, vR2 = 204, 236, 60
    if 0 in GDMA:
        dma(a, 0)
    a(f"""
    s_mov_b32 s{s2CB}, s{sG2C}
    s_mov_b32 s{s2RB}, s{sE}
    v_and_b32 v{t}, 31, v{vL}
    v_lshrrev_b32 v{t+1}, 5, v{vL}
    v_bfe_u32 v{t+2}, v{vL}, 1, 3
    v_xor_b32 v{t+2}, v{t+2}, v{t+1}
    v_lshlrev_b32 v{t+3}, 7, v{t}
    v_lshl_add_u32 v{vXA}, v{t+2}, 4, v{t+3}
    v_xor_b32 v{vXA+1}, 32, v{vXA}
    v_xor_b32 v{vXA+2}, 64, v{vXA}
    v_xor_b32 v{vXA+3}, 96, v{vXA}
    s_lshl_b32 s{sT0}, s{sRB}, 7
    v_add_u32 v{t}, s{sT0}, v{t}
    v_lshlrev_b32 v{t}, 3, v{t}
    v_add_u32 v{vSA0}, {WS_STATS}, v{t}
    s_lshl_b32 s{sT0}, s{sCB}, 3
    s_lshl_b32 s{sT1}, s{sCQ}, 1
    s_add_u32 s{sT0}, s{sT0}, s{sT1}
    s_lshl_b32 s{sT1}, s{sT0}, 7
    s_add_u32 s{sT1}, s{sT1}, {WS_CS}
    v_lshl_add_u32 v{vSA1}, v{t+1}, 4, s{sT1}
    s_lshl_b32 s{sT1}, s{sRB}, 9
    s_add_u32 s{sT0}, s{sT0}, s{sT1}
    s_lshl_b32 s{sT0}, s{sT0}, 10
    v_add_u32 v{vHS}, s{sT0}, v{vLB}
    v_bfe_u32 v{t}, v{vL}, 4, 1
    v_bfe_u32 v{t+2}, v{vL}, 2, 2
    v_bfe_u32 v{t+3}, v{vL}, 1, 1
    s_lshl_b32 s{sT0}, s{sCQ}, 2
    v_or_b32 v{t+3}, s{sT0}, v{t+3}
    v_lshlrev_b32 v{t+4}, 2, v{t+2}
    v_xor_b32 v{t+3}, v{t+3}, v{t+4}
    v_lshlrev_b32 v{t+4}, 1, v{t}
    v_xor_b32 v{t+3}, v{t+3}, v{t+4}
    v_lshlrev_b32 v{t+3}, 4, v{t+3}
    v_and_b32 v{t+4}, 1, v{vL}
    v_lshl_add_u32 v{t+3}, v{t+4}, 3, v{t+3}
    v_lshl_add_u32 v{t+2}, v{t+1}, 3, v{t+2}
    v_lshl_add_u32 v{t+3}, v{t+2}, 8, v{t+3}
    v_add_u32 v{t}, 1, v{t}
    v_lshl_add_u32 v{vWA}, v{t}, 14, v{t+3}
    v_xor_b32 v{vWA+1}, 32, v{vWA}
    s_mul_i32 s{sE}, s{sRB}, 56
    s_lshl_b32 s{sT0}, s{sCB}, 2
    s_add_u32 s{sE}, s{sE}, s{sT0}
    s_add_u32 s{sE}, s{sE}, s{sCQ}
    s_lshl_b32 s{sE}, s{sE}, 7
    s_add_u32 s{sE}, s{sE}, {WS_FLH}
    s_lshl_b32 s{sWB}, s{sCQ}, 12
    s_lshl_b32 s{sT0}, s{s2RB}, 8
    s_mul_i32 s{sT1}, s{sCQ}, 28
    s_add_u32 s{sT0}, s{sT0}, s{sT1}
    s_lshl_b32 s{sT0}, s{sT0}, 10
    v_add_u32 v{vHO}, s{sT0}, v{vLB}
    v_lshrrev_b32 v{t}, 3, v{vL}
    s_mul_i32 s{sT0}, s{sCQ}, 448
    v_add_u32 v{t}, s{sT0}, v{t}
    v_mul_u32_u24 v{t}, 896, v{t}
    v_bfe_u32 v{t+1}, v{vL}, 4, 1
    v_lshlrev_b32 v{t+1}, 2, v{t+1}
    v_and_b32 v{t+2}, 7, v{vL}
    v_xor_b32 v{t+1}, v{t+1}, v{t+2}
    v_lshl_add_u32 v{vWD}, v{t+1}, 4, v{t}
    s_lshl_b32 s{sT0}, s{s2CB}, 7
    v_add_u32 v{vWD}, s{sT0}, v{vWD}
    v_lshrrev_b32 v{t}, 5, v{vL}
    v_bfe_u32 v{t+1}, v{vL}, 2, 2
    v_lshl_add_u32 v{t}, v{t}, 2, v{t+1}
    v_bfe_u32 v{t+2}, v{vL}, 4, 1
    v_bfe_u32 v{t+3}, v{vL}, 1, 1
    v_lshl_add_u32 v{t+2}, v{t+2}, 1, v{t+3}
    v_bfe_u32 v{t+3}, v{vL}, 3, 1
    v_lshl_add_u32 v{t+2}, v{t+3}, 2, v{t+2}
    v_lshlrev_b32 v{t+2}, 4, v{t+2}
    v_and_b32 v{t+3}, 1, v{vL}
    v_lshl_add_u32 v{t+2}, v{t+3}, 3, v{t+2}
    v_lshl_add_u32 v{t+2}, v{t}, 7, v{t+2}
    v_add_u32 v{vRA0}, s{sWB}, v{t+2}
    """)
    srd(a, R_WS, S_WS, WS_END)
    srd(a, R_WD, S_WD, SZ_W)

    def fx(s_, nt):
        return vFR + 24 * s_ + 4 * nt

    def fw(s_, mt):
        return vFR + 24 * s_ + 16 + 4 * mt

    def read_ops(st, p, s_):
        slot = (st % 3) * SLOT
        ops = []
        pre = []
        if p == 0:
            pre.append(f"v_add_u32 v{vWR0}, {slot}, v{vWA}")
            pre.append(f"v_add_u32 v{vWR1}, {slot}, v{vWA+1}")
        pre.append(f"v_add_u32 v{vXR}, {slot}, v{vXA+p}")
        ops.append(pre + [f"ds_read_b64_tr_b16 {vr(fw(s_,0),2)}, v{vWR0} offset:{4096*p}"])
        ops.append([f"ds_read_b64_tr_b16 {vr(fw(s_,0)+2,2)}, v{vWR0} offset:{4096*p+1024}"])
        for nt in range(4):
            ops.append([f"ds_read_b128 {vr(fx(s_,nt),4)}, v{vXR} offset:{4096*nt}"])
        ops.append([f"ds_read_b64_tr_b16 {vr(fw(s_,1),2)}, v{vWR1} offset:{4096*p}"])
        ops.append([f"ds_read_b64_tr_b16 {vr(fw(s_,1)+2,2)}, v{vWR1} offset:{4096*p+1024}"])
        return ops

    def wdma(r, s_, ent):
        for j in range(4):
            r(f"s_mov_b32 s{sW2}, {(32*s_ + 8*j)*896}")
            r(f"s_add_u32 m0, s{sWB}, {ent + j*1024}")
            r("s_nop 0")
            r.vmem(f"buffer_load_dwordx4 v{vWD}, {sr(R_WD,4)}, s{sW2} offen lds", f"W{s_}")

    def stat_loads(r):
        for nt in range(4):
            r.vmem(f"buffer_load_dwordx2 {vr(vSTAT+2*nt,2)}, v{vSA0}, {sr(R_WS,4)}, 0 offen offset:{256*nt} sc1", "ST")
        for i in range(8):
            r.vmem(f"buffer_load_dwordx4 {vr(vCS+4*i,4)}, v{vSA1}, {sr(R_WS,4)}, 0 offen offset:{32*i} sc1", "ST")

    def tag_read(r):
        r(f"v_mov_b32 v{t}, {USCR+8192}")
        r(f"ds_read_b32 v{vONE}, v{t}")

    WD = lambda s_: (lambda r: wdma(r, s_, WENT[s_]))
    plan = {0: [tag_read], 1: [], 2: [WD(6)], 3: [], 4: [WD(0), WD(1), WD(2)], 5: [stat_loads, WD(3), WD(4), WD(5)], 6: []}
    for st_ in GDMA:
        if st_ >= 3:
            plan[st_ - 3] = plan[st_ - 3] + [(lambda q: (lambda r: dma(r, q)))(st_)]
    if 1 in GDMA:
        dma(a, 1)
    a.vm_wait("A0")
    a("s_barrier")
    a.stamp()
    for ops in read_ops(0, 0, 0):
        for o in ops:
            a(o)
    cur = 0
    fill = explode(a, [lambda r: dma(r, 2)]) if 2 in GDMA else []
    order = [(0, 0), (0, 1), (0, 2), (0, 3), (1, 3), (1, 2), (1, 1), (1, 0)]
    for st in range(7):
        for p in range(4):
            a("s_waitcnt lgkmcnt(0)")
            nxt = []
            if p == 3:
                assert not fill
                a.vm_wait(f"A{st+1}")
                a("s_barrier")
                if st < 6:
                    nxt = read_ops(st + 1, 0, cur ^ 1)
                fill = explode(a, plan[st])
            else:
                nxt = read_ops(st, p + 1, cur ^ 1)
            slots = 8 * (3 - p) if p < 3 else 32
            for k, (mt, nt) in enumerate(order):
                acc = vACC + 16 * (4 * mt + nt)
                c = "0" if (st == 0 and p == 0) else vr(acc, 16)
                a(f"v_mfma_f32_32x32x16_bf16 {vr(acc,16)}, {vr(fw(cur,mt),4)}, {vr(fx(cur,nt),4)}, {c}")
                for _ in range(2):
                    if nxt:
                        for o in nxt.pop(0):
                            a(o)
                tot = sum(c_ for c_, _ in fill)
                budget = tot / max(1, slots - k)
                used = 0
                while fill and used < budget - 1e-9:
                    c_, e = fill.pop(0)
                    e()
                    used += c_
            cur ^= 1
            if p == 3 and (st in (3, 6) or STM):
                a.stamp()
    a.vm_wait("ST")
    for nt in range(4):
        a(f"v_mul_f32 v{vR2+2*nt}, v{vSTAT+2*nt+1}, v{vSTAT+2*nt+1}")
    for nt in range(1, 4):
        a(f"s_mov_b32 s{sM0X+nt-1}, {nt*128*1024}")
    a("s_nop 4")
    vH = 28
    k = 0
    for nt in range(4):
        for mt in range(2):
            acc = vACC + 16 * (4 * mt + nt)
            cs = vCS + 16 * mt
            m = vSTAT + 2 * nt
            for i in range(8):
                a(f"v_pk_fma_f32 {vr(acc+2*i,2)}, {vr(m,2)}, {vr(cs+2*i,2)}, {vr(acc+2*i,2)} op_sel_hi:[0,1,1] neg_lo:[1,0,0] neg_hi:[1,0,0]")
            for i in range(8):
                a(f"v_max_f32 v{acc+i}, 0, v{acc+i}")
            for i in range(4):
                a(f"v_pk_mul_f32 {vr(acc+8+2*i,2)}, {vr(acc+8+2*i,2)}, {vr(vR2+2*nt,2)} op_sel_hi:[1,0]")
            for i in range(4):
                a(f"v_pk_mul_f32 {vr(acc+2*i,2)}, {vr(acc+2*i,2)}, {vr(acc+8+2*i,2)}")
            o = vH + 4 * k
            for i in range(4):
                a(f"v_cvt_pk_bf16_f32 v{o+i}, v{acc+2*i}, v{acc+2*i+1}")
            so = "0" if nt == 0 else f"s{sM0X+nt-1}"
            a.vmem(f"buffer_store_dwordx4 {vr(o,4)}, v{vHS}, {sr(R_WS,4)}, {so} offen offset:{mt*1024} sc1", "HS")
            k += 1
    a.stamp()
    vA2 = 192
    WR = [60 + 16 * i for i in range(4)]
    HR = [124 + 16 * i for i in range(4)] + [28, 44]
    NHR = len(HR)
    vRB0, vRB1, vH1, vFA = 3, 4, 5, 6
    vXO, vF_, vTG, vTW, vTR, vRW, vRR = 7, 8, 9, 10, 11, 24, 25
    ENT = {s_: WENT[s_ % 7] for s_ in range(14)}

    def trreads(s_, dst):
        a(f"v_add_u32 v{vRB0}, {ENT[s_]}, v{vRA0}")
        a(f"v_xor_b32 v{vRB1}, 64, v{vRB0}")
        for tt in range(2):
            for Td in range(2):
                for hf in range(2):
                    a(f"ds_read_b64_tr_b16 {vr(dst+8*tt+4*Td+2*hf,2)}, v{vRB1 if Td else vRB0} offset:{tt*2048+hf*1024}")

    a(f"""
    v_add_u32 v{vH1}, {128*1024}, v{vHO}
    s_lshr_b32 s{sT0}, s{s2RB}, 1
    s_mul_i32 s{sT0}, s{sT0}, 56
    s_mul_i32 s{sT1}, s{sCQ}, 14
    s_add_u32 s{sT0}, s{sT0}, s{sT1}
    s_lshl_b32 s{sT0}, s{sT0}, 7
    s_add_u32 s{sT0}, s{sT0}, {WS_FLH}
    v_min_u32 v{vFA}, 13, v{vL}
    v_lshl_add_u32 v{vFA}, v{vFA}, 7, s{sT0}
    """)
    for s_ in range(4):
        a.vm_wait(f"W{s_}")
        trreads(s_, WR[s_])
    a("s_waitcnt lgkmcnt(0)")
    for s_ in range(7, 11):
        wdma(a, s_, ENT[s_])
    a.vm_wait("HS")
    a("s_mov_b64 exec, 1")
    a.vmem(f"buffer_store_dword v{vONE}, v{vZ}, {sr(R_WS,4)}, s{sE} offen sc1", "HF")
    a("s_mov_b64 exec, -1")
    a.stamp()
    a(f"""
    s_add_u32 s{sT1}, s{sWB}, {WENT[0]}
    v_add_u32 v{vRW}, s{sT1}, v{vLB}
    s_lshl_b32 s{sT0}, s3, 2
    s_add_u32 s{sT0}, s{sT0}, {L_FLAG + 64}
    v_mov_b32 v{t+6}, s{sT0}
    """)
    gpoll(a, vFA, "GH", False)
    a.vm = []
    a.stamp()

    def hloads(s_):
        r = HR[s_ % NHR]
        a(f"s_mov_b32 s{sHO}, {2048*s_}")
        for tt in range(2):
            for nt in range(2):
                a.vmem(f"buffer_load_dwordx4 {vr(r+8*tt+4*nt,4)}, v{vH1 if nt else vHO}, {sr(R_WS,4)}, s{sHO} offen offset:{1024*tt} sc1", f"H{s_}")

    for s_ in range(NHR):
        hloads(s_)
    vXV, vST2 = 188, 26
    for s_ in range(14):
        wreg = WR[s_ % 4]
        a.vm_wait(f"H{s_}")
        if s_ >= 4:
            a(f"s_waitcnt lgkmcnt({min(15, 8*min(3, 13 - s_))})")
        for tt in range(2):
            for Td in range(2):
                for nt in range(2):
                    acc = vA2 + 32 * nt + 16 * Td
                    c = "0" if (s_ == 0 and tt == 0) else vr(acc, 16)
                    a(f"v_mfma_f32_32x32x16_bf16 {vr(acc,16)}, {vr(wreg+8*tt+4*Td,4)}, {vr(HR[s_%NHR]+8*tt+4*nt,4)}, {c}")
        if s_ == TGATE:
            a(f"ds_write_b32 v{t+6}, v{vONE} offset:16")
        if s_ + NHR < 14:
            hloads(s_ + NHR)
        sn = s_ + 4
        if sn < 14:
            a.vm_wait(f"W{sn}")
            trreads(sn, wreg)
            if sn + 7 < 14:
                a("s_waitcnt lgkmcnt(0)")
                wdma(a, sn + 7, ENT[sn + 7])
    a.stamp()
    a("s_nop 7")
    a("s_nop 3")
    for tau in range(4):
        for q in range(4):
            a(f"ds_write_b128 v{vRW}, {vr(vA2+16*tau+4*q,4)} offset:{tau*16384+q*1024}")
    a("s_waitcnt lgkmcnt(0)")
    a(f"ds_write_b32 v{t+6}, v{vONE}")
    a.stamp()
    a.stamp_flush()
    a("s_endpgm")


def role_b(a):
    R_K, R_V, R_SH = 76, 80, 84
    t = 6
    uA = 24
    uK, uV, uW, uX = 32, 43, 52, 56
    uKU, uWU, uAC, uVU, uO, uS = 64, 86, 94, 110, 112, 120
    vD, vU, vBLD = 144, 168, 176
    vAA, vBA, vKA, vTA, vEXW, vEXR, vFL, vWM, vWX, vWZ, vWP, vPA, vKVA = range(216, 229)
    if 0 not in GDMA:
        dma(a, 0)
    srd(a, R_K, S_K, SZ_X)
    srd(a, R_V, S_V, SZ_X)
    srd(a, R_SH, S_SHK, SZ_SHK)
    srd(a, R_WS, S_WS, WS_END)
    srd(a, R_DBG, S_DBG, 256)
    a(f"""
    v_cmp_le_u32 vcc, 28, v{vL}
    v_mov_b32 v{uA+4}, 0x7f000000
    s_and_b32 s{sT0}, s2, 7
    v_cndmask_b32 v{uA}, 0, 1, vcc
    v_mul_u32_u24 v{uA+1}, 28, v{uA}
    v_sub_u32 v{uA+1}, v{vL}, v{uA+1}
    s_and_b32 s{sT1}, s2, 0xf8
    s_lshl_b32 s{sTMP}, s{sCQ}, 1
    s_add_u32 s{sT1}, s{sT1}, s{sTMP}
    s_mul_i32 s{sT1}, s{sT1}, {8*896}
    s_mul_i32 s{sT0}, s{sT0}, 112
    s_add_u32 s{sT1}, s{sT1}, s{sT0}
    v_mul_u32_u24 v{uA+2}, {8*896}, v{uA}
    v_lshl_add_u32 v{uA+2}, v{uA+1}, 2, v{uA+2}
    v_add_u32 v{uA+2}, s{sT1}, v{uA+2}
    v_cmp_le_u32 vcc, 56, v{vL}
    v_subrev_u32 v{uA+3}, {3*896}, v{uA+2}
    s_lshl_b32 s{sT0}, s{sT0}, 2
    v_cndmask_b32 v{uA+2}, v{uA+2}, v{uA+4}, vcc
    v_cndmask_b32 v{uA+3}, v{uA+3}, v{uA+4}, vcc
    v_lshl_add_u32 v{uA+5}, v{uA+1}, 4, s{sT0}
    s_lshl_b32 s{sT0}, s2, 3
    s_add_u32 s{sT0}, s{sT0}, s{sTMP}
    s_mul_i32 s{sT0}, s{sT0}, 896
    v_add_u32 v{t}, s{sT0}, v{vLB}
    v_cndmask_b32 v{t}, v{t}, v{uA+4}, vcc
    s_mov_b32 s{sT1}, {4*896}
    """)
    a.vmem(f"buffer_load_dwordx4 {vr(uW,4)}, v{uA+5}, {sr(R_SH,4)}, 0 offen", "UK")
    for i in range(3):
        a.vmem(f"buffer_load_dword v{uK+i}, v{uA+3}, {sr(R_K,4)}, 0 offen offset:{896*i}", "UK")
    for i in range(8):
        a.vmem(f"buffer_load_dword v{uK+3+i}, v{uA+2}, {sr(R_K,4)}, {'0' if i<4 else 's%d'%sT1} offen offset:{896*(i&3)}", "UK")
    for i in range(8):
        a.vmem(f"buffer_load_dword v{uV+i}, v{uA+2}, {sr(R_V,4)}, {'0' if i<4 else 's%d'%sT1} offen offset:{896*(i&3)}", "UK")
    for i in range(2):
        a.vmem(f"buffer_load_dwordx4 {vr(uX+4*i,4)}, v{t}, {sr(R_X,4)}, 0 offen offset:{896*i}", "UX")
    if 1 not in GDMA:
        dma(a, 1)
    a.vm_wait("A0")
    if BPRIO:
        a(f"s_setprio {BPRIO}")
    EARLY = int(os.environ.get("EARLY", 1))
    a.stamp()
    a(f"s_lshl_b32 s{sT0}, s{sCQ}, 12")
    tagl = lambda: a.vmem(f"buffer_load_dword v{vONE}, v{vZ}, {sr(R_DBG,4)}, s{sT0} offen sc1", "TAG")

    def chunk_kv():
        a.vm_wait("UK")
        for r in range(11):
            a(f"v_lshlrev_b32 v{uKU+2*r}, 16, v{uK+r}")
            a(f"v_and_b32 v{uKU+2*r+1}, 0xffff0000, v{uK+r}")
        for h in range(2):
            a(f"v_lshlrev_b32 v{uWU+0+h}, 16, v{uW+2*h}")
            a(f"v_and_b32 v{uWU+2+h}, 0xffff0000, v{uW+2*h}")
            a(f"v_lshlrev_b32 v{uWU+4+h}, 16, v{uW+2*h+1}")
            a(f"v_and_b32 v{uWU+6+h}, 0xffff0000, v{uW+2*h+1}")
        w = lambda j: vr(uWU + 2 * j, 2)
        for r in range(8):
            ac = vr(uAC + 2 * r, 2)
            a(f"v_pk_mul_f32 {ac}, {vr(uKU+2*r,2)}, {w(3)}")
            a(f"v_pk_fma_f32 {ac}, {vr(uKU+2*(r+1),2)}, {w(2)}, {ac}")
            a(f"v_pk_fma_f32 {ac}, {vr(uKU+2*(r+2),2)}, {w(1)}, {ac}")
            a(f"v_pk_fma_f32 {ac}, {vr(uKU+2*(r+3),2)}, {w(0)}, {ac}")
            a(f"v_cvt_pk_bf16_f32 v{uAC+2*r+1}, v{uAC+2*r}, v{uAC+2*r+1}")
            a(f"v_lshlrev_b32 v{uVU}, 16, v{uV+r}")
            a(f"v_and_b32 v{uVU+1}, 0xffff0000, v{uV+r}")
            a(f"v_lshlrev_b32 v{uAC+2*r}, 16, v{uAC+2*r+1}")
            a(f"v_and_b32 v{uAC+2*r+1}, 0xffff0000, v{uAC+2*r+1}")
            a(f"v_pk_mul_f32 {ac}, {ac}, {vr(uVU,2)}")
        for h in range(2):
            for q in range(4):
                a(f"v_cvt_pk_bf16_f32 v{uO+4*h+q}, v{uAC+2*(7-2*q)+h}, v{uAC+2*(6-2*q)+h}")
        a(f"""
        v_lshlrev_b32 v{uA+2}, 8, v{uA+1}
        v_lshlrev_b32 v{uA+3}, 4, v{uA}
        v_sub_u32 v{uA+2}, v{uA+2}, v{uA+3}
        s_lshl_b32 s{sT0}, s{sCQ}, 5
        s_sub_u32 s{sT0}, {USCR + 7*16}, s{sT0}
        v_add_u32 v{uA+2}, s{sT0}, v{uA+2}
        s_mov_b32 exec_hi, 0xffffff
        ds_write_b128 v{uA+2}, {vr(uO,4)}
        ds_write_b128 v{uA+2}, {vr(uO+4,4)} offset:128
        s_mov_b64 exec, -1
        """)

    def tag_block():
        L, Lok, Lsk = newlabel("TB"), newlabel("TBOK"), newlabel("TBSK")
        a.vm_wait("TAG")
        a(f"s_cmp_lg_u32 s{sCQ}, 0")
        a(f"s_cbranch_scc1 {Lsk}")
        a(f"s_mov_b32 s{sSP}, 0")
        a.label(L)
        a(f"""
        v_readfirstlane_b32 s{sSP+1}, v{vONE}
        s_add_u32 s{sSP}, s{sSP}, 1
        s_cmp_gt_u32 s{sSP}, 0x4000
        s_cbranch_scc1 {Lok}
        s_cmp_lg_u32 s{sSP+1}, 0
        s_cbranch_scc1 {Lok}
        s_sleep 4
        buffer_load_dword v{vONE}, v{vZ}, {sr(R_DBG,4)}, 0 offen sc1
        s_waitcnt vmcnt(0)
        s_branch {L}
        """)
        a.label(Lok)
        a(f"v_mov_b32 v{t}, {USCR+8192}")
        a(f"ds_write_b32 v{t}, v{vONE}")
        a.label(Lsk)

    def chunk_store_stats():
        if not EARLY:
            a(f"v_mov_b32 v{t}, {USCR+8192}")
            a(f"ds_read_b32 v{vONE}, v{t}")
        a(f"""
        s_mul_i32 s{sT0}, s{sCQ}, 1792
        s_add_u32 s{sT0}, s{sT0}, {USCR}
        v_add_u32 v{uA+2}, s{sT0}, v{vLB}
        ds_read_b128 {vr(uO,4)}, v{uA+2}
        ds_read_b128 {vr(uO+4,4)}, v{uA+2} offset:896
        v_lshrrev_b32 v{uA+2}, 3, v{vL}
        v_lshlrev_b32 v{uA+2}, 12, v{uA+2}
        v_and_b32 v{uA+3}, 7, v{vL}
        v_lshl_add_u32 v{uA+2}, v{uA+3}, 4, v{uA+2}
        s_and_b32 s{sT0}, s2, 7
        s_mul_i32 s{sT0}, s{sT0}, 56
        s_mul_i32 s{sT1}, s{sCQ}, 14
        s_add_u32 s{sT0}, s{sT0}, s{sT1}
        s_lshl_b32 s{sT0}, s{sT0}, 12
        s_lshr_b32 s{sT1}, s2, 3
        s_lshl_b32 s{sT1}, s{sT1}, 7
        s_sub_u32 s{sT0}, s{sT0}, s{sT1}
        s_add_u32 s{sT0}, s{sT0}, {WS_KVR + 3968}
        s_add_u32 s{sT1}, s{sT0}, {7*4096}
        s_waitcnt lgkmcnt(0)
        s_mov_b32 exec_hi, 0xffffff
        """)
        a.vmem(f"buffer_store_dwordx4 {vr(uO,4)}, v{uA+2}, {sr(R_WS,4)}, s{sT0} offen sc1", "US")
        a.vmem(f"buffer_store_dwordx4 {vr(uO+4,4)}, v{uA+2}, {sr(R_WS,4)}, s{sT1} offen sc1", "US")
        a("s_mov_b64 exec, -1")
        a.vm_wait("UX")
        for i in range(4):
            a(f"v_mov_b32 v{uS+i}, 0")
        a(f"v_mov_b32 v{uS+4}, 0x3f803f80")
        for i in range(4):
            for r in range(2):
                a(f"v_dot2c_f32_bf16 v{uS+2*r}, v{uX+4*r+i}, v{uS+4}")
                a(f"v_dot2c_f32_bf16 v{uS+2*r+1}, v{uX+4*r+i}, v{uX+4*r+i}")
        a("s_nop 2")
        for mode in ("quad_perm:[1,0,3,2]", "quad_perm:[2,3,0,1]", "row_half_mirror", "row_mirror"):
            for i in range(4):
                a(f"v_add_f32_dpp v{uS+i}, v{uS+i}, v{uS+i} {mode} row_mask:0xf bank_mask:0xf")
        for sw in ("v_permlane16_swap_b32", "v_permlane32_swap_b32"):
            for i in range(4):
                a(f"v_mov_b32 v{uS+4+i}, v{uS+i}")
            a("s_nop 1")
            for i in range(4):
                a(f"{sw} v{uS+i}, v{uS+4+i}")
            a("s_nop 1")
            for i in range(4):
                a(f"v_add_f32 v{uS+i}, v{uS+i}, v{uS+4+i}")
        a(f"s_mov_b32 s{sT0}, {f32bits(1.0/448.0)}")
        a(f"s_mov_b32 s{sT1}, {f32bits(1e-5)}")
        for r in range(2):
            m, q = uS + 2 * r, uS + 2 * r + 1
            a(f"""
            v_mul_f32 v{m}, s{sT0}, v{m}
            v_mul_f32 v{q}, s{sT0}, v{q}
            v_fma_f32 v{q}, -v{m}, v{m}, v{q}
            v_max_f32 v{q}, 0, v{q}
            v_cvt_pk_bf16_f32 v{q}, v{m}, v{q}
            v_lshlrev_b32 v{m}, 16, v{q}
            v_and_b32 v{q}, 0xffff0000, v{q}
            v_add_f32 v{q}, s{sT1}, v{q}
            v_cvt_pk_bf16_f32 v{q}, v{q}, v{q}
            v_and_b32 v{q}, 0xffff0000, v{q}
            v_sqrt_f32 v{q}, v{q}
            s_nop 0
            v_cvt_pk_bf16_f32 v{q}, v{q}, v{q}
            v_and_b32 v{q}, 0xffff0000, v{q}
            v_rcp_f32 v{q}, v{q}
            """)
        a(f"""
        s_lshl_b32 s{sT0}, s2, 2
        s_add_u32 s{sT0}, s{sT0}, s{sCQ}
        s_lshl_b32 s{sT0}, s{sT0}, 4
        s_add_u32 s{sT0}, s{sT0}, {WS_STATS}
        s_mov_b64 exec, 1
        """)
        a.vmem(f"buffer_store_dwordx4 {vr(uS,4)}, v{vZ}, {sr(R_WS,4)}, s{sT0} offen sc1", "US")
        a("s_mov_b64 exec, -1")

    def chunk_conv_setup():
        c = t
        a(f"""
        s_lshl_b32 s{sCH}, s2, 1
        s_add_u32 s{sCH}, s{sCH}, s{sCHL}
        s_mul_i32 s{sUB}, s{sCHL}, {8*CV_UP}
        s_add_u32 s{sUB}, s{sUB}, {CV_U}
        s_mul_i32 s{sAB}, s{sCHL}, {CV_A[1]}
        s_lshl_b32 s{sT0}, s{sCH}, 12
        s_add_u32 s{R_H}, s{S_SSMK}, s{sT0}
        s_addc_u32 s{R_H+1}, s{S_SSMK+1}, 0
        s_and_b32 s{R_H+1}, s{R_H+1}, 0xffff
        s_mov_b32 s{R_H+2}, 4096
        s_mov_b32 s{R_H+3}, 0x20000
        s_lshl_b32 s{sT1}, s2, 2
        s_load_dword s{sD}, {sr(S_SSMD,2)}, s{sT1}
        s_lshl_b32 s{sT1}, s{sHF}, 11
        v_add_u32 v{c+1}, s{sT1}, v{vLB}
        v_subrev_u32 v{c+2}, 64, v{vLB}
        v_subrev_u32 v{c+3}, 48, v{vLB}
        s_add_u32 s{sT0}, s{sT0}, {WS_KVR}
        v_add_u32 v{vKVA}, s{sT0}, v{c+1}
        """)
        a.vmem(f"buffer_load_dwordx4 {vr(vD,4)}, v{c+1}, {sr(R_H,4)}, 0 offen", "D")
        a.vmem(f"buffer_load_dwordx4 {vr(vD+4,4)}, v{c+1}, {sr(R_H,4)}, 0 offen offset:16", "D")
        a.vmem(f"buffer_load_dwordx4 {vr(vD+8,4)}, v{c+1}, {sr(R_H,4)}, 0 offen offset:1024", "D")
        a.vmem(f"buffer_load_dwordx4 {vr(vD+12,4)}, v{c+1}, {sr(R_H,4)}, 0 offen offset:1040", "D")
        a.vmem(f"buffer_load_dwordx4 {vr(vD+16,4)}, v{c+2}, {sr(R_H,4)}, 0 offen", "D")
        a.vmem(f"buffer_load_dwordx4 {vr(vD+20,4)}, v{c+3}, {sr(R_H,4)}, 0 offen", "D")
        a(f"""
        v_add_u32 v{vWM}, s{sAB}, v{c+1}
        v_add_u32 v{vWX}, s{sAB}, v{vLB}
        v_mov_b32 v{vBLD+36}, 0
        v_mov_b32 v{vBLD+37}, 0
        v_mov_b32 v{vBLD+38}, 0
        v_mov_b32 v{vBLD+39}, 0
        v_lshrrev_b32 v{c+4}, 4, v{vL}
        s_lshl_b32 s{sT0}, s{sHF}, 2
        v_add_u32 v{vWZ}, s{sT0}, v{c+4}
        v_mul_u32_u24 v{vWZ}, {CV_UP}, v{vWZ}
        v_and_b32 v{c}, 15, v{vL}
        v_lshl_add_u32 v{vWZ}, v{c}, 4, v{vWZ}
        v_add_u32 v{vWZ}, s{sUB}, v{vWZ}
        v_and_b32 v{vWP}, 7, v{vL}
        v_xor_b32 v{vWP}, 4, v{vWP}
        v_mul_u32_u24 v{vWP}, {CV_UP}, v{vWP}
        v_lshrrev_b32 v{c+5}, 3, v{vL}
        v_lshlrev_b32 v{c+5}, 4, v{c+5}
        v_sub_u32 v{vWP}, v{vWP}, v{c+5}
        s_lshl_b32 s{sT0}, s{sHF}, 8
        s_sub_u32 s{sT0}, s{sUB}, s{sT0}
        s_add_u32 s{sT0}, s{sT0}, {(47-8)*16}
        v_add_u32 v{vWP}, s{sT0}, v{vWP}
        v_mul_u32_u24 v{vBA}, {CV_UP}, v{c+4}
        v_lshl_add_u32 v{vBA}, v{c}, 4, v{vBA}
        v_add_u32 v{vBA}, s{sUB}, v{vBA}
        v_sub_u32 v{vKA}, 3, v{c+4}
        v_mul_u32_u24 v{vKA}, {CV_UP}, v{vKA}
        v_lshl_add_u32 v{vKA}, v{c}, 4, v{vKA}
        v_add_u32 v{vKA}, s{sUB}, v{vKA}
        v_lshlrev_b32 v{vTA}, 7, v{c}
        v_lshl_add_u32 v{vTA}, v{c+4}, 4, v{vTA}
        v_lshrrev_b32 v{c}, 2, v{c}
        v_add_u32 v{c}, v{c}, v{c+4}
        v_lshlrev_b32 v{c}, 4, v{c}
        v_add_u32 v{c}, s{sAB}, v{c}
        v_and_b32 v{c+4}, 3, v{vL}
        v_mul_u32_u24 v{vAA}, {CV_ST}, v{c+4}
        v_add_u32 v{vAA}, v{vAA}, v{c}
        s_lshl_b32 s{sT0}, s{sHF}, 12
        s_add_u32 s{sT1}, s{sT0}, s{sAB}
        v_add_u32 v{vEXW}, s{sT1}, v{vLB}
        s_xor_b32 s{sT0}, s{sT0}, 4096
        s_add_u32 s{sT1}, s{sT0}, s{sAB}
        v_add_u32 v{vEXR}, s{sT1}, v{vLB}
        s_lshl_b32 s{sT0}, s{sCHL}, 5
        s_add_u32 s{sT0}, s{sT0}, {L_FLAG}
        v_mov_b32 v{vFL}, s{sT0}
        s_lshl_b32 s{sT0}, s{sRB}, 4
        v_add_u32 v{c+2}, s{sT0}, v{vL}
        s_mul_i32 s{sT1}, s2, 2341
        s_lshr_b32 s{sT1}, s{sT1}, 16
        s_sub_u32 s{sT1}, s{sT1}, 128
        v_lshl_add_u32 v{c+3}, v{vL}, 3, s{sT1}
        v_cmp_le_u32 vcc, 16, v{vL}
        s_add_u32 s{sT1}, s{sCB}, {224 - 48*14}
        v_mul_u32_u24 v{c}, 14, v{vL}
        v_cndmask_b32 v{c+2}, v{c+2}, v{c+3}, vcc
        v_add_u32 v{c+3}, s{sT1}, v{c}
        v_cmp_le_u32 vcc, 48, v{vL}
        s_lshl_b32 s{sT1}, s{sE}, 3
        s_sub_u32 s{sT1}, s{sT1}, 50
        v_cndmask_b32 v{c+2}, v{c+2}, v{c+3}, vcc
        v_add_u32 v{c+3}, s{sT1}, v{vL}
        v_cmp_le_u32 vcc, 50, v{vL}
        v_mov_b32 v{c}, s{sT0}
        s_lshl_b32 s{sT1}, s{sCQ}, 24
        v_cndmask_b32 v{c+2}, v{c+2}, v{c+3}, vcc
        v_cmp_le_u32 vcc, 58, v{vL}
        s_add_u32 s{sT1}, s{sT1}, {WS_FLU}
        s_nop 0
        v_cndmask_b32 v{c+2}, v{c+2}, v{c}, vcc
        v_lshl_add_u32 v{vPA}, v{c+2}, 7, s{sT1}
        """)

    def signal():
        L = newlabel("NOSIG")
        a(f"""
        s_cmp_lg_u32 s{sCQ}, 0
        s_cbranch_scc1 {L}
        s_lshl_b32 s{sT0}, s2, 7
        s_add_u32 s{sT0}, s{sT0}, {WS_FLU}
        s_mov_b64 exec, 1
        buffer_store_dword v{vONE}, v{vZ}, {sr(R_WS,4)}, s{sT0} offen sc1
        s_mov_b64 exec, -1
        """)
        a.label(L)

    def chunk_build():
        a.vm_wait("D")
        for rnd in range(3):
            d, b = vD + 8 * rnd, vBLD + 12 * rnd
            for i in range(4):
                a(f"v_mov_b32 v{b+i}, v{d+1+i}")
            for i in range(4):
                a(f"v_alignbit_b32 v{b+4+i}, v{d+i+1}, v{d+i}, 16")
            for i in range(4):
                a(f"v_alignbit_b32 v{b+8+i}, v{d+i+2}, v{d+i+1}, 16")

    def poll_block():
        L = newlabel("NOPOLL")
        a.vm_wait("P0")
        if PROF and os.environ.get("VCCD"):
            a(f"v_cmp_ne_u32 vcc, v{vONE}, v{vPOLL}")
            a("s_nop 4")
            a(f"s_add_u32 s{72+2*a.nst}, s72, vcc_lo")
            a.nst += 1
            a(f"s_add_u32 s{72+2*a.nst}, s72, vcc_hi")
            a.nst += 1
        a(f"s_cmp_lg_u32 s{sCQ}, 0")
        a(f"s_cbranch_scc1 {L}")
        gpoll(a, vPA, "BP", True)
        a.label(L)

    if EARLY:
        chunk_kv()
        a("s_waitcnt lgkmcnt(0)")
    a("s_barrier")
    a(f"s_lshl_b32 s{sT0}, s{sCQ}, 12")
    tagl()
    if 2 not in GDMA:
        dma(a, 2)
    for st in range(7):
        if EARLY:
            if st == 0:
                chunk_store_stats()
                tag_block()
            if st == 1:
                a(f"v_mov_b32 v{t}, {USCR+8192}")
                a(f"ds_read_b32 v{vONE}, v{t}")
                chunk_conv_setup()
        else:
            if st == 0:
                chunk_kv()
                tag_block()
            if st == 1:
                chunk_store_stats()
            if st == 2:
                chunk_conv_setup()
        if st == SIGST + 1:
            signal()
        if st == 4:
            chunk_build()
        if st == 6:
            a.vmem(f"buffer_load_dwordx4 {vr(vU,4)}, v{vKVA}, {sr(R_WS,4)}, 0 offen sc1", "U")
            a.vmem(f"buffer_load_dwordx4 {vr(vU+4,4)}, v{vKVA}, {sr(R_WS,4)}, 0 offen offset:1024 sc1", "U")
        a("s_waitcnt lgkmcnt(0)")
        if st + 1 < 7:
            a.vm_wait(f"A{st+1}")
        if st == SIGST:
            a.vm_wait("US")
        if st == 5:
            if P0ST == 5:
                a.vmem(f"buffer_load_dword v{vPOLL}, v{vPA}, {sr(R_WS,4)}, 0 offen sc1", "P0")
            poll_block()
        a("s_barrier")
        if st == 4 and P0ST == 4:
            a.vmem(f"buffer_load_dword v{vPOLL}, v{vPA}, {sr(R_WS,4)}, 0 offen sc1", "P0")
        if st + 3 < 7 and st + 3 not in GDMA:
            dma(a, st + 3)
        if st in (3, 6) or STM:
            a.stamp()
    if os.environ.get("CPRIO"):
        a(f"s_setprio {os.environ['CPRIO']}")
    for rnd in range(3):
        d, b = vD + 8 * rnd, vBLD + 12 * rnd
        if rnd == 2:
            a("s_mov_b64 exec, 15")
        srcs = [b + 4, b, b + 8, d + 2]
        for cc in range(4):
            a(f"ds_write_b128 v{vWX if rnd == 2 else vWM}, {vr(srcs[cc],4)} offset:{cc*CV_ST + (0 if rnd == 2 else 64 + 1024*rnd)}")
        if rnd == 2:
            a("s_mov_b64 exec, -1")
    a(f"ds_write_b128 v{vWZ}, {vr(vBLD+36,4)}")
    a.vm_wait("U")
    a(f"ds_write_b128 v{vWP}, {vr(vU,4)} offset:128")
    a(f"ds_write_b128 v{vWP}, {vr(vU+4,4)}")
    a("s_waitcnt lgkmcnt(0)")
    a(f"s_cmp_eq_u32 s{sHF}, 1")
    a("s_cbranch_scc1 C_HALF1")
    vF, vB, vAC = 32, 68, 100
    nst_save = a.nst
    for half in range(2):
        if half:
            a.label("C_HALF1")
            a.nst = nst_save
        own, oth = half, half ^ 1
        a(f"ds_write_b32 v{vFL}, v{vONE} offset:{4*own}")
        lds_wait_flag(a, vFL, 4 * oth, t, "CR")
        a.stamp()

        def F(psi):
            return vF + 6 * (psi % 6)

        def rdA(psi):
            off = 4 * psi * 16
            a(f"ds_read_b128 {vr(F(psi),4)}, v{vAA} offset:{off}")
            a(f"ds_read_b64 {vr(F(psi)+4,2)}, v{vAA} offset:{off+16}")
            return 2

        def nus(dl):
            return (0, 1) if dl < 16 else (1,)

        def rdB(dl):
            n = 0
            for kc in range(2):
                for nu in nus(dl):
                    a(f"ds_read_b128 {vr(vB+16*(dl&1)+8*kc+4*nu,4)}, v{vBA} offset:{kc*4*CV_UP+(16+16*nu-dl)*16}")
                    n += 1
            return n

        dls = list(range(0, 12)) if half == 0 else list(range(12, 32))
        if half:
            rdA(2 * dls[0] - 1)
        rdA(2 * dls[0]); rdA(2 * dls[0] + 1); rdB(dls[0])
        inited = set()
        for dl in dls:
            n = 0
            if dl != dls[-1]:
                n += rdA(2 * dl + 2); n += rdA(2 * dl + 3); n += rdB(dl + 1)
            a(f"s_waitcnt lgkmcnt({n})")
            for kc in range(2):
                for p in range(2):
                    psi = 2 * dl + p - kc
                    if psi < 0:
                        continue
                    for par in range(2):
                        for nu in nus(dl):
                            acc = vAC + 16 * nu + 8 * p + 4 * par
                            csrc = vr(acc, 4) if acc in inited else "0"
                            inited.add(acc)
                            a(f"v_mfma_f32_16x16x32_bf16 {vr(acc,4)}, {vr(F(psi)+2*par,4)}, {vr(vB+16*(dl&1)+8*kc+4*nu,4)}, {csrc}")
        a.stamp()
        a(f"ds_write_b32 v{vFL}, v{vONE} offset:{8+4*own}")
        a(f"ds_read_b128 {vr(vU,4)}, v{vKA} offset:{(16+16*own)*16}")
        a(f"ds_read_b128 {vr(vU+4,4)}, v{vKA} offset:{4*CV_UP+(16+16*own)*16}")
        a(f"""
        s_lshl_b32 s{sT0}, s{sCH}, 12
        s_add_u32 s{sT0}, s{sT0}, {WS_T + own*2048}
        s_lshl_b32 s{sT1}, s{sCHL}, 4
        s_lshr_b32 s{sD}, s{sD}, s{sT1}
        s_lshl_b32 s{sD}, s{sD}, 16
        s_lshl_b32 s{sTMP}, s{sCH}, 7
        s_add_u32 s{sTMP}, s{sTMP}, {WS_FLT + own*448*128}
        """)
        lds_wait_flag(a, vFL, 8 + 4 * oth, t, "CD")
        for q in range(4):
            a(f"ds_write_b128 v{vEXW}, {vr(vAC+16*oth+4*q,4)} offset:{1024*q}")
        a("s_waitcnt lgkmcnt(0)")
        a(f"ds_write_b32 v{vFL}, v{vONE} offset:{16+4*own}")
        vK = vF
        for p in range(2):
            for dq in range(4):
                a(f"v_lshlrev_b32 v{vK+8*p+7-2*dq}, 16, v{vU+4*p+dq}")
                a(f"v_and_b32 v{vK+8*p+6-2*dq}, 0xffff0000, v{vU+4*p+dq}")
        for i in range(16):
            a(f"v_mul_f32 v{vK+i}, s{sD}, v{vK+i}")
        for i in range(8):
            round_pair(a, vK + 2 * i, vK + 2 * i + 1)
        lds_wait_flag(a, vFL, 16 + 4 * oth, t, "CX")
        vR = vB
        for q in range(4):
            a(f"ds_read_b128 {vr(vR+4*q,4)}, v{vEXR} offset:{1024*q}")
        a("s_waitcnt lgkmcnt(0)")
        y = vAC + 16 * own
        for i in range(8):
            a(f"v_pk_add_f32 {vr(y+2*i,2)}, {vr(y+2*i,2)}, {vr(vR+2*i,2)}")
        for i in range(8):
            round_pair(a, y + 2 * i, y + 2 * i + 1)
        for i in range(8):
            a(f"v_pk_add_f32 {vr(y+2*i,2)}, {vr(y+2*i,2)}, {vr(vK+2*i,2)}")
        for i in range(8):
            a(f"v_cvt_pk_bf16_f32 v{vB+16+i}, v{y+2*i}, v{y+2*i+1}")
        a(f"buffer_store_dwordx4 {vr(vB+16,4)}, v{vTA}, {sr(R_WS,4)}, s{sT0} offen sc1")
        a(f"buffer_store_dwordx4 {vr(vB+20,4)}, v{vTA}, {sr(R_WS,4)}, s{sT0} offen offset:64 sc1")
        a.stamp()
        if half == 0:
            a("s_branch B_FINAL")
    a.label("B_FINAL")
    b_final(a)


def b_final(a):
    t = 12
    vXO, vF_, vTG, vTW, vTR, vRR, vST2 = 7, 8, 9, 10, 11, 25, 26
    sT2 = sW2
    srd(a, R_O, S_OUT, SZ_X)
    a(f"""
    s_lshl_b32 s{sT0}, s{sE}, 6
    s_lshl_b32 s{sT1}, s{sCHL}, 5
    s_add_u32 s{sT0}, s{sT0}, s{sT1}
    v_and_b32 v{t}, 31, v{vL}
    v_add_u32 v{t+1}, s{sT0}, v{t}
    v_lshlrev_b32 v{t+2}, 3, v{t+1}
    v_add_u32 v{t+2}, {WS_STATS}, v{t+2}
    v_mul_u32_u24 v{vXO}, 896, v{t+1}
    v_lshrrev_b32 v{t+3}, 5, v{vL}
    v_lshl_add_u32 v{vXO}, v{t+3}, 3, v{vXO}
    s_lshl_b32 s{sXO}, s{sG2C}, 6
    s_lshl_b32 s{sT1}, s{sHF}, 5
    s_add_u32 s{sXO}, s{sXO}, s{sT1}
    s_lshl_b32 s{sT1}, s{sXO}, 1
    v_add_u32 v{vXO}, s{sT1}, v{vXO}
    s_lshl_b32 s{sWO}, s{sT0}, 1
    s_add_u32 s{sWO}, s{sWO}, {WS_T}
    s_add_u32 s{sT2}, s{sWO}, {16*4096}
    s_lshr_b32 s{sT0}, s{sE}, 4
    s_mul_i32 s{sT0}, s{sT0}, 448
    s_add_u32 s{sT0}, s{sT0}, s{sXO}
    s_lshl_b32 s{sT0}, s{sT0}, 7
    s_add_u32 s{sT0}, s{sT0}, {WS_FLT}
    v_lshl_add_u32 v{vF_}, v{t}, 7, s{sT0}
    v_lshrrev_b32 v{t}, 2, v{vL}
    v_add_u32 v{t}, s{sXO}, v{t}
    v_lshlrev_b32 v{t}, 12, v{t}
    v_and_b32 v{t+1}, 3, v{vL}
    v_lshl_add_u32 v{vTG}, v{t+1}, 4, v{t}
    s_lshl_b32 s{sT1}, s{sHF}, 11
    s_add_u32 s{sT1}, s{sT1}, s{sAB}
    s_add_u32 s{sT1}, s{sT1}, 8192
    v_add_u32 v{vTW}, s{sT1}, v{vLB}
    v_bfe_u32 v{t}, v{vL}, 2, 2
    v_lshl_add_u32 v{t}, v{t+3}, 2, v{t}
    v_lshlrev_b32 v{t}, 6, v{t}
    v_bfe_u32 v{t+4}, v{vL}, 4, 1
    v_lshl_add_u32 v{t}, v{t+4}, 5, v{t}
    v_lshl_add_u32 v{t}, v{t+1}, 3, v{t}
    v_add_u32 v{vTR}, s{sT1}, v{t}
    s_lshl_b32 s{sT1}, s{sCQ}, 14
    s_add_u32 s{sT1}, s{sT1}, {WENT[0]}
    v_add_u32 v{vRR}, s{sT1}, v{vLB}
    v_lshlrev_b32 v{t+4}, 2, v{t+1}
    v_add_u32 v{t+4}, {L_FLAG + 64}, v{t+4}
    s_waitcnt vmcnt(0)
    s_mov_b64 exec, 1
    buffer_store_dword v{vONE}, v{vZ}, {sr(R_WS,4)}, s{sTMP} offen sc1
    s_mov_b64 exec, -1
    """)
    a.stamp()
    vXV, vTT, vTD = 28, 36, 44
    vX, vXN, vP, vE, vS = 52, 68, 84, 148, 164
    for i in range(4):
        a(f"buffer_load_dwordx2 {vr(vXV+2*i,2)}, v{vXO}, {sr(R_X,4)}, 0 offen offset:{16*i}")
    a(f"buffer_load_dwordx2 {vr(vST2,2)}, v{t+2}, {sr(R_WS,4)}, 0 offen sc1")
    lds_wait_flag(a, t + 4, 16, t + 3, "TG", sleep=True)
    gpoll(a, vF_, "BT", False, 8)
    a(f"buffer_load_dwordx4 {vr(vTT,4)}, v{vTG}, {sr(R_WS,4)}, s{sWO} offen sc1")
    a(f"buffer_load_dwordx4 {vr(vTT+4,4)}, v{vTG}, {sr(R_WS,4)}, s{sT2} offen sc1")
    a.stamp()
    for i in range(8):
        a(f"v_lshlrev_b32 v{vX+2*i}, 16, v{vXV+i}")
        a(f"v_and_b32 v{vX+2*i+1}, 0xffff0000, v{vXV+i}")
    for i in range(16):
        a(f"v_sub_f32 v{vXN+i}, v{vX+i}, v{vST2}")
    for i in range(8):
        round_pair(a, vXN + 2 * i, vXN + 2 * i + 1)
    for i in range(16):
        a(f"v_mul_f32 v{vXN+i}, v{vXN+i}, v{vST2+1}")
    for i in range(8):
        round_pair(a, vXN + 2 * i, vXN + 2 * i + 1)
    a("s_waitcnt vmcnt(0)")
    a(f"ds_write_b128 v{vTW}, {vr(vTT,4)}")
    a(f"ds_write_b128 v{vTW}, {vr(vTT+4,4)} offset:1024")
    a("s_waitcnt lgkmcnt(0)")
    for i in range(4):
        a(f"ds_read_b64_tr_b16 {vr(vTD+2*i,2)}, v{vTR} offset:{512*i}")
    a("s_waitcnt lgkmcnt(0)")
    for i in range(8):
        a(f"v_lshlrev_b32 v{vS+2*i}, 16, v{vTD+i}")
        a(f"v_and_b32 v{vS+2*i+1}, 0xffff0000, v{vTD+i}")
    for i in range(8):
        a(f"v_pk_mul_f32 {vr(vS+2*i,2)}, {vr(vS+2*i,2)}, {vr(vXN+2*i,2)}")
    for i in range(8):
        round_pair(a, vS + 2 * i, vS + 2 * i + 1)
    a(f"s_mov_b32 s{sW2}, {f32bits(-1.4426950408889634)}")
    a.stamp()
    lds_wait_flag(a, t + 4, 0, t + 3, "GR", sleep=True)
    a.stamp()
    for src in range(4):
        for q in range(4):
            a(f"ds_read_b128 {vr(vP+16*src+4*q,4)}, v{vRR} offset:{src*4096+q*1024}")
    a("s_waitcnt lgkmcnt(8)")
    for i in range(8):
        a(f"v_pk_add_f32 {vr(vP+2*i,2)}, {vr(vP+2*i,2)}, {vr(vP+16+2*i,2)}")
    a("s_waitcnt lgkmcnt(0)")
    for i in range(8):
        a(f"v_pk_add_f32 {vr(vP+32+2*i,2)}, {vr(vP+32+2*i,2)}, {vr(vP+48+2*i,2)}")
    for i in range(8):
        a(f"v_pk_add_f32 {vr(vP+2*i,2)}, {vr(vP+2*i,2)}, {vr(vP+32+2*i,2)}")
    for i in range(8):
        round_pair(a, vP + 2 * i, vP + 2 * i + 1)
    for i in range(16):
        a(f"v_mul_f32 v{vE+i}, s{sW2}, v{vP+i}")
    for i in range(16):
        a(f"v_exp_f32 v{vE+i}, v{vE+i}")
    for i in range(16):
        a(f"v_add_f32 v{vE+i}, 1.0, v{vE+i}")
    for i in range(16):
        a(f"v_rcp_f32 v{vE+i}, v{vE+i}")
    a("s_nop 0")
    for i in range(8):
        a(f"v_pk_mul_f32 {vr(vP+2*i,2)}, {vr(vP+2*i,2)}, {vr(vE+2*i,2)}")
    for i in range(8):
        round_pair(a, vP + 2 * i, vP + 2 * i + 1)
    for i in range(8):
        a(f"v_pk_mul_f32 {vr(vS+2*i,2)}, {vr(vS+2*i,2)}, {vr(vP+2*i,2)}")
    for i in range(8):
        round_pair(a, vS + 2 * i, vS + 2 * i + 1)
    for i in range(8):
        a(f"v_pk_add_f32 {vr(vS+2*i,2)}, {vr(vS+2*i,2)}, {vr(vX+2*i,2)}")
    for i in range(8):
        a(f"v_cvt_pk_bf16_f32 v{vTT+i}, v{vS+2*i}, v{vS+2*i+1}")
    for i in range(4):
        a(f"buffer_store_dwordx2 {vr(vTT+2*i,2)}, v{vXO}, {sr(R_O,4)}, 0 offen offset:{16*i}")
    if PROF:
        a("s_waitcnt vmcnt(0)")
    a.stamp()
    a.stamp_flush()
    a("s_endpgm")


def gen(a):
    a.lines.append(f".globl {KNAME}\n.p2align 8\n.type {KNAME},@function")
    a.label(KNAME)
    a("s_cmp_ge_u32 s2, 256")
    a("s_cbranch_scc1 K_END")
    if int(os.environ.get("REMAP", 1)):
        a("s_add_u32 s2, s2, 224")
        a("s_and_b32 s2, s2, 255")
    a.stamp()
    a("""
    s_load_dwordx16 s[16:31], s[0:1], 0
    s_load_dwordx8 s[32:39], s[0:1], 64
    s_load_dwordx2 s[40:41], s[0:1], 96
    v_lshrrev_b32 v1, 6, v0
    v_and_b32 v2, 63, v0
    s_nop 0
    v_readfirstlane_b32 s3, v1
    s_cmp_ge_u32 s2, 224
    s_cbranch_scc1 K_PREP
    """)
    wg_map(a)
    dma_setup(a, 12)
    a("s_cmp_ge_u32 s3, 4")
    a("s_cbranch_scc1 K_B")
    role_g(a)
    a.label("K_B")
    a.vm, a.nst = [], 1
    role_b(a)
    a.label("K_PREP")
    a.vm, a.nst = [], 1
    role_prep(a)
    a.label("K_END")
    a("s_endpgm")


def main():
    HEADER = open("cdna_kernels/" + NAME + ".s.ref").read().split("; Override launch")[0]
    a = Asm()
    gen(a)
    out = HEADER
    out += f"; @launch grid=(256,1,1) block=(512,1,1) lds={LDS_BYTES}\n"
    out += '.amdgcn_target "amdgcn-amd-amdhsa--gfx950"\n.text\n'
    out += a.text()
    out += '.section .rodata,"a"\n.p2align 6\n'
    out += descriptor(KNAME, 256, 102)
    path = sys.argv[1] if len(sys.argv) > 1 else "cdna_kernels/" + NAME + ".s"
    open(path, "w").write(out)


if __name__ == "__main__":
    main()
```

```python
import sys, os
from gen2 import (Asm, vr, sr, srd, round_pair, newlabel, f32bits, descriptor, NAME, KNAME, PROF,
                  S_X, S_K, S_V, S_SHK, S_SSMK, S_SSMD, S_WG, S_WU, S_WD, S_OUT, S_DBG, S_WS,
                  R_X, R_W, R_WS, R_DBG, R_A, R_B, SZ_X, SZ_W, SZ_SHK)
import gen12 as G12
from gen12 import (WS_H, WS_KVR, WS_T, WS_STATS, WS_CS, WS_FLU, WS_FLH, WS_FLT, WS_END, SLOT, LDS_BYTES, USCR,
                   CV_ST, CV_A, CV_U, CV_UP, role_prep, explode, vONE, vZ, vL, sSP, sT0, sT1, tag_issue)

STM = int(os.environ.get("STM", 0))
HFL = os.environ.get("HFL", " sc1")
BPRIO = int(os.environ.get("BPRIO", 2))
TGATE = int(os.environ.get("TGATE", 8))
P0ST = int(os.environ.get("P0ST", 5))
SIGST = int(os.environ.get("SIGST", 1))
WENT = [49152 + 16384 * i for i in range(7)]
L_FLAG = 45568
sRB, sCB, sE, sCQ = 4, 5, 6, 10
sXO, sWO, sM0X, sM0W, sTMP = 11, 12, 13, 14, 15
s2RB, s2CB, sCH, sUB, sAB, sD, sW2 = 18, 19, 20, 21, 22, 23, 28
sWB, sHF, sCHL, sHO, sG2C = 29, 68, 69, 70, 9
R_WD, R_O, R_H, R_W2 = R_A, R_B, 92, 88
vLB, vPOLL = 1, 21


MAP = int(os.environ.get("MAP", 0))
HPF = int(os.environ.get("HPF", 0))
MAXH = int(os.environ.get("MAXH", 4))


def wg_map(a):
    a(f"""
    s_and_b32 s{sT0}, s2, 7
    s_lshr_b32 s{sT1}, s2, 3
    s_mul_i32 s{sRB}, s{sT1}, 37
    s_lshr_b32 s{sRB}, s{sRB}, 8
    s_mul_i32 s{sCB}, s{sRB}, 7
    s_sub_u32 s{sCB}, s{sT1}, s{sCB}
    s_mov_b32 s{sXO}, s{sCB}
    """)
    if MAP == 2:
        a(f"""
        s_lshl_b32 s{sWO}, s{sT0}, 2
        s_add_u32 s{sWO}, s{sWO}, s{sRB}
        s_and_b32 s{sT1}, s{sRB}, 1
        s_mul_i32 s{sT1}, s{sT1}, 7
        s_add_u32 s{sCB}, s{sCB}, s{sT1}
        s_lshr_b32 s{sRB}, s{sRB}, 1
        s_lshl_b32 s{sT1}, s{sT0}, 1
        s_add_u32 s{sRB}, s{sRB}, s{sT1}
        """)
    else:
        if MAP == 1:
            a(f"""
            s_and_b32 s{sWO}, s{sT0}, 3
            s_lshl_b32 s{sWO}, s{sWO}, 3
            s_lshr_b32 s{sT1}, s{sT0}, 2
            s_lshl_b32 s{sT1}, s{sT1}, 2
            s_add_u32 s{sWO}, s{sWO}, s{sT1}
            s_add_u32 s{sWO}, s{sWO}, s{sRB}
            """)
        else:
            a(f"""
            s_lshl_b32 s{sWO}, s{sT0}, 2
            s_add_u32 s{sWO}, s{sWO}, s{sRB}
            """)
        a(f"""
        s_and_b32 s{sT1}, s{sT0}, 3
        s_lshl_b32 s{sT1}, s{sT1}, 2
        s_add_u32 s{sRB}, s{sRB}, s{sT1}
        s_lshr_b32 s{sT1}, s{sT0}, 2
        s_mul_i32 s{sT1}, s{sT1}, 7
        s_add_u32 s{sCB}, s{sCB}, s{sT1}
        """)
    a(f"""
    s_and_b32 s{sCQ}, s3, 3
    v_lshlrev_b32 v{vLB}, 4, v{vL}
    v_mov_b32 v{vZ}, 0
    """)


def lds_wait_flag(a, vaddr, off, vtmp, name, sleep=False):
    L, Lok = newlabel(name), newlabel(name + "OK")
    a(f"s_mov_b32 s{sSP}, 0")
    a.label(L)
    if sleep:
        a("s_sleep 1")
    a(f"""
    ds_read_b32 v{vtmp}, v{vaddr} offset:{off}
    s_add_u32 s{sSP}, s{sSP}, 1
    s_cmp_gt_u32 s{sSP}, 0x100000
    s_cbranch_scc1 {Lok}
    s_waitcnt lgkmcnt(0)
    v_cmp_eq_u32 vcc, v{vONE}, v{vtmp}
    s_nop 3
    s_cmp_eq_u64 vcc, exec
    s_cbranch_scc0 {L}
    """)
    a.label(Lok)
    a("s_waitcnt lgkmcnt(0)")


def gpoll(a, vaddr, name, first_loaded, sleep=8):
    L, Lok = newlabel(name), newlabel(name + "OK")
    a(f"s_mov_b32 s{sSP}, 0")
    if not first_loaded:
        a(f"buffer_load_dword v{vPOLL}, v{vaddr}, {sr(R_WS,4)}, 0 offen sc1")
        a("s_waitcnt vmcnt(0)")
    a.label(L)
    a(f"""
    v_cmp_eq_u32 vcc, v{vONE}, v{vPOLL}
    s_add_u32 s{sSP}, s{sSP}, 1
    s_cmp_gt_u32 s{sSP}, 0x10000
    s_cbranch_scc1 {Lok}
    s_cmp_eq_u64 vcc, exec
    s_cbranch_scc1 {Lok}
    s_sleep {sleep}
    buffer_load_dword v{vPOLL}, v{vaddr}, {sr(R_WS,4)}, 0 offen sc1
    s_waitcnt vmcnt(0)
    s_branch {L}
    """)
    a.label(Lok)


vXG0, vXG1, vWG = 246, 247, 248


def dma_setup(a, t):
    a(f"""
    v_lshrrev_b32 v{t}, 3, v{vL}
    v_lshrrev_b32 v{t+1}, 4, v{vL}
    v_and_b32 v{t+2}, 7, v{vL}
    s_lshl_b32 s{sT0}, s{sRB}, 7
    s_lshl_b32 s{sT1}, s{sCQ}, 5
    s_add_u32 s{sT0}, s{sT0}, s{sT1}
    v_add_u32 v{t}, s{sT0}, v{t}
    v_mul_u32_u24 v{t}, 896, v{t}
    v_xor_b32 v{t+3}, v{t+2}, v{t+1}
    v_lshl_add_u32 v{vXG0}, v{t+3}, 4, v{t}
    v_xor_b32 v{t+3}, 4, v{t+3}
    v_lshl_add_u32 v{vXG1}, v{t+3}, 4, v{t}
    v_add_u32 v{vXG1}, {8*896}, v{vXG1}
    s_lshr_b32 s{sCHL}, s{sCQ}, 1
    s_and_b32 s{sHF}, s{sCQ}, 1
    v_and_b32 v{t+2}, 15, v{vL}
    v_lshlrev_b32 v{t+3}, 2, v{t+1}
    v_xor_b32 v{t+2}, v{t+2}, v{t+3}
    s_lshl_b32 s{sT0}, s{sCHL}, 1
    v_xor_b32 v{t+2}, s{sT0}, v{t+2}
    s_lshl_b32 s{sT1}, s{sHF}, 5
    v_add_u32 v{t+3}, s{sT1}, v{t+1}
    v_mul_u32_u24 v{t+3}, 3584, v{t+3}
    v_lshl_add_u32 v{vWG}, v{t+2}, 4, v{t+3}
    s_lshl_b32 s{sT0}, s{sCB}, 8
    v_add_u32 v{vWG}, s{sT0}, v{vWG}
    s_lshl_b32 s{sM0X}, s{sCQ}, 12
    s_lshl_b32 s{sM0W}, s{sCQ}, 13
    s_add_u32 s{sM0W}, s{sM0W}, 16384
    s_mov_b32 s{sE}, s{sWO}
    s_mov_b32 s{sG2C}, s{sXO}
    s_waitcnt lgkmcnt(0)
    """)
    srd(a, R_X, S_X, SZ_X)
    a(f"""
    s_cmp_eq_u32 s{sCHL}, 0
    s_cselect_b32 s{R_W}, s{S_WG}, s{S_WU}
    s_cselect_b32 s{R_W+1}, s{S_WG+1}, s{S_WU+1}
    s_and_b32 s{R_W+1}, s{R_W+1}, 0xffff
    s_mov_b32 s{R_W+2}, {SZ_W}
    s_mov_b32 s{R_W+3}, 0x20000
    """)


def dma(a, st):
    slot = (st % 3) * SLOT
    for j in range(8):
        a(f"s_mov_b32 s{sWO}, {st*64*3584 + j*4*3584}")
        a(f"s_add_u32 m0, s{sM0W}, {slot+1024*j}")
        a("s_nop 0")
        a.vmem(f"buffer_load_dwordx4 v{vWG}, {sr(R_W,4)}, s{sWO} offen lds", f"A{st}")
        if j % 2 == 1:
            i = j // 2
            a(f"s_mov_b32 s{sXO}, {st*128 + (i//2)*16*896}")
            a(f"s_add_u32 m0, s{sM0X}, {slot+1024*i}")
            a("s_nop 0")
            a.vmem(f"buffer_load_dwordx4 v{vXG1 if i%2 else vXG0}, {sr(R_X,4)}, s{sXO} offen lds", f"A{st}")


GDMA = [int(c) for c in os.environ.get("GDMA", "012")]


def role_g(a):
    vXA, vWA = 3, 7
    vXR, vWR0, vWR1 = 9, 10, 11
    t = 12
    vWD, vHO, vRA0 = 0, 19, 22
    vSA0, vSA1, vHS = 24, 25, 26
    vFR = 28
    vACC = 76
    vCS, vSTAT, vR2 = 204, 236, 60
    if 0 in GDMA:
        dma(a, 0)
    a(f"""
    s_mov_b32 s{s2CB}, s{sG2C}
    s_mov_b32 s{s2RB}, s{sE}
    v_and_b32 v{t}, 31, v{vL}
    v_lshrrev_b32 v{t+1}, 5, v{vL}
    v_bfe_u32 v{t+2}, v{vL}, 1, 3
    v_xor_b32 v{t+2}, v{t+2}, v{t+1}
    v_lshlrev_b32 v{t+3}, 7, v{t}
    v_lshl_add_u32 v{vXA}, v{t+2}, 4, v{t+3}
    v_xor_b32 v{vXA+1}, 32, v{vXA}
    v_xor_b32 v{vXA+2}, 64, v{vXA}
    v_xor_b32 v{vXA+3}, 96, v{vXA}
    s_lshl_b32 s{sT0}, s{sRB}, 7
    v_add_u32 v{t}, s{sT0}, v{t}
    v_lshlrev_b32 v{t}, 3, v{t}
    v_add_u32 v{vSA0}, {WS_STATS}, v{t}
    s_lshl_b32 s{sT0}, s{sCB}, 3
    s_lshl_b32 s{sT1}, s{sCQ}, 1
    s_add_u32 s{sT0}, s{sT0}, s{sT1}
    s_lshl_b32 s{sT1}, s{sT0}, 7
    s_add_u32 s{sT1}, s{sT1}, {WS_CS}
    v_lshl_add_u32 v{vSA1}, v{t+1}, 4, s{sT1}
    s_lshl_b32 s{sT1}, s{sRB}, 9
    s_add_u32 s{sT0}, s{sT0}, s{sT1}
    s_lshl_b32 s{sT0}, s{sT0}, 10
    v_add_u32 v{vHS}, s{sT0}, v{vLB}
    v_bfe_u32 v{t}, v{vL}, 4, 1
    v_bfe_u32 v{t+2}, v{vL}, 2, 2
    v_bfe_u32 v{t+3}, v{vL}, 1, 1
    s_lshl_b32 s{sT0}, s{sCQ}, 2
    v_or_b32 v{t+3}, s{sT0}, v{t+3}
    v_lshlrev_b32 v{t+4}, 2, v{t+2}
    v_xor_b32 v{t+3}, v{t+3}, v{t+4}
    v_lshlrev_b32 v{t+4}, 1, v{t}
    v_xor_b32 v{t+3}, v{t+3}, v{t+4}
    v_lshlrev_b32 v{t+3}, 4, v{t+3}
    v_and_b32 v{t+4}, 1, v{vL}
    v_lshl_add_u32 v{t+3}, v{t+4}, 3, v{t+3}
    v_lshl_add_u32 v{t+2}, v{t+1}, 3, v{t+2}
    v_lshl_add_u32 v{t+3}, v{t+2}, 8, v{t+3}
    v_add_u32 v{t}, 1, v{t}
    v_lshl_add_u32 v{vWA}, v{t}, 14, v{t+3}
    v_xor_b32 v{vWA+1}, 32, v{vWA}
    s_mul_i32 s{sE}, s{sRB}, 56
    s_lshl_b32 s{sT0}, s{sCB}, 2
    s_add_u32 s{sE}, s{sE}, s{sT0}
    s_add_u32 s{sE}, s{sE}, s{sCQ}
    s_lshl_b32 s{sE}, s{sE}, 7
    s_add_u32 s{sE}, s{sE}, {WS_FLH}
    s_lshl_b32 s{sWB}, s{sCQ}, 12
    s_lshl_b32 s{sT0}, s{s2RB}, 8
    s_mul_i32 s{sT1}, s{sCQ}, 28
    s_add_u32 s{sT0}, s{sT0}, s{sT1}
    s_lshl_b32 s{sT0}, s{sT0}, 10
    v_add_u32 v{vHO}, s{sT0}, v{vLB}
    v_lshrrev_b32 v{t}, 3, v{vL}
    s_mul_i32 s{sT0}, s{sCQ}, 448
    v_add_u32 v{t}, s{sT0}, v{t}
    v_mul_u32_u24 v{t}, 896, v{t}
    v_bfe_u32 v{t+1}, v{vL}, 4, 1
    v_lshlrev_b32 v{t+1}, 2, v{t+1}
    v_and_b32 v{t+2}, 7, v{vL}
    v_xor_b32 v{t+1}, v{t+1}, v{t+2}
    v_lshl_add_u32 v{vWD}, v{t+1}, 4, v{t}
    s_lshl_b32 s{sT0}, s{s2CB}, 7
    v_add_u32 v{vWD}, s{sT0}, v{vWD}
    v_lshrrev_b32 v{t}, 5, v{vL}
    v_bfe_u32 v{t+1}, v{vL}, 2, 2
    v_lshl_add_u32 v{t}, v{t}, 2, v{t+1}
    v_bfe_u32 v{t+2}, v{vL}, 4, 1
    v_bfe_u32 v{t+3}, v{vL}, 1, 1
    v_lshl_add_u32 v{t+2}, v{t+2}, 1, v{t+3}
    v_bfe_u32 v{t+3}, v{vL}, 3, 1
    v_lshl_add_u32 v{t+2}, v{t+3}, 2, v{t+2}
    v_lshlrev_b32 v{t+2}, 4, v{t+2}
    v_and_b32 v{t+3}, 1, v{vL}
    v_lshl_add_u32 v{t+2}, v{t+3}, 3, v{t+2}
    v_lshl_add_u32 v{t+2}, v{t}, 7, v{t+2}
    v_add_u32 v{vRA0}, s{sWB}, v{t+2}
    """)
    srd(a, R_WS, S_WS, WS_END)
    srd(a, R_WD, S_WD, SZ_W)

    def fx(s_, nt):
        return vFR + 24 * s_ + 4 * nt

    def fw(s_, mt):
        return vFR + 24 * s_ + 16 + 4 * mt

    def read_ops(st, p, s_):
        slot = (st % 3) * SLOT
        ops = []
        pre = []
        if p == 0:
            pre.append(f"v_add_u32 v{vWR0}, {slot}, v{vWA}")
            pre.append(f"v_add_u32 v{vWR1}, {slot}, v{vWA+1}")
        pre.append(f"v_add_u32 v{vXR}, {slot}, v{vXA+p}")
        ops.append(pre + [f"ds_read_b64_tr_b16 {vr(fw(s_,0),2)}, v{vWR0} offset:{4096*p}"])
        ops.append([f"ds_read_b64_tr_b16 {vr(fw(s_,0)+2,2)}, v{vWR0} offset:{4096*p+1024}"])
        for nt in range(4):
            ops.append([f"ds_read_b128 {vr(fx(s_,nt),4)}, v{vXR} offset:{4096*nt}"])
        ops.append([f"ds_read_b64_tr_b16 {vr(fw(s_,1),2)}, v{vWR1} offset:{4096*p}"])
        ops.append([f"ds_read_b64_tr_b16 {vr(fw(s_,1)+2,2)}, v{vWR1} offset:{4096*p+1024}"])
        return ops

    def wdma(r, s_, ent):
        for j in range(4):
            r(f"s_mov_b32 s{sW2}, {(32*s_ + 8*j)*896}")
            r(f"s_add_u32 m0, s{sWB}, {ent + j*1024}")
            r("s_nop 0")
            r.vmem(f"buffer_load_dwordx4 v{vWD}, {sr(R_WD,4)}, s{sW2} offen lds", f"W{s_}")

    def stat_loads(r):
        for nt in range(4):
            r.vmem(f"buffer_load_dwordx2 {vr(vSTAT+2*nt,2)}, v{vSA0}, {sr(R_WS,4)}, 0 offen offset:{256*nt} sc1", "ST")
        for i in range(8):
            r.vmem(f"buffer_load_dwordx4 {vr(vCS+4*i,4)}, v{vSA1}, {sr(R_WS,4)}, 0 offen offset:{32*i} sc1", "ST")

    def tag_read(r):
        r(f"v_mov_b32 v{t}, {USCR+8192}")
        r(f"ds_read_b32 v{vONE}, v{t}")

    WD = lambda s_: (lambda r: wdma(r, s_, WENT[s_]))
    plan = {0: [tag_read], 1: [], 2: [WD(6)], 3: [], 4: [WD(0), WD(1), WD(2)], 5: [stat_loads, WD(3), WD(4), WD(5)], 6: []}
    for st_ in GDMA:
        if st_ >= 3:
            plan[st_ - 3] = plan[st_ - 3] + [(lambda q: (lambda r: dma(r, q)))(st_)]
    if 1 in GDMA:
        dma(a, 1)
    a.vm_wait("A0")
    a("s_barrier")
    a.stamp()
    for ops in read_ops(0, 0, 0):
        for o in ops:
            a(o)
    cur = 0
    fill = explode(a, [lambda r: dma(r, 2)]) if 2 in GDMA else []
    order = [(0, 0), (0, 1), (0, 2), (0, 3), (1, 3), (1, 2), (1, 1), (1, 0)]
    for st in range(7):
        for p in range(4):
            a("s_waitcnt lgkmcnt(0)")
            nxt = []
            if p == 3:
                assert not fill
                a.vm_wait(f"A{st+1}")
                a("s_barrier")
                if st < 6:
                    nxt = read_ops(st + 1, 0, cur ^ 1)
                fill = explode(a, plan[st])
            else:
                nxt = read_ops(st, p + 1, cur ^ 1)
            slots = 8 * (3 - p) if p < 3 else 32
            for k, (mt, nt) in enumerate(order):
                acc = vACC + 16 * (4 * mt + nt)
                c = "0" if (st == 0 and p == 0) else vr(acc, 16)
                a(f"v_mfma_f32_32x32x16_bf16 {vr(acc,16)}, {vr(fw(cur,mt),4)}, {vr(fx(cur,nt),4)}, {c}")
                for _ in range(2):
                    if nxt:
                        for o in nxt.pop(0):
                            a(o)
                tot = sum(c_ for c_, _ in fill)
                budget = tot / max(1, slots - k)
                used = 0
                while fill and used < budget - 1e-9:
                    c_, e = fill.pop(0)
                    e()
                    used += c_
            cur ^= 1
            if p == 3 and (st in (3, 6) or STM == 1):
                a.stamp()
    a.vm_wait("ST")
    for nt in range(4):
        a(f"v_mul_f32 v{vR2+2*nt}, v{vSTAT+2*nt+1}, v{vSTAT+2*nt+1}")
    for nt in range(1, 4):
        a(f"s_mov_b32 s{sM0X+nt-1}, {nt*128*1024}")
    a("s_nop 4")
    vH = 28
    k = 0
    for nt in range(4):
        for mt in range(2):
            acc = vACC + 16 * (4 * mt + nt)
            cs = vCS + 16 * mt
            m = vSTAT + 2 * nt
            for i in range(8):
                a(f"v_pk_fma_f32 {vr(acc+2*i,2)}, {vr(m,2)}, {vr(cs+2*i,2)}, {vr(acc+2*i,2)} op_sel_hi:[0,1,1] neg_lo:[1,0,0] neg_hi:[1,0,0]")
            for i in range(8):
                a(f"v_max_f32 v{acc+i}, 0, v{acc+i}")
            for i in range(4):
                a(f"v_pk_mul_f32 {vr(acc+8+2*i,2)}, {vr(acc+8+2*i,2)}, {vr(vR2+2*nt,2)} op_sel_hi:[1,0]")
            for i in range(4):
                a(f"v_pk_mul_f32 {vr(acc+2*i,2)}, {vr(acc+2*i,2)}, {vr(acc+8+2*i,2)}")
            o = vH + 4 * k
            for i in range(4):
                a(f"v_cvt_pk_bf16_f32 v{o+i}, v{acc+2*i}, v{acc+2*i+1}")
            so = "0" if nt == 0 else f"s{sM0X+nt-1}"
            a.vmem(f"buffer_store_dwordx4 {vr(o,4)}, v{vHS}, {sr(R_WS,4)}, {so} offen offset:{mt*1024} sc1", "HS")
            k += 1
    a.stamp()
    vA2 = 192
    vRB0, vRB1, vH1, vFA = 3, 4, 5, 6
    gH0, gRA, gTAG, vRW, gFL = 7, 8, 9, 10, 11
    SETS = [16 + 16 * i for i in range(11)]
    ENT = {s_: WENT[s_ % 7] for s_ in range(14)}

    def trreads(s_, dst):
        a(f"v_add_u32 v{vRB0}, {ENT[s_]}, v{gRA}")
        a(f"v_xor_b32 v{vRB1}, 64, v{vRB0}")
        for tt in range(2):
            for Td in range(2):
                for hf in range(2):
                    a(f"ds_read_b64_tr_b16 {vr(dst+8*tt+4*Td+2*hf,2)}, v{vRB1 if Td else vRB0} offset:{tt*2048+hf*1024}")

    a(f"""
    v_add_u32 v{vH1}, {128*1024}, v{vHO}
    v_mov_b32 v{gH0}, v{vHO}
    v_mov_b32 v{gRA}, v{vRA0}
    v_mov_b32 v{gTAG}, v{vONE}
    s_lshr_b32 s{sT0}, s{s2RB}, 1
    s_mul_i32 s{sT0}, s{sT0}, 56
    s_mul_i32 s{sT1}, s{sCQ}, 14
    s_add_u32 s{sT0}, s{sT0}, s{sT1}
    s_lshl_b32 s{sT0}, s{sT0}, 7
    s_add_u32 s{sT0}, s{sT0}, {WS_FLH}
    v_min_u32 v{vFA}, 13, v{vL}
    v_lshl_add_u32 v{vFA}, v{vFA}, 7, s{sT0}
    """)
    NW0 = int(os.environ.get("NW0", 4))
    LOOK = int(os.environ.get("LOOK", 2))
    setW, setH = {}, {}
    free = SETS[:]
    for s_ in range(NW0):
        setW[s_] = free.pop()
        a.vm_wait(f"W{s_}")
        trreads(s_, setW[s_])
    a("s_waitcnt lgkmcnt(0)")
    for s_ in range(7, 7 + NW0):
        wdma(a, s_, ENT[s_])
    a.vm_wait("HS")
    a("s_mov_b64 exec, 1")
    a.vmem(f"buffer_store_dword v{vONE}, v{vZ}, {sr(R_WS,4)}, s{sE} offen sc1", "HF")
    a("s_mov_b64 exec, -1")
    if HPF:
        a(f"""
        v_sub_u32 v{t}, v{vHS}, v{vLB}
        v_lshrrev_b32 v{t+1}, 4, v{vL}
        v_lshl_add_u32 v{t}, v{t+1}, 17, v{t}
        v_and_b32 v{t+1}, 15, v{vL}
        v_lshl_add_u32 v{t}, v{t+1}, 7, v{t}
        buffer_load_dword v{t+1}, v{t}, {sr(R_WS,4)}, 0 offen
        """)
    a.stamp()
    a(f"""
    s_add_u32 s{sT1}, s{sWB}, {WENT[0]}
    v_add_u32 v{vRW}, s{sT1}, v{vLB}
    s_lshl_b32 s{sT0}, s3, 2
    s_add_u32 s{sT0}, s{sT0}, {L_FLAG + 64}
    v_mov_b32 v{gFL}, s{sT0}
    """)
    gpoll(a, vFA, "GH", False)
    a.vm = []
    a.stamp()

    def hloads(s_):
        r = setH[s_]
        a(f"s_mov_b32 s{sHO}, {2048*s_}")
        for tt in range(2):
            for nt in range(2):
                a.vmem(f"buffer_load_dwordx4 {vr(r+8*tt+4*nt,4)}, v{vH1 if nt else gH0}, {sr(R_WS,4)}, s{sHO} offen offset:{1024*tt}{HFL}", f"H{s_}")

    nh, nw = 0, NW0
    while free and nh < MAXH:
        setH[nh] = free.pop(0)
        hloads(nh)
        nh += 1
    for s_ in range(14):
        a.vm_wait(f"H{s_}")
        if s_ >= NW0:
            a(f"s_waitcnt lgkmcnt({min(15, 8*(nw - 1 - s_))})")
        if STM == 2 and s_ in (0, 3, 6, 9, 12):
            a.stamp()
        for tt in range(2):
            for Td in range(2):
                for nt in range(2):
                    acc = vA2 + 32 * nt + 16 * Td
                    c = "0" if (s_ == 0 and tt == 0) else vr(acc, 16)
                    a(f"v_mfma_f32_32x32x16_bf16 {vr(acc,16)}, {vr(setW[s_]+8*tt+4*Td,4)}, {vr(setH[s_]+8*tt+4*nt,4)}, {c}")
        if s_ == TGATE:
            a(f"ds_write_b32 v{gFL}, v{gTAG} offset:16")
        free += [setW[s_], setH[s_]]
        wnow = []
        while nw < 14 and (nw <= s_ + LOOK or (nh >= 14 and nw <= s_ + 3)):
            setW[nw] = free.pop(0)
            wnow.append(nw)
            nw += 1
        while free and nh < 14 and nh <= s_ + MAXH:
            setH[nh] = free.pop(0)
            hloads(nh)
            nh += 1
        for sn in wnow:
            a.vm_wait(f"W{sn}")
            trreads(sn, setW[sn])
            if sn + 7 < 14:
                a("s_waitcnt lgkmcnt(0)")
                wdma(a, sn + 7, ENT[sn + 7])
    a.stamp()
    a("s_nop 7")
    a("s_nop 3")
    for tau in range(4):
        for q in range(4):
            a(f"ds_write_b128 v{vRW}, {vr(vA2+16*tau+4*q,4)} offset:{tau*16384+q*1024}")
    a("s_waitcnt lgkmcnt(0)")
    a(f"ds_write_b32 v{gFL}, v{gTAG}")
    a.stamp()
    a.stamp_flush()
    a("s_endpgm")


def role_b(a):
    R_K, R_V, R_SH = 76, 80, 84
    t = 6
    uA = 24
    uK, uV, uW, uX = 32, 43, 52, 56
    uKU, uWU, uAC, uVU, uO, uS = 64, 86, 94, 110, 112, 120
    vD, vU, vBLD = 144, 168, 176
    vAA, vBA, vKA, vTA, vEXW, vEXR, vFL, vWM, vWX, vWZ, vWP, vPA, vKVA = range(216, 229)
    if 0 not in GDMA:
        dma(a, 0)
    srd(a, R_K, S_K, SZ_X)
    srd(a, R_V, S_V, SZ_X)
    srd(a, R_SH, S_SHK, SZ_SHK)
    srd(a, R_WS, S_WS, WS_END)
    srd(a, R_DBG, S_DBG, 256)
    a(f"""
    v_cmp_le_u32 vcc, 28, v{vL}
    v_mov_b32 v{uA+4}, 0x7f000000
    s_and_b32 s{sT0}, s2, 7
    v_cndmask_b32 v{uA}, 0, 1, vcc
    v_mul_u32_u24 v{uA+1}, 28, v{uA}
    v_sub_u32 v{uA+1}, v{vL}, v{uA+1}
    s_and_b32 s{sT1}, s2, 0xf8
    s_lshl_b32 s{sTMP}, s{sCQ}, 1
    s_add_u32 s{sT1}, s{sT1}, s{sTMP}
    s_mul_i32 s{sT1}, s{sT1}, {8*896}
    s_mul_i32 s{sT0}, s{sT0}, 112
    s_add_u32 s{sT1}, s{sT1}, s{sT0}
    v_mul_u32_u24 v{uA+2}, {8*896}, v{uA}
    v_lshl_add_u32 v{uA+2}, v{uA+1}, 2, v{uA+2}
    v_add_u32 v{uA+2}, s{sT1}, v{uA+2}
    v_cmp_le_u32 vcc, 56, v{vL}
    v_subrev_u32 v{uA+3}, {3*896}, v{uA+2}
    s_lshl_b32 s{sT0}, s{sT0}, 2
    v_cndmask_b32 v{uA+2}, v{uA+2}, v{uA+4}, vcc
    v_cndmask_b32 v{uA+3}, v{uA+3}, v{uA+4}, vcc
    v_lshl_add_u32 v{uA+5}, v{uA+1}, 4, s{sT0}
    s_lshl_b32 s{sT0}, s2, 3
    s_add_u32 s{sT0}, s{sT0}, s{sTMP}
    s_mul_i32 s{sT0}, s{sT0}, 896
    v_add_u32 v{t}, s{sT0}, v{vLB}
    v_cndmask_b32 v{t}, v{t}, v{uA+4}, vcc
    s_mov_b32 s{sT1}, {4*896}
    """)
    a.vmem(f"buffer_load_dwordx4 {vr(uW,4)}, v{uA+5}, {sr(R_SH,4)}, 0 offen", "UK")
    for i in range(3):
        a.vmem(f"buffer_load_dword v{uK+i}, v{uA+3}, {sr(R_K,4)}, 0 offen offset:{896*i}", "UK")
    for i in range(8):
        a.vmem(f"buffer_load_dword v{uK+3+i}, v{uA+2}, {sr(R_K,4)}, {'0' if i<4 else 's%d'%sT1} offen offset:{896*(i&3)}", "UK")
    for i in range(8):
        a.vmem(f"buffer_load_dword v{uV+i}, v{uA+2}, {sr(R_V,4)}, {'0' if i<4 else 's%d'%sT1} offen offset:{896*(i&3)}", "UK")
    for i in range(2):
        a.vmem(f"buffer_load_dwordx4 {vr(uX+4*i,4)}, v{t}, {sr(R_X,4)}, 0 offen offset:{896*i}", "UX")
    if 1 not in GDMA:
        dma(a, 1)
    a.vm_wait("A0")
    if BPRIO:
        a(f"s_setprio {BPRIO}")
    EARLY = int(os.environ.get("EARLY", 1))
    a.stamp()
    a(f"s_lshl_b32 s{sT0}, s{sCQ}, 12")
    tagl = lambda: a.vmem(f"buffer_load_dword v{vONE}, v{vZ}, {sr(R_DBG,4)}, s{sT0} offen sc1", "TAG")

    def chunk_kv():
        a.vm_wait("UK")
        for r in range(11):
            a(f"v_lshlrev_b32 v{uKU+2*r}, 16, v{uK+r}")
            a(f"v_and_b32 v{uKU+2*r+1}, 0xffff0000, v{uK+r}")
        for h in range(2):
            a(f"v_lshlrev_b32 v{uWU+0+h}, 16, v{uW+2*h}")
            a(f"v_and_b32 v{uWU+2+h}, 0xffff0000, v{uW+2*h}")
            a(f"v_lshlrev_b32 v{uWU+4+h}, 16, v{uW+2*h+1}")
            a(f"v_and_b32 v{uWU+6+h}, 0xffff0000, v{uW+2*h+1}")
        w = lambda j: vr(uWU + 2 * j, 2)
        for r in range(8):
            ac = vr(uAC + 2 * r, 2)
            a(f"v_pk_mul_f32 {ac}, {vr(uKU+2*r,2)}, {w(3)}")
            a(f"v_pk_fma_f32 {ac}, {vr(uKU+2*(r+1),2)}, {w(2)}, {ac}")
            a(f"v_pk_fma_f32 {ac}, {vr(uKU+2*(r+2),2)}, {w(1)}, {ac}")
            a(f"v_pk_fma_f32 {ac}, {vr(uKU+2*(r+3),2)}, {w(0)}, {ac}")
            a(f"v_cvt_pk_bf16_f32 v{uAC+2*r+1}, v{uAC+2*r}, v{uAC+2*r+1}")
            a(f"v_lshlrev_b32 v{uVU}, 16, v{uV+r}")
            a(f"v_and_b32 v{uVU+1}, 0xffff0000, v{uV+r}")
            a(f"v_lshlrev_b32 v{uAC+2*r}, 16, v{uAC+2*r+1}")
            a(f"v_and_b32 v{uAC+2*r+1}, 0xffff0000, v{uAC+2*r+1}")
            a(f"v_pk_mul_f32 {ac}, {ac}, {vr(uVU,2)}")
        for h in range(2):
            for q in range(4):
                a(f"v_cvt_pk_bf16_f32 v{uO+4*h+q}, v{uAC+2*(7-2*q)+h}, v{uAC+2*(6-2*q)+h}")
        a(f"""
        v_lshlrev_b32 v{uA+2}, 8, v{uA+1}
        v_lshlrev_b32 v{uA+3}, 4, v{uA}
        v_sub_u32 v{uA+2}, v{uA+2}, v{uA+3}
        s_lshl_b32 s{sT0}, s{sCQ}, 5
        s_sub_u32 s{sT0}, {USCR + 7*16}, s{sT0}
        v_add_u32 v{uA+2}, s{sT0}, v{uA+2}
        s_mov_b32 exec_hi, 0xffffff
        ds_write_b128 v{uA+2}, {vr(uO,4)}
        ds_write_b128 v{uA+2}, {vr(uO+4,4)} offset:128
        s_mov_b64 exec, -1
        """)

    def tag_block():
        L, Lok, Lsk = newlabel("TB"), newlabel("TBOK"), newlabel("TBSK")
        a.vm_wait("TAG")
        a(f"s_cmp_lg_u32 s{sCQ}, 0")
        a(f"s_cbranch_scc1 {Lsk}")
        a(f"s_mov_b32 s{sSP}, 0")
        a.label(L)
        a(f"""
        v_readfirstlane_b32 s{sSP+1}, v{vONE}
        s_add_u32 s{sSP}, s{sSP}, 1
        s_cmp_gt_u32 s{sSP}, 0x4000
        s_cbranch_scc1 {Lok}
        s_cmp_lg_u32 s{sSP+1}, 0
        s_cbranch_scc1 {Lok}
        s_sleep 4
        buffer_load_dword v{vONE}, v{vZ}, {sr(R_DBG,4)}, 0 offen sc1
        s_waitcnt vmcnt(0)
        s_branch {L}
        """)
        a.label(Lok)
        a(f"v_mov_b32 v{t}, {USCR+8192}")
        a(f"ds_write_b32 v{t}, v{vONE}")
        a.label(Lsk)

    def chunk_store_stats():
        if not EARLY:
            a(f"v_mov_b32 v{t}, {USCR+8192}")
            a(f"ds_read_b32 v{vONE}, v{t}")
        a(f"""
        s_mul_i32 s{sT0}, s{sCQ}, 1792
        s_add_u32 s{sT0}, s{sT0}, {USCR}
        v_add_u32 v{uA+2}, s{sT0}, v{vLB}
        ds_read_b128 {vr(uO,4)}, v{uA+2}
        ds_read_b128 {vr(uO+4,4)}, v{uA+2} offset:896
        v_lshrrev_b32 v{uA+2}, 3, v{vL}
        v_lshlrev_b32 v{uA+2}, 12, v{uA+2}
        v_and_b32 v{uA+3}, 7, v{vL}
        v_lshl_add_u32 v{uA+2}, v{uA+3}, 4, v{uA+2}
        s_and_b32 s{sT0}, s2, 7
        s_mul_i32 s{sT0}, s{sT0}, 56
        s_mul_i32 s{sT1}, s{sCQ}, 14
        s_add_u32 s{sT0}, s{sT0}, s{sT1}
        s_lshl_b32 s{sT0}, s{sT0}, 12
        s_lshr_b32 s{sT1}, s2, 3
        s_lshl_b32 s{sT1}, s{sT1}, 7
        s_sub_u32 s{sT0}, s{sT0}, s{sT1}
        s_add_u32 s{sT0}, s{sT0}, {WS_KVR + 3968}
        s_add_u32 s{sT1}, s{sT0}, {7*4096}
        s_waitcnt lgkmcnt(0)
        s_mov_b32 exec_hi, 0xffffff
        """)
        a.vmem(f"buffer_store_dwordx4 {vr(uO,4)}, v{uA+2}, {sr(R_WS,4)}, s{sT0} offen sc1", "US")
        a.vmem(f"buffer_store_dwordx4 {vr(uO+4,4)}, v{uA+2}, {sr(R_WS,4)}, s{sT1} offen sc1", "US")
        a("s_mov_b64 exec, -1")
        a.vm_wait("UX")
        for i in range(4):
            a(f"v_mov_b32 v{uS+i}, 0")
        a(f"v_mov_b32 v{uS+4}, 0x3f803f80")
        for i in range(4):
            for r in range(2):
                a(f"v_dot2c_f32_bf16 v{uS+2*r}, v{uX+4*r+i}, v{uS+4}")
                a(f"v_dot2c_f32_bf16 v{uS+2*r+1}, v{uX+4*r+i}, v{uX+4*r+i}")
        a("s_nop 2")
        for mode in ("quad_perm:[1,0,3,2]", "quad_perm:[2,3,0,1]", "row_half_mirror", "row_mirror"):
            for i in range(4):
                a(f"v_add_f32_dpp v{uS+i}, v{uS+i}, v{uS+i} {mode} row_mask:0xf bank_mask:0xf")
        for sw in ("v_permlane16_swap_b32", "v_permlane32_swap_b32"):
            for i in range(4):
                a(f"v_mov_b32 v{uS+4+i}, v{uS+i}")
            a("s_nop 1")
            for i in range(4):
                a(f"{sw} v{uS+i}, v{uS+4+i}")
            a("s_nop 1")
            for i in range(4):
                a(f"v_add_f32 v{uS+i}, v{uS+i}, v{uS+4+i}")
        a(f"s_mov_b32 s{sT0}, {f32bits(1.0/448.0)}")
        a(f"s_mov_b32 s{sT1}, {f32bits(1e-5)}")
        for r in range(2):
            m, q = uS + 2 * r, uS + 2 * r + 1
            a(f"""
            v_mul_f32 v{m}, s{sT0}, v{m}
            v_mul_f32 v{q}, s{sT0}, v{q}
            v_fma_f32 v{q}, -v{m}, v{m}, v{q}
            v_max_f32 v{q}, 0, v{q}
            v_cvt_pk_bf16_f32 v{q}, v{m}, v{q}
            v_lshlrev_b32 v{m}, 16, v{q}
            v_and_b32 v{q}, 0xffff0000, v{q}
            v_add_f32 v{q}, s{sT1}, v{q}
            v_cvt_pk_bf16_f32 v{q}, v{q}, v{q}
            v_and_b32 v{q}, 0xffff0000, v{q}
            v_sqrt_f32 v{q}, v{q}
            s_nop 0
            v_cvt_pk_bf16_f32 v{q}, v{q}, v{q}
            v_and_b32 v{q}, 0xffff0000, v{q}
            v_rcp_f32 v{q}, v{q}
            """)
        a(f"""
        s_lshl_b32 s{sT0}, s2, 2
        s_add_u32 s{sT0}, s{sT0}, s{sCQ}
        s_lshl_b32 s{sT0}, s{sT0}, 4
        s_add_u32 s{sT0}, s{sT0}, {WS_STATS}
        s_mov_b64 exec, 1
        """)
        a.vmem(f"buffer_store_dwordx4 {vr(uS,4)}, v{vZ}, {sr(R_WS,4)}, s{sT0} offen sc1", "US")
        a("s_mov_b64 exec, -1")

    def chunk_conv_setup():
        c = t
        a(f"""
        s_lshl_b32 s{sCH}, s2, 1
        s_add_u32 s{sCH}, s{sCH}, s{sCHL}
        s_mul_i32 s{sUB}, s{sCHL}, {8*CV_UP}
        s_add_u32 s{sUB}, s{sUB}, {CV_U}
        s_mul_i32 s{sAB}, s{sCHL}, {CV_A[1]}
        s_lshl_b32 s{sT0}, s{sCH}, 12
        s_add_u32 s{R_H}, s{S_SSMK}, s{sT0}
        s_addc_u32 s{R_H+1}, s{S_SSMK+1}, 0
        s_and_b32 s{R_H+1}, s{R_H+1}, 0xffff
        s_mov_b32 s{R_H+2}, 4096
        s_mov_b32 s{R_H+3}, 0x20000
        s_lshl_b32 s{sT1}, s2, 2
        s_load_dword s{sD}, {sr(S_SSMD,2)}, s{sT1}
        s_lshl_b32 s{sT1}, s{sHF}, 11
        v_add_u32 v{c+1}, s{sT1}, v{vLB}
        v_subrev_u32 v{c+2}, 64, v{vLB}
        v_subrev_u32 v{c+3}, 48, v{vLB}
        s_add_u32 s{sT0}, s{sT0}, {WS_KVR}
        v_add_u32 v{vKVA}, s{sT0}, v{c+1}
        """)
        a.vmem(f"buffer_load_dwordx4 {vr(vD,4)}, v{c+1}, {sr(R_H,4)}, 0 offen", "D")
        a.vmem(f"buffer_load_dwordx4 {vr(vD+4,4)}, v{c+1}, {sr(R_H,4)}, 0 offen offset:16", "D")
        a.vmem(f"buffer_load_dwordx4 {vr(vD+8,4)}, v{c+1}, {sr(R_H,4)}, 0 offen offset:1024", "D")
        a.vmem(f"buffer_load_dwordx4 {vr(vD+12,4)}, v{c+1}, {sr(R_H,4)}, 0 offen offset:1040", "D")
        a.vmem(f"buffer_load_dwordx4 {vr(vD+16,4)}, v{c+2}, {sr(R_H,4)}, 0 offen", "D")
        a.vmem(f"buffer_load_dwordx4 {vr(vD+20,4)}, v{c+3}, {sr(R_H,4)}, 0 offen", "D")
        a(f"""
        v_add_u32 v{vWM}, s{sAB}, v{c+1}
        v_add_u32 v{vWX}, s{sAB}, v{vLB}
        v_mov_b32 v{vBLD+36}, 0
        v_mov_b32 v{vBLD+37}, 0
        v_mov_b32 v{vBLD+38}, 0
        v_mov_b32 v{vBLD+39}, 0
        v_lshrrev_b32 v{c+4}, 4, v{vL}
        s_lshl_b32 s{sT0}, s{sHF}, 2
        v_add_u32 v{vWZ}, s{sT0}, v{c+4}
        v_mul_u32_u24 v{vWZ}, {CV_UP}, v{vWZ}
        v_and_b32 v{c}, 15, v{vL}
        v_lshl_add_u32 v{vWZ}, v{c}, 4, v{vWZ}
        v_add_u32 v{vWZ}, s{sUB}, v{vWZ}
        v_and_b32 v{vWP}, 7, v{vL}
        v_xor_b32 v{vWP}, 4, v{vWP}
        v_mul_u32_u24 v{vWP}, {CV_UP}, v{vWP}
        v_lshrrev_b32 v{c+5}, 3, v{vL}
        v_lshlrev_b32 v{c+5}, 4, v{c+5}
        v_sub_u32 v{vWP}, v{vWP}, v{c+5}
        s_lshl_b32 s{sT0}, s{sHF}, 8
        s_sub_u32 s{sT0}, s{sUB}, s{sT0}
        s_add_u32 s{sT0}, s{sT0}, {(47-8)*16}
        v_add_u32 v{vWP}, s{sT0}, v{vWP}
        v_mul_u32_u24 v{vBA}, {CV_UP}, v{c+4}
        v_lshl_add_u32 v{vBA}, v{c}, 4, v{vBA}
        v_add_u32 v{vBA}, s{sUB}, v{vBA}
        v_sub_u32 v{vKA}, 3, v{c+4}
        v_mul_u32_u24 v{vKA}, {CV_UP}, v{vKA}
        v_lshl_add_u32 v{vKA}, v{c}, 4, v{vKA}
        v_add_u32 v{vKA}, s{sUB}, v{vKA}
        v_lshlrev_b32 v{vTA}, 7, v{c}
        v_lshl_add_u32 v{vTA}, v{c+4}, 4, v{vTA}
        v_lshrrev_b32 v{c}, 2, v{c}
        v_add_u32 v{c}, v{c}, v{c+4}
        v_lshlrev_b32 v{c}, 4, v{c}
        v_add_u32 v{c}, s{sAB}, v{c}
        v_and_b32 v{c+4}, 3, v{vL}
        v_mul_u32_u24 v{vAA}, {CV_ST}, v{c+4}
        v_add_u32 v{vAA}, v{vAA}, v{c}
        s_lshl_b32 s{sT0}, s{sHF}, 12
        s_add_u32 s{sT1}, s{sT0}, s{sAB}
        v_add_u32 v{vEXW}, s{sT1}, v{vLB}
        s_xor_b32 s{sT0}, s{sT0}, 4096
        s_add_u32 s{sT1}, s{sT0}, s{sAB}
        v_add_u32 v{vEXR}, s{sT1}, v{vLB}
        s_lshl_b32 s{sT0}, s{sCHL}, 5
        s_add_u32 s{sT0}, s{sT0}, {L_FLAG}
        v_mov_b32 v{vFL}, s{sT0}
        s_lshl_b32 s{sT0}, s{sRB}, 4
        v_add_u32 v{c+2}, s{sT0}, v{vL}
        s_mul_i32 s{sT1}, s2, 2341
        s_lshr_b32 s{sT1}, s{sT1}, 16
        s_sub_u32 s{sT1}, s{sT1}, 128
        v_lshl_add_u32 v{c+3}, v{vL}, 3, s{sT1}
        v_cmp_le_u32 vcc, 16, v{vL}
        s_add_u32 s{sT1}, s{sCB}, {224 - 48*14}
        v_mul_u32_u24 v{c}, 14, v{vL}
        v_cndmask_b32 v{c+2}, v{c+2}, v{c+3}, vcc
        v_add_u32 v{c+3}, s{sT1}, v{c}
        v_cmp_le_u32 vcc, 48, v{vL}
        s_lshl_b32 s{sT1}, s{sE}, 3
        s_sub_u32 s{sT1}, s{sT1}, 50
        v_cndmask_b32 v{c+2}, v{c+2}, v{c+3}, vcc
        v_add_u32 v{c+3}, s{sT1}, v{vL}
        v_cmp_le_u32 vcc, 50, v{vL}
        v_mov_b32 v{c}, s{sT0}
        s_lshl_b32 s{sT1}, s{sCQ}, 24
        v_cndmask_b32 v{c+2}, v{c+2}, v{c+3}, vcc
        v_cmp_le_u32 vcc, 58, v{vL}
        s_add_u32 s{sT1}, s{sT1}, {WS_FLU}
        s_nop 0
        v_cndmask_b32 v{c+2}, v{c+2}, v{c}, vcc
        v_lshl_add_u32 v{vPA}, v{c+2}, 7, s{sT1}
        """)

    def signal():
        L = newlabel("NOSIG")
        a(f"""
        s_cmp_lg_u32 s{sCQ}, 0
        s_cbranch_scc1 {L}
        s_lshl_b32 s{sT0}, s2, 7
        s_add_u32 s{sT0}, s{sT0}, {WS_FLU}
        s_mov_b64 exec, 1
        buffer_store_dword v{vONE}, v{vZ}, {sr(R_WS,4)}, s{sT0} offen sc1
        s_mov_b64 exec, -1
        """)
        a.label(L)

    def chunk_build():
        a.vm_wait("D")
        for rnd in range(3):
            d, b = vD + 8 * rnd, vBLD + 12 * rnd
            for i in range(4):
                a(f"v_mov_b32 v{b+i}, v{d+1+i}")
            for i in range(4):
                a(f"v_alignbit_b32 v{b+4+i}, v{d+i+1}, v{d+i}, 16")
            for i in range(4):
                a(f"v_alignbit_b32 v{b+8+i}, v{d+i+2}, v{d+i+1}, 16")

    def poll_block():
        L = newlabel("NOPOLL")
        a.vm_wait("P0")
        if PROF and os.environ.get("VCCD"):
            a(f"v_cmp_ne_u32 vcc, v{vONE}, v{vPOLL}")
            a("s_nop 4")
            a(f"s_add_u32 s{72+2*a.nst}, s72, vcc_lo")
            a.nst += 1
            a(f"s_add_u32 s{72+2*a.nst}, s72, vcc_hi")
            a.nst += 1
        a(f"s_cmp_lg_u32 s{sCQ}, 0")
        a(f"s_cbranch_scc1 {L}")
        gpoll(a, vPA, "BP", True)
        a.label(L)

    if EARLY:
        chunk_kv()
        a("s_waitcnt lgkmcnt(0)")
    a("s_barrier")
    a(f"s_lshl_b32 s{sT0}, s{sCQ}, 12")
    tagl()
    if 2 not in GDMA:
        dma(a, 2)
    for st in range(7):
        if EARLY:
            if st == 0:
                chunk_store_stats()
                tag_block()
            if st == 1:
                a(f"v_mov_b32 v{t}, {USCR+8192}")
                a(f"ds_read_b32 v{vONE}, v{t}")
                chunk_conv_setup()
        else:
            if st == 0:
                chunk_kv()
                tag_block()
            if st == 1:
                chunk_store_stats()
            if st == 2:
                chunk_conv_setup()
        if st == SIGST + 1:
            signal()
        if st == 4:
            chunk_build()
        if st == 6:
            a.vmem(f"buffer_load_dwordx4 {vr(vU,4)}, v{vKVA}, {sr(R_WS,4)}, 0 offen sc1", "U")
            a.vmem(f"buffer_load_dwordx4 {vr(vU+4,4)}, v{vKVA}, {sr(R_WS,4)}, 0 offen offset:1024 sc1", "U")
        a("s_waitcnt lgkmcnt(0)")
        if st + 1 < 7:
            a.vm_wait(f"A{st+1}")
        if st == SIGST:
            a.vm_wait("US")
        if st == 5:
            if P0ST == 5:
                a.vmem(f"buffer_load_dword v{vPOLL}, v{vPA}, {sr(R_WS,4)}, 0 offen sc1", "P0")
            poll_block()
        a("s_barrier")
        if st == 4 and P0ST == 4:
            a.vmem(f"buffer_load_dword v{vPOLL}, v{vPA}, {sr(R_WS,4)}, 0 offen sc1", "P0")
        if st + 3 < 7 and st + 3 not in GDMA:
            dma(a, st + 3)
        if st in (3, 6) or STM:
            a.stamp()
    if os.environ.get("CPRIO"):
        a(f"s_setprio {os.environ['CPRIO']}")
    for rnd in range(3):
        d, b = vD + 8 * rnd, vBLD + 12 * rnd
        if rnd == 2:
            a("s_mov_b64 exec, 15")
        srcs = [b + 4, b, b + 8, d + 2]
        for cc in range(4):
            a(f"ds_write_b128 v{vWX if rnd == 2 else vWM}, {vr(srcs[cc],4)} offset:{cc*CV_ST + (0 if rnd == 2 else 64 + 1024*rnd)}")
        if rnd == 2:
            a("s_mov_b64 exec, -1")
    a(f"ds_write_b128 v{vWZ}, {vr(vBLD+36,4)}")
    a.vm_wait("U")
    a(f"ds_write_b128 v{vWP}, {vr(vU,4)} offset:128")
    a(f"ds_write_b128 v{vWP}, {vr(vU+4,4)}")
    a("s_waitcnt lgkmcnt(0)")
    a(f"s_cmp_eq_u32 s{sHF}, 1")
    a("s_cbranch_scc1 C_HALF1")
    vF, vB, vAC = 32, 68, 100
    nst_save = a.nst
    for half in range(2):
        if half:
            a.label("C_HALF1")
            a.nst = nst_save
        own, oth = half, half ^ 1
        a(f"ds_write_b32 v{vFL}, v{vONE} offset:{4*own}")
        lds_wait_flag(a, vFL, 4 * oth, t, "CR")
        a.stamp()

        def F(psi):
            return vF + 6 * (psi % 6)

        def rdA(psi):
            off = 4 * psi * 16
            a(f"ds_read_b128 {vr(F(psi),4)}, v{vAA} offset:{off}")
            a(f"ds_read_b64 {vr(F(psi)+4,2)}, v{vAA} offset:{off+16}")
            return 2

        def nus(dl):
            return (0, 1) if dl < 16 else (1,)

        def rdB(dl):
            n = 0
            for kc in range(2):
                for nu in nus(dl):
                    a(f"ds_read_b128 {vr(vB+16*(dl&1)+8*kc+4*nu,4)}, v{vBA} offset:{kc*4*CV_UP+(16+16*nu-dl)*16}")
                    n += 1
            return n

        dls = list(range(0, 12)) if half == 0 else list(range(12, 32))
        if os.environ.get("NOCONV"):
            dls = dls[:2]
        if half:
            rdA(2 * dls[0] - 1)
        rdA(2 * dls[0]); rdA(2 * dls[0] + 1); rdB(dls[0])
        inited = set()
        for dl in dls:
            n = 0
            if dl != dls[-1]:
                n += rdA(2 * dl + 2); n += rdA(2 * dl + 3); n += rdB(dl + 1)
            a(f"s_waitcnt lgkmcnt({n})")
            for kc in range(2):
                for p in range(2):
                    psi = 2 * dl + p - kc
                    if psi < 0:
                        continue
                    for par in range(2):
                        for nu in nus(dl):
                            acc = vAC + 16 * nu + 8 * p + 4 * par
                            csrc = vr(acc, 4) if acc in inited else "0"
                            inited.add(acc)
                            a(f"v_mfma_f32_16x16x32_bf16 {vr(acc,4)}, {vr(F(psi)+2*par,4)}, {vr(vB+16*(dl&1)+8*kc+4*nu,4)}, {csrc}")
        a.stamp()
        a(f"ds_write_b32 v{vFL}, v{vONE} offset:{8+4*own}")
        a(f"ds_read_b128 {vr(vU,4)}, v{vKA} offset:{(16+16*own)*16}")
        a(f"ds_read_b128 {vr(vU+4,4)}, v{vKA} offset:{4*CV_UP+(16+16*own)*16}")
        a(f"""
        s_lshl_b32 s{sT0}, s{sCH}, 12
        s_add_u32 s{sT0}, s{sT0}, {WS_T + own*2048}
        s_lshl_b32 s{sT1}, s{sCHL}, 4
        s_lshr_b32 s{sD}, s{sD}, s{sT1}
        s_lshl_b32 s{sD}, s{sD}, 16
        s_lshl_b32 s{sTMP}, s{sCH}, 7
        s_add_u32 s{sTMP}, s{sTMP}, {WS_FLT + own*448*128}
        """)
        lds_wait_flag(a, vFL, 8 + 4 * oth, t, "CD")
        for q in range(4):
            a(f"ds_write_b128 v{vEXW}, {vr(vAC+16*oth+4*q,4)} offset:{1024*q}")
        a("s_waitcnt lgkmcnt(0)")
        a(f"ds_write_b32 v{vFL}, v{vONE} offset:{16+4*own}")
        vK = vF
        for p in range(2):
            for dq in range(4):
                a(f"v_lshlrev_b32 v{vK+8*p+7-2*dq}, 16, v{vU+4*p+dq}")
                a(f"v_and_b32 v{vK+8*p+6-2*dq}, 0xffff0000, v{vU+4*p+dq}")
        for i in range(16):
            a(f"v_mul_f32 v{vK+i}, s{sD}, v{vK+i}")
        for i in range(8):
            round_pair(a, vK + 2 * i, vK + 2 * i + 1)
        lds_wait_flag(a, vFL, 16 + 4 * oth, t, "CX")
        vR = vB
        for q in range(4):
            a(f"ds_read_b128 {vr(vR+4*q,4)}, v{vEXR} offset:{1024*q}")
        a("s_waitcnt lgkmcnt(0)")
        y = vAC + 16 * own
        for i in range(8):
            a(f"v_pk_add_f32 {vr(y+2*i,2)}, {vr(y+2*i,2)}, {vr(vR+2*i,2)}")
        for i in range(8):
            round_pair(a, y + 2 * i, y + 2 * i + 1)
        for i in range(8):
            a(f"v_pk_add_f32 {vr(y+2*i,2)}, {vr(y+2*i,2)}, {vr(vK+2*i,2)}")
        for i in range(8):
            a(f"v_cvt_pk_bf16_f32 v{vB+16+i}, v{y+2*i}, v{y+2*i+1}")
        a(f"buffer_store_dwordx4 {vr(vB+16,4)}, v{vTA}, {sr(R_WS,4)}, s{sT0} offen sc1")
        a(f"buffer_store_dwordx4 {vr(vB+20,4)}, v{vTA}, {sr(R_WS,4)}, s{sT0} offen offset:64 sc1")
        a.stamp()
        if half == 0:
            a("s_branch B_FINAL")
    a.label("B_FINAL")
    b_final(a)


def b_final(a):
    t = 12
    vXO, vF_, vTG, vTW, vTR, vRR, vST2 = 7, 8, 9, 10, 11, 25, 26
    sT2 = sW2
    srd(a, R_O, S_OUT, SZ_X)
    a(f"""
    s_lshl_b32 s{sT0}, s{sE}, 6
    s_lshl_b32 s{sT1}, s{sCHL}, 5
    s_add_u32 s{sT0}, s{sT0}, s{sT1}
    v_and_b32 v{t}, 31, v{vL}
    v_add_u32 v{t+1}, s{sT0}, v{t}
    v_lshlrev_b32 v{t+2}, 3, v{t+1}
    v_add_u32 v{t+2}, {WS_STATS}, v{t+2}
    v_mul_u32_u24 v{vXO}, 896, v{t+1}
    v_lshrrev_b32 v{t+3}, 5, v{vL}
    v_lshl_add_u32 v{vXO}, v{t+3}, 3, v{vXO}
    s_lshl_b32 s{sXO}, s{sG2C}, 6
    s_lshl_b32 s{sT1}, s{sHF}, 5
    s_add_u32 s{sXO}, s{sXO}, s{sT1}
    s_lshl_b32 s{sT1}, s{sXO}, 1
    v_add_u32 v{vXO}, s{sT1}, v{vXO}
    s_lshl_b32 s{sWO}, s{sT0}, 1
    s_add_u32 s{sWO}, s{sWO}, {WS_T}
    s_add_u32 s{sT2}, s{sWO}, {16*4096}
    s_lshr_b32 s{sT0}, s{sE}, 4
    s_mul_i32 s{sT0}, s{sT0}, 448
    s_add_u32 s{sT0}, s{sT0}, s{sXO}
    s_lshl_b32 s{sT0}, s{sT0}, 7
    s_add_u32 s{sT0}, s{sT0}, {WS_FLT}
    v_lshl_add_u32 v{vF_}, v{t}, 7, s{sT0}
    v_lshrrev_b32 v{t}, 2, v{vL}
    v_add_u32 v{t}, s{sXO}, v{t}
    v_lshlrev_b32 v{t}, 12, v{t}
    v_and_b32 v{t+1}, 3, v{vL}
    v_lshl_add_u32 v{vTG}, v{t+1}, 4, v{t}
    s_lshl_b32 s{sT1}, s{sHF}, 11
    s_add_u32 s{sT1}, s{sT1}, s{sAB}
    s_add_u32 s{sT1}, s{sT1}, 8192
    v_add_u32 v{vTW}, s{sT1}, v{vLB}
    v_bfe_u32 v{t}, v{vL}, 2, 2
    v_lshl_add_u32 v{t}, v{t+3}, 2, v{t}
    v_lshlrev_b32 v{t}, 6, v{t}
    v_bfe_u32 v{t+4}, v{vL}, 4, 1
    v_lshl_add_u32 v{t}, v{t+4}, 5, v{t}
    v_lshl_add_u32 v{t}, v{t+1}, 3, v{t}
    v_add_u32 v{vTR}, s{sT1}, v{t}
    s_lshl_b32 s{sT1}, s{sCQ}, 14
    s_add_u32 s{sT1}, s{sT1}, {WENT[0]}
    v_add_u32 v{vRR}, s{sT1}, v{vLB}
    v_lshlrev_b32 v{t+4}, 2, v{t+1}
    v_add_u32 v{t+4}, {L_FLAG + 64}, v{t+4}
    s_waitcnt vmcnt(0)
    s_mov_b64 exec, 1
    buffer_store_dword v{vONE}, v{vZ}, {sr(R_WS,4)}, s{sTMP} offen sc1
    s_mov_b64 exec, -1
    """)
    a.stamp()
    vXV, vTT, vTD = 28, 36, 44
    vX, vXN, vP, vE, vS = 52, 68, 84, 148, 164
    for i in range(4):
        a(f"buffer_load_dwordx2 {vr(vXV+2*i,2)}, v{vXO}, {sr(R_X,4)}, 0 offen offset:{16*i}")
    a(f"buffer_load_dwordx2 {vr(vST2,2)}, v{t+2}, {sr(R_WS,4)}, 0 offen sc1")
    lds_wait_flag(a, t + 4, 16, t + 3, "TG", sleep=True)
    gpoll(a, vF_, "BT", False, 8)
    a(f"buffer_load_dwordx4 {vr(vTT,4)}, v{vTG}, {sr(R_WS,4)}, s{sWO} offen sc1")
    a(f"buffer_load_dwordx4 {vr(vTT+4,4)}, v{vTG}, {sr(R_WS,4)}, s{sT2} offen sc1")
    a.stamp()
    for i in range(8):
        a(f"v_lshlrev_b32 v{vX+2*i}, 16, v{vXV+i}")
        a(f"v_and_b32 v{vX+2*i+1}, 0xffff0000, v{vXV+i}")
    for i in range(16):
        a(f"v_sub_f32 v{vXN+i}, v{vX+i}, v{vST2}")
    for i in range(8):
        round_pair(a, vXN + 2 * i, vXN + 2 * i + 1)
    for i in range(16):
        a(f"v_mul_f32 v{vXN+i}, v{vXN+i}, v{vST2+1}")
    for i in range(8):
        round_pair(a, vXN + 2 * i, vXN + 2 * i + 1)
    a("s_waitcnt vmcnt(0)")
    a(f"ds_write_b128 v{vTW}, {vr(vTT,4)}")
    a(f"ds_write_b128 v{vTW}, {vr(vTT+4,4)} offset:1024")
    a("s_waitcnt lgkmcnt(0)")
    for i in range(4):
        a(f"ds_read_b64_tr_b16 {vr(vTD+2*i,2)}, v{vTR} offset:{512*i}")
    a("s_waitcnt lgkmcnt(0)")
    for i in range(8):
        a(f"v_lshlrev_b32 v{vS+2*i}, 16, v{vTD+i}")
        a(f"v_and_b32 v{vS+2*i+1}, 0xffff0000, v{vTD+i}")
    for i in range(8):
        a(f"v_pk_mul_f32 {vr(vS+2*i,2)}, {vr(vS+2*i,2)}, {vr(vXN+2*i,2)}")
    for i in range(8):
        round_pair(a, vS + 2 * i, vS + 2 * i + 1)
    a(f"s_mov_b32 s{sW2}, {f32bits(-1.4426950408889634)}")
    a.stamp()
    lds_wait_flag(a, t + 4, 0, t + 3, "GR", sleep=True)
    a.stamp()
    for src in range(4):
        for q in range(4):
            a(f"ds_read_b128 {vr(vP+16*src+4*q,4)}, v{vRR} offset:{src*4096+q*1024}")
    a("s_waitcnt lgkmcnt(8)")
    for i in range(8):
        a(f"v_pk_add_f32 {vr(vP+2*i,2)}, {vr(vP+2*i,2)}, {vr(vP+16+2*i,2)}")
    a("s_waitcnt lgkmcnt(0)")
    for i in range(8):
        a(f"v_pk_add_f32 {vr(vP+32+2*i,2)}, {vr(vP+32+2*i,2)}, {vr(vP+48+2*i,2)}")
    for i in range(8):
        a(f"v_pk_add_f32 {vr(vP+2*i,2)}, {vr(vP+2*i,2)}, {vr(vP+32+2*i,2)}")
    for i in range(8):
        round_pair(a, vP + 2 * i, vP + 2 * i + 1)
    for i in range(16):
        a(f"v_mul_f32 v{vE+i}, s{sW2}, v{vP+i}")
    for i in range(16):
        a(f"v_exp_f32 v{vE+i}, v{vE+i}")
    for i in range(16):
        a(f"v_add_f32 v{vE+i}, 1.0, v{vE+i}")
    for i in range(16):
        a(f"v_rcp_f32 v{vE+i}, v{vE+i}")
    a("s_nop 0")
    for i in range(8):
        a(f"v_pk_mul_f32 {vr(vP+2*i,2)}, {vr(vP+2*i,2)}, {vr(vE+2*i,2)}")
    for i in range(8):
        round_pair(a, vP + 2 * i, vP + 2 * i + 1)
    for i in range(8):
        a(f"v_pk_mul_f32 {vr(vS+2*i,2)}, {vr(vS+2*i,2)}, {vr(vP+2*i,2)}")
    for i in range(8):
        round_pair(a, vS + 2 * i, vS + 2 * i + 1)
    for i in range(8):
        a(f"v_pk_add_f32 {vr(vS+2*i,2)}, {vr(vS+2*i,2)}, {vr(vX+2*i,2)}")
    for i in range(8):
        a(f"v_cvt_pk_bf16_f32 v{vTT+i}, v{vS+2*i}, v{vS+2*i+1}")
    for i in range(4):
        a(f"buffer_store_dwordx2 {vr(vTT+2*i,2)}, v{vXO}, {sr(R_O,4)}, 0 offen offset:{16*i}")
    if PROF:
        a("s_waitcnt vmcnt(0)")
    a.stamp()
    a.stamp_flush()
    a("s_endpgm")


def gen(a):
    a.lines.append(f".globl {KNAME}\n.p2align 8\n.type {KNAME},@function")
    a.label(KNAME)
    a("s_cmp_ge_u32 s2, 256")
    a("s_cbranch_scc1 K_END")
    if int(os.environ.get("REMAP", 1)):
        a("s_add_u32 s2, s2, 224")
        a("s_and_b32 s2, s2, 255")
    a.stamp()
    a("""
    s_load_dwordx16 s[16:31], s[0:1], 0
    s_load_dwordx8 s[32:39], s[0:1], 64
    s_load_dwordx2 s[40:41], s[0:1], 96
    v_lshrrev_b32 v1, 6, v0
    v_and_b32 v2, 63, v0
    s_nop 0
    v_readfirstlane_b32 s3, v1
    s_cmp_ge_u32 s2, 224
    s_cbranch_scc1 K_PREP
    """)
    wg_map(a)
    dma_setup(a, 12)
    a("s_cmp_ge_u32 s3, 4")
    a("s_cbranch_scc1 K_B")
    role_g(a)
    a.label("K_B")
    a.vm, a.nst = [], 1
    role_b(a)
    a.label("K_PREP")
    a.vm, a.nst = [], 1
    role_prep(a)
    a.label("K_END")
    a("s_endpgm")


def main():
    HEADER = open("cdna_kernels/" + NAME + ".s.ref").read().split("; Override launch")[0]
    a = Asm()
    gen(a)
    out = HEADER
    out += f"; @launch grid=(256,1,1) block=(512,1,1) lds={LDS_BYTES}\n"
    out += '.amdgcn_target "amdgcn-amd-amdhsa--gfx950"\n.text\n'
    out += a.text()
    out += '.section .rodata,"a"\n.p2align 6\n'
    out += descriptor(KNAME, 256, 102)
    path = sys.argv[1] if len(sys.argv) > 1 else "cdna_kernels/" + NAME + ".s"
    open(path, "w").write(out)


if __name__ == "__main__":
    main()
```

```python
import sys, os
from gen2 import (Asm, vr, sr, srd, round_pair, newlabel, f32bits, descriptor, NAME, KNAME, PROF,
                  S_X, S_K, S_V, S_SHK, S_SSMK, S_SSMD, S_WG, S_WU, S_WD, S_OUT, S_DBG, S_WS,
                  R_X, R_W, R_WS, R_DBG, R_A, R_B, SZ_X, SZ_W, SZ_SHK)
import gen12 as G12
from gen12 import (WS_H, WS_KVR, WS_T, WS_STATS, WS_CS, WS_FLU, WS_FLH, WS_FLT, WS_END, SLOT, LDS_BYTES, USCR,
                   CV_ST, CV_A, CV_U, CV_UP, role_prep, explode, vONE, vZ, vL, sSP, sT0, sT1, tag_issue)

STM = int(os.environ.get("STM", 0))
KVE = int(os.environ.get("KVE", 1))
PE = bool(int(os.environ.get("PE", 1)))
HFL = os.environ.get("HFL", " sc1")
BPRIO = int(os.environ.get("BPRIO", 2))
TGATE = int(os.environ.get("TGATE", 8))
P0ST = int(os.environ.get("P0ST", 5))
SIGST = int(os.environ.get("SIGST", 1))
WENT = [49152 + 16384 * i for i in range(7)]
L_FLAG = 45568
sRB, sCB, sE, sCQ = 4, 5, 6, 10
sXO, sWO, sM0X, sM0W, sTMP = 11, 12, 13, 14, 15
s2RB, s2CB, sCH, sUB, sAB, sD, sW2 = 18, 19, 20, 21, 22, 23, 28
sWB, sHF, sCHL, sHO, sG2C = 29, 68, 69, 70, 9
R_WD, R_O, R_H, R_W2 = R_A, R_B, 92, 88
vLB, vPOLL = 1, 21


MAP = int(os.environ.get("MAP", 0))
HPF = int(os.environ.get("HPF", 0))
MAXH = int(os.environ.get("MAXH", 4))


def wg_map(a):
    a(f"""
    s_and_b32 s{sT0}, s2, 7
    s_lshr_b32 s{sT1}, s2, 3
    s_mul_i32 s{sRB}, s{sT1}, 37
    s_lshr_b32 s{sRB}, s{sRB}, 8
    s_mul_i32 s{sCB}, s{sRB}, 7
    s_sub_u32 s{sCB}, s{sT1}, s{sCB}
    s_mov_b32 s{sXO}, s{sCB}
    """)
    if MAP == 2:
        a(f"""
        s_lshl_b32 s{sWO}, s{sT0}, 2
        s_add_u32 s{sWO}, s{sWO}, s{sRB}
        s_and_b32 s{sT1}, s{sRB}, 1
        s_mul_i32 s{sT1}, s{sT1}, 7
        s_add_u32 s{sCB}, s{sCB}, s{sT1}
        s_lshr_b32 s{sRB}, s{sRB}, 1
        s_lshl_b32 s{sT1}, s{sT0}, 1
        s_add_u32 s{sRB}, s{sRB}, s{sT1}
        """)
    else:
        if MAP == 1:
            a(f"""
            s_and_b32 s{sWO}, s{sT0}, 3
            s_lshl_b32 s{sWO}, s{sWO}, 3
            s_lshr_b32 s{sT1}, s{sT0}, 2
            s_lshl_b32 s{sT1}, s{sT1}, 2
            s_add_u32 s{sWO}, s{sWO}, s{sT1}
            s_add_u32 s{sWO}, s{sWO}, s{sRB}
            """)
        else:
            a(f"""
            s_lshl_b32 s{sWO}, s{sT0}, 2
            s_add_u32 s{sWO}, s{sWO}, s{sRB}
            """)
        a(f"""
        s_and_b32 s{sT1}, s{sT0}, 3
        s_lshl_b32 s{sT1}, s{sT1}, 2
        s_add_u32 s{sRB}, s{sRB}, s{sT1}
        s_lshr_b32 s{sT1}, s{sT0}, 2
        s_mul_i32 s{sT1}, s{sT1}, 7
        s_add_u32 s{sCB}, s{sCB}, s{sT1}
        """)
    a(f"""
    s_and_b32 s{sCQ}, s3, 3
    v_lshlrev_b32 v{vLB}, 4, v{vL}
    v_mov_b32 v{vZ}, 0
    """)


def lds_wait_flag(a, vaddr, off, vtmp, name, sleep=False):
    L, Lok = newlabel(name), newlabel(name + "OK")
    a(f"s_mov_b32 s{sSP}, 0")
    a.label(L)
    if sleep:
        a("s_sleep 1")
    a(f"""
    ds_read_b32 v{vtmp}, v{vaddr} offset:{off}
    s_add_u32 s{sSP}, s{sSP}, 1
    s_cmp_gt_u32 s{sSP}, 0x100000
    s_cbranch_scc1 {Lok}
    s_waitcnt lgkmcnt(0)
    v_cmp_eq_u32 vcc, v{vONE}, v{vtmp}
    s_nop 3
    s_cmp_eq_u64 vcc, exec
    s_cbranch_scc0 {L}
    """)
    a.label(Lok)
    a("s_waitcnt lgkmcnt(0)")


def gpoll(a, vaddr, name, first_loaded, sleep=8):
    L, Lok = newlabel(name), newlabel(name + "OK")
    a(f"s_mov_b32 s{sSP}, 0")
    if not first_loaded:
        a(f"buffer_load_dword v{vPOLL}, v{vaddr}, {sr(R_WS,4)}, 0 offen sc1")
        a("s_waitcnt vmcnt(0)")
    a.label(L)
    a(f"""
    v_cmp_eq_u32 vcc, v{vONE}, v{vPOLL}
    s_add_u32 s{sSP}, s{sSP}, 1
    s_cmp_gt_u32 s{sSP}, 0x10000
    s_cbranch_scc1 {Lok}
    s_cmp_eq_u64 vcc, exec
    s_cbranch_scc1 {Lok}
    s_sleep {sleep}
    buffer_load_dword v{vPOLL}, v{vaddr}, {sr(R_WS,4)}, 0 offen sc1
    s_waitcnt vmcnt(0)
    s_branch {L}
    """)
    a.label(Lok)


vXG0, vXG1, vWG = 246, 247, 248


def dma_setup(a, t):
    a(f"""
    v_lshrrev_b32 v{t}, 3, v{vL}
    v_lshrrev_b32 v{t+1}, 4, v{vL}
    v_and_b32 v{t+2}, 7, v{vL}
    s_lshl_b32 s{sT0}, s{sRB}, 7
    s_lshl_b32 s{sT1}, s{sCQ}, 5
    s_add_u32 s{sT0}, s{sT0}, s{sT1}
    v_add_u32 v{t}, s{sT0}, v{t}
    v_mul_u32_u24 v{t}, 896, v{t}
    v_xor_b32 v{t+3}, v{t+2}, v{t+1}
    v_lshl_add_u32 v{vXG0}, v{t+3}, 4, v{t}
    v_xor_b32 v{t+3}, 4, v{t+3}
    v_lshl_add_u32 v{vXG1}, v{t+3}, 4, v{t}
    v_add_u32 v{vXG1}, {8*896}, v{vXG1}
    s_lshr_b32 s{sCHL}, s{sCQ}, 1
    s_and_b32 s{sHF}, s{sCQ}, 1
    v_and_b32 v{t+2}, 15, v{vL}
    v_lshlrev_b32 v{t+3}, 2, v{t+1}
    v_xor_b32 v{t+2}, v{t+2}, v{t+3}
    s_lshl_b32 s{sT0}, s{sCHL}, 1
    v_xor_b32 v{t+2}, s{sT0}, v{t+2}
    s_lshl_b32 s{sT1}, s{sHF}, 5
    v_add_u32 v{t+3}, s{sT1}, v{t+1}
    v_mul_u32_u24 v{t+3}, 3584, v{t+3}
    v_lshl_add_u32 v{vWG}, v{t+2}, 4, v{t+3}
    s_lshl_b32 s{sT0}, s{sCB}, 8
    v_add_u32 v{vWG}, s{sT0}, v{vWG}
    s_lshl_b32 s{sM0X}, s{sCQ}, 12
    s_lshl_b32 s{sM0W}, s{sCQ}, 13
    s_add_u32 s{sM0W}, s{sM0W}, 16384
    s_mov_b32 s{sE}, s{sWO}
    s_mov_b32 s{sG2C}, s{sXO}
    s_waitcnt lgkmcnt(0)
    """)
    srd(a, R_X, S_X, SZ_X)
    a(f"""
    s_cmp_eq_u32 s{sCHL}, 0
    s_cselect_b32 s{R_W}, s{S_WG}, s{S_WU}
    s_cselect_b32 s{R_W+1}, s{S_WG+1}, s{S_WU+1}
    s_and_b32 s{R_W+1}, s{R_W+1}, 0xffff
    s_mov_b32 s{R_W+2}, {SZ_W}
    s_mov_b32 s{R_W+3}, 0x20000
    """)


def dma(a, st):
    slot = (st % 3) * SLOT
    for j in range(8):
        a(f"s_mov_b32 s{sWO}, {st*64*3584 + j*4*3584}")
        a(f"s_add_u32 m0, s{sM0W}, {slot+1024*j}")
        a("s_nop 0")
        a.vmem(f"buffer_load_dwordx4 v{vWG}, {sr(R_W,4)}, s{sWO} offen lds", f"A{st}")
        if j % 2 == 1:
            i = j // 2
            a(f"s_mov_b32 s{sXO}, {st*128 + (i//2)*16*896}")
            a(f"s_add_u32 m0, s{sM0X}, {slot+1024*i}")
            a("s_nop 0")
            a.vmem(f"buffer_load_dwordx4 v{vXG1 if i%2 else vXG0}, {sr(R_X,4)}, s{sXO} offen lds", f"A{st}")


GDMA = [int(c) for c in os.environ.get("GDMA", "0")]


def unit_g(a):
    R_K, R_V, R_SH = 76, 80, 84
    O = 64
    t = 12
    uA = 24 + O
    uK, uV, uW = 32 + O, 43 + O, 52 + O
    uKU, uWU, uAC, uVU, uO = 64 + O, 86 + O, 94 + O, 110 + O, 112 + O

    def loads():
        srd(a, R_K, S_K, SZ_X)
        srd(a, R_V, S_V, SZ_X)
        srd(a, R_SH, S_SHK, SZ_SHK)
        a(f"""
        v_cmp_le_u32 vcc, 28, v{vL}
        v_mov_b32 v{uA+4}, 0x7f000000
        s_and_b32 s{sT0}, s2, 7
        v_cndmask_b32 v{uA}, 0, 1, vcc
        v_mul_u32_u24 v{uA+1}, 28, v{uA}
        v_sub_u32 v{uA+1}, v{vL}, v{uA+1}
        s_and_b32 s{sT1}, s2, 0xf8
        s_lshl_b32 s{sTMP}, s{sCQ}, 1
        s_add_u32 s{sT1}, s{sT1}, s{sTMP}
        s_mul_i32 s{sT1}, s{sT1}, {8*896}
        s_mul_i32 s{sT0}, s{sT0}, 112
        s_add_u32 s{sT1}, s{sT1}, s{sT0}
        v_mul_u32_u24 v{uA+2}, {8*896}, v{uA}
        v_lshl_add_u32 v{uA+2}, v{uA+1}, 2, v{uA+2}
        v_add_u32 v{uA+2}, s{sT1}, v{uA+2}
        v_cmp_le_u32 vcc, 56, v{vL}
        v_subrev_u32 v{uA+3}, {3*896}, v{uA+2}
        s_lshl_b32 s{sT0}, s{sT0}, 2
        v_cndmask_b32 v{uA+2}, v{uA+2}, v{uA+4}, vcc
        v_cndmask_b32 v{uA+3}, v{uA+3}, v{uA+4}, vcc
        v_lshl_add_u32 v{uA+5}, v{uA+1}, 4, s{sT0}
        s_lshl_b32 s{sT0}, s2, 3
        s_add_u32 s{sT0}, s{sT0}, s{sTMP}
        s_mul_i32 s{sT0}, s{sT0}, 896
        v_add_u32 v{t}, s{sT0}, v{vLB}
        v_cndmask_b32 v{t}, v{t}, v{uA+4}, vcc
        s_mov_b32 s{sT1}, {4*896}
        """)
        a.vmem(f"buffer_load_dwordx4 {vr(uW,4)}, v{uA+5}, {sr(R_SH,4)}, 0 offen", "UK")
        for i in range(3):
            a.vmem(f"buffer_load_dword v{uK+i}, v{uA+3}, {sr(R_K,4)}, 0 offen offset:{896*i}", "UK")
        for i in range(8):
            a.vmem(f"buffer_load_dword v{uK+3+i}, v{uA+2}, {sr(R_K,4)}, {'0' if i<4 else 's%d'%sT1} offen offset:{896*(i&3)}", "UK")
        for i in range(8):
            a.vmem(f"buffer_load_dword v{uV+i}, v{uA+2}, {sr(R_V,4)}, {'0' if i<4 else 's%d'%sT1} offen offset:{896*(i&3)}", "UK")


    def chunk_kv():
        a.vm_wait("UK")
        for r in range(11):
            a(f"v_lshlrev_b32 v{uKU+2*r}, 16, v{uK+r}")
            a(f"v_and_b32 v{uKU+2*r+1}, 0xffff0000, v{uK+r}")
        for h in range(2):
            a(f"v_lshlrev_b32 v{uWU+0+h}, 16, v{uW+2*h}")
            a(f"v_and_b32 v{uWU+2+h}, 0xffff0000, v{uW+2*h}")
            a(f"v_lshlrev_b32 v{uWU+4+h}, 16, v{uW+2*h+1}")
            a(f"v_and_b32 v{uWU+6+h}, 0xffff0000, v{uW+2*h+1}")
        kv_rows(range(0, 3))

    def kv_rows(rows):
        w = lambda j: vr(uWU + 2 * j, 2)
        for r in rows:
            ac = vr(uAC + 2 * r, 2)
            a(f"v_pk_mul_f32 {ac}, {vr(uKU+2*r,2)}, {w(3)}")
            a(f"v_pk_fma_f32 {ac}, {vr(uKU+2*(r+1),2)}, {w(2)}, {ac}")
            a(f"v_pk_fma_f32 {ac}, {vr(uKU+2*(r+2),2)}, {w(1)}, {ac}")
            a(f"v_pk_fma_f32 {ac}, {vr(uKU+2*(r+3),2)}, {w(0)}, {ac}")
            a(f"v_cvt_pk_bf16_f32 v{uAC+2*r+1}, v{uAC+2*r}, v{uAC+2*r+1}")
            a(f"v_lshlrev_b32 v{uVU}, 16, v{uV+r}")
            a(f"v_and_b32 v{uVU+1}, 0xffff0000, v{uV+r}")
            a(f"v_lshlrev_b32 v{uAC+2*r}, 16, v{uAC+2*r+1}")
            a(f"v_and_b32 v{uAC+2*r+1}, 0xffff0000, v{uAC+2*r+1}")
            a(f"v_pk_mul_f32 {ac}, {ac}, {vr(uVU,2)}")

    def chunk_kv2():
        kv_rows(range(3, 8))
        for h in range(2):
            for q in range(4):
                a(f"v_cvt_pk_bf16_f32 v{uO+4*h+q}, v{uAC+2*(7-2*q)+h}, v{uAC+2*(6-2*q)+h}")
        a(f"""
        v_lshlrev_b32 v{uA+2}, 8, v{uA+1}
        v_lshlrev_b32 v{uA+3}, 4, v{uA}
        v_sub_u32 v{uA+2}, v{uA+2}, v{uA+3}
        s_lshl_b32 s{sT0}, s{sCQ}, 5
        s_sub_u32 s{sT0}, {USCR + 7*16}, s{sT0}
        v_add_u32 v{uA+2}, s{sT0}, v{uA+2}
        s_mov_b32 exec_hi, 0xffffff
        ds_write_b128 v{uA+2}, {vr(uO,4)}
        ds_write_b128 v{uA+2}, {vr(uO+4,4)} offset:128
        s_mov_b64 exec, -1
        """)


    return loads, chunk_kv, chunk_kv2


def role_g(a):
    vXA, vWA = 3, 7
    vXR, vWR0, vWR1 = 9, 10, 11
    t = 12
    vWD, vHO, vRA0 = 0, 19, 22
    vSA0, vSA1, vHS = 24, 25, 26
    vFR = 28
    vACC = 76
    vCS, vSTAT, vR2 = 204, 236, 60
    ul_, kv1_, kv2_ = unit_g(a)
    UFIRST = int(os.environ.get("UFIRST", 0))
    if UFIRST:
        ul_()
    if 0 in GDMA:
        dma(a, 0)
    if not UFIRST:
        ul_()
    a(f"""
    s_mov_b32 s{s2CB}, s{sG2C}
    s_mov_b32 s{s2RB}, s{sE}
    v_and_b32 v{t}, 31, v{vL}
    v_lshrrev_b32 v{t+1}, 5, v{vL}
    v_bfe_u32 v{t+2}, v{vL}, 1, 3
    v_xor_b32 v{t+2}, v{t+2}, v{t+1}
    v_lshlrev_b32 v{t+3}, 7, v{t}
    v_lshl_add_u32 v{vXA}, v{t+2}, 4, v{t+3}
    v_xor_b32 v{vXA+1}, 32, v{vXA}
    v_xor_b32 v{vXA+2}, 64, v{vXA}
    v_xor_b32 v{vXA+3}, 96, v{vXA}
    s_lshl_b32 s{sT0}, s{sRB}, 7
    v_add_u32 v{t}, s{sT0}, v{t}
    v_lshlrev_b32 v{t}, 3, v{t}
    v_add_u32 v{vSA0}, {WS_STATS}, v{t}
    s_lshl_b32 s{sT0}, s{sCB}, 3
    s_lshl_b32 s{sT1}, s{sCQ}, 1
    s_add_u32 s{sT0}, s{sT0}, s{sT1}
    s_lshl_b32 s{sT1}, s{sT0}, 7
    s_add_u32 s{sT1}, s{sT1}, {WS_CS}
    v_lshl_add_u32 v{vSA1}, v{t+1}, 4, s{sT1}
    s_lshl_b32 s{sT1}, s{sRB}, 9
    s_add_u32 s{sT0}, s{sT0}, s{sT1}
    s_lshl_b32 s{sT0}, s{sT0}, 10
    v_add_u32 v{vHS}, s{sT0}, v{vLB}
    v_bfe_u32 v{t}, v{vL}, 4, 1
    v_bfe_u32 v{t+2}, v{vL}, 2, 2
    v_bfe_u32 v{t+3}, v{vL}, 1, 1
    s_lshl_b32 s{sT0}, s{sCQ}, 2
    v_or_b32 v{t+3}, s{sT0}, v{t+3}
    v_lshlrev_b32 v{t+4}, 2, v{t+2}
    v_xor_b32 v{t+3}, v{t+3}, v{t+4}
    v_lshlrev_b32 v{t+4}, 1, v{t}
    v_xor_b32 v{t+3}, v{t+3}, v{t+4}
    v_lshlrev_b32 v{t+3}, 4, v{t+3}
    v_and_b32 v{t+4}, 1, v{vL}
    v_lshl_add_u32 v{t+3}, v{t+4}, 3, v{t+3}
    v_lshl_add_u32 v{t+2}, v{t+1}, 3, v{t+2}
    v_lshl_add_u32 v{t+3}, v{t+2}, 8, v{t+3}
    v_add_u32 v{t}, 1, v{t}
    v_lshl_add_u32 v{vWA}, v{t}, 14, v{t+3}
    v_xor_b32 v{vWA+1}, 32, v{vWA}
    s_mul_i32 s{sE}, s{sRB}, 56
    s_lshl_b32 s{sT0}, s{sCB}, 2
    s_add_u32 s{sE}, s{sE}, s{sT0}
    s_add_u32 s{sE}, s{sE}, s{sCQ}
    s_lshl_b32 s{sE}, s{sE}, 7
    s_add_u32 s{sE}, s{sE}, {WS_FLH}
    s_lshl_b32 s{sWB}, s{sCQ}, 12
    s_lshl_b32 s{sT0}, s{s2RB}, 8
    s_mul_i32 s{sT1}, s{sCQ}, 28
    s_add_u32 s{sT0}, s{sT0}, s{sT1}
    s_lshl_b32 s{sT0}, s{sT0}, 10
    v_add_u32 v{vHO}, s{sT0}, v{vLB}
    v_lshrrev_b32 v{t}, 3, v{vL}
    s_mul_i32 s{sT0}, s{sCQ}, 448
    v_add_u32 v{t}, s{sT0}, v{t}
    v_mul_u32_u24 v{t}, 896, v{t}
    v_bfe_u32 v{t+1}, v{vL}, 4, 1
    v_lshlrev_b32 v{t+1}, 2, v{t+1}
    v_and_b32 v{t+2}, 7, v{vL}
    v_xor_b32 v{t+1}, v{t+1}, v{t+2}
    v_lshl_add_u32 v{vWD}, v{t+1}, 4, v{t}
    s_lshl_b32 s{sT0}, s{s2CB}, 7
    v_add_u32 v{vWD}, s{sT0}, v{vWD}
    v_lshrrev_b32 v{t}, 5, v{vL}
    v_bfe_u32 v{t+1}, v{vL}, 2, 2
    v_lshl_add_u32 v{t}, v{t}, 2, v{t+1}
    v_bfe_u32 v{t+2}, v{vL}, 4, 1
    v_bfe_u32 v{t+3}, v{vL}, 1, 1
    v_lshl_add_u32 v{t+2}, v{t+2}, 1, v{t+3}
    v_bfe_u32 v{t+3}, v{vL}, 3, 1
    v_lshl_add_u32 v{t+2}, v{t+3}, 2, v{t+2}
    v_lshlrev_b32 v{t+2}, 4, v{t+2}
    v_and_b32 v{t+3}, 1, v{vL}
    v_lshl_add_u32 v{t+2}, v{t+3}, 3, v{t+2}
    v_lshl_add_u32 v{t+2}, v{t}, 7, v{t+2}
    v_add_u32 v{vRA0}, s{sWB}, v{t+2}
    """)
    srd(a, R_WS, S_WS, WS_END)
    srd(a, R_WD, S_WD, SZ_W)

    def fx(s_, nt):
        return vFR + 24 * s_ + 4 * nt

    def fw(s_, mt):
        return vFR + 24 * s_ + 16 + 4 * mt

    def read_ops(st, p, s_):
        slot = (st % 3) * SLOT
        ops = []
        pre = []
        if p == 0:
            pre.append(f"v_add_u32 v{vWR0}, {slot}, v{vWA}")
            pre.append(f"v_add_u32 v{vWR1}, {slot}, v{vWA+1}")
        pre.append(f"v_add_u32 v{vXR}, {slot}, v{vXA+p}")
        ops.append(pre + [f"ds_read_b64_tr_b16 {vr(fw(s_,0),2)}, v{vWR0} offset:{4096*p}"])
        ops.append([f"ds_read_b64_tr_b16 {vr(fw(s_,0)+2,2)}, v{vWR0} offset:{4096*p+1024}"])
        for nt in range(4):
            ops.append([f"ds_read_b128 {vr(fx(s_,nt),4)}, v{vXR} offset:{4096*nt}"])
        ops.append([f"ds_read_b64_tr_b16 {vr(fw(s_,1),2)}, v{vWR1} offset:{4096*p}"])
        ops.append([f"ds_read_b64_tr_b16 {vr(fw(s_,1)+2,2)}, v{vWR1} offset:{4096*p+1024}"])
        return ops

    def wdma(r, s_, ent):
        for j in range(4):
            r(f"s_mov_b32 s{sW2}, {(32*s_ + 8*j)*896}")
            r(f"s_add_u32 m0, s{sWB}, {ent + j*1024}")
            r("s_nop 0")
            r.vmem(f"buffer_load_dwordx4 v{vWD}, {sr(R_WD,4)}, s{sW2} offen lds", f"W{s_}")

    def stat_loads(r):
        for nt in range(4):
            r.vmem(f"buffer_load_dwordx2 {vr(vSTAT+2*nt,2)}, v{vSA0}, {sr(R_WS,4)}, 0 offen offset:{256*nt} sc1", "ST")
        for i in range(8):
            r.vmem(f"buffer_load_dwordx4 {vr(vCS+4*i,4)}, v{vSA1}, {sr(R_WS,4)}, 0 offen offset:{32*i} sc1", "ST")

    def tag_read(r):
        r(f"v_mov_b32 v{t}, {USCR+8192}")
        r(f"ds_read_b32 v{vONE}, v{t}")

    WD = lambda s_: (lambda r: wdma(r, s_, WENT[s_]))
    plan = {0: [tag_read], 1: [], 2: [WD(6)], 3: [], 4: [WD(0), WD(1), WD(2)], 5: [stat_loads, WD(3), WD(4), WD(5)], 6: []}
    for st_ in GDMA:
        if st_ >= 3:
            plan[st_ - 3] = plan[st_ - 3] + [(lambda q: (lambda r: dma(r, q)))(st_)]
    if 1 in GDMA:
        dma(a, 1)
    kv1_()
    kv2_()
    a.vm_wait("A0")
    a("s_waitcnt lgkmcnt(0)")
    a("s_barrier")
    a.stamp()
    for ops in read_ops(0, 0, 0):
        for o in ops:
            a(o)
    cur = 0
    fill = explode(a, [lambda r: dma(r, 2)]) if 2 in GDMA else []
    order = [(0, 0), (0, 1), (0, 2), (0, 3), (1, 3), (1, 2), (1, 1), (1, 0)]
    for st in range(7):
        for p in range(4):
            a("s_waitcnt lgkmcnt(0)")
            nxt = []
            if p == 3:
                assert not fill
                a.vm_wait(f"A{st+1}")
                a("s_barrier")
                if st < 6:
                    nxt = read_ops(st + 1, 0, cur ^ 1)
                fill = explode(a, plan[st])
            else:
                nxt = read_ops(st, p + 1, cur ^ 1)
            slots = 8 * (3 - p) if p < 3 else 32
            for k, (mt, nt) in enumerate(order):
                acc = vACC + 16 * (4 * mt + nt)
                c = "0" if (st == 0 and p == 0) else vr(acc, 16)
                a(f"v_mfma_f32_32x32x16_bf16 {vr(acc,16)}, {vr(fw(cur,mt),4)}, {vr(fx(cur,nt),4)}, {c}")
                for _ in range(2):
                    if nxt:
                        for o in nxt.pop(0):
                            a(o)
                tot = sum(c_ for c_, _ in fill)
                budget = tot / max(1, slots - k)
                used = 0
                while fill and used < budget - 1e-9:
                    c_, e = fill.pop(0)
                    e()
                    used += c_
            cur ^= 1
            if p == 3 and (st in (3, 6) or STM == 1):
                a.stamp()
    a.vm_wait("ST")
    for nt in range(4):
        a(f"v_mul_f32 v{vR2+2*nt}, v{vSTAT+2*nt+1}, v{vSTAT+2*nt+1}")
    for nt in range(1, 4):
        a(f"s_mov_b32 s{sM0X+nt-1}, {nt*128*1024}")
    a("s_nop 4")
    vH = 28
    k = 0
    for nt in range(4):
        for mt in range(2):
            acc = vACC + 16 * (4 * mt + nt)
            cs = vCS + 16 * mt
            m = vSTAT + 2 * nt
            for i in range(8):
                a(f"v_pk_fma_f32 {vr(acc+2*i,2)}, {vr(m,2)}, {vr(cs+2*i,2)}, {vr(acc+2*i,2)} op_sel_hi:[0,1,1] neg_lo:[1,0,0] neg_hi:[1,0,0]")
            for i in range(8):
                a(f"v_max_f32 v{acc+i}, 0, v{acc+i}")
            for i in range(4):
                a(f"v_pk_mul_f32 {vr(acc+8+2*i,2)}, {vr(acc+8+2*i,2)}, {vr(vR2+2*nt,2)} op_sel_hi:[1,0]")
            for i in range(4):
                a(f"v_pk_mul_f32 {vr(acc+2*i,2)}, {vr(acc+2*i,2)}, {vr(acc+8+2*i,2)}")
            o = vH + 4 * k
            for i in range(4):
                a(f"v_cvt_pk_bf16_f32 v{o+i}, v{acc+2*i}, v{acc+2*i+1}")
            so = "0" if nt == 0 else f"s{sM0X+nt-1}"
            a.vmem(f"buffer_store_dwordx4 {vr(o,4)}, v{vHS}, {sr(R_WS,4)}, {so} offen offset:{mt*1024} sc1", "HS")
            k += 1
    a.stamp()
    vA2 = 192
    vRB0, vRB1, vH1, vFA = 3, 4, 5, 6
    gH0, gRA, gTAG, vRW, gFL = 7, 8, 9, 10, 11
    SETS = [16 + 16 * i for i in range(11)]
    ENT = {s_: WENT[s_ % 7] for s_ in range(14)}

    def trreads(s_, dst):
        a(f"v_add_u32 v{vRB0}, {ENT[s_]}, v{gRA}")
        a(f"v_xor_b32 v{vRB1}, 64, v{vRB0}")
        for tt in range(2):
            for Td in range(2):
                for hf in range(2):
                    a(f"ds_read_b64_tr_b16 {vr(dst+8*tt+4*Td+2*hf,2)}, v{vRB1 if Td else vRB0} offset:{tt*2048+hf*1024}")

    a(f"""
    v_add_u32 v{vH1}, {128*1024}, v{vHO}
    v_mov_b32 v{gH0}, v{vHO}
    v_mov_b32 v{gRA}, v{vRA0}
    v_mov_b32 v{gTAG}, v{vONE}
    s_lshr_b32 s{sT0}, s{s2RB}, 1
    s_mul_i32 s{sT0}, s{sT0}, 56
    s_mul_i32 s{sT1}, s{sCQ}, 14
    s_add_u32 s{sT0}, s{sT0}, s{sT1}
    s_lshl_b32 s{sT0}, s{sT0}, 7
    s_add_u32 s{sT0}, s{sT0}, {WS_FLH}
    v_min_u32 v{vFA}, 13, v{vL}
    v_lshl_add_u32 v{vFA}, v{vFA}, 7, s{sT0}
    """)
    NW0 = int(os.environ.get("NW0", 4))
    LOOK = int(os.environ.get("LOOK", 2))
    setW, setH = {}, {}
    free = SETS[:]
    for s_ in range(NW0):
        setW[s_] = free.pop()
        a.vm_wait(f"W{s_}")
        trreads(s_, setW[s_])
    a("s_waitcnt lgkmcnt(0)")
    for s_ in range(7, 7 + NW0):
        wdma(a, s_, ENT[s_])
    a.vm_wait("HS")
    a("s_mov_b64 exec, 1")
    a.vmem(f"buffer_store_dword v{vONE}, v{vZ}, {sr(R_WS,4)}, s{sE} offen sc1", "HF")
    a("s_mov_b64 exec, -1")
    if HPF:
        a(f"""
        v_sub_u32 v{t}, v{vHS}, v{vLB}
        v_lshrrev_b32 v{t+1}, 4, v{vL}
        v_lshl_add_u32 v{t}, v{t+1}, 17, v{t}
        v_and_b32 v{t+1}, 15, v{vL}
        v_lshl_add_u32 v{t}, v{t+1}, 7, v{t}
        buffer_load_dword v{t+1}, v{t}, {sr(R_WS,4)}, 0 offen
        """)
    a.stamp()
    a(f"""
    s_add_u32 s{sT1}, s{sWB}, {WENT[0]}
    v_add_u32 v{vRW}, s{sT1}, v{vLB}
    s_lshl_b32 s{sT0}, s3, 2
    s_add_u32 s{sT0}, s{sT0}, {L_FLAG + 64}
    v_mov_b32 v{gFL}, s{sT0}
    """)
    gpoll(a, vFA, "GH", False)
    a.vm = []
    a.stamp()

    def hloads(s_):
        r = setH[s_]
        a(f"s_mov_b32 s{sHO}, {2048*s_}")
        for tt in range(2):
            for nt in range(2):
                a.vmem(f"buffer_load_dwordx4 {vr(r+8*tt+4*nt,4)}, v{vH1 if nt else gH0}, {sr(R_WS,4)}, s{sHO} offen offset:{1024*tt}{HFL}", f"H{s_}")

    nh, nw = 0, NW0
    while free and nh < MAXH:
        setH[nh] = free.pop(0)
        hloads(nh)
        nh += 1
    for s_ in range(14):
        a.vm_wait(f"H{s_}")
        if s_ >= NW0:
            a(f"s_waitcnt lgkmcnt({min(15, 8*(nw - 1 - s_))})")
        if STM == 2 and s_ in (0, 3, 6, 9, 12):
            a.stamp()
        for tt in range(2):
            for Td in range(2):
                for nt in range(2):
                    acc = vA2 + 32 * nt + 16 * Td
                    c = "0" if (s_ == 0 and tt == 0) else vr(acc, 16)
                    a(f"v_mfma_f32_32x32x16_bf16 {vr(acc,16)}, {vr(setW[s_]+8*tt+4*Td,4)}, {vr(setH[s_]+8*tt+4*nt,4)}, {c}")
        if s_ == TGATE:
            a(f"ds_write_b32 v{gFL}, v{gTAG} offset:16")
        free += [setW[s_], setH[s_]]
        wnow = []
        while nw < 14 and (nw <= s_ + LOOK or (nh >= 14 and nw <= s_ + 3)):
            setW[nw] = free.pop(0)
            wnow.append(nw)
            nw += 1
        while free and nh < 14 and nh <= s_ + MAXH:
            setH[nh] = free.pop(0)
            hloads(nh)
            nh += 1
        for sn in wnow:
            a.vm_wait(f"W{sn}")
            trreads(sn, setW[sn])
            if sn + 7 < 14:
                a("s_waitcnt lgkmcnt(0)")
                wdma(a, sn + 7, ENT[sn + 7])
    a.stamp()
    a("s_nop 7")
    a("s_nop 3")
    for tau in range(4):
        for q in range(4):
            a(f"ds_write_b128 v{vRW}, {vr(vA2+16*tau+4*q,4)} offset:{tau*16384+q*1024}")
    a("s_waitcnt lgkmcnt(0)")
    a(f"ds_write_b32 v{gFL}, v{gTAG}")
    a.stamp()
    a.stamp_flush()
    a("s_endpgm")


def role_b(a):
    R_K, R_V, R_SH = 76, 80, 84
    t = 6
    uA = 24
    uK, uV, uW, uX = 32, 43, 52, 56
    uKU, uWU, uAC, uVU, uO, uS = 64, 86, 94, 110, 112, 120
    vD, vU, vBLD = 144, 168, 176
    vAA, vBA, vKA, vTA, vEXW, vEXR, vFL, vWM, vWX, vWZ, vWP, vPA, vKVA = range(216, 229)
    if 0 not in GDMA:
        dma(a, 0)
    if 1 not in GDMA:
        dma(a, 1)
    srd(a, R_WS, S_WS, WS_END)
    srd(a, R_DBG, S_DBG, 256)
    a.vm_wait("A0")
    if BPRIO:
        a(f"s_setprio {BPRIO}")
    EARLY = int(os.environ.get("EARLY", 1))
    a.stamp()
    a(f"s_lshl_b32 s{sT0}, s{sCQ}, 12")
    tagl = lambda: a.vmem(f"buffer_load_dword v{vONE}, v{vZ}, {sr(R_DBG,4)}, s{sT0} offen sc1", "TAG")

    def tag_block():
        L, Lok, Lsk = newlabel("TB"), newlabel("TBOK"), newlabel("TBSK")
        a.vm_wait("TAG")
        a(f"s_cmp_lg_u32 s{sCQ}, 0")
        a(f"s_cbranch_scc1 {Lsk}")
        a(f"s_mov_b32 s{sSP}, 0")
        a.label(L)
        a(f"""
        v_readfirstlane_b32 s{sSP+1}, v{vONE}
        s_add_u32 s{sSP}, s{sSP}, 1
        s_cmp_gt_u32 s{sSP}, 0x4000
        s_cbranch_scc1 {Lok}
        s_cmp_lg_u32 s{sSP+1}, 0
        s_cbranch_scc1 {Lok}
        s_sleep 4
        buffer_load_dword v{vONE}, v{vZ}, {sr(R_DBG,4)}, 0 offen sc1
        s_waitcnt vmcnt(0)
        s_branch {L}
        """)
        a.label(Lok)
        a(f"v_mov_b32 v{t}, {USCR+8192}")
        a(f"ds_write_b32 v{t}, v{vONE}")
        a.label(Lsk)

    def chunk_store_stats():
        if not EARLY:
            a(f"v_mov_b32 v{t}, {USCR+8192}")
            a(f"ds_read_b32 v{vONE}, v{t}")
        a(f"""
        s_mul_i32 s{sT0}, s{sCQ}, 1792
        s_add_u32 s{sT0}, s{sT0}, {USCR}
        v_add_u32 v{uA+2}, s{sT0}, v{vLB}
        ds_read_b128 {vr(uO,4)}, v{uA+2}
        ds_read_b128 {vr(uO+4,4)}, v{uA+2} offset:896
        v_lshrrev_b32 v{uA+2}, 3, v{vL}
        v_lshlrev_b32 v{uA+2}, 12, v{uA+2}
        v_and_b32 v{uA+3}, 7, v{vL}
        v_lshl_add_u32 v{uA+2}, v{uA+3}, 4, v{uA+2}
        s_and_b32 s{sT0}, s2, 7
        s_mul_i32 s{sT0}, s{sT0}, 56
        s_mul_i32 s{sT1}, s{sCQ}, 14
        s_add_u32 s{sT0}, s{sT0}, s{sT1}
        s_lshl_b32 s{sT0}, s{sT0}, 12
        s_lshr_b32 s{sT1}, s2, 3
        s_lshl_b32 s{sT1}, s{sT1}, 7
        s_sub_u32 s{sT0}, s{sT0}, s{sT1}
        s_add_u32 s{sT0}, s{sT0}, {WS_KVR + 3968}
        s_add_u32 s{sT1}, s{sT0}, {7*4096}
        s_waitcnt lgkmcnt(0)
        s_mov_b32 exec_hi, 0xffffff
        """)
        a.vmem(f"buffer_store_dwordx4 {vr(uO,4)}, v{uA+2}, {sr(R_WS,4)}, s{sT0} offen sc1", "US")
        a.vmem(f"buffer_store_dwordx4 {vr(uO+4,4)}, v{uA+2}, {sr(R_WS,4)}, s{sT1} offen sc1", "US")
        a("s_mov_b64 exec, -1")
        return
        a.vm_wait("UX")
        for i in range(4):
            a(f"v_mov_b32 v{uS+i}, 0")
        a(f"v_mov_b32 v{uS+4}, 0x3f803f80")
        for i in range(4):
            for r in range(2):
                a(f"v_dot2c_f32_bf16 v{uS+2*r}, v{uX+4*r+i}, v{uS+4}")
                a(f"v_dot2c_f32_bf16 v{uS+2*r+1}, v{uX+4*r+i}, v{uX+4*r+i}")
        a("s_nop 2")
        for mode in ("quad_perm:[1,0,3,2]", "quad_perm:[2,3,0,1]", "row_half_mirror", "row_mirror"):
            for i in range(4):
                a(f"v_add_f32_dpp v{uS+i}, v{uS+i}, v{uS+i} {mode} row_mask:0xf bank_mask:0xf")
        for sw in ("v_permlane16_swap_b32", "v_permlane32_swap_b32"):
            for i in range(4):
                a(f"v_mov_b32 v{uS+4+i}, v{uS+i}")
            a("s_nop 1")
            for i in range(4):
                a(f"{sw} v{uS+i}, v{uS+4+i}")
            a("s_nop 1")
            for i in range(4):
                a(f"v_add_f32 v{uS+i}, v{uS+i}, v{uS+4+i}")
        a(f"s_mov_b32 s{sT0}, {f32bits(1.0/448.0)}")
        a(f"s_mov_b32 s{sT1}, {f32bits(1e-5)}")
        for r in range(2):
            m, q = uS + 2 * r, uS + 2 * r + 1
            a(f"""
            v_mul_f32 v{m}, s{sT0}, v{m}
            v_mul_f32 v{q}, s{sT0}, v{q}
            v_fma_f32 v{q}, -v{m}, v{m}, v{q}
            v_max_f32 v{q}, 0, v{q}
            v_cvt_pk_bf16_f32 v{q}, v{m}, v{q}
            v_lshlrev_b32 v{m}, 16, v{q}
            v_and_b32 v{q}, 0xffff0000, v{q}
            v_add_f32 v{q}, s{sT1}, v{q}
            v_cvt_pk_bf16_f32 v{q}, v{q}, v{q}
            v_and_b32 v{q}, 0xffff0000, v{q}
            v_sqrt_f32 v{q}, v{q}
            s_nop 0
            v_cvt_pk_bf16_f32 v{q}, v{q}, v{q}
            v_and_b32 v{q}, 0xffff0000, v{q}
            v_rcp_f32 v{q}, v{q}
            """)
        a(f"""
        s_lshl_b32 s{sT0}, s2, 2
        s_add_u32 s{sT0}, s{sT0}, s{sCQ}
        s_lshl_b32 s{sT0}, s{sT0}, 4
        s_add_u32 s{sT0}, s{sT0}, {WS_STATS}
        s_mov_b64 exec, 1
        """)
        a.vmem(f"buffer_store_dwordx4 {vr(uS,4)}, v{vZ}, {sr(R_WS,4)}, s{sT0} offen sc1", "US")
        a("s_mov_b64 exec, -1")

    def chunk_conv_setup():
        c = t
        a(f"""
        s_lshl_b32 s{sCH}, s2, 1
        s_add_u32 s{sCH}, s{sCH}, s{sCHL}
        s_mul_i32 s{sUB}, s{sCHL}, {8*CV_UP}
        s_add_u32 s{sUB}, s{sUB}, {CV_U}
        s_mul_i32 s{sAB}, s{sCHL}, {CV_A[1]}
        s_lshl_b32 s{sT0}, s{sCH}, 12
        s_add_u32 s{R_H}, s{S_SSMK}, s{sT0}
        s_addc_u32 s{R_H+1}, s{S_SSMK+1}, 0
        s_and_b32 s{R_H+1}, s{R_H+1}, 0xffff
        s_mov_b32 s{R_H+2}, 4096
        s_mov_b32 s{R_H+3}, 0x20000
        s_lshl_b32 s{sT1}, s2, 2
        s_load_dword s{sD}, {sr(S_SSMD,2)}, s{sT1}
        s_lshl_b32 s{sT1}, s{sHF}, 11
        v_add_u32 v{c+1}, s{sT1}, v{vLB}
        v_subrev_u32 v{c+2}, 64, v{vLB}
        v_subrev_u32 v{c+3}, 48, v{vLB}
        s_add_u32 s{sT0}, s{sT0}, {WS_KVR}
        v_add_u32 v{vKVA}, s{sT0}, v{c+1}
        """)
        a.vmem(f"buffer_load_dwordx4 {vr(vD,4)}, v{c+1}, {sr(R_H,4)}, 0 offen", "D")
        a.vmem(f"buffer_load_dwordx4 {vr(vD+4,4)}, v{c+1}, {sr(R_H,4)}, 0 offen offset:16", "D")
        a.vmem(f"buffer_load_dwordx4 {vr(vD+8,4)}, v{c+1}, {sr(R_H,4)}, 0 offen offset:1024", "D")
        a.vmem(f"buffer_load_dwordx4 {vr(vD+12,4)}, v{c+1}, {sr(R_H,4)}, 0 offen offset:1040", "D")
        a.vmem(f"buffer_load_dwordx4 {vr(vD+16,4)}, v{c+2}, {sr(R_H,4)}, 0 offen", "D")
        a.vmem(f"buffer_load_dwordx4 {vr(vD+20,4)}, v{c+3}, {sr(R_H,4)}, 0 offen", "D")
        a(f"""
        v_add_u32 v{vWM}, s{sAB}, v{c+1}
        v_add_u32 v{vWX}, s{sAB}, v{vLB}
        v_mov_b32 v{vBLD+36}, 0
        v_mov_b32 v{vBLD+37}, 0
        v_mov_b32 v{vBLD+38}, 0
        v_mov_b32 v{vBLD+39}, 0
        v_lshrrev_b32 v{c+4}, 4, v{vL}
        s_lshl_b32 s{sT0}, s{sHF}, 2
        v_add_u32 v{vWZ}, s{sT0}, v{c+4}
        v_mul_u32_u24 v{vWZ}, {CV_UP}, v{vWZ}
        v_and_b32 v{c}, 15, v{vL}
        v_lshl_add_u32 v{vWZ}, v{c}, 4, v{vWZ}
        v_add_u32 v{vWZ}, s{sUB}, v{vWZ}
        v_and_b32 v{vWP}, 7, v{vL}
        v_xor_b32 v{vWP}, 4, v{vWP}
        v_mul_u32_u24 v{vWP}, {CV_UP}, v{vWP}
        v_lshrrev_b32 v{c+5}, 3, v{vL}
        v_lshlrev_b32 v{c+5}, 4, v{c+5}
        v_sub_u32 v{vWP}, v{vWP}, v{c+5}
        s_lshl_b32 s{sT0}, s{sHF}, 8
        s_sub_u32 s{sT0}, s{sUB}, s{sT0}
        s_add_u32 s{sT0}, s{sT0}, {(47-8)*16}
        v_add_u32 v{vWP}, s{sT0}, v{vWP}
        v_mul_u32_u24 v{vBA}, {CV_UP}, v{c+4}
        v_lshl_add_u32 v{vBA}, v{c}, 4, v{vBA}
        v_add_u32 v{vBA}, s{sUB}, v{vBA}
        v_sub_u32 v{vKA}, 3, v{c+4}
        v_mul_u32_u24 v{vKA}, {CV_UP}, v{vKA}
        v_lshl_add_u32 v{vKA}, v{c}, 4, v{vKA}
        v_add_u32 v{vKA}, s{sUB}, v{vKA}
        v_lshlrev_b32 v{vTA}, 7, v{c}
        v_lshl_add_u32 v{vTA}, v{c+4}, 4, v{vTA}
        v_lshrrev_b32 v{c}, 2, v{c}
        v_add_u32 v{c}, v{c}, v{c+4}
        v_lshlrev_b32 v{c}, 4, v{c}
        v_add_u32 v{c}, s{sAB}, v{c}
        v_and_b32 v{c+4}, 3, v{vL}
        v_mul_u32_u24 v{vAA}, {CV_ST}, v{c+4}
        v_add_u32 v{vAA}, v{vAA}, v{c}
        s_lshl_b32 s{sT0}, s{sHF}, 12
        s_add_u32 s{sT1}, s{sT0}, s{sAB}
        v_add_u32 v{vEXW}, s{sT1}, v{vLB}
        s_xor_b32 s{sT0}, s{sT0}, 4096
        s_add_u32 s{sT1}, s{sT0}, s{sAB}
        v_add_u32 v{vEXR}, s{sT1}, v{vLB}
        s_lshl_b32 s{sT0}, s{sCHL}, 5
        s_add_u32 s{sT0}, s{sT0}, {L_FLAG}
        v_mov_b32 v{vFL}, s{sT0}
        s_mul_i32 s{sT1}, s2, 2341
        s_lshr_b32 s{sT1}, s{sT1}, 16
        v_lshl_add_u32 v{c+2}, v{vL}, 3, s{sT1}
        s_lshl_b32 s{sT0}, s{sRB}, 1
        s_add_u32 s{sT0}, s{sT0}, {256 - 32}
        v_add_u32 v{c+3}, s{sT0}, v{vL}
        v_cmp_le_u32 vcc, 32, v{vL}
        s_sub_u32 s{sT1}, s{sCB}, {34*14 - 256}
        v_mul_u32_u24 v{c}, 14, v{vL}
        v_cndmask_b32 v{c+2}, v{c+2}, v{c+3}, vcc
        v_add_u32 v{c+3}, s{sT1}, v{c}
        v_cmp_le_u32 vcc, 34, v{vL}
        v_mov_b32 v{c}, s{sE}
        v_add_u32 v{c}, 256, v{c}
        s_lshl_b32 s{sT1}, s{sCQ}, 24
        v_cndmask_b32 v{c+2}, v{c+2}, v{c+3}, vcc
        v_cmp_le_u32 vcc, 36, v{vL}
        s_add_u32 s{sT1}, s{sT1}, {WS_FLU}
        s_nop 0
        v_cndmask_b32 v{c+2}, v{c+2}, v{c}, vcc
        v_lshl_add_u32 v{vPA}, v{c+2}, 7, s{sT1}
        """)

    def signal():
        L = newlabel("NOSIG")
        a(f"""
        s_cmp_lg_u32 s{sCQ}, 0
        s_cbranch_scc1 {L}
        s_lshl_b32 s{sT0}, s2, 7
        s_add_u32 s{sT0}, s{sT0}, {WS_FLU}
        s_mov_b64 exec, 1
        buffer_store_dword v{vONE}, v{vZ}, {sr(R_WS,4)}, s{sT0} offen sc1
        s_mov_b64 exec, -1
        """)
        a.label(L)

    def chunk_build():
        a.vm_wait("D")
        for rnd in range(3):
            d, b = vD + 8 * rnd, vBLD + 12 * rnd
            for i in range(4):
                a(f"v_mov_b32 v{b+i}, v{d+1+i}")
            for i in range(4):
                a(f"v_alignbit_b32 v{b+4+i}, v{d+i+1}, v{d+i}, 16")
            for i in range(4):
                a(f"v_alignbit_b32 v{b+8+i}, v{d+i+2}, v{d+i+1}, 16")

    def poll_block():
        L = newlabel("NOPOLL")
        a.vm_wait("P0")
        if PROF and os.environ.get("VCCD"):
            a(f"v_cmp_ne_u32 vcc, v{vONE}, v{vPOLL}")
            a("s_nop 4")
            a(f"s_add_u32 s{72+2*a.nst}, s72, vcc_lo")
            a.nst += 1
            a(f"s_add_u32 s{72+2*a.nst}, s72, vcc_hi")
            a.nst += 1
        a(f"s_cmp_lg_u32 s{sCQ}, 0")
        a(f"s_cbranch_scc1 {L}")
        gpoll(a, vPA, "BP", True)
        a.label(L)

    chunk_conv_setup()
    a("s_barrier")
    chunk_store_stats()
    a(f"s_lshl_b32 s{sT0}, s{sCQ}, 12")
    tagl()
    if 2 not in GDMA:
        dma(a, 2)
    CSST = int(os.environ.get("CSST", 5))
    KV0 = int(os.environ.get("KV0", 0))
    SIG = int(os.environ.get("SIG", 1))
    for st in range(7):
        if st == 0:
            tag_block()
        if st == 1:
            a(f"v_mov_b32 v{t}, {USCR+8192}")
            a(f"ds_read_b32 v{vONE}, v{t}")
        if st == SIG + 1:
            signal()
        if st == 4:
            chunk_build()
        if st == 6 and KVE:
            a.vmem(f"buffer_load_dwordx4 {vr(vU,4)}, v{vKVA}, {sr(R_WS,4)}, 0 offen sc1", "U")
            a.vmem(f"buffer_load_dwordx4 {vr(vU+4,4)}, v{vKVA}, {sr(R_WS,4)}, 0 offen offset:1024 sc1", "U")
        a("s_waitcnt lgkmcnt(0)")
        if st + 1 < 7:
            a.vm_wait(f"A{st+1}")
        if st == SIG:
            a.vm_wait("US")
        if st == CSST:
            if PE:
                a.vm_wait("P0")
            L = newlabel("NOCS")
            a(f"s_cmp_lg_u32 s{sCQ}, 0")
            a(f"s_cbranch_scc1 {L}")
            if not KVE:
                a("s_mov_b32 exec_lo, 0")
            gpoll(a, vPA, "BC", PE, 4)
            a("s_mov_b64 exec, -1")
            a.label(L)
        a("s_barrier")
        if st == CSST - 1 and PE:
            a.vmem(f"buffer_load_dword v{vPOLL}, v{vPA}, {sr(R_WS,4)}, 0 offen sc1", "P0")
        if st + 3 < 7 and st + 3 not in GDMA:
            dma(a, st + 3)
        if st in (3, 6) or STM:
            a.stamp()
    if os.environ.get("CPRIO"):
        a(f"s_setprio {os.environ['CPRIO']}")
    for rnd in range(3):
        d, b = vD + 8 * rnd, vBLD + 12 * rnd
        if rnd == 2:
            a("s_mov_b64 exec, 15")
        srcs = [b + 4, b, b + 8, d + 2]
        for cc in range(4):
            a(f"ds_write_b128 v{vWX if rnd == 2 else vWM}, {vr(srcs[cc],4)} offset:{cc*CV_ST + (0 if rnd == 2 else 64 + 1024*rnd)}")
        if rnd == 2:
            a("s_mov_b64 exec, -1")
    a(f"ds_write_b128 v{vWZ}, {vr(vBLD+36,4)}")
    if not KVE:
        Lk = newlabel("NOKV")
        a(f"v_mov_b32 v{t+1}, {L_FLAG + 112}")
        a(f"s_cmp_lg_u32 s{sCQ}, 0")
        a(f"s_cbranch_scc1 {Lk}")
        gpoll(a, vPA, "BK", False, 16)
        a(f"ds_write_b32 v{t+1}, v{vONE}")
        a.label(Lk)
        lds_wait_flag(a, t + 1, 0, t, "BKW", sleep=True)
        a.vm = []
        a.vmem(f"buffer_load_dwordx4 {vr(vU,4)}, v{vKVA}, {sr(R_WS,4)}, 0 offen sc1", "U")
        a.vmem(f"buffer_load_dwordx4 {vr(vU+4,4)}, v{vKVA}, {sr(R_WS,4)}, 0 offen offset:1024 sc1", "U")
    a.vm_wait("U")
    a(f"ds_write_b128 v{vWP}, {vr(vU,4)} offset:128")
    a(f"ds_write_b128 v{vWP}, {vr(vU+4,4)}")
    a("s_waitcnt lgkmcnt(0)")
    a(f"s_cmp_eq_u32 s{sHF}, 1")
    a("s_cbranch_scc1 C_HALF1")
    vF, vB, vAC = 32, 68, 100
    nst_save = a.nst
    for half in range(2):
        if half:
            a.label("C_HALF1")
            a.nst = nst_save
        own, oth = half, half ^ 1
        a(f"ds_write_b32 v{vFL}, v{vONE} offset:{4*own}")
        lds_wait_flag(a, vFL, 4 * oth, t, "CR")
        a.stamp()

        def F(psi):
            return vF + 6 * (psi % 6)

        def rdA(psi):
            off = 4 * psi * 16
            a(f"ds_read_b128 {vr(F(psi),4)}, v{vAA} offset:{off}")
            a(f"ds_read_b64 {vr(F(psi)+4,2)}, v{vAA} offset:{off+16}")
            return 2

        def nus(dl):
            return (0, 1) if dl < 16 else (1,)

        def rdB(dl):
            n = 0
            for kc in range(2):
                for nu in nus(dl):
                    a(f"ds_read_b128 {vr(vB+16*(dl&1)+8*kc+4*nu,4)}, v{vBA} offset:{kc*4*CV_UP+(16+16*nu-dl)*16}")
                    n += 1
            return n

        dls = list(range(0, 12)) if half == 0 else list(range(12, 32))
        if os.environ.get("NOCONV"):
            dls = dls[:2]
        if half:
            rdA(2 * dls[0] - 1)
        rdA(2 * dls[0]); rdA(2 * dls[0] + 1); rdB(dls[0])
        inited = set()
        for dl in dls:
            n = 0
            if dl != dls[-1]:
                n += rdA(2 * dl + 2); n += rdA(2 * dl + 3); n += rdB(dl + 1)
            a(f"s_waitcnt lgkmcnt({n})")
            for kc in range(2):
                for p in range(2):
                    psi = 2 * dl + p - kc
                    if psi < 0:
                        continue
                    for par in range(2):
                        for nu in nus(dl):
                            acc = vAC + 16 * nu + 8 * p + 4 * par
                            csrc = vr(acc, 4) if acc in inited else "0"
                            inited.add(acc)
                            a(f"v_mfma_f32_16x16x32_bf16 {vr(acc,4)}, {vr(F(psi)+2*par,4)}, {vr(vB+16*(dl&1)+8*kc+4*nu,4)}, {csrc}")
        a.stamp()
        a(f"ds_write_b32 v{vFL}, v{vONE} offset:{8+4*own}")
        a(f"ds_read_b128 {vr(vU,4)}, v{vKA} offset:{(16+16*own)*16}")
        a(f"ds_read_b128 {vr(vU+4,4)}, v{vKA} offset:{4*CV_UP+(16+16*own)*16}")
        a(f"""
        s_lshl_b32 s{sT0}, s{sCH}, 12
        s_add_u32 s{sT0}, s{sT0}, {WS_T + own*2048}
        s_lshl_b32 s{sT1}, s{sCHL}, 4
        s_lshr_b32 s{sD}, s{sD}, s{sT1}
        s_lshl_b32 s{sD}, s{sD}, 16
        s_lshl_b32 s{sTMP}, s{sCH}, 7
        s_add_u32 s{sTMP}, s{sTMP}, {WS_FLT + own*448*128}
        """)
        lds_wait_flag(a, vFL, 8 + 4 * oth, t, "CD")
        for q in range(4):
            a(f"ds_write_b128 v{vEXW}, {vr(vAC+16*oth+4*q,4)} offset:{1024*q}")
        a("s_waitcnt lgkmcnt(0)")
        a(f"ds_write_b32 v{vFL}, v{vONE} offset:{16+4*own}")
        vK = vF
        for p in range(2):
            for dq in range(4):
                a(f"v_lshlrev_b32 v{vK+8*p+7-2*dq}, 16, v{vU+4*p+dq}")
                a(f"v_and_b32 v{vK+8*p+6-2*dq}, 0xffff0000, v{vU+4*p+dq}")
        for i in range(16):
            a(f"v_mul_f32 v{vK+i}, s{sD}, v{vK+i}")
        for i in range(8):
            round_pair(a, vK + 2 * i, vK + 2 * i + 1)
        lds_wait_flag(a, vFL, 16 + 4 * oth, t, "CX")
        vR = vB
        for q in range(4):
            a(f"ds_read_b128 {vr(vR+4*q,4)}, v{vEXR} offset:{1024*q}")
        a("s_waitcnt lgkmcnt(0)")
        y = vAC + 16 * own
        for i in range(8):
            a(f"v_pk_add_f32 {vr(y+2*i,2)}, {vr(y+2*i,2)}, {vr(vR+2*i,2)}")
        for i in range(8):
            round_pair(a, y + 2 * i, y + 2 * i + 1)
        for i in range(8):
            a(f"v_pk_add_f32 {vr(y+2*i,2)}, {vr(y+2*i,2)}, {vr(vK+2*i,2)}")
        for i in range(8):
            a(f"v_cvt_pk_bf16_f32 v{vB+16+i}, v{y+2*i}, v{y+2*i+1}")
        a(f"buffer_store_dwordx4 {vr(vB+16,4)}, v{vTA}, {sr(R_WS,4)}, s{sT0} offen sc1")
        a(f"buffer_store_dwordx4 {vr(vB+20,4)}, v{vTA}, {sr(R_WS,4)}, s{sT0} offen offset:64 sc1")
        a.stamp()
        if half == 0:
            a("s_branch B_FINAL")
    a.label("B_FINAL")
    b_final(a)


def b_final(a):
    t = 12
    vXO, vF_, vTG, vTW, vTR, vRR, vST2 = 7, 8, 9, 10, 11, 25, 26
    sT2 = sW2
    srd(a, R_O, S_OUT, SZ_X)
    a(f"""
    s_lshl_b32 s{sT0}, s{sE}, 6
    s_lshl_b32 s{sT1}, s{sCHL}, 5
    s_add_u32 s{sT0}, s{sT0}, s{sT1}
    v_and_b32 v{t}, 31, v{vL}
    v_add_u32 v{t+1}, s{sT0}, v{t}
    v_lshlrev_b32 v{t+2}, 3, v{t+1}
    v_add_u32 v{t+2}, {WS_STATS}, v{t+2}
    v_mul_u32_u24 v{vXO}, 896, v{t+1}
    v_lshrrev_b32 v{t+3}, 5, v{vL}
    v_lshl_add_u32 v{vXO}, v{t+3}, 3, v{vXO}
    s_lshl_b32 s{sXO}, s{sG2C}, 6
    s_lshl_b32 s{sT1}, s{sHF}, 5
    s_add_u32 s{sXO}, s{sXO}, s{sT1}
    s_lshl_b32 s{sT1}, s{sXO}, 1
    v_add_u32 v{vXO}, s{sT1}, v{vXO}
    s_lshl_b32 s{sWO}, s{sT0}, 1
    s_add_u32 s{sWO}, s{sWO}, {WS_T}
    s_add_u32 s{sT2}, s{sWO}, {16*4096}
    s_lshr_b32 s{sT0}, s{sE}, 4
    s_mul_i32 s{sT0}, s{sT0}, 448
    s_add_u32 s{sT0}, s{sT0}, s{sXO}
    s_lshl_b32 s{sT0}, s{sT0}, 7
    s_add_u32 s{sT0}, s{sT0}, {WS_FLT}
    v_lshl_add_u32 v{vF_}, v{t}, 7, s{sT0}
    v_lshrrev_b32 v{t}, 2, v{vL}
    v_add_u32 v{t}, s{sXO}, v{t}
    v_lshlrev_b32 v{t}, 12, v{t}
    v_and_b32 v{t+1}, 3, v{vL}
    v_lshl_add_u32 v{vTG}, v{t+1}, 4, v{t}
    s_lshl_b32 s{sT1}, s{sHF}, 11
    s_add_u32 s{sT1}, s{sT1}, s{sAB}
    s_add_u32 s{sT1}, s{sT1}, 8192
    v_add_u32 v{vTW}, s{sT1}, v{vLB}
    v_bfe_u32 v{t}, v{vL}, 2, 2
    v_lshl_add_u32 v{t}, v{t+3}, 2, v{t}
    v_lshlrev_b32 v{t}, 6, v{t}
    v_bfe_u32 v{t+4}, v{vL}, 4, 1
    v_lshl_add_u32 v{t}, v{t+4}, 5, v{t}
    v_lshl_add_u32 v{t}, v{t+1}, 3, v{t}
    v_add_u32 v{vTR}, s{sT1}, v{t}
    s_lshl_b32 s{sT1}, s{sCQ}, 14
    s_add_u32 s{sT1}, s{sT1}, {WENT[0]}
    v_add_u32 v{vRR}, s{sT1}, v{vLB}
    v_lshlrev_b32 v{t+4}, 2, v{t+1}
    v_add_u32 v{t+4}, {L_FLAG + 64}, v{t+4}
    s_waitcnt vmcnt(0)
    s_mov_b64 exec, 1
    buffer_store_dword v{vONE}, v{vZ}, {sr(R_WS,4)}, s{sTMP} offen sc1
    s_mov_b64 exec, -1
    """)
    a.stamp()
    vXV, vTT, vTD = 28, 36, 44
    vX, vXN, vP, vE, vS = 52, 68, 84, 148, 164
    for i in range(4):
        a(f"buffer_load_dwordx2 {vr(vXV+2*i,2)}, v{vXO}, {sr(R_X,4)}, 0 offen offset:{16*i}")
    a(f"buffer_load_dwordx2 {vr(vST2,2)}, v{t+2}, {sr(R_WS,4)}, 0 offen sc1")
    lds_wait_flag(a, t + 4, 16, t + 3, "TG", sleep=True)
    gpoll(a, vF_, "BT", False, 8)
    a(f"buffer_load_dwordx4 {vr(vTT,4)}, v{vTG}, {sr(R_WS,4)}, s{sWO} offen sc1")
    a(f"buffer_load_dwordx4 {vr(vTT+4,4)}, v{vTG}, {sr(R_WS,4)}, s{sT2} offen sc1")
    a.stamp()
    for i in range(8):
        a(f"v_lshlrev_b32 v{vX+2*i}, 16, v{vXV+i}")
        a(f"v_and_b32 v{vX+2*i+1}, 0xffff0000, v{vXV+i}")
    for i in range(16):
        a(f"v_sub_f32 v{vXN+i}, v{vX+i}, v{vST2}")
    for i in range(8):
        round_pair(a, vXN + 2 * i, vXN + 2 * i + 1)
    for i in range(16):
        a(f"v_mul_f32 v{vXN+i}, v{vXN+i}, v{vST2+1}")
    for i in range(8):
        round_pair(a, vXN + 2 * i, vXN + 2 * i + 1)
    a("s_waitcnt vmcnt(0)")
    a(f"ds_write_b128 v{vTW}, {vr(vTT,4)}")
    a(f"ds_write_b128 v{vTW}, {vr(vTT+4,4)} offset:1024")
    a("s_waitcnt lgkmcnt(0)")
    for i in range(4):
        a(f"ds_read_b64_tr_b16 {vr(vTD+2*i,2)}, v{vTR} offset:{512*i}")
    a("s_waitcnt lgkmcnt(0)")
    for i in range(8):
        a(f"v_lshlrev_b32 v{vS+2*i}, 16, v{vTD+i}")
        a(f"v_and_b32 v{vS+2*i+1}, 0xffff0000, v{vTD+i}")
    for i in range(8):
        a(f"v_pk_mul_f32 {vr(vS+2*i,2)}, {vr(vS+2*i,2)}, {vr(vXN+2*i,2)}")
    for i in range(8):
        round_pair(a, vS + 2 * i, vS + 2 * i + 1)
    a(f"s_mov_b32 s{sW2}, {f32bits(-1.4426950408889634)}")
    a.stamp()
    lds_wait_flag(a, t + 4, 0, t + 3, "GR", sleep=True)
    a.stamp()
    for src in range(4):
        for q in range(4):
            a(f"ds_read_b128 {vr(vP+16*src+4*q,4)}, v{vRR} offset:{src*4096+q*1024}")
    a("s_waitcnt lgkmcnt(8)")
    for i in range(8):
        a(f"v_pk_add_f32 {vr(vP+2*i,2)}, {vr(vP+2*i,2)}, {vr(vP+16+2*i,2)}")
    a("s_waitcnt lgkmcnt(0)")
    for i in range(8):
        a(f"v_pk_add_f32 {vr(vP+32+2*i,2)}, {vr(vP+32+2*i,2)}, {vr(vP+48+2*i,2)}")
    for i in range(8):
        a(f"v_pk_add_f32 {vr(vP+2*i,2)}, {vr(vP+2*i,2)}, {vr(vP+32+2*i,2)}")
    for i in range(8):
        round_pair(a, vP + 2 * i, vP + 2 * i + 1)
    for i in range(16):
        a(f"v_mul_f32 v{vE+i}, s{sW2}, v{vP+i}")
    for i in range(16):
        a(f"v_exp_f32 v{vE+i}, v{vE+i}")
    for i in range(16):
        a(f"v_add_f32 v{vE+i}, 1.0, v{vE+i}")
    for i in range(16):
        a(f"v_rcp_f32 v{vE+i}, v{vE+i}")
    a("s_nop 0")
    for i in range(8):
        a(f"v_pk_mul_f32 {vr(vP+2*i,2)}, {vr(vP+2*i,2)}, {vr(vE+2*i,2)}")
    for i in range(8):
        round_pair(a, vP + 2 * i, vP + 2 * i + 1)
    for i in range(8):
        a(f"v_pk_mul_f32 {vr(vS+2*i,2)}, {vr(vS+2*i,2)}, {vr(vP+2*i,2)}")
    for i in range(8):
        round_pair(a, vS + 2 * i, vS + 2 * i + 1)
    for i in range(8):
        a(f"v_pk_add_f32 {vr(vS+2*i,2)}, {vr(vS+2*i,2)}, {vr(vX+2*i,2)}")
    for i in range(8):
        a(f"v_cvt_pk_bf16_f32 v{vTT+i}, v{vS+2*i}, v{vS+2*i+1}")
    for i in range(4):
        a(f"buffer_store_dwordx2 {vr(vTT+2*i,2)}, v{vXO}, {sr(R_O,4)}, 0 offen offset:{16*i}")
    if PROF:
        a("s_waitcnt vmcnt(0)")
    a.stamp()
    a.stamp_flush()
    a("s_endpgm")


def role_prep2(a):
    R_K, R_V, R_SH = 76, 80, 84
    sB = 4
    vTID = 0
    vTB, vCG = 3, 4
    vO0, vO1, vOH, vOS = 5, 6, 7, 8
    t = 9
    vXS, vWC, vKR, vVR, vSH, vCA = 24, 52, 108, 152, 184, 120
    a(f"""
    s_sub_u32 s{sB}, s2, 224
    s_lshl_b32 s5, s{sB}, 6
    v_lshrrev_b32 v{t}, 3, v{vTID}
    v_add_u32 v{t+1}, s5, v{t}
    v_mul_u32_u24 v{t+1}, 896, v{t+1}
    v_and_b32 v{t+2}, 7, v{vTID}
    v_lshl_add_u32 v{t+1}, v{t+2}, 4, v{t+1}
    s_cmp_ge_u32 s{sB}, 14
    s_cselect_b32 s6, 14, 0
    s_sub_u32 s6, s{sB}, s6
    v_lshrrev_b32 v{t+3}, 4, v{vTID}
    v_mul_u32_u24 v{t+3}, 3584, v{t+3}
    v_and_b32 v{t+4}, 15, v{vTID}
    v_lshl_add_u32 v{t+3}, v{t+4}, 4, v{t+3}
    s_lshl_b32 s9, s6, 8
    v_mov_b32 v{vZ}, 0
    s_waitcnt lgkmcnt(0)
    s_cmp_ge_u32 s{sB}, 14
    s_cselect_b32 s{R_W}, s{S_WU}, s{S_WG}
    s_cselect_b32 s{R_W+1}, s{S_WU+1}, s{S_WG+1}
    s_and_b32 s{R_W+1}, s{R_W+1}, 0xffff
    s_mov_b32 s{R_W+2}, {SZ_W}
    s_mov_b32 s{R_W+3}, 0x20000
    s_cmp_ge_u32 s{sB}, 28
    s_cselect_b32 s{R_W+2}, 0, s{R_W+2}
    """)
    srd(a, R_X, S_X, SZ_X)
    srd(a, R_DBG, S_DBG, 256)
    a(f"""
    s_add_u32 s{sT0}, s{sB}, s3
    s_cmp_lg_u32 s{sT0}, 0
    s_cbranch_scc1 P_NOTAG
    s_memrealtime s[{sSP}:{sSP+1}]
    s_waitcnt lgkmcnt(0)
    s_lshl_b32 s{sSP+1}, s{sSP+1}, 29
    s_xor_b32 s{sSP}, s{sSP}, s{sSP+1}
    s_or_b32 s{sSP}, s{sSP}, 1
    v_mov_b32 v{vONE}, s{sSP}
    s_mov_b64 exec, 1
    buffer_store_dword v{vONE}, v{vZ}, {sr(R_DBG,4)}, 0 offen sc1
    s_mov_b64 exec, -1
    """)
    a.label("P_NOTAG")
    for i in range(14):
        a.vmem(f"buffer_load_dwordx4 {vr(vWC+4*i,4)}, v{t+3}, {sr(R_W,4)}, s9 offen", f"C{i}")
        if i < 13:
            a(f"s_add_u32 s9, s9, {32*3584}")
    for i in range(7):
        a.vmem(f"buffer_load_dwordx4 {vr(vXS+4*i,4)}, v{t+1}, {sr(R_X,4)}, 0 offen offset:{128*i}", "X")
    a(f"""
    v_mul_u32_u24 v{vTB}, 1171, v{vTID}
    v_lshrrev_b32 v{vTB}, 16, v{vTB}
    v_mul_u32_u24 v{vCG}, 56, v{vTB}
    v_sub_u32 v{vCG}, v{vTID}, v{vCG}
    v_lshl_add_u32 v{vO0}, v{vTB}, 3, s5
    v_mul_u32_u24 v{vO0}, 896, v{vO0}
    v_lshl_add_u32 v{vO0}, v{vCG}, 4, v{vO0}
    v_add_u32 v{vO1}, {4*896}, v{vO0}
    v_subrev_u32 v{vOH}, {3*896}, v{vO0}
    v_lshlrev_b32 v{vOS}, 6, v{vCG}
    """)
    srd(a, R_K, S_K, SZ_X)
    srd(a, R_V, S_V, SZ_X)
    srd(a, R_SH, S_SHK, SZ_SHK)
    srd(a, R_WS, S_WS, WS_END)
    for i in range(8):
        a(f"v_mov_b32 v{vCA+i}, 0")
    vUP = 108
    kvl = []
    G12.unit_loads(a)
    for i in range(14):
        a.vm_wait(f"C{i}")
        if i == 0:
            a.stamp()
        for d in range(4):
            a(f"v_lshlrev_b32 v{vUP+2*d}, 16, v{vWC+4*i+d}")
            a(f"v_and_b32 v{vUP+2*d+1}, 0xffff0000, v{vWC+4*i+d}")
        for d in range(4):
            a(f"v_pk_add_f32 {vr(vCA+2*d,2)}, {vr(vCA+2*d,2)}, {vr(vUP+2*d,2)}")
        for _ in range(2):
            if kvl:
                a.vmem(kvl.pop(0), "KV")
    a(f"""
    v_lshlrev_b32 v{t+5}, 5, v{vTID}
    v_add_u32 v{t+5}, 65536, v{t+5}
    ds_write_b128 v{t+5}, {vr(vCA,4)}
    ds_write_b128 v{t+5}, {vr(vCA+4,4)} offset:16
    """)
    vS1, vS2, vON = t + 5, t + 6, t + 4
    a(f"v_mov_b32 v{vS1}, 0")
    a(f"v_mov_b32 v{vS2}, 0")
    a(f"v_mov_b32 v{vON}, 0x3f803f80")
    a.vm_wait("X")
    for i in range(28):
        a(f"v_dot2c_f32_bf16 v{vS1}, v{vXS+i}, v{vON}")
        a(f"v_dot2c_f32_bf16 v{vS2}, v{vXS+i}, v{vXS+i}")
    a("s_nop 3")
    for mode in ("quad_perm:[1,0,3,2]", "quad_perm:[2,3,0,1]", "row_half_mirror"):
        a(f"v_add_f32_dpp v{vS1}, v{vS1}, v{vS1} {mode} row_mask:0xf bank_mask:0xf")
        a(f"v_add_f32_dpp v{vS2}, v{vS2}, v{vS2} {mode} row_mask:0xf bank_mask:0xf")
        a("s_nop 1")
    a(f"""
    s_mov_b32 s8, {f32bits(1.0/448.0)}
    s_mov_b32 s9, {f32bits(1e-5)}
    v_mul_f32 v{vS1}, s8, v{vS1}
    v_mul_f32 v{vS2}, s8, v{vS2}
    v_fma_f32 v{vS2}, -v{vS1}, v{vS1}, v{vS2}
    v_max_f32 v{vS2}, 0, v{vS2}
    v_cvt_pk_bf16_f32 v{vS2}, v{vS1}, v{vS2}
    v_lshlrev_b32 v{vXS}, 16, v{vS2}
    v_and_b32 v{vS2}, 0xffff0000, v{vS2}
    v_add_f32 v{vS2}, s9, v{vS2}
    v_cvt_pk_bf16_f32 v{vS2}, v{vS2}, v{vS2}
    v_and_b32 v{vS2}, 0xffff0000, v{vS2}
    v_sqrt_f32 v{vS2}, v{vS2}
    s_nop 0
    v_cvt_pk_bf16_f32 v{vS2}, v{vS2}, v{vS2}
    v_and_b32 v{vS2}, 0xffff0000, v{vS2}
    v_rcp_f32 v{vXS+1}, v{vS2}
    v_lshlrev_b32 v{t}, 3, v{t}
    v_add_u32 v{t}, 98304, v{t}
    ds_write_b64 v{t}, {vr(vXS,2)}
    s_waitcnt lgkmcnt(0)
    s_barrier
    s_cmp_lg_u32 s3, 7
    s_cbranch_scc1 P_KV
    s_setprio 3
    s_waitcnt vmcnt(0)
    """)
    a(f"""
    buffer_load_dword v{vONE}, v{vZ}, {sr(R_DBG,4)}, 0 offen sc1
    v_lshlrev_b32 v{t+1}, 3, v{vL}
    v_add_u32 v{t+2}, 65536, v{t+1}
    v_add_u32 v{t+3}, 98304, v{t+1}
    ds_read_b64 {vr(vXS,2)}, v{t+3}
    """)
    for i in range(32):
        a(f"ds_read_b64 {vr(vWC+2*i,2)}, v{t+2} offset:{512*i}")
    a(f"""
    s_lshl_b32 s7, s{sB}, 9
    s_add_u32 s7, s7, {WS_STATS}
    v_lshrrev_b32 v{t+2}, 3, v{vL}
    v_lshlrev_b32 v{t+2}, 7, v{t+2}
    v_and_b32 v{t+3}, 7, v{vL}
    v_lshl_add_u32 v{t+2}, v{t+3}, 3, v{t+2}
    s_lshl_b32 s8, s6, 10
    s_cmp_ge_u32 s{sB}, 14
    s_cselect_b32 s9, 64, 0
    s_add_u32 s8, s8, s9
    s_add_u32 s8, s8, {WS_CS}
    s_cmp_ge_u32 s{sB}, 28
    s_cselect_b32 s8, 0x7f000000, s8
    s_waitcnt lgkmcnt(0)
    buffer_store_dwordx2 {vr(vXS,2)}, v{t+1}, {sr(R_WS,4)}, s7 offen sc1
    """)
    n = 32
    while n > 1:
        n //= 2
        for i in range(n):
            a(f"v_pk_add_f32 {vr(vWC+2*i,2)}, {vr(vWC+2*i,2)}, {vr(vWC+2*(i+n),2)}")
    a(f"""
    buffer_store_dwordx2 {vr(vWC,2)}, v{t+2}, {sr(R_WS,4)}, s8 offen sc1
    s_mov_b32 s{sSP}, 0
    """)
    a.label("P_TAGL")
    a(f"""
    s_waitcnt vmcnt(0)
    v_readfirstlane_b32 s{sSP+1}, v{vONE}
    s_add_u32 s{sSP}, s{sSP}, 1
    s_cmp_gt_u32 s{sSP}, 0x4000
    s_cbranch_scc1 P_TAGOK
    s_cmp_lg_u32 s{sSP+1}, 0
    s_cbranch_scc1 P_TAGOK
    s_sleep 4
    buffer_load_dword v{vONE}, v{vZ}, {sr(R_DBG,4)}, 0 offen sc1
    s_branch P_TAGL
    """)
    a.label("P_TAGOK")
    a(f"""
    s_lshl_b32 s7, s{sB}, 7
    s_add_u32 s7, s7, {WS_FLU + 256*128}
    s_mov_b64 exec, 1
    buffer_store_dword v{vONE}, v{vZ}, {sr(R_WS,4)}, s7 offen sc1
    s_mov_b64 exec, -1
    """)
    a.stamp()
    a.label("P_KV")
    a.vm_all()
    up = G12.unit_pieces(a)
    for f in up[4:11]:
        f()
    a("s_waitcnt lgkmcnt(0)")
    a("s_barrier")
    up[11]()
    a("s_waitcnt vmcnt(0)")
    a(f"""
    s_barrier
    s_cmp_lg_u32 s3, 7
    s_cbranch_scc1 P_NOSIG1
    s_lshl_b32 s7, s2, 7
    s_add_u32 s7, s7, {WS_FLU}
    s_mov_b64 exec, 1
    buffer_store_dword v{vONE}, v{vZ}, {sr(R_WS,4)}, s7 offen sc1
    s_mov_b64 exec, -1
    """)
    a.label("P_NOSIG1")
    a.stamp()
    a("s_barrier")
    if int(os.environ.get("WPF3", 1)):
        srd(a, R_WD, S_WD, SZ_W)
        a(f"""
        s_lshr_b32 s5, s{sB}, 3
        s_mul_i32 s5, s5, 401408
        s_add_u32 s9, s5, 200704
        v_lshlrev_b32 v{t}, 7, v{vTID}
        """)
        for i in range(4):
            off = i * 65536
            a(f"s_add_u32 s8, s9, {off}")
            if i == 3:
                a(f"v_cmp_gt_u32 vcc, {(200704 - off)//128}, v{vTID}")
                a("s_and_saveexec_b64 s[10:11], vcc")
                a("s_cbranch_execz P_PF1")
            a(f"buffer_load_dword v{t+1}, v{t}, {sr(R_WD,4)}, s8 offen")
            if i == 3:
                a.label("P_PF1")
                a("s_mov_b64 exec, s[10:11]")
    a.stamp_flush()
    a("s_endpgm")


def gen(a):
    a.lines.append(f".globl {KNAME}\n.p2align 8\n.type {KNAME},@function")
    a.label(KNAME)
    a("s_cmp_ge_u32 s2, 256")
    a("s_cbranch_scc1 K_END")
    if int(os.environ.get("REMAP", 1)):
        a("s_add_u32 s2, s2, 224")
        a("s_and_b32 s2, s2, 255")
    a.stamp()
    a("""
    s_load_dwordx16 s[16:31], s[0:1], 0
    s_load_dwordx8 s[32:39], s[0:1], 64
    s_load_dwordx2 s[40:41], s[0:1], 96
    v_lshrrev_b32 v1, 6, v0
    v_and_b32 v2, 63, v0
    s_nop 0
    v_readfirstlane_b32 s3, v1
    s_cmp_ge_u32 s2, 224
    s_cbranch_scc1 K_PREP
    """)
    wg_map(a)
    dma_setup(a, 12)
    a("s_cmp_ge_u32 s3, 4")
    a("s_cbranch_scc1 K_B")
    role_g(a)
    a.label("K_B")
    a.vm, a.nst = [], 1
    role_b(a)
    a.label("K_PREP")
    a.vm, a.nst = [], 1
    role_prep2(a)
    a.label("K_END")
    a("s_endpgm")


def main():
    HEADER = open("cdna_kernels/" + NAME + ".s.ref").read().split("; Override launch")[0]
    a = Asm()
    gen(a)
    out = HEADER
    out += f"; @launch grid=(256,1,1) block=(512,1,1) lds={LDS_BYTES}\n"
    out += '.amdgcn_target "amdgcn-amd-amdhsa--gfx950"\n.text\n'
    out += a.text()
    out += '.section .rodata,"a"\n.p2align 6\n'
    out += descriptor(KNAME, 256, 102)
    path = sys.argv[1] if len(sys.argv) > 1 else "cdna_kernels/" + NAME + ".s"
    open(path, "w").write(out)


if __name__ == "__main__":
    main()
```

```python
import sys, os
from gen2 import (Asm, vr, sr, srd, round_pair, newlabel, f32bits, descriptor, NAME, KNAME, PROF,
                  S_X, S_K, S_V, S_SHK, S_SSMK, S_SSMD, S_WG, S_WU, S_WD, S_OUT, S_DBG, S_WS,
                  R_X, R_W, R_WS, R_DBG, R_A, R_B, SZ_X, SZ_W, SZ_SHK)
import gen12 as G12
from gen12 import (WS_H, WS_KVR, WS_T, WS_STATS, WS_CS, WS_FLU, WS_FLH, WS_FLT, WS_END, SLOT, LDS_BYTES, USCR,
                   CV_ST, CV_A, CV_U, CV_UP, role_prep, explode, vONE, vZ, vL, sSP, sT0, sT1, tag_issue)

STM = int(os.environ.get("STM", 0))
KVE = int(os.environ.get("KVE", 1))
PE = bool(int(os.environ.get("PE", 1)))
HFL = os.environ.get("HFL", " sc1")
BPRIO = int(os.environ.get("BPRIO", 2))
TGATE = int(os.environ.get("TGATE", 8))
P0ST = int(os.environ.get("P0ST", 5))
SIGST = int(os.environ.get("SIGST", 1))
WENT = [49152 + 16384 * i for i in range(7)]
L_FLAG = 45568
sRB, sCB, sE, sCQ = 4, 5, 6, 10
sXO, sWO, sM0X, sM0W, sTMP = 11, 12, 13, 14, 15
s2RB, s2CB, sCH, sUB, sAB, sD, sW2 = 18, 19, 20, 21, 22, 23, 28
sWB, sHF, sCHL, sHO, sG2C = 29, 68, 69, 70, 9
R_WD, R_O, R_H, R_W2 = R_A, R_B, 92, 88
vLB, vPOLL = 1, 21


MAP = int(os.environ.get("MAP", 0))
HPF = int(os.environ.get("HPF", 0))
MAXH = int(os.environ.get("MAXH", 4))


def wg_map(a):
    a(f"""
    s_and_b32 s{sT0}, s2, 7
    s_lshr_b32 s{sT1}, s2, 3
    s_mul_i32 s{sRB}, s{sT1}, 37
    s_lshr_b32 s{sRB}, s{sRB}, 8
    s_mul_i32 s{sCB}, s{sRB}, 7
    s_sub_u32 s{sCB}, s{sT1}, s{sCB}
    s_mov_b32 s{sXO}, s{sCB}
    """)
    if MAP == 2:
        a(f"""
        s_lshl_b32 s{sWO}, s{sT0}, 2
        s_add_u32 s{sWO}, s{sWO}, s{sRB}
        s_and_b32 s{sT1}, s{sRB}, 1
        s_mul_i32 s{sT1}, s{sT1}, 7
        s_add_u32 s{sCB}, s{sCB}, s{sT1}
        s_lshr_b32 s{sRB}, s{sRB}, 1
        s_lshl_b32 s{sT1}, s{sT0}, 1
        s_add_u32 s{sRB}, s{sRB}, s{sT1}
        """)
    else:
        if MAP == 1:
            a(f"""
            s_and_b32 s{sWO}, s{sT0}, 3
            s_lshl_b32 s{sWO}, s{sWO}, 3
            s_lshr_b32 s{sT1}, s{sT0}, 2
            s_lshl_b32 s{sT1}, s{sT1}, 2
            s_add_u32 s{sWO}, s{sWO}, s{sT1}
            s_add_u32 s{sWO}, s{sWO}, s{sRB}
            """)
        else:
            a(f"""
            s_lshl_b32 s{sWO}, s{sT0}, 2
            s_add_u32 s{sWO}, s{sWO}, s{sRB}
            """)
        a(f"""
        s_and_b32 s{sT1}, s{sT0}, 3
        s_lshl_b32 s{sT1}, s{sT1}, 2
        s_add_u32 s{sRB}, s{sRB}, s{sT1}
        s_lshr_b32 s{sT1}, s{sT0}, 2
        s_mul_i32 s{sT1}, s{sT1}, 7
        s_add_u32 s{sCB}, s{sCB}, s{sT1}
        """)
    a(f"""
    s_and_b32 s{sCQ}, s3, 3
    v_lshlrev_b32 v{vLB}, 4, v{vL}
    v_mov_b32 v{vZ}, 0
    """)


def lds_wait_flag(a, vaddr, off, vtmp, name, sleep=False):
    L, Lok = newlabel(name), newlabel(name + "OK")
    a(f"s_mov_b32 s{sSP}, 0")
    a.label(L)
    if sleep:
        a("s_sleep 1")
    a(f"""
    ds_read_b32 v{vtmp}, v{vaddr} offset:{off}
    s_add_u32 s{sSP}, s{sSP}, 1
    s_cmp_gt_u32 s{sSP}, 0x100000
    s_cbranch_scc1 {Lok}
    s_waitcnt lgkmcnt(0)
    v_cmp_eq_u32 vcc, v{vONE}, v{vtmp}
    s_nop 3
    s_cmp_eq_u64 vcc, exec
    s_cbranch_scc0 {L}
    """)
    a.label(Lok)
    a("s_waitcnt lgkmcnt(0)")


def gpoll(a, vaddr, name, first_loaded, sleep=8):
    L, Lok = newlabel(name), newlabel(name + "OK")
    a(f"s_mov_b32 s{sSP}, 0")
    if not first_loaded:
        a(f"buffer_load_dword v{vPOLL}, v{vaddr}, {sr(R_WS,4)}, 0 offen sc1")
        a("s_waitcnt vmcnt(0)")
    a.label(L)
    a(f"""
    v_cmp_eq_u32 vcc, v{vONE}, v{vPOLL}
    s_add_u32 s{sSP}, s{sSP}, 1
    s_cmp_gt_u32 s{sSP}, 0x10000
    s_cbranch_scc1 {Lok}
    s_cmp_eq_u64 vcc, exec
    s_cbranch_scc1 {Lok}
    s_sleep {sleep}
    buffer_load_dword v{vPOLL}, v{vaddr}, {sr(R_WS,4)}, 0 offen sc1
    s_waitcnt vmcnt(0)
    s_branch {L}
    """)
    a.label(Lok)


vXG0, vXG1, vWG = 246, 247, 248


def dma_setup(a, t):
    a(f"""
    v_lshrrev_b32 v{t}, 3, v{vL}
    v_lshrrev_b32 v{t+1}, 4, v{vL}
    v_and_b32 v{t+2}, 7, v{vL}
    s_lshl_b32 s{sT0}, s{sRB}, 7
    s_lshl_b32 s{sT1}, s{sCQ}, 5
    s_add_u32 s{sT0}, s{sT0}, s{sT1}
    v_add_u32 v{t}, s{sT0}, v{t}
    v_mul_u32_u24 v{t}, 896, v{t}
    v_xor_b32 v{t+3}, v{t+2}, v{t+1}
    v_lshl_add_u32 v{vXG0}, v{t+3}, 4, v{t}
    v_xor_b32 v{t+3}, 4, v{t+3}
    v_lshl_add_u32 v{vXG1}, v{t+3}, 4, v{t}
    v_add_u32 v{vXG1}, {8*896}, v{vXG1}
    s_lshr_b32 s{sCHL}, s{sCQ}, 1
    s_and_b32 s{sHF}, s{sCQ}, 1
    v_and_b32 v{t+2}, 15, v{vL}
    v_lshlrev_b32 v{t+3}, 2, v{t+1}
    v_xor_b32 v{t+2}, v{t+2}, v{t+3}
    s_lshl_b32 s{sT0}, s{sCHL}, 1
    v_xor_b32 v{t+2}, s{sT0}, v{t+2}
    s_lshl_b32 s{sT1}, s{sHF}, 5
    v_add_u32 v{t+3}, s{sT1}, v{t+1}
    v_mul_u32_u24 v{t+3}, 3584, v{t+3}
    v_lshl_add_u32 v{vWG}, v{t+2}, 4, v{t+3}
    s_lshl_b32 s{sT0}, s{sCB}, 8
    v_add_u32 v{vWG}, s{sT0}, v{vWG}
    s_lshl_b32 s{sM0X}, s{sCQ}, 12
    s_lshl_b32 s{sM0W}, s{sCQ}, 13
    s_add_u32 s{sM0W}, s{sM0W}, 16384
    s_mov_b32 s{sE}, s{sWO}
    s_mov_b32 s{sG2C}, s{sXO}
    s_waitcnt lgkmcnt(0)
    """)
    srd(a, R_X, S_X, SZ_X)
    a(f"""
    s_cmp_eq_u32 s{sCHL}, 0
    s_cselect_b32 s{R_W}, s{S_WG}, s{S_WU}
    s_cselect_b32 s{R_W+1}, s{S_WG+1}, s{S_WU+1}
    s_and_b32 s{R_W+1}, s{R_W+1}, 0xffff
    s_mov_b32 s{R_W+2}, {SZ_W}
    s_mov_b32 s{R_W+3}, 0x20000
    """)


def dma(a, st):
    slot = (st % 3) * SLOT
    for j in range(8):
        a(f"s_mov_b32 s{sWO}, {st*64*3584 + j*4*3584}")
        a(f"s_add_u32 m0, s{sM0W}, {slot+1024*j}")
        a("s_nop 0")
        a.vmem(f"buffer_load_dwordx4 v{vWG}, {sr(R_W,4)}, s{sWO} offen lds", f"A{st}")
        if j % 2 == 1:
            i = j // 2
            a(f"s_mov_b32 s{sXO}, {st*128 + (i//2)*16*896}")
            a(f"s_add_u32 m0, s{sM0X}, {slot+1024*i}")
            a("s_nop 0")
            a.vmem(f"buffer_load_dwordx4 v{vXG1 if i%2 else vXG0}, {sr(R_X,4)}, s{sXO} offen lds", f"A{st}")


GDMA = [int(c) for c in os.environ.get("GDMA", "0")]


def unit_g(a):
    R_K, R_V, R_SH = 76, 80, 84
    O = 64
    t = 12
    uA = 24 + O
    uK, uV, uW = 32 + O, 43 + O, 52 + O
    uKU, uWU, uAC, uVU, uO = 64 + O, 86 + O, 94 + O, 110 + O, 112 + O

    def loads():
        srd(a, R_K, S_K, SZ_X)
        srd(a, R_V, S_V, SZ_X)
        srd(a, R_SH, S_SHK, SZ_SHK)
        a(f"""
        v_cmp_le_u32 vcc, 28, v{vL}
        v_mov_b32 v{uA+4}, 0x7f000000
        s_and_b32 s{sT0}, s2, 7
        v_cndmask_b32 v{uA}, 0, 1, vcc
        v_mul_u32_u24 v{uA+1}, 28, v{uA}
        v_sub_u32 v{uA+1}, v{vL}, v{uA+1}
        s_and_b32 s{sT1}, s2, 0xf8
        s_lshl_b32 s{sTMP}, s{sCQ}, 1
        s_add_u32 s{sT1}, s{sT1}, s{sTMP}
        s_mul_i32 s{sT1}, s{sT1}, {8*896}
        s_mul_i32 s{sT0}, s{sT0}, 112
        s_add_u32 s{sT1}, s{sT1}, s{sT0}
        v_mul_u32_u24 v{uA+2}, {8*896}, v{uA}
        v_lshl_add_u32 v{uA+2}, v{uA+1}, 2, v{uA+2}
        v_add_u32 v{uA+2}, s{sT1}, v{uA+2}
        v_cmp_le_u32 vcc, 56, v{vL}
        v_subrev_u32 v{uA+3}, {3*896}, v{uA+2}
        s_lshl_b32 s{sT0}, s{sT0}, 2
        v_cndmask_b32 v{uA+2}, v{uA+2}, v{uA+4}, vcc
        v_cndmask_b32 v{uA+3}, v{uA+3}, v{uA+4}, vcc
        v_lshl_add_u32 v{uA+5}, v{uA+1}, 4, s{sT0}
        s_lshl_b32 s{sT0}, s2, 3
        s_add_u32 s{sT0}, s{sT0}, s{sTMP}
        s_mul_i32 s{sT0}, s{sT0}, 896
        v_add_u32 v{t}, s{sT0}, v{vLB}
        v_cndmask_b32 v{t}, v{t}, v{uA+4}, vcc
        s_mov_b32 s{sT1}, {4*896}
        """)
        a.vmem(f"buffer_load_dwordx4 {vr(uW,4)}, v{uA+5}, {sr(R_SH,4)}, 0 offen", "UK")
        for i in range(3):
            a.vmem(f"buffer_load_dword v{uK+i}, v{uA+3}, {sr(R_K,4)}, 0 offen offset:{896*i}", "UK")
        for i in range(8):
            a.vmem(f"buffer_load_dword v{uK+3+i}, v{uA+2}, {sr(R_K,4)}, {'0' if i<4 else 's%d'%sT1} offen offset:{896*(i&3)}", "UK")
        for i in range(8):
            a.vmem(f"buffer_load_dword v{uV+i}, v{uA+2}, {sr(R_V,4)}, {'0' if i<4 else 's%d'%sT1} offen offset:{896*(i&3)}", "UK")


    def chunk_kv():
        a.vm_wait("UK")
        for r in range(11):
            a(f"v_lshlrev_b32 v{uKU+2*r}, 16, v{uK+r}")
            a(f"v_and_b32 v{uKU+2*r+1}, 0xffff0000, v{uK+r}")
        for h in range(2):
            a(f"v_lshlrev_b32 v{uWU+0+h}, 16, v{uW+2*h}")
            a(f"v_and_b32 v{uWU+2+h}, 0xffff0000, v{uW+2*h}")
            a(f"v_lshlrev_b32 v{uWU+4+h}, 16, v{uW+2*h+1}")
            a(f"v_and_b32 v{uWU+6+h}, 0xffff0000, v{uW+2*h+1}")
        kv_rows(range(0, 3))

    def kv_rows(rows):
        w = lambda j: vr(uWU + 2 * j, 2)
        for r in rows:
            ac = vr(uAC + 2 * r, 2)
            a(f"v_pk_mul_f32 {ac}, {vr(uKU+2*r,2)}, {w(3)}")
            a(f"v_pk_fma_f32 {ac}, {vr(uKU+2*(r+1),2)}, {w(2)}, {ac}")
            a(f"v_pk_fma_f32 {ac}, {vr(uKU+2*(r+2),2)}, {w(1)}, {ac}")
            a(f"v_pk_fma_f32 {ac}, {vr(uKU+2*(r+3),2)}, {w(0)}, {ac}")
            a(f"v_cvt_pk_bf16_f32 v{uAC+2*r+1}, v{uAC+2*r}, v{uAC+2*r+1}")
            a(f"v_lshlrev_b32 v{uVU}, 16, v{uV+r}")
            a(f"v_and_b32 v{uVU+1}, 0xffff0000, v{uV+r}")
            a(f"v_lshlrev_b32 v{uAC+2*r}, 16, v{uAC+2*r+1}")
            a(f"v_and_b32 v{uAC+2*r+1}, 0xffff0000, v{uAC+2*r+1}")
            a(f"v_pk_mul_f32 {ac}, {ac}, {vr(uVU,2)}")

    def chunk_kv2():
        kv_rows(range(3, 8))
        for h in range(2):
            for q in range(4):
                a(f"v_cvt_pk_bf16_f32 v{uO+4*h+q}, v{uAC+2*(7-2*q)+h}, v{uAC+2*(6-2*q)+h}")
        a(f"""
        v_lshlrev_b32 v{uA+2}, 8, v{uA+1}
        v_lshlrev_b32 v{uA+3}, 4, v{uA}
        v_sub_u32 v{uA+2}, v{uA+2}, v{uA+3}
        s_lshl_b32 s{sT0}, s{sCQ}, 5
        s_sub_u32 s{sT0}, {USCR + 7*16}, s{sT0}
        v_add_u32 v{uA+2}, s{sT0}, v{uA+2}
        s_mov_b32 exec_hi, 0xffffff
        ds_write_b128 v{uA+2}, {vr(uO,4)}
        ds_write_b128 v{uA+2}, {vr(uO+4,4)} offset:128
        s_mov_b64 exec, -1
        """)


    return loads, chunk_kv, chunk_kv2


def role_g(a):
    vXA, vWA = 3, 7
    vXR, vWR0, vWR1 = 9, 10, 11
    t = 12
    vWD, vHO, vRA0 = 0, 19, 22
    vSA0, vSA1, vHS = 24, 25, 26
    vFR = 28
    vACC = 76
    vCS, vSTAT, vR2 = 204, 236, 60
    ul_, kv1_, kv2_ = unit_g(a)
    UFIRST = int(os.environ.get("UFIRST", 0))
    if UFIRST:
        ul_()
    if 0 in GDMA:
        dma(a, 0)
    if not UFIRST:
        ul_()
    a(f"""
    s_mov_b32 s{s2CB}, s{sG2C}
    s_mov_b32 s{s2RB}, s{sE}
    v_and_b32 v{t}, 31, v{vL}
    v_lshrrev_b32 v{t+1}, 5, v{vL}
    v_bfe_u32 v{t+2}, v{vL}, 1, 3
    v_xor_b32 v{t+2}, v{t+2}, v{t+1}
    v_lshlrev_b32 v{t+3}, 7, v{t}
    v_lshl_add_u32 v{vXA}, v{t+2}, 4, v{t+3}
    v_xor_b32 v{vXA+1}, 32, v{vXA}
    v_xor_b32 v{vXA+2}, 64, v{vXA}
    v_xor_b32 v{vXA+3}, 96, v{vXA}
    s_lshl_b32 s{sT0}, s{sRB}, 7
    v_add_u32 v{t}, s{sT0}, v{t}
    v_lshlrev_b32 v{t}, 3, v{t}
    v_add_u32 v{vSA0}, {WS_STATS}, v{t}
    s_lshl_b32 s{sT0}, s{sCB}, 3
    s_lshl_b32 s{sT1}, s{sCQ}, 1
    s_add_u32 s{sT0}, s{sT0}, s{sT1}
    s_lshl_b32 s{sT1}, s{sT0}, 7
    s_add_u32 s{sT1}, s{sT1}, {WS_CS}
    v_lshl_add_u32 v{vSA1}, v{t+1}, 4, s{sT1}
    s_lshl_b32 s{sT1}, s{sRB}, 9
    s_add_u32 s{sT0}, s{sT0}, s{sT1}
    s_lshl_b32 s{sT0}, s{sT0}, 10
    v_add_u32 v{vHS}, s{sT0}, v{vLB}
    v_bfe_u32 v{t}, v{vL}, 4, 1
    v_bfe_u32 v{t+2}, v{vL}, 2, 2
    v_bfe_u32 v{t+3}, v{vL}, 1, 1
    s_lshl_b32 s{sT0}, s{sCQ}, 2
    v_or_b32 v{t+3}, s{sT0}, v{t+3}
    v_lshlrev_b32 v{t+4}, 2, v{t+2}
    v_xor_b32 v{t+3}, v{t+3}, v{t+4}
    v_lshlrev_b32 v{t+4}, 1, v{t}
    v_xor_b32 v{t+3}, v{t+3}, v{t+4}
    v_lshlrev_b32 v{t+3}, 4, v{t+3}
    v_and_b32 v{t+4}, 1, v{vL}
    v_lshl_add_u32 v{t+3}, v{t+4}, 3, v{t+3}
    v_lshl_add_u32 v{t+2}, v{t+1}, 3, v{t+2}
    v_lshl_add_u32 v{t+3}, v{t+2}, 8, v{t+3}
    v_add_u32 v{t}, 1, v{t}
    v_lshl_add_u32 v{vWA}, v{t}, 14, v{t+3}
    v_xor_b32 v{vWA+1}, 32, v{vWA}
    s_mul_i32 s{sE}, s{sRB}, 56
    s_lshl_b32 s{sT0}, s{sCB}, 2
    s_add_u32 s{sE}, s{sE}, s{sT0}
    s_add_u32 s{sE}, s{sE}, s{sCQ}
    s_lshl_b32 s{sE}, s{sE}, 7
    s_add_u32 s{sE}, s{sE}, {WS_FLH}
    s_lshl_b32 s{sWB}, s{sCQ}, 12
    s_lshl_b32 s{sT0}, s{s2RB}, 8
    s_mul_i32 s{sT1}, s{sCQ}, 28
    s_add_u32 s{sT0}, s{sT0}, s{sT1}
    s_lshl_b32 s{sT0}, s{sT0}, 10
    v_add_u32 v{vHO}, s{sT0}, v{vLB}
    v_lshrrev_b32 v{t}, 3, v{vL}
    s_mul_i32 s{sT0}, s{sCQ}, 448
    v_add_u32 v{t}, s{sT0}, v{t}
    v_mul_u32_u24 v{t}, 896, v{t}
    v_bfe_u32 v{t+1}, v{vL}, 4, 1
    v_lshlrev_b32 v{t+1}, 2, v{t+1}
    v_and_b32 v{t+2}, 7, v{vL}
    v_xor_b32 v{t+1}, v{t+1}, v{t+2}
    v_lshl_add_u32 v{vWD}, v{t+1}, 4, v{t}
    s_lshl_b32 s{sT0}, s{s2CB}, 7
    v_add_u32 v{vWD}, s{sT0}, v{vWD}
    v_lshrrev_b32 v{t}, 5, v{vL}
    v_bfe_u32 v{t+1}, v{vL}, 2, 2
    v_lshl_add_u32 v{t}, v{t}, 2, v{t+1}
    v_bfe_u32 v{t+2}, v{vL}, 4, 1
    v_bfe_u32 v{t+3}, v{vL}, 1, 1
    v_lshl_add_u32 v{t+2}, v{t+2}, 1, v{t+3}
    v_bfe_u32 v{t+3}, v{vL}, 3, 1
    v_lshl_add_u32 v{t+2}, v{t+3}, 2, v{t+2}
    v_lshlrev_b32 v{t+2}, 4, v{t+2}
    v_and_b32 v{t+3}, 1, v{vL}
    v_lshl_add_u32 v{t+2}, v{t+3}, 3, v{t+2}
    v_lshl_add_u32 v{t+2}, v{t}, 7, v{t+2}
    v_add_u32 v{vRA0}, s{sWB}, v{t+2}
    """)
    srd(a, R_WS, S_WS, WS_END)
    srd(a, R_WD, S_WD, SZ_W)

    def fx(s_, nt):
        return vFR + 24 * s_ + 4 * nt

    def fw(s_, mt):
        return vFR + 24 * s_ + 16 + 4 * mt

    def read_ops(st, p, s_):
        slot = (st % 3) * SLOT
        ops = []
        pre = []
        if p == 0:
            pre.append(f"v_add_u32 v{vWR0}, {slot}, v{vWA}")
            pre.append(f"v_add_u32 v{vWR1}, {slot}, v{vWA+1}")
        pre.append(f"v_add_u32 v{vXR}, {slot}, v{vXA+p}")
        ops.append(pre + [f"ds_read_b64_tr_b16 {vr(fw(s_,0),2)}, v{vWR0} offset:{4096*p}"])
        ops.append([f"ds_read_b64_tr_b16 {vr(fw(s_,0)+2,2)}, v{vWR0} offset:{4096*p+1024}"])
        for nt in range(4):
            ops.append([f"ds_read_b128 {vr(fx(s_,nt),4)}, v{vXR} offset:{4096*nt}"])
        ops.append([f"ds_read_b64_tr_b16 {vr(fw(s_,1),2)}, v{vWR1} offset:{4096*p}"])
        ops.append([f"ds_read_b64_tr_b16 {vr(fw(s_,1)+2,2)}, v{vWR1} offset:{4096*p+1024}"])
        return ops

    def wdma(r, s_, ent):
        for j in range(4):
            r(f"s_mov_b32 s{sW2}, {(32*s_ + 8*j)*896}")
            r(f"s_add_u32 m0, s{sWB}, {ent + j*1024}")
            r("s_nop 0")
            r.vmem(f"buffer_load_dwordx4 v{vWD}, {sr(R_WD,4)}, s{sW2} offen lds", f"W{s_}")

    def stat_loads(r):
        for nt in range(4):
            r.vmem(f"buffer_load_dwordx2 {vr(vSTAT+2*nt,2)}, v{vSA0}, {sr(R_WS,4)}, 0 offen offset:{256*nt} sc1", "ST")
        for i in range(8):
            r.vmem(f"buffer_load_dwordx4 {vr(vCS+4*i,4)}, v{vSA1}, {sr(R_WS,4)}, 0 offen offset:{32*i} sc1", "ST")

    def tag_read(r):
        r(f"v_mov_b32 v{t}, {USCR+8192}")
        r(f"ds_read_b32 v{vONE}, v{t}")

    WD = lambda s_: (lambda r: wdma(r, s_, WENT[s_]))
    plan = {0: [tag_read], 1: [], 2: [WD(6)], 3: [], 4: [WD(0), WD(1), WD(2)], 5: [stat_loads, WD(3), WD(4), WD(5)], 6: []}
    for st_ in GDMA:
        if st_ >= 3:
            plan[st_ - 3] = plan[st_ - 3] + [(lambda q: (lambda r: dma(r, q)))(st_)]
    if 1 in GDMA:
        dma(a, 1)
    kv1_()
    kv2_()
    a.vm_wait("A0")
    a("s_waitcnt lgkmcnt(0)")
    a("s_barrier")
    a.stamp()
    for ops in read_ops(0, 0, 0):
        for o in ops:
            a(o)
    cur = 0
    fill = explode(a, [lambda r: dma(r, 2)]) if 2 in GDMA else []
    order = [(0, 0), (0, 1), (0, 2), (0, 3), (1, 3), (1, 2), (1, 1), (1, 0)]
    for st in range(7):
        for p in range(4):
            a("s_waitcnt lgkmcnt(0)")
            nxt = []
            if p == 3:
                assert not fill
                a.vm_wait(f"A{st+1}")
                a("s_barrier")
                if st < 6:
                    nxt = read_ops(st + 1, 0, cur ^ 1)
                fill = explode(a, plan[st])
            else:
                nxt = read_ops(st, p + 1, cur ^ 1)
            slots = 8 * (3 - p) if p < 3 else 32
            for k, (mt, nt) in enumerate(order):
                acc = vACC + 16 * (4 * mt + nt)
                c = "0" if (st == 0 and p == 0) else vr(acc, 16)
                a(f"v_mfma_f32_32x32x16_bf16 {vr(acc,16)}, {vr(fw(cur,mt),4)}, {vr(fx(cur,nt),4)}, {c}")
                for _ in range(2):
                    if nxt:
                        for o in nxt.pop(0):
                            a(o)
                tot = sum(c_ for c_, _ in fill)
                budget = tot / max(1, slots - k)
                used = 0
                while fill and used < budget - 1e-9:
                    c_, e = fill.pop(0)
                    e()
                    used += c_
            cur ^= 1
            if p == 3 and (st in (3, 6) or STM == 1):
                a.stamp()
    a.vm_wait("ST")
    for nt in range(4):
        a(f"v_mul_f32 v{vR2+2*nt}, v{vSTAT+2*nt+1}, v{vSTAT+2*nt+1}")
    for nt in range(1, 4):
        a(f"s_mov_b32 s{sM0X+nt-1}, {nt*128*1024}")
    a("s_nop 4")
    vH = 28
    k = 0
    for nt in range(4):
        for mt in range(2):
            acc = vACC + 16 * (4 * mt + nt)
            cs = vCS + 16 * mt
            m = vSTAT + 2 * nt
            for i in range(8):
                a(f"v_pk_fma_f32 {vr(acc+2*i,2)}, {vr(m,2)}, {vr(cs+2*i,2)}, {vr(acc+2*i,2)} op_sel_hi:[0,1,1] neg_lo:[1,0,0] neg_hi:[1,0,0]")
            for i in range(8):
                a(f"v_max_f32 v{acc+i}, 0, v{acc+i}")
            for i in range(4):
                a(f"v_pk_mul_f32 {vr(acc+8+2*i,2)}, {vr(acc+8+2*i,2)}, {vr(vR2+2*nt,2)} op_sel_hi:[1,0]")
            for i in range(4):
                a(f"v_pk_mul_f32 {vr(acc+2*i,2)}, {vr(acc+2*i,2)}, {vr(acc+8+2*i,2)}")
            o = vH + 4 * k
            for i in range(4):
                a(f"v_cvt_pk_bf16_f32 v{o+i}, v{acc+2*i}, v{acc+2*i+1}")
            so = "0" if nt == 0 else f"s{sM0X+nt-1}"
            a.vmem(f"buffer_store_dwordx4 {vr(o,4)}, v{vHS}, {sr(R_WS,4)}, {so} offen offset:{mt*1024} sc1", "HS")
            k += 1
    a.stamp()
    vA2 = 192
    vRB0, vRB1, vH1, vFA = 3, 4, 5, 6
    gH0, gRA, gTAG, vRW, gFL = 7, 8, 9, 10, 11
    SETS = [16 + 16 * i for i in range(11)]
    ENT = {s_: WENT[s_ % 7] for s_ in range(14)}

    def trreads(s_, dst):
        a(f"v_add_u32 v{vRB0}, {ENT[s_]}, v{gRA}")
        a(f"v_xor_b32 v{vRB1}, 64, v{vRB0}")
        for tt in range(2):
            for Td in range(2):
                for hf in range(2):
                    a(f"ds_read_b64_tr_b16 {vr(dst+8*tt+4*Td+2*hf,2)}, v{vRB1 if Td else vRB0} offset:{tt*2048+hf*1024}")

    a(f"""
    v_add_u32 v{vH1}, {128*1024}, v{vHO}
    v_mov_b32 v{gH0}, v{vHO}
    v_mov_b32 v{gRA}, v{vRA0}
    v_mov_b32 v{gTAG}, v{vONE}
    s_lshr_b32 s{sT0}, s{s2RB}, 1
    s_mul_i32 s{sT0}, s{sT0}, 56
    s_mul_i32 s{sT1}, s{sCQ}, 14
    s_add_u32 s{sT0}, s{sT0}, s{sT1}
    s_lshl_b32 s{sT0}, s{sT0}, 7
    s_add_u32 s{sT0}, s{sT0}, {WS_FLH}
    v_min_u32 v{vFA}, 13, v{vL}
    v_lshl_add_u32 v{vFA}, v{vFA}, 7, s{sT0}
    """)
    NW0 = int(os.environ.get("NW0", 4))
    LOOK = int(os.environ.get("LOOK", 2))
    setW, setH = {}, {}
    free = SETS[:]
    for s_ in range(NW0):
        setW[s_] = free.pop()
        a.vm_wait(f"W{s_}")
        trreads(s_, setW[s_])
    a("s_waitcnt lgkmcnt(0)")
    FORD = int(os.environ.get("FORD", 1))
    if not FORD:
        for s_ in range(7, 7 + NW0):
            wdma(a, s_, ENT[s_])
    a.vm_wait("HS")
    a("s_mov_b64 exec, 1")
    a.vmem(f"buffer_store_dword v{vONE}, v{vZ}, {sr(R_WS,4)}, s{sE} offen sc1", "HF")
    a("s_mov_b64 exec, -1")
    if FORD:
        for s_ in range(7, 7 + NW0):
            wdma(a, s_, ENT[s_])
    if HPF:
        a(f"""
        v_sub_u32 v{t}, v{vHS}, v{vLB}
        v_lshrrev_b32 v{t+1}, 4, v{vL}
        v_lshl_add_u32 v{t}, v{t+1}, 17, v{t}
        v_and_b32 v{t+1}, 15, v{vL}
        v_lshl_add_u32 v{t}, v{t+1}, 7, v{t}
        buffer_load_dword v{t+1}, v{t}, {sr(R_WS,4)}, 0 offen
        """)
    a.stamp()
    a(f"""
    s_add_u32 s{sT1}, s{sWB}, {WENT[0]}
    v_add_u32 v{vRW}, s{sT1}, v{vLB}
    s_lshl_b32 s{sT0}, s3, 2
    s_add_u32 s{sT0}, s{sT0}, {L_FLAG + 64}
    v_mov_b32 v{gFL}, s{sT0}
    """)
    gpoll(a, vFA, "GH", False)
    a.vm = []
    a.stamp()

    def hloads(s_):
        r = setH[s_]
        a(f"s_mov_b32 s{sHO}, {2048*s_}")
        for tt in range(2):
            for nt in range(2):
                a.vmem(f"buffer_load_dwordx4 {vr(r+8*tt+4*nt,4)}, v{vH1 if nt else gH0}, {sr(R_WS,4)}, s{sHO} offen offset:{1024*tt}{HFL}", f"H{s_}")

    nh, nw = 0, NW0
    while free and nh < MAXH:
        setH[nh] = free.pop(0)
        hloads(nh)
        nh += 1
    for s_ in range(14):
        a.vm_wait(f"H{s_}")
        if s_ >= NW0:
            a(f"s_waitcnt lgkmcnt({min(15, 8*(nw - 1 - s_))})")
        if STM == 2 and s_ in (0, 3, 6, 9, 12):
            a.stamp()
        for tt in range(2):
            for Td in range(2):
                for nt in range(2):
                    acc = vA2 + 32 * nt + 16 * Td
                    c = "0" if (s_ == 0 and tt == 0) else vr(acc, 16)
                    a(f"v_mfma_f32_32x32x16_bf16 {vr(acc,16)}, {vr(setW[s_]+8*tt+4*Td,4)}, {vr(setH[s_]+8*tt+4*nt,4)}, {c}")
        if s_ == TGATE:
            a(f"ds_write_b32 v{gFL}, v{gTAG} offset:16")
        free += [setW[s_], setH[s_]]
        wnow = []
        while nw < 14 and (nw <= s_ + LOOK or (nh >= 14 and nw <= s_ + 3)):
            setW[nw] = free.pop(0)
            wnow.append(nw)
            nw += 1
        while free and nh < 14 and nh <= s_ + MAXH:
            setH[nh] = free.pop(0)
            hloads(nh)
            nh += 1
        for sn in wnow:
            a.vm_wait(f"W{sn}")
            trreads(sn, setW[sn])
            if sn + 7 < 14:
                a("s_waitcnt lgkmcnt(0)")
                wdma(a, sn + 7, ENT[sn + 7])
    a.stamp()
    a("s_nop 7")
    a("s_nop 3")
    for tau in range(4):
        for q in range(4):
            a(f"ds_write_b128 v{vRW}, {vr(vA2+16*tau+4*q,4)} offset:{tau*16384+q*1024}")
    a("s_waitcnt lgkmcnt(0)")
    a(f"ds_write_b32 v{gFL}, v{gTAG}")
    a.stamp()
    a.stamp_flush()
    a("s_endpgm")


def role_b(a):
    R_K, R_V, R_SH = 76, 80, 84
    t = 6
    uA = 24
    uK, uV, uW, uX = 32, 43, 52, 56
    uKU, uWU, uAC, uVU, uO, uS = 64, 86, 94, 110, 112, 120
    vD, vU, vBLD = 144, 168, 176
    vAA, vBA, vKA, vTA, vEXW, vEXR, vFL, vWM, vWX, vWZ, vWP, vPA, vKVA = range(216, 229)
    if 0 not in GDMA:
        dma(a, 0)
    if 1 not in GDMA:
        dma(a, 1)
    srd(a, R_WS, S_WS, WS_END)
    srd(a, R_DBG, S_DBG, 256)
    a.vm_wait("A0")
    if BPRIO:
        a(f"s_setprio {BPRIO}")
    EARLY = int(os.environ.get("EARLY", 1))
    a.stamp()
    a(f"s_lshl_b32 s{sT0}, s{sCQ}, 12")
    tagl = lambda: a.vmem(f"buffer_load_dword v{vONE}, v{vZ}, {sr(R_DBG,4)}, s{sT0} offen sc1", "TAG")

    def tag_block():
        L, Lok, Lsk = newlabel("TB"), newlabel("TBOK"), newlabel("TBSK")
        a.vm_wait("TAG")
        a(f"s_cmp_lg_u32 s{sCQ}, 0")
        a(f"s_cbranch_scc1 {Lsk}")
        a(f"s_mov_b32 s{sSP}, 0")
        a.label(L)
        a(f"""
        v_readfirstlane_b32 s{sSP+1}, v{vONE}
        s_add_u32 s{sSP}, s{sSP}, 1
        s_cmp_gt_u32 s{sSP}, 0x4000
        s_cbranch_scc1 {Lok}
        s_cmp_lg_u32 s{sSP+1}, 0
        s_cbranch_scc1 {Lok}
        s_sleep 4
        buffer_load_dword v{vONE}, v{vZ}, {sr(R_DBG,4)}, 0 offen sc1
        s_waitcnt vmcnt(0)
        s_branch {L}
        """)
        a.label(Lok)
        a(f"v_mov_b32 v{t}, {USCR+8192}")
        a(f"ds_write_b32 v{t}, v{vONE}")
        a.label(Lsk)

    def chunk_store_stats():
        if not EARLY:
            a(f"v_mov_b32 v{t}, {USCR+8192}")
            a(f"ds_read_b32 v{vONE}, v{t}")
        a(f"""
        s_mul_i32 s{sT0}, s{sCQ}, 1792
        s_add_u32 s{sT0}, s{sT0}, {USCR}
        v_add_u32 v{uA+2}, s{sT0}, v{vLB}
        ds_read_b128 {vr(uO,4)}, v{uA+2}
        ds_read_b128 {vr(uO+4,4)}, v{uA+2} offset:896
        v_lshrrev_b32 v{uA+2}, 3, v{vL}
        v_lshlrev_b32 v{uA+2}, 12, v{uA+2}
        v_and_b32 v{uA+3}, 7, v{vL}
        v_lshl_add_u32 v{uA+2}, v{uA+3}, 4, v{uA+2}
        s_and_b32 s{sT0}, s2, 7
        s_mul_i32 s{sT0}, s{sT0}, 56
        s_mul_i32 s{sT1}, s{sCQ}, 14
        s_add_u32 s{sT0}, s{sT0}, s{sT1}
        s_lshl_b32 s{sT0}, s{sT0}, 12
        s_lshr_b32 s{sT1}, s2, 3
        s_lshl_b32 s{sT1}, s{sT1}, 7
        s_sub_u32 s{sT0}, s{sT0}, s{sT1}
        s_add_u32 s{sT0}, s{sT0}, {WS_KVR + 3968}
        s_add_u32 s{sT1}, s{sT0}, {7*4096}
        s_waitcnt lgkmcnt(0)
        s_mov_b32 exec_hi, 0xffffff
        """)
        a.vmem(f"buffer_store_dwordx4 {vr(uO,4)}, v{uA+2}, {sr(R_WS,4)}, s{sT0} offen sc1", "US")
        a.vmem(f"buffer_store_dwordx4 {vr(uO+4,4)}, v{uA+2}, {sr(R_WS,4)}, s{sT1} offen sc1", "US")
        a("s_mov_b64 exec, -1")
        return
        a.vm_wait("UX")
        for i in range(4):
            a(f"v_mov_b32 v{uS+i}, 0")
        a(f"v_mov_b32 v{uS+4}, 0x3f803f80")
        for i in range(4):
            for r in range(2):
                a(f"v_dot2c_f32_bf16 v{uS+2*r}, v{uX+4*r+i}, v{uS+4}")
                a(f"v_dot2c_f32_bf16 v{uS+2*r+1}, v{uX+4*r+i}, v{uX+4*r+i}")
        a("s_nop 2")
        for mode in ("quad_perm:[1,0,3,2]", "quad_perm:[2,3,0,1]", "row_half_mirror", "row_mirror"):
            for i in range(4):
                a(f"v_add_f32_dpp v{uS+i}, v{uS+i}, v{uS+i} {mode} row_mask:0xf bank_mask:0xf")
        for sw in ("v_permlane16_swap_b32", "v_permlane32_swap_b32"):
            for i in range(4):
                a(f"v_mov_b32 v{uS+4+i}, v{uS+i}")
            a("s_nop 1")
            for i in range(4):
                a(f"{sw} v{uS+i}, v{uS+4+i}")
            a("s_nop 1")
            for i in range(4):
                a(f"v_add_f32 v{uS+i}, v{uS+i}, v{uS+4+i}")
        a(f"s_mov_b32 s{sT0}, {f32bits(1.0/448.0)}")
        a(f"s_mov_b32 s{sT1}, {f32bits(1e-5)}")
        for r in range(2):
            m, q = uS + 2 * r, uS + 2 * r + 1
            a(f"""
            v_mul_f32 v{m}, s{sT0}, v{m}
            v_mul_f32 v{q}, s{sT0}, v{q}
            v_fma_f32 v{q}, -v{m}, v{m}, v{q}
            v_max_f32 v{q}, 0, v{q}
            v_cvt_pk_bf16_f32 v{q}, v{m}, v{q}
            v_lshlrev_b32 v{m}, 16, v{q}
            v_and_b32 v{q}, 0xffff0000, v{q}
            v_add_f32 v{q}, s{sT1}, v{q}
            v_cvt_pk_bf16_f32 v{q}, v{q}, v{q}
            v_and_b32 v{q}, 0xffff0000, v{q}
            v_sqrt_f32 v{q}, v{q}
            s_nop 0
            v_cvt_pk_bf16_f32 v{q}, v{q}, v{q}
            v_and_b32 v{q}, 0xffff0000, v{q}
            v_rcp_f32 v{q}, v{q}
            """)
        a(f"""
        s_lshl_b32 s{sT0}, s2, 2
        s_add_u32 s{sT0}, s{sT0}, s{sCQ}
        s_lshl_b32 s{sT0}, s{sT0}, 4
        s_add_u32 s{sT0}, s{sT0}, {WS_STATS}
        s_mov_b64 exec, 1
        """)
        a.vmem(f"buffer_store_dwordx4 {vr(uS,4)}, v{vZ}, {sr(R_WS,4)}, s{sT0} offen sc1", "US")
        a("s_mov_b64 exec, -1")

    def chunk_conv_setup():
        c = t
        a(f"""
        s_lshl_b32 s{sCH}, s2, 1
        s_add_u32 s{sCH}, s{sCH}, s{sCHL}
        s_mul_i32 s{sUB}, s{sCHL}, {8*CV_UP}
        s_add_u32 s{sUB}, s{sUB}, {CV_U}
        s_mul_i32 s{sAB}, s{sCHL}, {CV_A[1]}
        s_lshl_b32 s{sT0}, s{sCH}, 12
        s_add_u32 s{R_H}, s{S_SSMK}, s{sT0}
        s_addc_u32 s{R_H+1}, s{S_SSMK+1}, 0
        s_and_b32 s{R_H+1}, s{R_H+1}, 0xffff
        s_mov_b32 s{R_H+2}, 4096
        s_mov_b32 s{R_H+3}, 0x20000
        s_lshl_b32 s{sT1}, s2, 2
        s_load_dword s{sD}, {sr(S_SSMD,2)}, s{sT1}
        s_lshl_b32 s{sT1}, s{sHF}, 11
        v_add_u32 v{c+1}, s{sT1}, v{vLB}
        v_subrev_u32 v{c+2}, 64, v{vLB}
        v_subrev_u32 v{c+3}, 48, v{vLB}
        s_add_u32 s{sT0}, s{sT0}, {WS_KVR}
        v_add_u32 v{vKVA}, s{sT0}, v{c+1}
        """)
        a.vmem(f"buffer_load_dwordx4 {vr(vD,4)}, v{c+1}, {sr(R_H,4)}, 0 offen", "D")
        a.vmem(f"buffer_load_dwordx4 {vr(vD+4,4)}, v{c+1}, {sr(R_H,4)}, 0 offen offset:16", "D")
        a.vmem(f"buffer_load_dwordx4 {vr(vD+8,4)}, v{c+1}, {sr(R_H,4)}, 0 offen offset:1024", "D")
        a.vmem(f"buffer_load_dwordx4 {vr(vD+12,4)}, v{c+1}, {sr(R_H,4)}, 0 offen offset:1040", "D")
        a.vmem(f"buffer_load_dwordx4 {vr(vD+16,4)}, v{c+2}, {sr(R_H,4)}, 0 offen", "D")
        a.vmem(f"buffer_load_dwordx4 {vr(vD+20,4)}, v{c+3}, {sr(R_H,4)}, 0 offen", "D")
        a(f"""
        v_add_u32 v{vWM}, s{sAB}, v{c+1}
        v_add_u32 v{vWX}, s{sAB}, v{vLB}
        v_mov_b32 v{vBLD+36}, 0
        v_mov_b32 v{vBLD+37}, 0
        v_mov_b32 v{vBLD+38}, 0
        v_mov_b32 v{vBLD+39}, 0
        v_lshrrev_b32 v{c+4}, 4, v{vL}
        s_lshl_b32 s{sT0}, s{sHF}, 2
        v_add_u32 v{vWZ}, s{sT0}, v{c+4}
        v_mul_u32_u24 v{vWZ}, {CV_UP}, v{vWZ}
        v_and_b32 v{c}, 15, v{vL}
        v_lshl_add_u32 v{vWZ}, v{c}, 4, v{vWZ}
        v_add_u32 v{vWZ}, s{sUB}, v{vWZ}
        v_and_b32 v{vWP}, 7, v{vL}
        v_xor_b32 v{vWP}, 4, v{vWP}
        v_mul_u32_u24 v{vWP}, {CV_UP}, v{vWP}
        v_lshrrev_b32 v{c+5}, 3, v{vL}
        v_lshlrev_b32 v{c+5}, 4, v{c+5}
        v_sub_u32 v{vWP}, v{vWP}, v{c+5}
        s_lshl_b32 s{sT0}, s{sHF}, 8
        s_sub_u32 s{sT0}, s{sUB}, s{sT0}
        s_add_u32 s{sT0}, s{sT0}, {(47-8)*16}
        v_add_u32 v{vWP}, s{sT0}, v{vWP}
        v_mul_u32_u24 v{vBA}, {CV_UP}, v{c+4}
        v_lshl_add_u32 v{vBA}, v{c}, 4, v{vBA}
        v_add_u32 v{vBA}, s{sUB}, v{vBA}
        v_sub_u32 v{vKA}, 3, v{c+4}
        v_mul_u32_u24 v{vKA}, {CV_UP}, v{vKA}
        v_lshl_add_u32 v{vKA}, v{c}, 4, v{vKA}
        v_add_u32 v{vKA}, s{sUB}, v{vKA}
        v_lshlrev_b32 v{vTA}, 7, v{c}
        v_lshl_add_u32 v{vTA}, v{c+4}, 4, v{vTA}
        v_lshrrev_b32 v{c}, 2, v{c}
        v_add_u32 v{c}, v{c}, v{c+4}
        v_lshlrev_b32 v{c}, 4, v{c}
        v_add_u32 v{c}, s{sAB}, v{c}
        v_and_b32 v{c+4}, 3, v{vL}
        v_mul_u32_u24 v{vAA}, {CV_ST}, v{c+4}
        v_add_u32 v{vAA}, v{vAA}, v{c}
        s_lshl_b32 s{sT0}, s{sHF}, 12
        s_add_u32 s{sT1}, s{sT0}, s{sAB}
        v_add_u32 v{vEXW}, s{sT1}, v{vLB}
        s_xor_b32 s{sT0}, s{sT0}, 4096
        s_add_u32 s{sT1}, s{sT0}, s{sAB}
        v_add_u32 v{vEXR}, s{sT1}, v{vLB}
        s_lshl_b32 s{sT0}, s{sCHL}, 5
        s_add_u32 s{sT0}, s{sT0}, {L_FLAG}
        v_mov_b32 v{vFL}, s{sT0}
        s_mul_i32 s{sT1}, s2, 2341
        s_lshr_b32 s{sT1}, s{sT1}, 16
        v_lshl_add_u32 v{c+2}, v{vL}, 3, s{sT1}
        s_lshl_b32 s{sT0}, s{sRB}, 1
        s_add_u32 s{sT0}, s{sT0}, {256 - 32}
        v_add_u32 v{c+3}, s{sT0}, v{vL}
        v_cmp_le_u32 vcc, 32, v{vL}
        s_sub_u32 s{sT1}, s{sCB}, {34*14 - 256}
        v_mul_u32_u24 v{c}, 14, v{vL}
        v_cndmask_b32 v{c+2}, v{c+2}, v{c+3}, vcc
        v_add_u32 v{c+3}, s{sT1}, v{c}
        v_cmp_le_u32 vcc, 34, v{vL}
        v_mov_b32 v{c}, s{sE}
        v_add_u32 v{c}, 256, v{c}
        s_lshl_b32 s{sT1}, s{sCQ}, 24
        v_cndmask_b32 v{c+2}, v{c+2}, v{c+3}, vcc
        v_cmp_le_u32 vcc, 36, v{vL}
        s_add_u32 s{sT1}, s{sT1}, {WS_FLU}
        s_nop 0
        v_cndmask_b32 v{c+2}, v{c+2}, v{c}, vcc
        v_lshl_add_u32 v{vPA}, v{c+2}, 7, s{sT1}
        """)

    def signal():
        L = newlabel("NOSIG")
        a(f"""
        s_cmp_lg_u32 s{sCQ}, 0
        s_cbranch_scc1 {L}
        s_lshl_b32 s{sT0}, s2, 7
        s_add_u32 s{sT0}, s{sT0}, {WS_FLU}
        s_mov_b64 exec, 1
        buffer_store_dword v{vONE}, v{vZ}, {sr(R_WS,4)}, s{sT0} offen sc1
        s_mov_b64 exec, -1
        """)
        a.label(L)

    def chunk_build():
        a.vm_wait("D")
        for rnd in range(3):
            d, b = vD + 8 * rnd, vBLD + 12 * rnd
            for i in range(4):
                a(f"v_mov_b32 v{b+i}, v{d+1+i}")
            for i in range(4):
                a(f"v_alignbit_b32 v{b+4+i}, v{d+i+1}, v{d+i}, 16")
            for i in range(4):
                a(f"v_alignbit_b32 v{b+8+i}, v{d+i+2}, v{d+i+1}, 16")

    def poll_block():
        L = newlabel("NOPOLL")
        a.vm_wait("P0")
        if PROF and os.environ.get("VCCD"):
            a(f"v_cmp_ne_u32 vcc, v{vONE}, v{vPOLL}")
            a("s_nop 4")
            a(f"s_add_u32 s{72+2*a.nst}, s72, vcc_lo")
            a.nst += 1
            a(f"s_add_u32 s{72+2*a.nst}, s72, vcc_hi")
            a.nst += 1
        a(f"s_cmp_lg_u32 s{sCQ}, 0")
        a(f"s_cbranch_scc1 {L}")
        gpoll(a, vPA, "BP", True)
        a.label(L)

    chunk_conv_setup()
    a("s_barrier")
    chunk_store_stats()
    a(f"s_lshl_b32 s{sT0}, s{sCQ}, 12")
    tagl()
    if 2 not in GDMA:
        dma(a, 2)
    CSST = int(os.environ.get("CSST", 5))
    KV0 = int(os.environ.get("KV0", 0))
    SIG = int(os.environ.get("SIG", 2))
    for st in range(7):
        if st == 0:
            tag_block()
        if st == 1:
            a(f"v_mov_b32 v{t}, {USCR+8192}")
            a(f"ds_read_b32 v{vONE}, v{t}")
        if st == SIG + 1:
            signal()
        if st == 4:
            chunk_build()
        if st == 6 and KVE:
            a.vmem(f"buffer_load_dwordx4 {vr(vU,4)}, v{vKVA}, {sr(R_WS,4)}, 0 offen sc1", "U")
            a.vmem(f"buffer_load_dwordx4 {vr(vU+4,4)}, v{vKVA}, {sr(R_WS,4)}, 0 offen offset:1024 sc1", "U")
        a("s_waitcnt lgkmcnt(0)")
        if st + 1 < 7:
            a.vm_wait(f"A{st+1}")
        if st == SIG:
            a.vm_wait("US")
        if st == CSST:
            if PE:
                a.vm_wait("P0")
            L = newlabel("NOCS")
            a(f"s_cmp_lg_u32 s{sCQ}, 0")
            a(f"s_cbranch_scc1 {L}")
            if not KVE:
                a("s_mov_b32 exec_lo, 0")
            gpoll(a, vPA, "BC", PE, 4)
            a("s_mov_b64 exec, -1")
            a.label(L)
        a("s_barrier")
        if st == CSST - 1 and PE:
            a.vmem(f"buffer_load_dword v{vPOLL}, v{vPA}, {sr(R_WS,4)}, 0 offen sc1", "P0")
        if st + 3 < 7 and st + 3 not in GDMA:
            dma(a, st + 3)
        if st in (3, 6) or STM:
            a.stamp()
    if os.environ.get("CPRIO"):
        a(f"s_setprio {os.environ['CPRIO']}")
    for rnd in range(3):
        d, b = vD + 8 * rnd, vBLD + 12 * rnd
        if rnd == 2:
            a("s_mov_b64 exec, 15")
        srcs = [b + 4, b, b + 8, d + 2]
        for cc in range(4):
            a(f"ds_write_b128 v{vWX if rnd == 2 else vWM}, {vr(srcs[cc],4)} offset:{cc*CV_ST + (0 if rnd == 2 else 64 + 1024*rnd)}")
        if rnd == 2:
            a("s_mov_b64 exec, -1")
    a(f"ds_write_b128 v{vWZ}, {vr(vBLD+36,4)}")
    if not KVE:
        Lk = newlabel("NOKV")
        a(f"v_mov_b32 v{t+1}, {L_FLAG + 112}")
        a(f"s_cmp_lg_u32 s{sCQ}, 0")
        a(f"s_cbranch_scc1 {Lk}")
        gpoll(a, vPA, "BK", False, 16)
        a(f"ds_write_b32 v{t+1}, v{vONE}")
        a.label(Lk)
        lds_wait_flag(a, t + 1, 0, t, "BKW", sleep=True)
        a.vm = []
        a.vmem(f"buffer_load_dwordx4 {vr(vU,4)}, v{vKVA}, {sr(R_WS,4)}, 0 offen sc1", "U")
        a.vmem(f"buffer_load_dwordx4 {vr(vU+4,4)}, v{vKVA}, {sr(R_WS,4)}, 0 offen offset:1024 sc1", "U")
    a.vm_wait("U")
    a(f"ds_write_b128 v{vWP}, {vr(vU,4)} offset:128")
    a(f"ds_write_b128 v{vWP}, {vr(vU+4,4)}")
    a("s_waitcnt lgkmcnt(0)")
    a(f"s_cmp_eq_u32 s{sHF}, 1")
    a("s_cbranch_scc1 C_HALF1")
    vF, vB, vAC = 32, 68, 100
    nst_save = a.nst
    for half in range(2):
        if half:
            a.label("C_HALF1")
            a.nst = nst_save
        own, oth = half, half ^ 1
        a(f"ds_write_b32 v{vFL}, v{vONE} offset:{4*own}")
        lds_wait_flag(a, vFL, 4 * oth, t, "CR")
        a.stamp()

        def F(psi):
            return vF + 6 * (psi % 6)

        def rdA(psi):
            off = 4 * psi * 16
            a(f"ds_read_b128 {vr(F(psi),4)}, v{vAA} offset:{off}")
            a(f"ds_read_b64 {vr(F(psi)+4,2)}, v{vAA} offset:{off+16}")
            return 2

        def nus(dl):
            return (0, 1) if dl < 16 else (1,)

        def rdB(dl):
            n = 0
            for kc in range(2):
                for nu in nus(dl):
                    a(f"ds_read_b128 {vr(vB+16*(dl&1)+8*kc+4*nu,4)}, v{vBA} offset:{kc*4*CV_UP+(16+16*nu-dl)*16}")
                    n += 1
            return n

        dls = list(range(0, 12)) if half == 0 else list(range(12, 32))
        if os.environ.get("NOCONV"):
            dls = dls[:2]
        if half:
            rdA(2 * dls[0] - 1)
        rdA(2 * dls[0]); rdA(2 * dls[0] + 1); rdB(dls[0])
        inited = set()
        for dl in dls:
            n = 0
            if dl != dls[-1]:
                n += rdA(2 * dl + 2); n += rdA(2 * dl + 3); n += rdB(dl + 1)
            a(f"s_waitcnt lgkmcnt({n})")
            for kc in range(2):
                for p in range(2):
                    psi = 2 * dl + p - kc
                    if psi < 0:
                        continue
                    for par in range(2):
                        for nu in nus(dl):
                            acc = vAC + 16 * nu + 8 * p + 4 * par
                            csrc = vr(acc, 4) if acc in inited else "0"
                            inited.add(acc)
                            a(f"v_mfma_f32_16x16x32_bf16 {vr(acc,4)}, {vr(F(psi)+2*par,4)}, {vr(vB+16*(dl&1)+8*kc+4*nu,4)}, {csrc}")
        a.stamp()
        a(f"ds_write_b32 v{vFL}, v{vONE} offset:{8+4*own}")
        a(f"ds_read_b128 {vr(vU,4)}, v{vKA} offset:{(16+16*own)*16}")
        a(f"ds_read_b128 {vr(vU+4,4)}, v{vKA} offset:{4*CV_UP+(16+16*own)*16}")
        a(f"""
        s_lshl_b32 s{sT0}, s{sCH}, 12
        s_add_u32 s{sT0}, s{sT0}, {WS_T + own*2048}
        s_lshl_b32 s{sT1}, s{sCHL}, 4
        s_lshr_b32 s{sD}, s{sD}, s{sT1}
        s_lshl_b32 s{sD}, s{sD}, 16
        s_lshl_b32 s{sTMP}, s{sCH}, 7
        s_add_u32 s{sTMP}, s{sTMP}, {WS_FLT + own*448*128}
        """)
        lds_wait_flag(a, vFL, 8 + 4 * oth, t, "CD")
        for q in range(4):
            a(f"ds_write_b128 v{vEXW}, {vr(vAC+16*oth+4*q,4)} offset:{1024*q}")
        a("s_waitcnt lgkmcnt(0)")
        a(f"ds_write_b32 v{vFL}, v{vONE} offset:{16+4*own}")
        vK = vF
        for p in range(2):
            for dq in range(4):
                a(f"v_lshlrev_b32 v{vK+8*p+7-2*dq}, 16, v{vU+4*p+dq}")
                a(f"v_and_b32 v{vK+8*p+6-2*dq}, 0xffff0000, v{vU+4*p+dq}")
        for i in range(16):
            a(f"v_mul_f32 v{vK+i}, s{sD}, v{vK+i}")
        for i in range(8):
            round_pair(a, vK + 2 * i, vK + 2 * i + 1)
        lds_wait_flag(a, vFL, 16 + 4 * oth, t, "CX")
        vR = vB
        for q in range(4):
            a(f"ds_read_b128 {vr(vR+4*q,4)}, v{vEXR} offset:{1024*q}")
        a("s_waitcnt lgkmcnt(0)")
        y = vAC + 16 * own
        for i in range(8):
            a(f"v_pk_add_f32 {vr(y+2*i,2)}, {vr(y+2*i,2)}, {vr(vR+2*i,2)}")
        for i in range(8):
            round_pair(a, y + 2 * i, y + 2 * i + 1)
        for i in range(8):
            a(f"v_pk_add_f32 {vr(y+2*i,2)}, {vr(y+2*i,2)}, {vr(vK+2*i,2)}")
        for i in range(8):
            a(f"v_cvt_pk_bf16_f32 v{vB+16+i}, v{y+2*i}, v{y+2*i+1}")
        a(f"buffer_store_dwordx4 {vr(vB+16,4)}, v{vTA}, {sr(R_WS,4)}, s{sT0} offen sc1")
        a(f"buffer_store_dwordx4 {vr(vB+20,4)}, v{vTA}, {sr(R_WS,4)}, s{sT0} offen offset:64 sc1")
        a.stamp()
        if half == 0:
            a("s_branch B_FINAL")
    a.label("B_FINAL")
    b_final(a)


def b_final(a):
    t = 12
    vXO, vF_, vTG, vTW, vTR, vRR, vST2 = 7, 8, 9, 10, 11, 25, 26
    sT2 = sW2
    srd(a, R_O, S_OUT, SZ_X)
    a(f"""
    s_lshl_b32 s{sT0}, s{sE}, 6
    s_lshl_b32 s{sT1}, s{sCHL}, 5
    s_add_u32 s{sT0}, s{sT0}, s{sT1}
    v_and_b32 v{t}, 31, v{vL}
    v_add_u32 v{t+1}, s{sT0}, v{t}
    v_lshlrev_b32 v{t+2}, 3, v{t+1}
    v_add_u32 v{t+2}, {WS_STATS}, v{t+2}
    v_mul_u32_u24 v{vXO}, 896, v{t+1}
    v_lshrrev_b32 v{t+3}, 5, v{vL}
    v_lshl_add_u32 v{vXO}, v{t+3}, 3, v{vXO}
    s_lshl_b32 s{sXO}, s{sG2C}, 6
    s_lshl_b32 s{sT1}, s{sHF}, 5
    s_add_u32 s{sXO}, s{sXO}, s{sT1}
    s_lshl_b32 s{sT1}, s{sXO}, 1
    v_add_u32 v{vXO}, s{sT1}, v{vXO}
    s_lshl_b32 s{sWO}, s{sT0}, 1
    s_add_u32 s{sWO}, s{sWO}, {WS_T}
    s_add_u32 s{sT2}, s{sWO}, {16*4096}
    s_lshr_b32 s{sT0}, s{sE}, 4
    s_mul_i32 s{sT0}, s{sT0}, 448
    s_add_u32 s{sT0}, s{sT0}, s{sXO}
    s_lshl_b32 s{sT0}, s{sT0}, 7
    s_add_u32 s{sT0}, s{sT0}, {WS_FLT}
    v_lshl_add_u32 v{vF_}, v{t}, 7, s{sT0}
    v_lshrrev_b32 v{t}, 2, v{vL}
    v_add_u32 v{t}, s{sXO}, v{t}
    v_lshlrev_b32 v{t}, 12, v{t}
    v_and_b32 v{t+1}, 3, v{vL}
    v_lshl_add_u32 v{vTG}, v{t+1}, 4, v{t}
    s_lshl_b32 s{sT1}, s{sHF}, 11
    s_add_u32 s{sT1}, s{sT1}, s{sAB}
    s_add_u32 s{sT1}, s{sT1}, 8192
    v_add_u32 v{vTW}, s{sT1}, v{vLB}
    v_bfe_u32 v{t}, v{vL}, 2, 2
    v_lshl_add_u32 v{t}, v{t+3}, 2, v{t}
    v_lshlrev_b32 v{t}, 6, v{t}
    v_bfe_u32 v{t+4}, v{vL}, 4, 1
    v_lshl_add_u32 v{t}, v{t+4}, 5, v{t}
    v_lshl_add_u32 v{t}, v{t+1}, 3, v{t}
    v_add_u32 v{vTR}, s{sT1}, v{t}
    s_lshl_b32 s{sT1}, s{sCQ}, 14
    s_add_u32 s{sT1}, s{sT1}, {WENT[0]}
    v_add_u32 v{vRR}, s{sT1}, v{vLB}
    v_lshlrev_b32 v{t+4}, 2, v{t+1}
    v_add_u32 v{t+4}, {L_FLAG + 64}, v{t+4}
    s_waitcnt vmcnt(0)
    s_mov_b64 exec, 1
    buffer_store_dword v{vONE}, v{vZ}, {sr(R_WS,4)}, s{sTMP} offen sc1
    s_mov_b64 exec, -1
    """)
    a.stamp()
    vXV, vTT, vTD = 28, 36, 44
    vX, vXN, vP, vE, vS = 52, 68, 84, 148, 164
    for i in range(4):
        a(f"buffer_load_dwordx2 {vr(vXV+2*i,2)}, v{vXO}, {sr(R_X,4)}, 0 offen offset:{16*i}")
    a(f"buffer_load_dwordx2 {vr(vST2,2)}, v{t+2}, {sr(R_WS,4)}, 0 offen sc1")
    lds_wait_flag(a, t + 4, 16, t + 3, "TG", sleep=True)
    gpoll(a, vF_, "BT", False, 8)
    a(f"buffer_load_dwordx4 {vr(vTT,4)}, v{vTG}, {sr(R_WS,4)}, s{sWO} offen sc1")
    a(f"buffer_load_dwordx4 {vr(vTT+4,4)}, v{vTG}, {sr(R_WS,4)}, s{sT2} offen sc1")
    a.stamp()
    for i in range(8):
        a(f"v_lshlrev_b32 v{vX+2*i}, 16, v{vXV+i}")
        a(f"v_and_b32 v{vX+2*i+1}, 0xffff0000, v{vXV+i}")
    for i in range(16):
        a(f"v_sub_f32 v{vXN+i}, v{vX+i}, v{vST2}")
    for i in range(8):
        round_pair(a, vXN + 2 * i, vXN + 2 * i + 1)
    for i in range(16):
        a(f"v_mul_f32 v{vXN+i}, v{vXN+i}, v{vST2+1}")
    for i in range(8):
        round_pair(a, vXN + 2 * i, vXN + 2 * i + 1)
    a("s_waitcnt vmcnt(0)")
    a(f"ds_write_b128 v{vTW}, {vr(vTT,4)}")
    a(f"ds_write_b128 v{vTW}, {vr(vTT+4,4)} offset:1024")
    a("s_waitcnt lgkmcnt(0)")
    for i in range(4):
        a(f"ds_read_b64_tr_b16 {vr(vTD+2*i,2)}, v{vTR} offset:{512*i}")
    a("s_waitcnt lgkmcnt(0)")
    for i in range(8):
        a(f"v_lshlrev_b32 v{vS+2*i}, 16, v{vTD+i}")
        a(f"v_and_b32 v{vS+2*i+1}, 0xffff0000, v{vTD+i}")
    for i in range(8):
        a(f"v_pk_mul_f32 {vr(vS+2*i,2)}, {vr(vS+2*i,2)}, {vr(vXN+2*i,2)}")
    for i in range(8):
        round_pair(a, vS + 2 * i, vS + 2 * i + 1)
    a(f"s_mov_b32 s{sW2}, {f32bits(-1.4426950408889634)}")
    a.stamp()
    lds_wait_flag(a, t + 4, 0, t + 3, "GR", sleep=True)
    a.stamp()
    for src in range(4):
        for q in range(4):
            a(f"ds_read_b128 {vr(vP+16*src+4*q,4)}, v{vRR} offset:{src*4096+q*1024}")
    a("s_waitcnt lgkmcnt(8)")
    for i in range(8):
        a(f"v_pk_add_f32 {vr(vP+2*i,2)}, {vr(vP+2*i,2)}, {vr(vP+16+2*i,2)}")
    a("s_waitcnt lgkmcnt(0)")
    for i in range(8):
        a(f"v_pk_add_f32 {vr(vP+32+2*i,2)}, {vr(vP+32+2*i,2)}, {vr(vP+48+2*i,2)}")
    for i in range(8):
        a(f"v_pk_add_f32 {vr(vP+2*i,2)}, {vr(vP+2*i,2)}, {vr(vP+32+2*i,2)}")
    for i in range(8):
        round_pair(a, vP + 2 * i, vP + 2 * i + 1)
    for i in range(16):
        a(f"v_mul_f32 v{vE+i}, s{sW2}, v{vP+i}")
    for i in range(16):
        a(f"v_exp_f32 v{vE+i}, v{vE+i}")
    for i in range(16):
        a(f"v_add_f32 v{vE+i}, 1.0, v{vE+i}")
    for i in range(16):
        a(f"v_rcp_f32 v{vE+i}, v{vE+i}")
    a("s_nop 0")
    for i in range(8):
        a(f"v_pk_mul_f32 {vr(vP+2*i,2)}, {vr(vP+2*i,2)}, {vr(vE+2*i,2)}")
    for i in range(8):
        round_pair(a, vP + 2 * i, vP + 2 * i + 1)
    for i in range(8):
        a(f"v_pk_mul_f32 {vr(vS+2*i,2)}, {vr(vS+2*i,2)}, {vr(vP+2*i,2)}")
    for i in range(8):
        round_pair(a, vS + 2 * i, vS + 2 * i + 1)
    for i in range(8):
        a(f"v_pk_add_f32 {vr(vS+2*i,2)}, {vr(vS+2*i,2)}, {vr(vX+2*i,2)}")
    for i in range(8):
        a(f"v_cvt_pk_bf16_f32 v{vTT+i}, v{vS+2*i}, v{vS+2*i+1}")
    for i in range(4):
        a(f"buffer_store_dwordx2 {vr(vTT+2*i,2)}, v{vXO}, {sr(R_O,4)}, 0 offen offset:{16*i}")
    if PROF:
        a("s_waitcnt vmcnt(0)")
    a.stamp()
    a.stamp_flush()
    a("s_endpgm")


def role_prep2(a):
    R_K, R_V, R_SH = 76, 80, 84
    sB = 4
    vTID = 0
    vTB, vCG = 3, 4
    vO0, vO1, vOH, vOS = 5, 6, 7, 8
    t = 9
    vXS, vWC, vKR, vVR, vSH, vCA = 24, 52, 108, 152, 184, 120
    a(f"""
    s_sub_u32 s{sB}, s2, 224
    s_lshl_b32 s5, s{sB}, 6
    v_lshrrev_b32 v{t}, 3, v{vTID}
    v_add_u32 v{t+1}, s5, v{t}
    v_mul_u32_u24 v{t+1}, 896, v{t+1}
    v_and_b32 v{t+2}, 7, v{vTID}
    v_lshl_add_u32 v{t+1}, v{t+2}, 4, v{t+1}
    s_cmp_ge_u32 s{sB}, 14
    s_cselect_b32 s6, 14, 0
    s_sub_u32 s6, s{sB}, s6
    v_lshrrev_b32 v{t+3}, 4, v{vTID}
    v_mul_u32_u24 v{t+3}, 3584, v{t+3}
    v_and_b32 v{t+4}, 15, v{vTID}
    v_lshl_add_u32 v{t+3}, v{t+4}, 4, v{t+3}
    s_lshl_b32 s9, s6, 8
    v_mov_b32 v{vZ}, 0
    s_waitcnt lgkmcnt(0)
    s_cmp_ge_u32 s{sB}, 14
    s_cselect_b32 s{R_W}, s{S_WU}, s{S_WG}
    s_cselect_b32 s{R_W+1}, s{S_WU+1}, s{S_WG+1}
    s_and_b32 s{R_W+1}, s{R_W+1}, 0xffff
    s_mov_b32 s{R_W+2}, {SZ_W}
    s_mov_b32 s{R_W+3}, 0x20000
    s_cmp_ge_u32 s{sB}, 28
    s_cselect_b32 s{R_W+2}, 0, s{R_W+2}
    """)
    srd(a, R_X, S_X, SZ_X)
    srd(a, R_DBG, S_DBG, 256)
    a(f"""
    s_add_u32 s{sT0}, s{sB}, s3
    s_cmp_lg_u32 s{sT0}, 0
    s_cbranch_scc1 P_NOTAG
    s_memrealtime s[{sSP}:{sSP+1}]
    s_waitcnt lgkmcnt(0)
    s_lshl_b32 s{sSP+1}, s{sSP+1}, 29
    s_xor_b32 s{sSP}, s{sSP}, s{sSP+1}
    s_or_b32 s{sSP}, s{sSP}, 1
    v_mov_b32 v{vONE}, s{sSP}
    s_mov_b64 exec, 1
    buffer_store_dword v{vONE}, v{vZ}, {sr(R_DBG,4)}, 0 offen sc1
    s_mov_b64 exec, -1
    """)
    a.label("P_NOTAG")
    for i in range(14):
        a.vmem(f"buffer_load_dwordx4 {vr(vWC+4*i,4)}, v{t+3}, {sr(R_W,4)}, s9 offen", f"C{i}")
        if i < 13:
            a(f"s_add_u32 s9, s9, {32*3584}")
    for i in range(7):
        a.vmem(f"buffer_load_dwordx4 {vr(vXS+4*i,4)}, v{t+1}, {sr(R_X,4)}, 0 offen offset:{128*i}", "X")
    a(f"""
    v_mul_u32_u24 v{vTB}, 1171, v{vTID}
    v_lshrrev_b32 v{vTB}, 16, v{vTB}
    v_mul_u32_u24 v{vCG}, 56, v{vTB}
    v_sub_u32 v{vCG}, v{vTID}, v{vCG}
    v_lshl_add_u32 v{vO0}, v{vTB}, 3, s5
    v_mul_u32_u24 v{vO0}, 896, v{vO0}
    v_lshl_add_u32 v{vO0}, v{vCG}, 4, v{vO0}
    v_add_u32 v{vO1}, {4*896}, v{vO0}
    v_subrev_u32 v{vOH}, {3*896}, v{vO0}
    v_lshlrev_b32 v{vOS}, 6, v{vCG}
    """)
    srd(a, R_K, S_K, SZ_X)
    srd(a, R_V, S_V, SZ_X)
    srd(a, R_SH, S_SHK, SZ_SHK)
    srd(a, R_WS, S_WS, WS_END)
    for i in range(8):
        a(f"v_mov_b32 v{vCA+i}, 0")
    vUP = 108
    kvl = []
    G12.unit_loads(a)
    for i in range(14):
        a.vm_wait(f"C{i}")
        if i == 0:
            a.stamp()
        for d in range(4):
            a(f"v_lshlrev_b32 v{vUP+2*d}, 16, v{vWC+4*i+d}")
            a(f"v_and_b32 v{vUP+2*d+1}, 0xffff0000, v{vWC+4*i+d}")
        for d in range(4):
            a(f"v_pk_add_f32 {vr(vCA+2*d,2)}, {vr(vCA+2*d,2)}, {vr(vUP+2*d,2)}")
        for _ in range(2):
            if kvl:
                a.vmem(kvl.pop(0), "KV")
    a(f"""
    v_lshlrev_b32 v{t+5}, 5, v{vTID}
    v_add_u32 v{t+5}, 65536, v{t+5}
    ds_write_b128 v{t+5}, {vr(vCA,4)}
    ds_write_b128 v{t+5}, {vr(vCA+4,4)} offset:16
    """)
    vS1, vS2, vON = t + 5, t + 6, t + 4
    a(f"v_mov_b32 v{vS1}, 0")
    a(f"v_mov_b32 v{vS2}, 0")
    a(f"v_mov_b32 v{vON}, 0x3f803f80")
    a.vm_wait("X")
    for i in range(28):
        a(f"v_dot2c_f32_bf16 v{vS1}, v{vXS+i}, v{vON}")
        a(f"v_dot2c_f32_bf16 v{vS2}, v{vXS+i}, v{vXS+i}")
    a("s_nop 3")
    for mode in ("quad_perm:[1,0,3,2]", "quad_perm:[2,3,0,1]", "row_half_mirror"):
        a(f"v_add_f32_dpp v{vS1}, v{vS1}, v{vS1} {mode} row_mask:0xf bank_mask:0xf")
        a(f"v_add_f32_dpp v{vS2}, v{vS2}, v{vS2} {mode} row_mask:0xf bank_mask:0xf")
        a("s_nop 1")
    a(f"""
    s_mov_b32 s8, {f32bits(1.0/448.0)}
    s_mov_b32 s9, {f32bits(1e-5)}
    v_mul_f32 v{vS1}, s8, v{vS1}
    v_mul_f32 v{vS2}, s8, v{vS2}
    v_fma_f32 v{vS2}, -v{vS1}, v{vS1}, v{vS2}
    v_max_f32 v{vS2}, 0, v{vS2}
    v_cvt_pk_bf16_f32 v{vS2}, v{vS1}, v{vS2}
    v_lshlrev_b32 v{vXS}, 16, v{vS2}
    v_and_b32 v{vS2}, 0xffff0000, v{vS2}
    v_add_f32 v{vS2}, s9, v{vS2}
    v_cvt_pk_bf16_f32 v{vS2}, v{vS2}, v{vS2}
    v_and_b32 v{vS2}, 0xffff0000, v{vS2}
    v_sqrt_f32 v{vS2}, v{vS2}
    s_nop 0
    v_cvt_pk_bf16_f32 v{vS2}, v{vS2}, v{vS2}
    v_and_b32 v{vS2}, 0xffff0000, v{vS2}
    v_rcp_f32 v{vXS+1}, v{vS2}
    v_lshlrev_b32 v{t}, 3, v{t}
    v_add_u32 v{t}, 98304, v{t}
    ds_write_b64 v{t}, {vr(vXS,2)}
    s_waitcnt lgkmcnt(0)
    s_barrier
    s_cmp_lg_u32 s3, 7
    s_cbranch_scc1 P_KV
    s_setprio 3
    s_waitcnt vmcnt(0)
    """)
    a(f"""
    buffer_load_dword v{vONE}, v{vZ}, {sr(R_DBG,4)}, 0 offen sc1
    v_lshlrev_b32 v{t+1}, 3, v{vL}
    v_add_u32 v{t+2}, 65536, v{t+1}
    v_add_u32 v{t+3}, 98304, v{t+1}
    ds_read_b64 {vr(vXS,2)}, v{t+3}
    """)
    for i in range(32):
        a(f"ds_read_b64 {vr(vWC+2*i,2)}, v{t+2} offset:{512*i}")
    a(f"""
    s_lshl_b32 s7, s{sB}, 9
    s_add_u32 s7, s7, {WS_STATS}
    v_lshrrev_b32 v{t+2}, 3, v{vL}
    v_lshlrev_b32 v{t+2}, 7, v{t+2}
    v_and_b32 v{t+3}, 7, v{vL}
    v_lshl_add_u32 v{t+2}, v{t+3}, 3, v{t+2}
    s_lshl_b32 s8, s6, 10
    s_cmp_ge_u32 s{sB}, 14
    s_cselect_b32 s9, 64, 0
    s_add_u32 s8, s8, s9
    s_add_u32 s8, s8, {WS_CS}
    s_cmp_ge_u32 s{sB}, 28
    s_cselect_b32 s8, 0x7f000000, s8
    s_waitcnt lgkmcnt(0)
    buffer_store_dwordx2 {vr(vXS,2)}, v{t+1}, {sr(R_WS,4)}, s7 offen sc1
    """)
    n = 32
    while n > 1:
        n //= 2
        for i in range(n):
            a(f"v_pk_add_f32 {vr(vWC+2*i,2)}, {vr(vWC+2*i,2)}, {vr(vWC+2*(i+n),2)}")
    a(f"""
    buffer_store_dwordx2 {vr(vWC,2)}, v{t+2}, {sr(R_WS,4)}, s8 offen sc1
    s_mov_b32 s{sSP}, 0
    """)
    a.label("P_TAGL")
    a(f"""
    s_waitcnt vmcnt(0)
    v_readfirstlane_b32 s{sSP+1}, v{vONE}
    s_add_u32 s{sSP}, s{sSP}, 1
    s_cmp_gt_u32 s{sSP}, 0x4000
    s_cbranch_scc1 P_TAGOK
    s_cmp_lg_u32 s{sSP+1}, 0
    s_cbranch_scc1 P_TAGOK
    s_sleep 4
    buffer_load_dword v{vONE}, v{vZ}, {sr(R_DBG,4)}, 0 offen sc1
    s_branch P_TAGL
    """)
    a.label("P_TAGOK")
    a(f"""
    s_lshl_b32 s7, s{sB}, 7
    s_add_u32 s7, s7, {WS_FLU + 256*128}
    s_mov_b64 exec, 1
    buffer_store_dword v{vONE}, v{vZ}, {sr(R_WS,4)}, s7 offen sc1
    s_mov_b64 exec, -1
    """)
    a.stamp()
    a.label("P_KV")
    a.vm_all()
    up = G12.unit_pieces(a)
    for f in up[4:11]:
        f()
    a("s_waitcnt lgkmcnt(0)")
    a("s_barrier")
    up[11]()
    a("s_waitcnt vmcnt(0)")
    a(f"""
    s_barrier
    s_cmp_lg_u32 s3, 7
    s_cbranch_scc1 P_NOSIG1
    s_lshl_b32 s7, s2, 7
    s_add_u32 s7, s7, {WS_FLU}
    s_mov_b64 exec, 1
    buffer_store_dword v{vONE}, v{vZ}, {sr(R_WS,4)}, s7 offen sc1
    s_mov_b64 exec, -1
    """)
    a.label("P_NOSIG1")
    a.stamp()
    a("s_barrier")
    if int(os.environ.get("WPF3", 1)):
        srd(a, R_WD, S_WD, SZ_W)
        a(f"""
        s_lshr_b32 s5, s{sB}, 3
        s_mul_i32 s5, s5, 401408
        s_add_u32 s9, s5, 200704
        v_lshlrev_b32 v{t}, 7, v{vTID}
        """)
        for i in range(4):
            off = i * 65536
            a(f"s_add_u32 s8, s9, {off}")
            if i == 3:
                a(f"v_cmp_gt_u32 vcc, {(200704 - off)//128}, v{vTID}")
                a("s_and_saveexec_b64 s[10:11], vcc")
                a("s_cbranch_execz P_PF1")
            a(f"buffer_load_dword v{t+1}, v{t}, {sr(R_WD,4)}, s8 offen")
            if i == 3:
                a.label("P_PF1")
                a("s_mov_b64 exec, s[10:11]")
    a.stamp_flush()
    a("s_endpgm")


def gen(a):
    a.lines.append(f".globl {KNAME}\n.p2align 8\n.type {KNAME},@function")
    a.label(KNAME)
    a("s_cmp_ge_u32 s2, 256")
    a("s_cbranch_scc1 K_END")
    if int(os.environ.get("REMAP", 1)):
        a("s_add_u32 s2, s2, 224")
        a("s_and_b32 s2, s2, 255")
    a.stamp()
    a("""
    s_load_dwordx16 s[16:31], s[0:1], 0
    s_load_dwordx8 s[32:39], s[0:1], 64
    s_load_dwordx2 s[40:41], s[0:1], 96
    v_lshrrev_b32 v1, 6, v0
    v_and_b32 v2, 63, v0
    s_nop 0
    v_readfirstlane_b32 s3, v1
    s_cmp_ge_u32 s2, 224
    s_cbranch_scc1 K_PREP
    """)
    wg_map(a)
    dma_setup(a, 12)
    a("s_cmp_ge_u32 s3, 4")
    a("s_cbranch_scc1 K_B")
    role_g(a)
    a.label("K_B")
    a.vm, a.nst = [], 1
    role_b(a)
    a.label("K_PREP")
    a.vm, a.nst = [], 1
    role_prep2(a)
    a.label("K_END")
    a("s_endpgm")


def main():
    HEADER = open("cdna_kernels/" + NAME + ".s.ref").read().split("; Override launch")[0]
    a = Asm()
    gen(a)
    out = HEADER
    out += f"; @launch grid=(256,1,1) block=(512,1,1) lds={LDS_BYTES}\n"
    out += '.amdgcn_target "amdgcn-amd-amdhsa--gfx950"\n.text\n'
    out += a.text()
    out += '.section .rodata,"a"\n.p2align 6\n'
    out += descriptor(KNAME, 256, 102)
    path = sys.argv[1] if len(sys.argv) > 1 else "cdna_kernels/" + NAME + ".s"
    open(path, "w").write(out)


if __name__ == "__main__":
    main()
```

```python
import sys, os
from gen2 import (Asm, vr, sr, srd, round_pair, newlabel, f32bits, descriptor, NAME, KNAME, PROF,
                  S_X, S_K, S_V, S_SHK, S_SSMK, S_SSMD, S_WG, S_WU, S_WD, S_OUT, S_DBG, S_WS,
                  R_X, R_W, R_WS, R_DBG, R_A, R_B, SZ_X, SZ_W, SZ_SHK)
import gen12 as G12
from gen12 import (WS_H, WS_KVR, WS_T, WS_STATS, WS_CS, WS_FLU, WS_FLH, WS_FLT, WS_END, SLOT, LDS_BYTES, USCR,
                   CV_ST, CV_A, CV_U, CV_UP, role_prep, explode, vONE, vZ, vL, sSP, sT0, sT1, tag_issue)

STM = int(os.environ.get("STM", 0))
KVE = int(os.environ.get("KVE", 1))
PE = bool(int(os.environ.get("PE", 1)))
HFL = os.environ.get("HFL", " sc1")
BPRIO = int(os.environ.get("BPRIO", 2))
TGATE = int(os.environ.get("TGATE", 8))
P0ST = int(os.environ.get("P0ST", 5))
SIGST = int(os.environ.get("SIGST", 1))
WENT = [49152 + 16384 * i for i in range(7)]
L_FLAG = 45568
sRB, sCB, sE, sCQ = 4, 5, 6, 10
sXO, sWO, sM0X, sM0W, sTMP = 11, 12, 13, 14, 15
s2RB, s2CB, sCH, sUB, sAB, sD, sW2 = 18, 19, 20, 21, 22, 23, 28
sWB, sHF, sCHL, sHO, sG2C = 29, 68, 69, 70, 9
R_WD, R_O, R_H, R_W2 = R_A, R_B, 92, 88
vLB, vPOLL = 1, 21


MAP = int(os.environ.get("MAP", 0))
HPF = int(os.environ.get("HPF", 0))
MAXH = int(os.environ.get("MAXH", 4))


def wg_map(a):
    a(f"""
    s_and_b32 s{sT0}, s2, 7
    s_lshr_b32 s{sT1}, s2, 3
    s_mul_i32 s{sRB}, s{sT1}, 37
    s_lshr_b32 s{sRB}, s{sRB}, 8
    s_mul_i32 s{sCB}, s{sRB}, 7
    s_sub_u32 s{sCB}, s{sT1}, s{sCB}
    s_mov_b32 s{sXO}, s{sCB}
    """)
    if MAP == 2:
        a(f"""
        s_lshl_b32 s{sWO}, s{sT0}, 2
        s_add_u32 s{sWO}, s{sWO}, s{sRB}
        s_and_b32 s{sT1}, s{sRB}, 1
        s_mul_i32 s{sT1}, s{sT1}, 7
        s_add_u32 s{sCB}, s{sCB}, s{sT1}
        s_lshr_b32 s{sRB}, s{sRB}, 1
        s_lshl_b32 s{sT1}, s{sT0}, 1
        s_add_u32 s{sRB}, s{sRB}, s{sT1}
        """)
    else:
        if MAP == 1:
            a(f"""
            s_and_b32 s{sWO}, s{sT0}, 3
            s_lshl_b32 s{sWO}, s{sWO}, 3
            s_lshr_b32 s{sT1}, s{sT0}, 2
            s_lshl_b32 s{sT1}, s{sT1}, 2
            s_add_u32 s{sWO}, s{sWO}, s{sT1}
            s_add_u32 s{sWO}, s{sWO}, s{sRB}
            """)
        else:
            a(f"""
            s_lshl_b32 s{sWO}, s{sT0}, 2
            s_add_u32 s{sWO}, s{sWO}, s{sRB}
            """)
        a(f"""
        s_and_b32 s{sT1}, s{sT0}, 3
        s_lshl_b32 s{sT1}, s{sT1}, 2
        s_add_u32 s{sRB}, s{sRB}, s{sT1}
        s_lshr_b32 s{sT1}, s{sT0}, 2
        s_mul_i32 s{sT1}, s{sT1}, 7
        s_add_u32 s{sCB}, s{sCB}, s{sT1}
        """)
    a(f"""
    s_and_b32 s{sCQ}, s3, 3
    v_lshlrev_b32 v{vLB}, 4, v{vL}
    v_mov_b32 v{vZ}, 0
    """)


def lds_wait_flag(a, vaddr, off, vtmp, name, sleep=False):
    L, Lok = newlabel(name), newlabel(name + "OK")
    a(f"s_mov_b32 s{sSP}, 0")
    a.label(L)
    if sleep:
        a("s_sleep 1")
    a(f"""
    ds_read_b32 v{vtmp}, v{vaddr} offset:{off}
    s_add_u32 s{sSP}, s{sSP}, 1
    s_cmp_gt_u32 s{sSP}, 0x100000
    s_cbranch_scc1 {Lok}
    s_waitcnt lgkmcnt(0)
    v_cmp_eq_u32 vcc, v{vONE}, v{vtmp}
    s_nop 3
    s_cmp_eq_u64 vcc, exec
    s_cbranch_scc0 {L}
    """)
    a.label(Lok)
    a("s_waitcnt lgkmcnt(0)")


def gpoll(a, vaddr, name, first_loaded, sleep=8):
    L, Lok = newlabel(name), newlabel(name + "OK")
    a(f"s_mov_b32 s{sSP}, 0")
    if not first_loaded:
        a(f"buffer_load_dword v{vPOLL}, v{vaddr}, {sr(R_WS,4)}, 0 offen sc1")
        a("s_waitcnt vmcnt(0)")
    a.label(L)
    a(f"""
    v_cmp_eq_u32 vcc, v{vONE}, v{vPOLL}
    s_add_u32 s{sSP}, s{sSP}, 1
    s_cmp_gt_u32 s{sSP}, 0x10000
    s_cbranch_scc1 {Lok}
    s_cmp_eq_u64 vcc, exec
    s_cbranch_scc1 {Lok}
    s_sleep {sleep}
    buffer_load_dword v{vPOLL}, v{vaddr}, {sr(R_WS,4)}, 0 offen sc1
    s_waitcnt vmcnt(0)
    s_branch {L}
    """)
    a.label(Lok)


vXG0, vXG1, vWG = 246, 247, 248


def dma_setup(a, t):
    a(f"""
    v_lshrrev_b32 v{t}, 3, v{vL}
    v_lshrrev_b32 v{t+1}, 4, v{vL}
    v_and_b32 v{t+2}, 7, v{vL}
    s_lshl_b32 s{sT0}, s{sRB}, 7
    s_lshl_b32 s{sT1}, s{sCQ}, 5
    s_add_u32 s{sT0}, s{sT0}, s{sT1}
    v_add_u32 v{t}, s{sT0}, v{t}
    v_mul_u32_u24 v{t}, 896, v{t}
    v_xor_b32 v{t+3}, v{t+2}, v{t+1}
    v_lshl_add_u32 v{vXG0}, v{t+3}, 4, v{t}
    v_xor_b32 v{t+3}, 4, v{t+3}
    v_lshl_add_u32 v{vXG1}, v{t+3}, 4, v{t}
    v_add_u32 v{vXG1}, {8*896}, v{vXG1}
    s_lshr_b32 s{sCHL}, s{sCQ}, 1
    s_and_b32 s{sHF}, s{sCQ}, 1
    v_and_b32 v{t+2}, 15, v{vL}
    v_lshlrev_b32 v{t+3}, 2, v{t+1}
    v_xor_b32 v{t+2}, v{t+2}, v{t+3}
    s_lshl_b32 s{sT0}, s{sCHL}, 1
    v_xor_b32 v{t+2}, s{sT0}, v{t+2}
    s_lshl_b32 s{sT1}, s{sHF}, 5
    v_add_u32 v{t+3}, s{sT1}, v{t+1}
    v_mul_u32_u24 v{t+3}, 3584, v{t+3}
    v_lshl_add_u32 v{vWG}, v{t+2}, 4, v{t+3}
    s_lshl_b32 s{sT0}, s{sCB}, 8
    v_add_u32 v{vWG}, s{sT0}, v{vWG}
    s_lshl_b32 s{sM0X}, s{sCQ}, 12
    s_lshl_b32 s{sM0W}, s{sCQ}, 13
    s_add_u32 s{sM0W}, s{sM0W}, 16384
    s_mov_b32 s{sE}, s{sWO}
    s_mov_b32 s{sG2C}, s{sXO}
    s_waitcnt lgkmcnt(0)
    """)
    srd(a, R_X, S_X, SZ_X)
    a(f"""
    s_cmp_eq_u32 s{sCHL}, 0
    s_cselect_b32 s{R_W}, s{S_WG}, s{S_WU}
    s_cselect_b32 s{R_W+1}, s{S_WG+1}, s{S_WU+1}
    s_and_b32 s{R_W+1}, s{R_W+1}, 0xffff
    s_mov_b32 s{R_W+2}, {SZ_W}
    s_mov_b32 s{R_W+3}, 0x20000
    """)


def dma(a, st):
    slot = (st % 3) * SLOT
    for j in range(8):
        a(f"s_mov_b32 s{sWO}, {st*64*3584 + j*4*3584}")
        a(f"s_add_u32 m0, s{sM0W}, {slot+1024*j}")
        a("s_nop 0")
        a.vmem(f"buffer_load_dwordx4 v{vWG}, {sr(R_W,4)}, s{sWO} offen lds", f"A{st}")
        if j % 2 == 1:
            i = j // 2
            a(f"s_mov_b32 s{sXO}, {st*128 + (i//2)*16*896}")
            a(f"s_add_u32 m0, s{sM0X}, {slot+1024*i}")
            a("s_nop 0")
            a.vmem(f"buffer_load_dwordx4 v{vXG1 if i%2 else vXG0}, {sr(R_X,4)}, s{sXO} offen lds", f"A{st}")


GDMA = [int(c) for c in os.environ.get("GDMA", "0")]


def unit_g(a):
    R_K, R_V, R_SH = 76, 80, 84
    O = 64
    t = 12
    uA = 24 + O
    uK, uV, uW = 32 + O, 43 + O, 52 + O
    uKU, uWU, uAC, uVU, uO = 64 + O, 86 + O, 94 + O, 110 + O, 112 + O

    def loads():
        srd(a, R_K, S_K, SZ_X)
        srd(a, R_V, S_V, SZ_X)
        srd(a, R_SH, S_SHK, SZ_SHK)
        a(f"""
        v_lshrrev_b32 v{uA}, 5, v{vL}
        v_and_b32 v{uA+1}, 31, v{vL}
        s_lshl_b32 s{sT1}, s{sE}, 3
        s_lshl_b32 s{sTMP}, s{sCQ}, 1
        s_add_u32 s{sT1}, s{sT1}, s{sTMP}
        s_mul_i32 s{sT1}, s{sT1}, {8*896}
        s_lshl_b32 s{sT0}, s{sG2C}, 7
        s_add_u32 s{sT1}, s{sT1}, s{sT0}
        v_mul_u32_u24 v{uA+2}, {8*896}, v{uA}
        v_lshl_add_u32 v{uA+2}, v{uA+1}, 2, v{uA+2}
        v_add_u32 v{uA+2}, s{sT1}, v{uA+2}
        v_subrev_u32 v{uA+3}, {3*896}, v{uA+2}
        s_lshl_b32 s{sT0}, s{sT0}, 2
        v_lshl_add_u32 v{uA+5}, v{uA+1}, 4, s{sT0}
        s_mov_b32 s{sT1}, {4*896}
        """)
        a.vmem(f"buffer_load_dwordx4 {vr(uW,4)}, v{uA+5}, {sr(R_SH,4)}, 0 offen", "UK")
        for i in range(3):
            a.vmem(f"buffer_load_dword v{uK+i}, v{uA+3}, {sr(R_K,4)}, 0 offen offset:{896*i}", "UK")
        for i in range(8):
            a.vmem(f"buffer_load_dword v{uK+3+i}, v{uA+2}, {sr(R_K,4)}, {'0' if i<4 else 's%d'%sT1} offen offset:{896*(i&3)}", "UK")
        for i in range(8):
            a.vmem(f"buffer_load_dword v{uV+i}, v{uA+2}, {sr(R_V,4)}, {'0' if i<4 else 's%d'%sT1} offen offset:{896*(i&3)}", "UK")


    def chunk_kv():
        a.vm_wait("UK")
        for r in range(11):
            a(f"v_lshlrev_b32 v{uKU+2*r}, 16, v{uK+r}")
            a(f"v_and_b32 v{uKU+2*r+1}, 0xffff0000, v{uK+r}")
        for h in range(2):
            a(f"v_lshlrev_b32 v{uWU+0+h}, 16, v{uW+2*h}")
            a(f"v_and_b32 v{uWU+2+h}, 0xffff0000, v{uW+2*h}")
            a(f"v_lshlrev_b32 v{uWU+4+h}, 16, v{uW+2*h+1}")
            a(f"v_and_b32 v{uWU+6+h}, 0xffff0000, v{uW+2*h+1}")
        kv_rows(range(0, 3))

    def kv_rows(rows):
        w = lambda j: vr(uWU + 2 * j, 2)
        for r in rows:
            ac = vr(uAC + 2 * r, 2)
            a(f"v_pk_mul_f32 {ac}, {vr(uKU+2*r,2)}, {w(3)}")
            a(f"v_pk_fma_f32 {ac}, {vr(uKU+2*(r+1),2)}, {w(2)}, {ac}")
            a(f"v_pk_fma_f32 {ac}, {vr(uKU+2*(r+2),2)}, {w(1)}, {ac}")
            a(f"v_pk_fma_f32 {ac}, {vr(uKU+2*(r+3),2)}, {w(0)}, {ac}")
            a(f"v_cvt_pk_bf16_f32 v{uAC+2*r+1}, v{uAC+2*r}, v{uAC+2*r+1}")
            a(f"v_lshlrev_b32 v{uVU}, 16, v{uV+r}")
            a(f"v_and_b32 v{uVU+1}, 0xffff0000, v{uV+r}")
            a(f"v_lshlrev_b32 v{uAC+2*r}, 16, v{uAC+2*r+1}")
            a(f"v_and_b32 v{uAC+2*r+1}, 0xffff0000, v{uAC+2*r+1}")
            a(f"v_pk_mul_f32 {ac}, {ac}, {vr(uVU,2)}")

    def chunk_kv2():
        kv_rows(range(3, 8))
        for h in range(2):
            for q in range(4):
                a(f"v_cvt_pk_bf16_f32 v{uO+4*h+q}, v{uAC+2*(7-2*q)+h}, v{uAC+2*(6-2*q)+h}")
        a(f"""
        v_lshlrev_b32 v{uA+2}, 8, v{uA+1}
        v_lshlrev_b32 v{uA+3}, 4, v{uA}
        v_sub_u32 v{uA+2}, v{uA+2}, v{uA+3}
        s_lshl_b32 s{sT0}, s{sCQ}, 5
        s_sub_u32 s{sT0}, {USCR + 7*16}, s{sT0}
        v_add_u32 v{uA+2}, s{sT0}, v{uA+2}
        ds_write_b128 v{uA+2}, {vr(uO,4)}
        ds_write_b128 v{uA+2}, {vr(uO+4,4)} offset:128
        """)


    return loads, chunk_kv, chunk_kv2


def role_g(a):
    vXA, vWA = 3, 7
    vXR, vWR0, vWR1 = 9, 10, 11
    t = 12
    vWD, vHO, vRA0 = 0, 19, 22
    vSA0, vSA1, vHS = 24, 25, 26
    vFR = 28
    vACC = 76
    vCS, vSTAT, vR2 = 204, 236, 60
    ul_, kv1_, kv2_ = unit_g(a)
    UFIRST = int(os.environ.get("UFIRST", 0))
    if UFIRST:
        ul_()
    if 0 in GDMA:
        dma(a, 0)
    if not UFIRST:
        ul_()
    a(f"""
    s_mov_b32 s{s2CB}, s{sG2C}
    s_mov_b32 s{s2RB}, s{sE}
    v_and_b32 v{t}, 31, v{vL}
    v_lshrrev_b32 v{t+1}, 5, v{vL}
    v_bfe_u32 v{t+2}, v{vL}, 1, 3
    v_xor_b32 v{t+2}, v{t+2}, v{t+1}
    v_lshlrev_b32 v{t+3}, 7, v{t}
    v_lshl_add_u32 v{vXA}, v{t+2}, 4, v{t+3}
    v_xor_b32 v{vXA+1}, 32, v{vXA}
    v_xor_b32 v{vXA+2}, 64, v{vXA}
    v_xor_b32 v{vXA+3}, 96, v{vXA}
    s_lshl_b32 s{sT0}, s{sRB}, 7
    v_add_u32 v{t}, s{sT0}, v{t}
    v_lshlrev_b32 v{t}, 3, v{t}
    v_add_u32 v{vSA0}, {WS_STATS}, v{t}
    s_lshl_b32 s{sT0}, s{sCB}, 3
    s_lshl_b32 s{sT1}, s{sCQ}, 1
    s_add_u32 s{sT0}, s{sT0}, s{sT1}
    s_lshl_b32 s{sT1}, s{sT0}, 7
    s_add_u32 s{sT1}, s{sT1}, {WS_CS}
    v_lshl_add_u32 v{vSA1}, v{t+1}, 4, s{sT1}
    s_lshl_b32 s{sT1}, s{sRB}, 9
    s_add_u32 s{sT0}, s{sT0}, s{sT1}
    s_lshl_b32 s{sT0}, s{sT0}, 10
    v_add_u32 v{vHS}, s{sT0}, v{vLB}
    v_bfe_u32 v{t}, v{vL}, 4, 1
    v_bfe_u32 v{t+2}, v{vL}, 2, 2
    v_bfe_u32 v{t+3}, v{vL}, 1, 1
    s_lshl_b32 s{sT0}, s{sCQ}, 2
    v_or_b32 v{t+3}, s{sT0}, v{t+3}
    v_lshlrev_b32 v{t+4}, 2, v{t+2}
    v_xor_b32 v{t+3}, v{t+3}, v{t+4}
    v_lshlrev_b32 v{t+4}, 1, v{t}
    v_xor_b32 v{t+3}, v{t+3}, v{t+4}
    v_lshlrev_b32 v{t+3}, 4, v{t+3}
    v_and_b32 v{t+4}, 1, v{vL}
    v_lshl_add_u32 v{t+3}, v{t+4}, 3, v{t+3}
    v_lshl_add_u32 v{t+2}, v{t+1}, 3, v{t+2}
    v_lshl_add_u32 v{t+3}, v{t+2}, 8, v{t+3}
    v_add_u32 v{t}, 1, v{t}
    v_lshl_add_u32 v{vWA}, v{t}, 14, v{t+3}
    v_xor_b32 v{vWA+1}, 32, v{vWA}
    s_mul_i32 s{sE}, s{sRB}, 56
    s_lshl_b32 s{sT0}, s{sCB}, 2
    s_add_u32 s{sE}, s{sE}, s{sT0}
    s_add_u32 s{sE}, s{sE}, s{sCQ}
    s_lshl_b32 s{sE}, s{sE}, 7
    s_add_u32 s{sE}, s{sE}, {WS_FLH}
    s_lshl_b32 s{sWB}, s{sCQ}, 12
    s_lshl_b32 s{sT0}, s{s2RB}, 8
    s_mul_i32 s{sT1}, s{sCQ}, 28
    s_add_u32 s{sT0}, s{sT0}, s{sT1}
    s_lshl_b32 s{sT0}, s{sT0}, 10
    v_add_u32 v{vHO}, s{sT0}, v{vLB}
    v_lshrrev_b32 v{t}, 3, v{vL}
    s_mul_i32 s{sT0}, s{sCQ}, 448
    v_add_u32 v{t}, s{sT0}, v{t}
    v_mul_u32_u24 v{t}, 896, v{t}
    v_bfe_u32 v{t+1}, v{vL}, 4, 1
    v_lshlrev_b32 v{t+1}, 2, v{t+1}
    v_and_b32 v{t+2}, 7, v{vL}
    v_xor_b32 v{t+1}, v{t+1}, v{t+2}
    v_lshl_add_u32 v{vWD}, v{t+1}, 4, v{t}
    s_lshl_b32 s{sT0}, s{s2CB}, 7
    v_add_u32 v{vWD}, s{sT0}, v{vWD}
    v_lshrrev_b32 v{t}, 5, v{vL}
    v_bfe_u32 v{t+1}, v{vL}, 2, 2
    v_lshl_add_u32 v{t}, v{t}, 2, v{t+1}
    v_bfe_u32 v{t+2}, v{vL}, 4, 1
    v_bfe_u32 v{t+3}, v{vL}, 1, 1
    v_lshl_add_u32 v{t+2}, v{t+2}, 1, v{t+3}
    v_bfe_u32 v{t+3}, v{vL}, 3, 1
    v_lshl_add_u32 v{t+2}, v{t+3}, 2, v{t+2}
    v_lshlrev_b32 v{t+2}, 4, v{t+2}
    v_and_b32 v{t+3}, 1, v{vL}
    v_lshl_add_u32 v{t+2}, v{t+3}, 3, v{t+2}
    v_lshl_add_u32 v{t+2}, v{t}, 7, v{t+2}
    v_add_u32 v{vRA0}, s{sWB}, v{t+2}
    """)
    srd(a, R_WS, S_WS, WS_END)
    srd(a, R_WD, S_WD, SZ_W)

    def fx(s_, nt):
        return vFR + 24 * s_ + 4 * nt

    def fw(s_, mt):
        return vFR + 24 * s_ + 16 + 4 * mt

    def read_ops(st, p, s_):
        slot = (st % 3) * SLOT
        ops = []
        pre = []
        if p == 0:
            pre.append(f"v_add_u32 v{vWR0}, {slot}, v{vWA}")
            pre.append(f"v_add_u32 v{vWR1}, {slot}, v{vWA+1}")
        pre.append(f"v_add_u32 v{vXR}, {slot}, v{vXA+p}")
        ops.append(pre + [f"ds_read_b64_tr_b16 {vr(fw(s_,0),2)}, v{vWR0} offset:{4096*p}"])
        ops.append([f"ds_read_b64_tr_b16 {vr(fw(s_,0)+2,2)}, v{vWR0} offset:{4096*p+1024}"])
        for nt in range(4):
            ops.append([f"ds_read_b128 {vr(fx(s_,nt),4)}, v{vXR} offset:{4096*nt}"])
        ops.append([f"ds_read_b64_tr_b16 {vr(fw(s_,1),2)}, v{vWR1} offset:{4096*p}"])
        ops.append([f"ds_read_b64_tr_b16 {vr(fw(s_,1)+2,2)}, v{vWR1} offset:{4096*p+1024}"])
        return ops

    def wdma(r, s_, ent):
        for j in range(4):
            r(f"s_mov_b32 s{sW2}, {(32*s_ + 8*j)*896}")
            r(f"s_add_u32 m0, s{sWB}, {ent + j*1024}")
            r("s_nop 0")
            r.vmem(f"buffer_load_dwordx4 v{vWD}, {sr(R_WD,4)}, s{sW2} offen lds", f"W{s_}")

    def stat_loads(r):
        for nt in range(4):
            r.vmem(f"buffer_load_dwordx2 {vr(vSTAT+2*nt,2)}, v{vSA0}, {sr(R_WS,4)}, 0 offen offset:{256*nt} sc1", "ST")
        for i in range(8):
            r.vmem(f"buffer_load_dwordx4 {vr(vCS+4*i,4)}, v{vSA1}, {sr(R_WS,4)}, 0 offen offset:{32*i} sc1", "ST")

    def tag_read(r):
        r(f"v_mov_b32 v{t}, {USCR+8192}")
        r(f"ds_read_b32 v{vONE}, v{t}")

    WD = lambda s_: (lambda r: wdma(r, s_, WENT[s_]))
    plan = {0: [tag_read], 1: [], 2: [WD(6)], 3: [], 4: [WD(0), WD(1), WD(2)], 5: [stat_loads, WD(3), WD(4), WD(5)], 6: []}
    for st_ in GDMA:
        if st_ >= 3:
            plan[st_ - 3] = plan[st_ - 3] + [(lambda q: (lambda r: dma(r, q)))(st_)]
    if 1 in GDMA:
        dma(a, 1)
    kv1_()
    kv2_()
    a.vm_wait("A0")
    a("s_waitcnt lgkmcnt(0)")
    a("s_barrier")
    a.stamp()
    for ops in read_ops(0, 0, 0):
        for o in ops:
            a(o)
    cur = 0
    fill = explode(a, [lambda r: dma(r, 2)]) if 2 in GDMA else []
    order = [(0, 0), (0, 1), (0, 2), (0, 3), (1, 3), (1, 2), (1, 1), (1, 0)]
    for st in range(7):
        for p in range(4):
            a("s_waitcnt lgkmcnt(0)")
            nxt = []
            if p == 3:
                assert not fill
                a.vm_wait(f"A{st+1}")
                a("s_barrier")
                if st < 6:
                    nxt = read_ops(st + 1, 0, cur ^ 1)
                fill = explode(a, plan[st])
            else:
                nxt = read_ops(st, p + 1, cur ^ 1)
            slots = 8 * (3 - p) if p < 3 else 32
            for k, (mt, nt) in enumerate(order):
                acc = vACC + 16 * (4 * mt + nt)
                c = "0" if (st == 0 and p == 0) else vr(acc, 16)
                a(f"v_mfma_f32_32x32x16_bf16 {vr(acc,16)}, {vr(fw(cur,mt),4)}, {vr(fx(cur,nt),4)}, {c}")
                for _ in range(2):
                    if nxt:
                        for o in nxt.pop(0):
                            a(o)
                tot = sum(c_ for c_, _ in fill)
                budget = tot / max(1, slots - k)
                used = 0
                while fill and used < budget - 1e-9:
                    c_, e = fill.pop(0)
                    e()
                    used += c_
            cur ^= 1
            if p == 3 and (st in (3, 6) or STM == 1):
                a.stamp()
    a.vm_wait("ST")
    for nt in range(4):
        a(f"v_mul_f32 v{vR2+2*nt}, v{vSTAT+2*nt+1}, v{vSTAT+2*nt+1}")
    for nt in range(1, 4):
        a(f"s_mov_b32 s{sM0X+nt-1}, {nt*128*1024}")
    a("s_nop 4")
    vH = 28
    k = 0
    for nt in range(4):
        for mt in range(2):
            acc = vACC + 16 * (4 * mt + nt)
            cs = vCS + 16 * mt
            m = vSTAT + 2 * nt
            for i in range(8):
                a(f"v_pk_fma_f32 {vr(acc+2*i,2)}, {vr(m,2)}, {vr(cs+2*i,2)}, {vr(acc+2*i,2)} op_sel_hi:[0,1,1] neg_lo:[1,0,0] neg_hi:[1,0,0]")
            for i in range(8):
                a(f"v_max_f32 v{acc+i}, 0, v{acc+i}")
            for i in range(4):
                a(f"v_pk_mul_f32 {vr(acc+8+2*i,2)}, {vr(acc+8+2*i,2)}, {vr(vR2+2*nt,2)} op_sel_hi:[1,0]")
            for i in range(4):
                a(f"v_pk_mul_f32 {vr(acc+2*i,2)}, {vr(acc+2*i,2)}, {vr(acc+8+2*i,2)}")
            o = vH + 4 * k
            for i in range(4):
                a(f"v_cvt_pk_bf16_f32 v{o+i}, v{acc+2*i}, v{acc+2*i+1}")
            so = "0" if nt == 0 else f"s{sM0X+nt-1}"
            a.vmem(f"buffer_store_dwordx4 {vr(o,4)}, v{vHS}, {sr(R_WS,4)}, {so} offen offset:{mt*1024} sc1", "HS")
            k += 1
    a.stamp()
    vA2 = 192
    vRB0, vRB1, vH1, vFA = 3, 4, 5, 6
    gH0, gRA, gTAG, vRW, gFL = 7, 8, 9, 10, 11
    SETS = [16 + 16 * i for i in range(11)]
    ENT = {s_: WENT[s_ % 7] for s_ in range(14)}

    def trreads(s_, dst):
        a(f"v_add_u32 v{vRB0}, {ENT[s_]}, v{gRA}")
        a(f"v_xor_b32 v{vRB1}, 64, v{vRB0}")
        for tt in range(2):
            for Td in range(2):
                for hf in range(2):
                    a(f"ds_read_b64_tr_b16 {vr(dst+8*tt+4*Td+2*hf,2)}, v{vRB1 if Td else vRB0} offset:{tt*2048+hf*1024}")

    a(f"""
    v_add_u32 v{vH1}, {128*1024}, v{vHO}
    v_mov_b32 v{gH0}, v{vHO}
    v_mov_b32 v{gRA}, v{vRA0}
    v_mov_b32 v{gTAG}, v{vONE}
    s_lshr_b32 s{sT0}, s{s2RB}, 1
    s_mul_i32 s{sT0}, s{sT0}, 56
    s_mul_i32 s{sT1}, s{sCQ}, 14
    s_add_u32 s{sT0}, s{sT0}, s{sT1}
    s_lshl_b32 s{sT0}, s{sT0}, 7
    s_add_u32 s{sT0}, s{sT0}, {WS_FLH}
    v_min_u32 v{vFA}, 13, v{vL}
    v_lshl_add_u32 v{vFA}, v{vFA}, 7, s{sT0}
    """)
    NW0 = int(os.environ.get("NW0", 6))
    LOOK = int(os.environ.get("LOOK", 2))
    setW, setH = {}, {}
    free = SETS[:]
    for s_ in range(NW0):
        setW[s_] = free.pop()
        a.vm_wait(f"W{s_}")
        trreads(s_, setW[s_])
    a("s_waitcnt lgkmcnt(0)")
    FORD = int(os.environ.get("FORD", 1))
    if not FORD:
        for s_ in range(7, 7 + NW0):
            wdma(a, s_, ENT[s_])
    a.vm_wait("HS")
    a("s_mov_b64 exec, 1")
    a.vmem(f"buffer_store_dword v{vONE}, v{vZ}, {sr(R_WS,4)}, s{sE} offen sc1", "HF")
    a("s_mov_b64 exec, -1")
    if FORD:
        for s_ in range(7, 7 + NW0):
            wdma(a, s_, ENT[s_])
    if HPF:
        a(f"""
        v_sub_u32 v{t}, v{vHS}, v{vLB}
        v_lshrrev_b32 v{t+1}, 4, v{vL}
        v_lshl_add_u32 v{t}, v{t+1}, 17, v{t}
        v_and_b32 v{t+1}, 15, v{vL}
        v_lshl_add_u32 v{t}, v{t+1}, 7, v{t}
        buffer_load_dword v{t+1}, v{t}, {sr(R_WS,4)}, 0 offen
        """)
    a.stamp()
    a(f"""
    s_add_u32 s{sT1}, s{sWB}, {WENT[0]}
    v_add_u32 v{vRW}, s{sT1}, v{vLB}
    s_lshl_b32 s{sT0}, s3, 2
    s_add_u32 s{sT0}, s{sT0}, {L_FLAG + 64}
    v_mov_b32 v{gFL}, s{sT0}
    """)
    gpoll(a, vFA, "GH", False)
    a.vm = []
    a.stamp()

    def hloads(s_):
        r = setH[s_]
        a(f"s_mov_b32 s{sHO}, {2048*s_}")
        for tt in range(2):
            for nt in range(2):
                a.vmem(f"buffer_load_dwordx4 {vr(r+8*tt+4*nt,4)}, v{vH1 if nt else gH0}, {sr(R_WS,4)}, s{sHO} offen offset:{1024*tt}{HFL}", f"H{s_}")

    nh, nw = 0, NW0
    while free and nh < MAXH:
        setH[nh] = free.pop(0)
        hloads(nh)
        nh += 1
    for s_ in range(14):
        a.vm_wait(f"H{s_}")
        if s_ >= NW0:
            a(f"s_waitcnt lgkmcnt({min(15, 8*(nw - 1 - s_))})")
        if STM == 2 and s_ in (0, 3, 6, 9, 12):
            a.stamp()
        for tt in range(2):
            for Td in range(2):
                for nt in range(2):
                    acc = vA2 + 32 * nt + 16 * Td
                    c = "0" if (s_ == 0 and tt == 0) else vr(acc, 16)
                    a(f"v_mfma_f32_32x32x16_bf16 {vr(acc,16)}, {vr(setW[s_]+8*tt+4*Td,4)}, {vr(setH[s_]+8*tt+4*nt,4)}, {c}")
        if s_ == TGATE:
            a(f"ds_write_b32 v{gFL}, v{gTAG} offset:16")
        free += [setW[s_], setH[s_]]
        wnow = []
        while nw < 14 and (nw <= s_ + LOOK or (nh >= 14 and nw <= s_ + 3)):
            setW[nw] = free.pop(0)
            wnow.append(nw)
            nw += 1
        while free and nh < 14 and nh <= s_ + MAXH:
            setH[nh] = free.pop(0)
            hloads(nh)
            nh += 1
        for sn in wnow:
            a.vm_wait(f"W{sn}")
            trreads(sn, setW[sn])
            if sn + 7 < 14:
                a("s_waitcnt lgkmcnt(0)")
                wdma(a, sn + 7, ENT[sn + 7])
    a.stamp()
    a("s_nop 7")
    a("s_nop 3")
    for tau in range(4):
        for q in range(4):
            a(f"ds_write_b128 v{vRW}, {vr(vA2+16*tau+4*q,4)} offset:{tau*16384+q*1024}")
    a("s_waitcnt lgkmcnt(0)")
    a(f"ds_write_b32 v{gFL}, v{gTAG}")
    a.stamp()
    a.stamp_flush()
    a("s_endpgm")


def role_b(a):
    R_K, R_V, R_SH = 76, 80, 84
    t = 6
    uA = 24
    uK, uV, uW, uX = 32, 43, 52, 56
    uKU, uWU, uAC, uVU, uO, uS = 64, 86, 94, 110, 112, 120
    vD, vU, vBLD = 144, 168, 176
    vAA, vBA, vKA, vTA, vEXW, vEXR, vFL, vWM, vWX, vWZ, vWP, vPA, vKVA = range(216, 229)
    if 0 not in GDMA:
        dma(a, 0)
    if 1 not in GDMA:
        dma(a, 1)
    srd(a, R_WS, S_WS, WS_END)
    srd(a, R_DBG, S_DBG, 256)
    a.vm_wait("A0")
    if BPRIO:
        a(f"s_setprio {BPRIO}")
    EARLY = int(os.environ.get("EARLY", 1))
    a.stamp()
    a(f"s_lshl_b32 s{sT0}, s{sCQ}, 12")
    tagl = lambda: a.vmem(f"buffer_load_dword v{vONE}, v{vZ}, {sr(R_DBG,4)}, s{sT0} offen sc1", "TAG")

    def tag_block():
        L, Lok, Lsk = newlabel("TB"), newlabel("TBOK"), newlabel("TBSK")
        a.vm_wait("TAG")
        a(f"s_cmp_lg_u32 s{sCQ}, 0")
        a(f"s_cbranch_scc1 {Lsk}")
        a(f"s_mov_b32 s{sSP}, 0")
        a.label(L)
        a(f"""
        v_readfirstlane_b32 s{sSP+1}, v{vONE}
        s_add_u32 s{sSP}, s{sSP}, 1
        s_cmp_gt_u32 s{sSP}, 0x4000
        s_cbranch_scc1 {Lok}
        s_cmp_lg_u32 s{sSP+1}, 0
        s_cbranch_scc1 {Lok}
        s_sleep 4
        buffer_load_dword v{vONE}, v{vZ}, {sr(R_DBG,4)}, 0 offen sc1
        s_waitcnt vmcnt(0)
        s_branch {L}
        """)
        a.label(Lok)
        a(f"v_mov_b32 v{t}, {USCR+8192}")
        a(f"ds_write_b32 v{t}, v{vONE}")
        a.label(Lsk)

    def chunk_store_stats():
        if not EARLY:
            a(f"v_mov_b32 v{t}, {USCR+8192}")
            a(f"ds_read_b32 v{vONE}, v{t}")
        a(f"""
        s_lshl_b32 s{sT0}, s{sCQ}, 11
        s_add_u32 s{sT0}, s{sT0}, {USCR}
        v_add_u32 v{uA+2}, s{sT0}, v{vLB}
        ds_read_b128 {vr(uO,4)}, v{uA+2}
        ds_read_b128 {vr(uO+4,4)}, v{uA+2} offset:1024
        v_lshrrev_b32 v{uA+2}, 3, v{vL}
        v_lshlrev_b32 v{uA+2}, 12, v{uA+2}
        v_and_b32 v{uA+3}, 7, v{vL}
        v_lshl_add_u32 v{uA+2}, v{uA+3}, 4, v{uA+2}
        s_lshl_b32 s{sT0}, s{sG2C}, 6
        s_lshl_b32 s{sT1}, s{sCQ}, 4
        s_add_u32 s{sT0}, s{sT0}, s{sT1}
        s_lshl_b32 s{sT0}, s{sT0}, 12
        s_lshl_b32 s{sT1}, s{sE}, 7
        s_sub_u32 s{sT0}, s{sT0}, s{sT1}
        s_add_u32 s{sT0}, s{sT0}, {WS_KVR + 3968}
        s_add_u32 s{sT1}, s{sT0}, {8*4096}
        s_waitcnt lgkmcnt(0)
        """)
        a.vmem(f"buffer_store_dwordx4 {vr(uO,4)}, v{uA+2}, {sr(R_WS,4)}, s{sT0} offen sc1", "US")
        a.vmem(f"buffer_store_dwordx4 {vr(uO+4,4)}, v{uA+2}, {sr(R_WS,4)}, s{sT1} offen sc1", "US")
        a("s_mov_b64 exec, -1")
        return
        a.vm_wait("UX")
        for i in range(4):
            a(f"v_mov_b32 v{uS+i}, 0")
        a(f"v_mov_b32 v{uS+4}, 0x3f803f80")
        for i in range(4):
            for r in range(2):
                a(f"v_dot2c_f32_bf16 v{uS+2*r}, v{uX+4*r+i}, v{uS+4}")
                a(f"v_dot2c_f32_bf16 v{uS+2*r+1}, v{uX+4*r+i}, v{uX+4*r+i}")
        a("s_nop 2")
        for mode in ("quad_perm:[1,0,3,2]", "quad_perm:[2,3,0,1]", "row_half_mirror", "row_mirror"):
            for i in range(4):
                a(f"v_add_f32_dpp v{uS+i}, v{uS+i}, v{uS+i} {mode} row_mask:0xf bank_mask:0xf")
        for sw in ("v_permlane16_swap_b32", "v_permlane32_swap_b32"):
            for i in range(4):
                a(f"v_mov_b32 v{uS+4+i}, v{uS+i}")
            a("s_nop 1")
            for i in range(4):
                a(f"{sw} v{uS+i}, v{uS+4+i}")
            a("s_nop 1")
            for i in range(4):
                a(f"v_add_f32 v{uS+i}, v{uS+i}, v{uS+4+i}")
        a(f"s_mov_b32 s{sT0}, {f32bits(1.0/448.0)}")
        a(f"s_mov_b32 s{sT1}, {f32bits(1e-5)}")
        for r in range(2):
            m, q = uS + 2 * r, uS + 2 * r + 1
            a(f"""
            v_mul_f32 v{m}, s{sT0}, v{m}
            v_mul_f32 v{q}, s{sT0}, v{q}
            v_fma_f32 v{q}, -v{m}, v{m}, v{q}
            v_max_f32 v{q}, 0, v{q}
            v_cvt_pk_bf16_f32 v{q}, v{m}, v{q}
            v_lshlrev_b32 v{m}, 16, v{q}
            v_and_b32 v{q}, 0xffff0000, v{q}
            v_add_f32 v{q}, s{sT1}, v{q}
            v_cvt_pk_bf16_f32 v{q}, v{q}, v{q}
            v_and_b32 v{q}, 0xffff0000, v{q}
            v_sqrt_f32 v{q}, v{q}
            s_nop 0
            v_cvt_pk_bf16_f32 v{q}, v{q}, v{q}
            v_and_b32 v{q}, 0xffff0000, v{q}
            v_rcp_f32 v{q}, v{q}
            """)
        a(f"""
        s_lshl_b32 s{sT0}, s2, 2
        s_add_u32 s{sT0}, s{sT0}, s{sCQ}
        s_lshl_b32 s{sT0}, s{sT0}, 4
        s_add_u32 s{sT0}, s{sT0}, {WS_STATS}
        s_mov_b64 exec, 1
        """)
        a.vmem(f"buffer_store_dwordx4 {vr(uS,4)}, v{vZ}, {sr(R_WS,4)}, s{sT0} offen sc1", "US")
        a("s_mov_b64 exec, -1")

    def chunk_conv_setup():
        c = t
        a(f"""
        s_lshl_b32 s{sCH}, s2, 1
        s_add_u32 s{sCH}, s{sCH}, s{sCHL}
        s_mul_i32 s{sUB}, s{sCHL}, {8*CV_UP}
        s_add_u32 s{sUB}, s{sUB}, {CV_U}
        s_mul_i32 s{sAB}, s{sCHL}, {CV_A[1]}
        s_lshl_b32 s{sT0}, s{sCH}, 12
        s_add_u32 s{R_H}, s{S_SSMK}, s{sT0}
        s_addc_u32 s{R_H+1}, s{S_SSMK+1}, 0
        s_and_b32 s{R_H+1}, s{R_H+1}, 0xffff
        s_mov_b32 s{R_H+2}, 4096
        s_mov_b32 s{R_H+3}, 0x20000
        s_lshl_b32 s{sT1}, s2, 2
        s_load_dword s{sD}, {sr(S_SSMD,2)}, s{sT1}
        s_lshl_b32 s{sT1}, s{sHF}, 11
        v_add_u32 v{c+1}, s{sT1}, v{vLB}
        v_subrev_u32 v{c+2}, 64, v{vLB}
        v_subrev_u32 v{c+3}, 48, v{vLB}
        s_add_u32 s{sT0}, s{sT0}, {WS_KVR}
        v_add_u32 v{vKVA}, s{sT0}, v{c+1}
        """)
        a.vmem(f"buffer_load_dwordx4 {vr(vD,4)}, v{c+1}, {sr(R_H,4)}, 0 offen", "D")
        a.vmem(f"buffer_load_dwordx4 {vr(vD+4,4)}, v{c+1}, {sr(R_H,4)}, 0 offen offset:16", "D")
        a.vmem(f"buffer_load_dwordx4 {vr(vD+8,4)}, v{c+1}, {sr(R_H,4)}, 0 offen offset:1024", "D")
        a.vmem(f"buffer_load_dwordx4 {vr(vD+12,4)}, v{c+1}, {sr(R_H,4)}, 0 offen offset:1040", "D")
        a.vmem(f"buffer_load_dwordx4 {vr(vD+16,4)}, v{c+2}, {sr(R_H,4)}, 0 offen", "D")
        a.vmem(f"buffer_load_dwordx4 {vr(vD+20,4)}, v{c+3}, {sr(R_H,4)}, 0 offen", "D")
        a(f"""
        v_add_u32 v{vWM}, s{sAB}, v{c+1}
        v_add_u32 v{vWX}, s{sAB}, v{vLB}
        v_mov_b32 v{vBLD+36}, 0
        v_mov_b32 v{vBLD+37}, 0
        v_mov_b32 v{vBLD+38}, 0
        v_mov_b32 v{vBLD+39}, 0
        v_lshrrev_b32 v{c+4}, 4, v{vL}
        s_lshl_b32 s{sT0}, s{sHF}, 2
        v_add_u32 v{vWZ}, s{sT0}, v{c+4}
        v_mul_u32_u24 v{vWZ}, {CV_UP}, v{vWZ}
        v_and_b32 v{c}, 15, v{vL}
        v_lshl_add_u32 v{vWZ}, v{c}, 4, v{vWZ}
        v_add_u32 v{vWZ}, s{sUB}, v{vWZ}
        v_and_b32 v{vWP}, 7, v{vL}
        v_xor_b32 v{vWP}, 4, v{vWP}
        v_mul_u32_u24 v{vWP}, {CV_UP}, v{vWP}
        v_lshrrev_b32 v{c+5}, 3, v{vL}
        v_lshlrev_b32 v{c+5}, 4, v{c+5}
        v_sub_u32 v{vWP}, v{vWP}, v{c+5}
        s_lshl_b32 s{sT0}, s{sHF}, 8
        s_sub_u32 s{sT0}, s{sUB}, s{sT0}
        s_add_u32 s{sT0}, s{sT0}, {(47-8)*16}
        v_add_u32 v{vWP}, s{sT0}, v{vWP}
        v_mul_u32_u24 v{vBA}, {CV_UP}, v{c+4}
        v_lshl_add_u32 v{vBA}, v{c}, 4, v{vBA}
        v_add_u32 v{vBA}, s{sUB}, v{vBA}
        v_sub_u32 v{vKA}, 3, v{c+4}
        v_mul_u32_u24 v{vKA}, {CV_UP}, v{vKA}
        v_lshl_add_u32 v{vKA}, v{c}, 4, v{vKA}
        v_add_u32 v{vKA}, s{sUB}, v{vKA}
        v_lshlrev_b32 v{vTA}, 7, v{c}
        v_lshl_add_u32 v{vTA}, v{c+4}, 4, v{vTA}
        v_lshrrev_b32 v{c}, 2, v{c}
        v_add_u32 v{c}, v{c}, v{c+4}
        v_lshlrev_b32 v{c}, 4, v{c}
        v_add_u32 v{c}, s{sAB}, v{c}
        v_and_b32 v{c+4}, 3, v{vL}
        v_mul_u32_u24 v{vAA}, {CV_ST}, v{c+4}
        v_add_u32 v{vAA}, v{vAA}, v{c}
        s_lshl_b32 s{sT0}, s{sHF}, 12
        s_add_u32 s{sT1}, s{sT0}, s{sAB}
        v_add_u32 v{vEXW}, s{sT1}, v{vLB}
        s_xor_b32 s{sT0}, s{sT0}, 4096
        s_add_u32 s{sT1}, s{sT0}, s{sAB}
        v_add_u32 v{vEXR}, s{sT1}, v{vLB}
        s_lshl_b32 s{sT0}, s{sCHL}, 5
        s_add_u32 s{sT0}, s{sT0}, {L_FLAG}
        v_mov_b32 v{vFL}, s{sT0}
        s_lshr_b32 s{sT1}, s2, 5
        v_lshl_add_u32 v{c+2}, v{vL}, 3, s{sT1}
        s_lshl_b32 s{sT0}, s{sRB}, 1
        s_add_u32 s{sT0}, s{sT0}, {256 - 32}
        v_add_u32 v{c+3}, s{sT0}, v{vL}
        v_cmp_le_u32 vcc, 32, v{vL}
        s_sub_u32 s{sT1}, s{sCB}, {34*14 - 288}
        v_mul_u32_u24 v{c}, 14, v{vL}
        v_cndmask_b32 v{c+2}, v{c+2}, v{c+3}, vcc
        v_add_u32 v{c+3}, s{sT1}, v{c}
        v_cmp_le_u32 vcc, 34, v{vL}
        v_mov_b32 v{c}, s{sE}
        v_add_u32 v{c}, 256, v{c}
        s_lshl_b32 s{sT1}, s{sCQ}, 24
        v_cndmask_b32 v{c+2}, v{c+2}, v{c+3}, vcc
        v_cmp_le_u32 vcc, 36, v{vL}
        s_add_u32 s{sT1}, s{sT1}, {WS_FLU}
        s_nop 0
        v_cndmask_b32 v{c+2}, v{c+2}, v{c}, vcc
        v_lshl_add_u32 v{vPA}, v{c+2}, 7, s{sT1}
        """)

    def signal():
        L = newlabel("NOSIG")
        a(f"""
        s_cmp_lg_u32 s{sCQ}, 0
        s_cbranch_scc1 {L}
        s_lshl_b32 s{sT0}, s{sE}, 3
        s_add_u32 s{sT0}, s{sT0}, s{sG2C}
        s_lshl_b32 s{sT0}, s{sT0}, 7
        s_add_u32 s{sT0}, s{sT0}, {WS_FLU}
        s_mov_b64 exec, 1
        buffer_store_dword v{vONE}, v{vZ}, {sr(R_WS,4)}, s{sT0} offen sc1
        s_mov_b64 exec, -1
        """)
        a.label(L)

    def chunk_build():
        a.vm_wait("D")
        for rnd in range(3):
            d, b = vD + 8 * rnd, vBLD + 12 * rnd
            for i in range(4):
                a(f"v_mov_b32 v{b+i}, v{d+1+i}")
            for i in range(4):
                a(f"v_alignbit_b32 v{b+4+i}, v{d+i+1}, v{d+i}, 16")
            for i in range(4):
                a(f"v_alignbit_b32 v{b+8+i}, v{d+i+2}, v{d+i+1}, 16")

    def poll_block():
        L = newlabel("NOPOLL")
        a.vm_wait("P0")
        if PROF and os.environ.get("VCCD"):
            a(f"v_cmp_ne_u32 vcc, v{vONE}, v{vPOLL}")
            a("s_nop 4")
            a(f"s_add_u32 s{72+2*a.nst}, s72, vcc_lo")
            a.nst += 1
            a(f"s_add_u32 s{72+2*a.nst}, s72, vcc_hi")
            a.nst += 1
        a(f"s_cmp_lg_u32 s{sCQ}, 0")
        a(f"s_cbranch_scc1 {L}")
        gpoll(a, vPA, "BP", True)
        a.label(L)

    chunk_conv_setup()
    a("s_barrier")
    chunk_store_stats()
    a(f"s_lshl_b32 s{sT0}, s{sCQ}, 12")
    tagl()
    if 2 not in GDMA:
        dma(a, 2)
    CSST = int(os.environ.get("CSST", 5))
    KV0 = int(os.environ.get("KV0", 0))
    SIG = int(os.environ.get("SIG", 2))
    for st in range(7):
        if st == 0:
            tag_block()
        if st == 1:
            a(f"v_mov_b32 v{t}, {USCR+8192}")
            a(f"ds_read_b32 v{vONE}, v{t}")
        if st == SIG + 1:
            signal()
        if st == 4:
            chunk_build()
        if st == 6 and KVE:
            a.vmem(f"buffer_load_dwordx4 {vr(vU,4)}, v{vKVA}, {sr(R_WS,4)}, 0 offen sc1", "U")
            a.vmem(f"buffer_load_dwordx4 {vr(vU+4,4)}, v{vKVA}, {sr(R_WS,4)}, 0 offen offset:1024 sc1", "U")
        a("s_waitcnt lgkmcnt(0)")
        if st + 1 < 7:
            a.vm_wait(f"A{st+1}")
        if st == SIG:
            a.vm_wait("US")
        if st == CSST:
            if PE:
                a.vm_wait("P0")
            L = newlabel("NOCS")
            a(f"s_cmp_lg_u32 s{sCQ}, 0")
            a(f"s_cbranch_scc1 {L}")
            if not KVE:
                a("s_mov_b32 exec_lo, 0")
            gpoll(a, vPA, "BC", PE, 4)
            a("s_mov_b64 exec, -1")
            a.label(L)
        a("s_barrier")
        if st == CSST - 1 and PE:
            a.vmem(f"buffer_load_dword v{vPOLL}, v{vPA}, {sr(R_WS,4)}, 0 offen sc1", "P0")
        if st + 3 < 7 and st + 3 not in GDMA:
            dma(a, st + 3)
        if st in (3, 6) or STM:
            a.stamp()
    if os.environ.get("CPRIO"):
        a(f"s_setprio {os.environ['CPRIO']}")
    for rnd in range(3):
        d, b = vD + 8 * rnd, vBLD + 12 * rnd
        if rnd == 2:
            a("s_mov_b64 exec, 15")
        srcs = [b + 4, b, b + 8, d + 2]
        for cc in range(4):
            a(f"ds_write_b128 v{vWX if rnd == 2 else vWM}, {vr(srcs[cc],4)} offset:{cc*CV_ST + (0 if rnd == 2 else 64 + 1024*rnd)}")
        if rnd == 2:
            a("s_mov_b64 exec, -1")
    a(f"ds_write_b128 v{vWZ}, {vr(vBLD+36,4)}")
    if not KVE:
        Lk = newlabel("NOKV")
        a(f"v_mov_b32 v{t+1}, {L_FLAG + 112}")
        a(f"s_cmp_lg_u32 s{sCQ}, 0")
        a(f"s_cbranch_scc1 {Lk}")
        gpoll(a, vPA, "BK", False, 16)
        a(f"ds_write_b32 v{t+1}, v{vONE}")
        a.label(Lk)
        lds_wait_flag(a, t + 1, 0, t, "BKW", sleep=True)
        a.vm = []
        a.vmem(f"buffer_load_dwordx4 {vr(vU,4)}, v{vKVA}, {sr(R_WS,4)}, 0 offen sc1", "U")
        a.vmem(f"buffer_load_dwordx4 {vr(vU+4,4)}, v{vKVA}, {sr(R_WS,4)}, 0 offen offset:1024 sc1", "U")
    a.vm_wait("U")
    a(f"ds_write_b128 v{vWP}, {vr(vU,4)} offset:128")
    a(f"ds_write_b128 v{vWP}, {vr(vU+4,4)}")
    a("s_waitcnt lgkmcnt(0)")
    a(f"s_cmp_eq_u32 s{sHF}, 1")
    a("s_cbranch_scc1 C_HALF1")
    vF, vB, vAC = 32, 68, 100
    nst_save = a.nst
    for half in range(2):
        if half:
            a.label("C_HALF1")
            a.nst = nst_save
        own, oth = half, half ^ 1
        a(f"ds_write_b32 v{vFL}, v{vONE} offset:{4*own}")
        lds_wait_flag(a, vFL, 4 * oth, t, "CR")
        a.stamp()

        def F(psi):
            return vF + 6 * (psi % 6)

        def rdA(psi):
            off = 4 * psi * 16
            a(f"ds_read_b128 {vr(F(psi),4)}, v{vAA} offset:{off}")
            a(f"ds_read_b64 {vr(F(psi)+4,2)}, v{vAA} offset:{off+16}")
            return 2

        def nus(dl):
            return (0, 1) if dl < 16 else (1,)

        def rdB(dl):
            n = 0
            for kc in range(2):
                for nu in nus(dl):
                    a(f"ds_read_b128 {vr(vB+16*(dl&1)+8*kc+4*nu,4)}, v{vBA} offset:{kc*4*CV_UP+(16+16*nu-dl)*16}")
                    n += 1
            return n

        dls = list(range(0, 12)) if half == 0 else list(range(12, 32))
        if os.environ.get("NOCONV"):
            dls = dls[:2]
        if half:
            rdA(2 * dls[0] - 1)
        rdA(2 * dls[0]); rdA(2 * dls[0] + 1); rdB(dls[0])
        inited = set()
        for dl in dls:
            n = 0
            if dl != dls[-1]:
                n += rdA(2 * dl + 2); n += rdA(2 * dl + 3); n += rdB(dl + 1)
            a(f"s_waitcnt lgkmcnt({n})")
            for kc in range(2):
                for p in range(2):
                    psi = 2 * dl + p - kc
                    if psi < 0:
                        continue
                    for par in range(2):
                        for nu in nus(dl):
                            acc = vAC + 16 * nu + 8 * p + 4 * par
                            csrc = vr(acc, 4) if acc in inited else "0"
                            inited.add(acc)
                            a(f"v_mfma_f32_16x16x32_bf16 {vr(acc,4)}, {vr(F(psi)+2*par,4)}, {vr(vB+16*(dl&1)+8*kc+4*nu,4)}, {csrc}")
        a.stamp()
        a(f"ds_write_b32 v{vFL}, v{vONE} offset:{8+4*own}")
        a(f"ds_read_b128 {vr(vU,4)}, v{vKA} offset:{(16+16*own)*16}")
        a(f"ds_read_b128 {vr(vU+4,4)}, v{vKA} offset:{4*CV_UP+(16+16*own)*16}")
        a(f"""
        s_lshl_b32 s{sT0}, s{sCH}, 12
        s_add_u32 s{sT0}, s{sT0}, {WS_T + own*2048}
        s_lshl_b32 s{sT1}, s{sCHL}, 4
        s_lshr_b32 s{sD}, s{sD}, s{sT1}
        s_lshl_b32 s{sD}, s{sD}, 16
        s_lshl_b32 s{sTMP}, s{sCH}, 7
        s_add_u32 s{sTMP}, s{sTMP}, {WS_FLT + own*448*128}
        """)
        lds_wait_flag(a, vFL, 8 + 4 * oth, t, "CD")
        for q in range(4):
            a(f"ds_write_b128 v{vEXW}, {vr(vAC+16*oth+4*q,4)} offset:{1024*q}")
        a("s_waitcnt lgkmcnt(0)")
        a(f"ds_write_b32 v{vFL}, v{vONE} offset:{16+4*own}")
        vK = vF
        for p in range(2):
            for dq in range(4):
                a(f"v_lshlrev_b32 v{vK+8*p+7-2*dq}, 16, v{vU+4*p+dq}")
                a(f"v_and_b32 v{vK+8*p+6-2*dq}, 0xffff0000, v{vU+4*p+dq}")
        for i in range(16):
            a(f"v_mul_f32 v{vK+i}, s{sD}, v{vK+i}")
        for i in range(8):
            round_pair(a, vK + 2 * i, vK + 2 * i + 1)
        lds_wait_flag(a, vFL, 16 + 4 * oth, t, "CX")
        vR = vB
        for q in range(4):
            a(f"ds_read_b128 {vr(vR+4*q,4)}, v{vEXR} offset:{1024*q}")
        a("s_waitcnt lgkmcnt(0)")
        y = vAC + 16 * own
        for i in range(8):
            a(f"v_pk_add_f32 {vr(y+2*i,2)}, {vr(y+2*i,2)}, {vr(vR+2*i,2)}")
        for i in range(8):
            round_pair(a, y + 2 * i, y + 2 * i + 1)
        for i in range(8):
            a(f"v_pk_add_f32 {vr(y+2*i,2)}, {vr(y+2*i,2)}, {vr(vK+2*i,2)}")
        for i in range(8):
            a(f"v_cvt_pk_bf16_f32 v{vB+16+i}, v{y+2*i}, v{y+2*i+1}")
        a(f"buffer_store_dwordx4 {vr(vB+16,4)}, v{vTA}, {sr(R_WS,4)}, s{sT0} offen sc1")
        a(f"buffer_store_dwordx4 {vr(vB+20,4)}, v{vTA}, {sr(R_WS,4)}, s{sT0} offen offset:64 sc1")
        a.stamp()
        if half == 0:
            a("s_branch B_FINAL")
    a.label("B_FINAL")
    b_final(a)


def b_final(a):
    t = 12
    vXO, vF_, vTG, vTW, vTR, vRR, vST2 = 7, 8, 9, 10, 11, 25, 26
    sT2 = sW2
    srd(a, R_O, S_OUT, SZ_X)
    a(f"""
    s_lshl_b32 s{sT0}, s{sE}, 6
    s_lshl_b32 s{sT1}, s{sCHL}, 5
    s_add_u32 s{sT0}, s{sT0}, s{sT1}
    v_and_b32 v{t}, 31, v{vL}
    v_add_u32 v{t+1}, s{sT0}, v{t}
    v_lshlrev_b32 v{t+2}, 3, v{t+1}
    v_add_u32 v{t+2}, {WS_STATS}, v{t+2}
    v_mul_u32_u24 v{vXO}, 896, v{t+1}
    v_lshrrev_b32 v{t+3}, 5, v{vL}
    v_lshl_add_u32 v{vXO}, v{t+3}, 3, v{vXO}
    s_lshl_b32 s{sXO}, s{sG2C}, 6
    s_lshl_b32 s{sT1}, s{sHF}, 5
    s_add_u32 s{sXO}, s{sXO}, s{sT1}
    s_lshl_b32 s{sT1}, s{sXO}, 1
    v_add_u32 v{vXO}, s{sT1}, v{vXO}
    s_lshl_b32 s{sWO}, s{sT0}, 1
    s_add_u32 s{sWO}, s{sWO}, {WS_T}
    s_add_u32 s{sT2}, s{sWO}, {16*4096}
    s_lshr_b32 s{sT0}, s{sE}, 4
    s_mul_i32 s{sT0}, s{sT0}, 448
    s_add_u32 s{sT0}, s{sT0}, s{sXO}
    s_lshl_b32 s{sT0}, s{sT0}, 7
    s_add_u32 s{sT0}, s{sT0}, {WS_FLT}
    v_lshl_add_u32 v{vF_}, v{t}, 7, s{sT0}
    v_lshrrev_b32 v{t}, 2, v{vL}
    v_add_u32 v{t}, s{sXO}, v{t}
    v_lshlrev_b32 v{t}, 12, v{t}
    v_and_b32 v{t+1}, 3, v{vL}
    v_lshl_add_u32 v{vTG}, v{t+1}, 4, v{t}
    s_lshl_b32 s{sT1}, s{sHF}, 11
    s_add_u32 s{sT1}, s{sT1}, s{sAB}
    s_add_u32 s{sT1}, s{sT1}, 8192
    v_add_u32 v{vTW}, s{sT1}, v{vLB}
    v_bfe_u32 v{t}, v{vL}, 2, 2
    v_lshl_add_u32 v{t}, v{t+3}, 2, v{t}
    v_lshlrev_b32 v{t}, 6, v{t}
    v_bfe_u32 v{t+4}, v{vL}, 4, 1
    v_lshl_add_u32 v{t}, v{t+4}, 5, v{t}
    v_lshl_add_u32 v{t}, v{t+1}, 3, v{t}
    v_add_u32 v{vTR}, s{sT1}, v{t}
    s_lshl_b32 s{sT1}, s{sCQ}, 14
    s_add_u32 s{sT1}, s{sT1}, {WENT[0]}
    v_add_u32 v{vRR}, s{sT1}, v{vLB}
    v_lshlrev_b32 v{t+4}, 2, v{t+1}
    v_add_u32 v{t+4}, {L_FLAG + 64}, v{t+4}
    s_waitcnt vmcnt(0)
    s_mov_b64 exec, 1
    buffer_store_dword v{vONE}, v{vZ}, {sr(R_WS,4)}, s{sTMP} offen sc1
    s_mov_b64 exec, -1
    """)
    a.stamp()
    vXV, vTT, vTD = 28, 36, 44
    vX, vXN, vP, vE, vS = 52, 68, 84, 148, 164
    for i in range(4):
        a(f"buffer_load_dwordx2 {vr(vXV+2*i,2)}, v{vXO}, {sr(R_X,4)}, 0 offen offset:{16*i}")
    a(f"buffer_load_dwordx2 {vr(vST2,2)}, v{t+2}, {sr(R_WS,4)}, 0 offen sc1")
    lds_wait_flag(a, t + 4, 16, t + 3, "TG", sleep=True)
    gpoll(a, vF_, "BT", False, 8)
    a(f"buffer_load_dwordx4 {vr(vTT,4)}, v{vTG}, {sr(R_WS,4)}, s{sWO} offen sc1")
    a(f"buffer_load_dwordx4 {vr(vTT+4,4)}, v{vTG}, {sr(R_WS,4)}, s{sT2} offen sc1")
    a.stamp()
    for i in range(8):
        a(f"v_lshlrev_b32 v{vX+2*i}, 16, v{vXV+i}")
        a(f"v_and_b32 v{vX+2*i+1}, 0xffff0000, v{vXV+i}")
    for i in range(16):
        a(f"v_sub_f32 v{vXN+i}, v{vX+i}, v{vST2}")
    for i in range(8):
        round_pair(a, vXN + 2 * i, vXN + 2 * i + 1)
    for i in range(16):
        a(f"v_mul_f32 v{vXN+i}, v{vXN+i}, v{vST2+1}")
    for i in range(8):
        round_pair(a, vXN + 2 * i, vXN + 2 * i + 1)
    a("s_waitcnt vmcnt(0)")
    a(f"ds_write_b128 v{vTW}, {vr(vTT,4)}")
    a(f"ds_write_b128 v{vTW}, {vr(vTT+4,4)} offset:1024")
    a("s_waitcnt lgkmcnt(0)")
    for i in range(4):
        a(f"ds_read_b64_tr_b16 {vr(vTD+2*i,2)}, v{vTR} offset:{512*i}")
    a("s_waitcnt lgkmcnt(0)")
    for i in range(8):
        a(f"v_lshlrev_b32 v{vS+2*i}, 16, v{vTD+i}")
        a(f"v_and_b32 v{vS+2*i+1}, 0xffff0000, v{vTD+i}")
    for i in range(8):
        a(f"v_pk_mul_f32 {vr(vS+2*i,2)}, {vr(vS+2*i,2)}, {vr(vXN+2*i,2)}")
    for i in range(8):
        round_pair(a, vS + 2 * i, vS + 2 * i + 1)
    a(f"s_mov_b32 s{sW2}, {f32bits(-1.4426950408889634)}")
    a.stamp()
    lds_wait_flag(a, t + 4, 0, t + 3, "GR", sleep=True)
    a.stamp()
    for src in range(4):
        for q in range(4):
            a(f"ds_read_b128 {vr(vP+16*src+4*q,4)}, v{vRR} offset:{src*4096+q*1024}")
    a("s_waitcnt lgkmcnt(8)")
    for i in range(8):
        a(f"v_pk_add_f32 {vr(vP+2*i,2)}, {vr(vP+2*i,2)}, {vr(vP+16+2*i,2)}")
    a("s_waitcnt lgkmcnt(0)")
    for i in range(8):
        a(f"v_pk_add_f32 {vr(vP+32+2*i,2)}, {vr(vP+32+2*i,2)}, {vr(vP+48+2*i,2)}")
    for i in range(8):
        a(f"v_pk_add_f32 {vr(vP+2*i,2)}, {vr(vP+2*i,2)}, {vr(vP+32+2*i,2)}")
    for i in range(8):
        round_pair(a, vP + 2 * i, vP + 2 * i + 1)
    for i in range(16):
        a(f"v_mul_f32 v{vE+i}, s{sW2}, v{vP+i}")
    for i in range(16):
        a(f"v_exp_f32 v{vE+i}, v{vE+i}")
    for i in range(16):
        a(f"v_add_f32 v{vE+i}, 1.0, v{vE+i}")
    for i in range(16):
        a(f"v_rcp_f32 v{vE+i}, v{vE+i}")
    a("s_nop 0")
    for i in range(8):
        a(f"v_pk_mul_f32 {vr(vP+2*i,2)}, {vr(vP+2*i,2)}, {vr(vE+2*i,2)}")
    for i in range(8):
        round_pair(a, vP + 2 * i, vP + 2 * i + 1)
    for i in range(8):
        a(f"v_pk_mul_f32 {vr(vS+2*i,2)}, {vr(vS+2*i,2)}, {vr(vP+2*i,2)}")
    for i in range(8):
        round_pair(a, vS + 2 * i, vS + 2 * i + 1)
    for i in range(8):
        a(f"v_pk_add_f32 {vr(vS+2*i,2)}, {vr(vS+2*i,2)}, {vr(vX+2*i,2)}")
    for i in range(8):
        a(f"v_cvt_pk_bf16_f32 v{vTT+i}, v{vS+2*i}, v{vS+2*i+1}")
    for i in range(4):
        a(f"buffer_store_dwordx2 {vr(vTT+2*i,2)}, v{vXO}, {sr(R_O,4)}, 0 offen offset:{16*i}")
    if PROF:
        a("s_waitcnt vmcnt(0)")
    a.stamp()
    a.stamp_flush()
    a("s_endpgm")


def role_prep2(a):
    R_K, R_V, R_SH = 76, 80, 84
    sB = 4
    vTID = 0
    vTB, vCG = 3, 4
    vO0, vO1, vOH, vOS = 5, 6, 7, 8
    t = 9
    vXS, vWC, vKR, vVR, vSH, vCA = 24, 52, 108, 152, 184, 120
    a(f"""
    s_sub_u32 s{sB}, s2, 224
    s_and_b32 s7, s{sB}, 3
    s_lshr_b32 s8, s{sB}, 3
    s_bfe_u32 s9, s{sB}, 0x10002
    s_lshl_b32 s12, s7, 3
    s_lshl_b32 s13, s9, 2
    s_add_u32 s12, s12, s13
    s_add_u32 s12, s12, s8
    s_lshl_b32 s13, s7, 2
    s_add_u32 s13, s13, s8
    s_mul_i32 s9, s9, 7
    s_cmp_ge_u32 s13, 7
    s_cselect_b32 s7, 7, 0
    s_add_u32 s9, s9, s7
    s_add_u32 s9, s9, s13
    s_cmp_ge_u32 s13, 14
    s_cselect_b32 s13, 28, s9
    s_lshl_b32 s5, s12, 6
    v_lshrrev_b32 v{t}, 3, v{vTID}
    v_add_u32 v{t+1}, s5, v{t}
    v_mul_u32_u24 v{t+1}, 896, v{t+1}
    v_and_b32 v{t+2}, 7, v{vTID}
    v_lshl_add_u32 v{t+1}, v{t+2}, 4, v{t+1}
    s_cmp_ge_u32 s13, 14
    s_cselect_b32 s6, 14, 0
    s_sub_u32 s6, s13, s6
    v_lshrrev_b32 v{t+3}, 4, v{vTID}
    v_mul_u32_u24 v{t+3}, 3584, v{t+3}
    v_and_b32 v{t+4}, 15, v{vTID}
    v_lshl_add_u32 v{t+3}, v{t+4}, 4, v{t+3}
    s_lshl_b32 s9, s6, 8
    v_mov_b32 v{vZ}, 0
    s_waitcnt lgkmcnt(0)
    s_cmp_ge_u32 s13, 14
    s_cselect_b32 s{R_W}, s{S_WU}, s{S_WG}
    s_cselect_b32 s{R_W+1}, s{S_WU+1}, s{S_WG+1}
    s_and_b32 s{R_W+1}, s{R_W+1}, 0xffff
    s_mov_b32 s{R_W+2}, {SZ_W}
    s_mov_b32 s{R_W+3}, 0x20000
    s_cmp_ge_u32 s13, 28
    s_cselect_b32 s{R_W+2}, 0, s{R_W+2}
    """)
    srd(a, R_X, S_X, SZ_X)
    srd(a, R_DBG, S_DBG, 256)
    a(f"""
    s_add_u32 s{sT0}, s{sB}, s3
    s_cmp_lg_u32 s{sT0}, 0
    s_cbranch_scc1 P_NOTAG
    s_memrealtime s[{sSP}:{sSP+1}]
    s_waitcnt lgkmcnt(0)
    s_lshl_b32 s{sSP+1}, s{sSP+1}, 29
    s_xor_b32 s{sSP}, s{sSP}, s{sSP+1}
    s_or_b32 s{sSP}, s{sSP}, 1
    v_mov_b32 v{vONE}, s{sSP}
    s_mov_b64 exec, 1
    buffer_store_dword v{vONE}, v{vZ}, {sr(R_DBG,4)}, 0 offen sc1
    s_mov_b64 exec, -1
    """)
    a.label("P_NOTAG")
    for i in range(14):
        a.vmem(f"buffer_load_dwordx4 {vr(vWC+4*i,4)}, v{t+3}, {sr(R_W,4)}, s9 offen", f"C{i}")
        if i < 13:
            a(f"s_add_u32 s9, s9, {32*3584}")
    for i in range(7):
        a.vmem(f"buffer_load_dwordx4 {vr(vXS+4*i,4)}, v{t+1}, {sr(R_X,4)}, 0 offen offset:{128*i}", "X")
    a(f"""
    v_mul_u32_u24 v{vTB}, 1171, v{vTID}
    v_lshrrev_b32 v{vTB}, 16, v{vTB}
    v_mul_u32_u24 v{vCG}, 56, v{vTB}
    v_sub_u32 v{vCG}, v{vTID}, v{vCG}
    v_lshl_add_u32 v{vO0}, v{vTB}, 3, s5
    v_mul_u32_u24 v{vO0}, 896, v{vO0}
    v_lshl_add_u32 v{vO0}, v{vCG}, 4, v{vO0}
    v_add_u32 v{vO1}, {4*896}, v{vO0}
    v_subrev_u32 v{vOH}, {3*896}, v{vO0}
    v_lshlrev_b32 v{vOS}, 6, v{vCG}
    """)
    srd(a, R_K, S_K, SZ_X)
    srd(a, R_V, S_V, SZ_X)
    srd(a, R_SH, S_SHK, SZ_SHK)
    srd(a, R_WS, S_WS, WS_END)
    for i in range(8):
        a(f"v_mov_b32 v{vCA+i}, 0")
    vUP = 108
    kvl = []
    for i in range(14):
        a.vm_wait(f"C{i}")
        if i == 0:
            a.stamp()
        for d in range(4):
            a(f"v_lshlrev_b32 v{vUP+2*d}, 16, v{vWC+4*i+d}")
            a(f"v_and_b32 v{vUP+2*d+1}, 0xffff0000, v{vWC+4*i+d}")
        for d in range(4):
            a(f"v_pk_add_f32 {vr(vCA+2*d,2)}, {vr(vCA+2*d,2)}, {vr(vUP+2*d,2)}")
        for _ in range(2):
            if kvl:
                a.vmem(kvl.pop(0), "KV")
    a(f"""
    v_lshlrev_b32 v{t+5}, 5, v{vTID}
    v_add_u32 v{t+5}, 65536, v{t+5}
    ds_write_b128 v{t+5}, {vr(vCA,4)}
    ds_write_b128 v{t+5}, {vr(vCA+4,4)} offset:16
    """)
    vS1, vS2, vON = t + 5, t + 6, t + 4
    a(f"v_mov_b32 v{vS1}, 0")
    a(f"v_mov_b32 v{vS2}, 0")
    a(f"v_mov_b32 v{vON}, 0x3f803f80")
    a.vm_wait("X")
    for i in range(28):
        a(f"v_dot2c_f32_bf16 v{vS1}, v{vXS+i}, v{vON}")
        a(f"v_dot2c_f32_bf16 v{vS2}, v{vXS+i}, v{vXS+i}")
    a("s_nop 3")
    for mode in ("quad_perm:[1,0,3,2]", "quad_perm:[2,3,0,1]", "row_half_mirror"):
        a(f"v_add_f32_dpp v{vS1}, v{vS1}, v{vS1} {mode} row_mask:0xf bank_mask:0xf")
        a(f"v_add_f32_dpp v{vS2}, v{vS2}, v{vS2} {mode} row_mask:0xf bank_mask:0xf")
        a("s_nop 1")
    a(f"""
    s_mov_b32 s8, {f32bits(1.0/448.0)}
    s_mov_b32 s9, {f32bits(1e-5)}
    v_mul_f32 v{vS1}, s8, v{vS1}
    v_mul_f32 v{vS2}, s8, v{vS2}
    v_fma_f32 v{vS2}, -v{vS1}, v{vS1}, v{vS2}
    v_max_f32 v{vS2}, 0, v{vS2}
    v_cvt_pk_bf16_f32 v{vS2}, v{vS1}, v{vS2}
    v_lshlrev_b32 v{vXS}, 16, v{vS2}
    v_and_b32 v{vS2}, 0xffff0000, v{vS2}
    v_add_f32 v{vS2}, s9, v{vS2}
    v_cvt_pk_bf16_f32 v{vS2}, v{vS2}, v{vS2}
    v_and_b32 v{vS2}, 0xffff0000, v{vS2}
    v_sqrt_f32 v{vS2}, v{vS2}
    s_nop 0
    v_cvt_pk_bf16_f32 v{vS2}, v{vS2}, v{vS2}
    v_and_b32 v{vS2}, 0xffff0000, v{vS2}
    v_rcp_f32 v{vXS+1}, v{vS2}
    v_lshlrev_b32 v{t}, 3, v{t}
    v_add_u32 v{t}, 98304, v{t}
    ds_write_b64 v{t}, {vr(vXS,2)}
    s_waitcnt lgkmcnt(0)
    s_barrier
    s_cmp_lg_u32 s3, 7
    s_cbranch_scc1 P_KV
    s_setprio 3
    s_waitcnt vmcnt(0)
    """)
    a(f"""
    buffer_load_dword v{vONE}, v{vZ}, {sr(R_DBG,4)}, 0 offen sc1
    v_lshlrev_b32 v{t+1}, 3, v{vL}
    v_add_u32 v{t+2}, 65536, v{t+1}
    v_add_u32 v{t+3}, 98304, v{t+1}
    ds_read_b64 {vr(vXS,2)}, v{t+3}
    """)
    for i in range(32):
        a(f"ds_read_b64 {vr(vWC+2*i,2)}, v{t+2} offset:{512*i}")
    a(f"""
    s_lshl_b32 s7, s12, 9
    s_add_u32 s7, s7, {WS_STATS}
    v_lshrrev_b32 v{t+2}, 3, v{vL}
    v_lshlrev_b32 v{t+2}, 7, v{t+2}
    v_and_b32 v{t+3}, 7, v{vL}
    v_lshl_add_u32 v{t+2}, v{t+3}, 3, v{t+2}
    s_lshl_b32 s8, s6, 10
    s_cmp_ge_u32 s13, 14
    s_cselect_b32 s9, 64, 0
    s_add_u32 s8, s8, s9
    s_add_u32 s8, s8, {WS_CS}
    s_cmp_ge_u32 s13, 28
    s_cselect_b32 s8, 0x7f000000, s8
    s_waitcnt lgkmcnt(0)
    buffer_store_dwordx2 {vr(vXS,2)}, v{t+1}, {sr(R_WS,4)}, s7 offen sc1
    """)
    n = 32
    while n > 1:
        n //= 2
        for i in range(n):
            a(f"v_pk_add_f32 {vr(vWC+2*i,2)}, {vr(vWC+2*i,2)}, {vr(vWC+2*(i+n),2)}")
    a(f"""
    buffer_store_dwordx2 {vr(vWC,2)}, v{t+2}, {sr(R_WS,4)}, s8 offen sc1
    s_mov_b32 s{sSP}, 0
    """)
    a.label("P_TAGL")
    a(f"""
    s_waitcnt vmcnt(0)
    v_readfirstlane_b32 s{sSP+1}, v{vONE}
    s_add_u32 s{sSP}, s{sSP}, 1
    s_cmp_gt_u32 s{sSP}, 0x4000
    s_cbranch_scc1 P_TAGOK
    s_cmp_lg_u32 s{sSP+1}, 0
    s_cbranch_scc1 P_TAGOK
    s_sleep 4
    buffer_load_dword v{vONE}, v{vZ}, {sr(R_DBG,4)}, 0 offen sc1
    s_branch P_TAGL
    """)
    a.label("P_TAGOK")
    a(f"""
    s_lshl_b32 s7, s12, 7
    s_add_u32 s7, s7, {WS_FLU + 256*128}
    s_lshl_b32 s8, s13, 7
    s_add_u32 s8, s8, {WS_FLU + 288*128}
    s_mov_b64 exec, 1
    buffer_store_dword v{vONE}, v{vZ}, {sr(R_WS,4)}, s7 offen sc1
    buffer_store_dword v{vONE}, v{vZ}, {sr(R_WS,4)}, s8 offen sc1
    s_mov_b64 exec, -1
    """)
    a.stamp()
    a.label("P_KV")
    a("s_barrier")
    if int(os.environ.get("WPF3", 1)):
        srd(a, R_WD, S_WD, SZ_W)
        a(f"""
        s_lshr_b32 s5, s{sB}, 3
        s_mul_i32 s5, s5, 401408
        s_add_u32 s9, s5, 200704
        v_lshlrev_b32 v{t}, 7, v{vTID}
        """)
        for i in range(7):
            off = i * 65536
            a(f"s_add_u32 s8, s5, {off}")
            if i == 6:
                a(f"v_cmp_gt_u32 vcc, {(401408 - off)//128}, v{vTID}")
                a("s_and_saveexec_b64 s[10:11], vcc")
                a("s_cbranch_execz P_PF1")
            a(f"buffer_load_dword v{t+1}, v{t}, {sr(R_WD,4)}, s8 offen")
            if i == 6:
                a.label("P_PF1")
                a("s_mov_b64 exec, s[10:11]")
    a.stamp_flush()
    a("s_endpgm")


def gen(a):
    a.lines.append(f".globl {KNAME}\n.p2align 8\n.type {KNAME},@function")
    a.label(KNAME)
    a("s_cmp_ge_u32 s2, 256")
    a("s_cbranch_scc1 K_END")
    if int(os.environ.get("REMAP", 1)):
        a("s_add_u32 s2, s2, 224")
        a("s_and_b32 s2, s2, 255")
    a.stamp()
    a("""
    s_load_dwordx16 s[16:31], s[0:1], 0
    s_load_dwordx8 s[32:39], s[0:1], 64
    s_load_dwordx2 s[40:41], s[0:1], 96
    v_lshrrev_b32 v1, 6, v0
    v_and_b32 v2, 63, v0
    s_nop 0
    v_readfirstlane_b32 s3, v1
    s_cmp_ge_u32 s2, 224
    s_cbranch_scc1 K_PREP
    """)
    wg_map(a)
    dma_setup(a, 12)
    a("s_cmp_ge_u32 s3, 4")
    a("s_cbranch_scc1 K_B")
    role_g(a)
    a.label("K_B")
    a.vm, a.nst = [], 1
    role_b(a)
    a.label("K_PREP")
    a.vm, a.nst = [], 1
    role_prep2(a)
    a.label("K_END")
    a("s_endpgm")


def main():
    HEADER = open("cdna_kernels/" + NAME + ".s.ref").read().split("; Override launch")[0]
    a = Asm()
    gen(a)
    out = HEADER
    out += f"; @launch grid=(256,1,1) block=(512,1,1) lds={LDS_BYTES}\n"
    out += '.amdgcn_target "amdgcn-amd-amdhsa--gfx950"\n.text\n'
    out += a.text()
    out += '.section .rodata,"a"\n.p2align 6\n'
    out += descriptor(KNAME, 256, 102)
    path = sys.argv[1] if len(sys.argv) > 1 else "cdna_kernels/" + NAME + ".s"
    open(path, "w").write(out)


if __name__ == "__main__":
    main()
```
